```python
import torch

def _softmax(x, axis=-1):
    return torch.softmax(x, dim=axis)
def _gelu(x):
    return torch.nn.functional.gelu(x, approximate="tanh")
def _silu(x):
    return torch.nn.functional.silu(x)
def _sigmoid(x):
    return torch.sigmoid(x)
def _layernorm(x, axis=-1, eps=1e-5):
    m = x.mean(dim=axis, keepdim=True)
    v = x.var(dim=axis, keepdim=True, unbiased=False)
    return (x - m) / torch.sqrt(v + eps)
def _scatter_add(tgt, idx, src, axis=0):
    return tgt.clone().index_add_(axis, idx, src)
def _segment_sum(src, seg, n):
    out = torch.zeros((n,) + src.shape[1:], dtype=src.dtype)
    return out.index_add_(0, seg, src)
def _pad(x, pw):
    flat = tuple(v for pair in reversed(pw) for v in pair)
    return torch.nn.functional.pad(x, flat)

kernel_name = 'recurrent_scan__mha_block_cached__glu_gated_glu__decode'

def setup_inputs():

    _w = (lambda a: (lambda t: t.to(torch.bfloat16) if t.is_floating_point() else t)(torch.as_tensor(a)))
    def _A_setup():
        B, Sq, D = 1, 1, 512
        H, Sk, Dh = 32, 8192, 128
        return {
            "x": _w((lambda *s: torch.randn(*s, dtype=torch.bfloat16) * 0.05)(B, Sq, D)),
            "k_cache": _w((lambda *s: torch.randn(*s, dtype=torch.bfloat16) * 0.8)(B, H, Sk, Dh)),
            "v_cache": _w((lambda *s: torch.randn(*s, dtype=torch.bfloat16) * 0.8)(B, H, Sk, Dh)),
            "wq": _w((lambda *s: torch.randn(*s, dtype=torch.bfloat16) * 0.8)(D, H * Dh) * (D ** -0.5)),
            "wo": _w((lambda *s: torch.randn(*s, dtype=torch.bfloat16) * 0.8)(H * Dh, D) * ((H * Dh) ** -0.5)),
        }
    _A_in = _A_setup()

    def _B_setup():
        B, S, D, F = 1, 1, 512, 1376
        return {
            "x": _w((lambda *s: torch.randn(*s, dtype=torch.bfloat16) * 0.05)(B, S, D)),
            "w_gate": _w((lambda *s: torch.randn(*s, dtype=torch.bfloat16) * 0.8)(D, F)),
            "w_up": _w((lambda *s: torch.randn(*s, dtype=torch.bfloat16) * 0.2)(D, F)),
            "w_down": _w((lambda *s: torch.randn(*s, dtype=torch.bfloat16) * 0.2)(F, D)),
        }
    _B_in = _B_setup()

    return {
        "A_x": _A_in["x"],
        "A_k_cache": _A_in["k_cache"],
        "A_v_cache": _A_in["v_cache"],
        "A_wq": _A_in["wq"],
        "A_wo": _A_in["wo"],
        "B_x": _B_in["x"],
        "B_w_gate": _B_in["w_gate"],
        "B_w_up": _B_in["w_up"],
        "B_w_down": _B_in["w_down"],
    }

def reference(A_x, A_k_cache, A_v_cache, A_wq, A_wo, B_x, B_w_gate, B_w_up, B_w_down):
    def _A_ref(x, k_cache, v_cache, wq, wo):
        B, Sq, D = x.shape
        H, Dh = 32, 128
        q = (lambda x, *d: x.permute(*d))((x @ wq).reshape(B, Sq, H, Dh), 0, 2, 1, 3)
        scores = torch.einsum("bhqd,bhkd->bhqk", q, k_cache) * (Dh ** -0.5)
        p = _softmax(scores, axis=-1)
        o = torch.einsum("bhqk,bhkd->bhqd", p, v_cache)
        return (lambda x, *d: x.permute(*d))(o, 0, 2, 1, 3).reshape(B, Sq, H * Dh) @ wo

    def _B_ref(x, w_gate, w_up, w_down):
        g = torch.einsum("bsd,df->bsf", x, w_gate)
        u = torch.einsum("bsd,df->bsf", x, w_up)
        h = _sigmoid(g) * u
        return torch.einsum("bsf,fd->bsd", h, w_down)

    x = A_x
    xn = _layernorm(x, axis=-1)
    s = _A_ref(xn, A_k_cache, A_v_cache, A_wq, A_wo)
    g = _silu(_B_ref(xn, B_w_gate, B_w_up, B_w_down))
    return x + s * g
```

```python
import re

REG = re.compile(r'(?<![\w\]])(-?)(v|s|a)(\d+|\[(\d+):(\d+)\])')

def regs_of(tok):
    tok = tok.strip()
    out = []
    if tok in ('vcc',): return ['vcc']
    if tok in ('vcc_lo', 'vcc_hi'): return ['vcc']
    if tok in ('exec', 'exec_lo', 'exec_hi'): return ['exec']
    if tok == 'm0': return ['m0']
    m = re.fullmatch(r'-?(?:abs\()?\|?(v|s|a)(?:(\d+)|\[(\d+):(\d+)\])\|?\)?', tok)
    if m:
        k = m.group(1)
        if m.group(2) is not None: return [k + m.group(2)]
        return [k + str(i) for i in range(int(m.group(3)), int(m.group(4)) + 1)]
    return out

TRANS = ('v_exp_f32', 'v_log_f32', 'v_rcp_f32', 'v_rsq_f32', 'v_sqrt_f32', 'v_sin_f32', 'v_cos_f32')

class Ins:
    def __init__(self, text):
        self.text = text
        t = text.split(';')[0].strip()
        self.label = t.endswith(':')
        self.directive = t.startswith('.')
        self.mn = ''
        self.w = set(); self.r = set()
        self.kind = 'other'
        if not t or self.label or self.directive:
            self.kind = 'none'; return
        parts = t.split(None, 1)
        self.mn = mn = parts[0]
        rest = parts[1] if len(parts) > 1 else ''
        ops = []; cur = ''; depth = 0
        for ch in rest:
            if ch == '[': depth += 1
            if ch == ']': depth -= 1
            if ch == ',' and depth == 0:
                ops.append(cur.strip()); cur = ''
            else: cur += ch
        if cur.strip(): ops.append(cur.strip())
        mods = ''
        if ops:
            last = ops[-1].split(None, 1)
            ops[-1] = last[0]
            mods = last[1] if len(last) > 1 else ''
        self.ops = ops; self.mods = mods
        R = lambda i: regs_of(ops[i]) if i < len(ops) else []
        allr = lambda a: [x for o in ops[a:] for x in regs_of(o)]
        self.dpp = '_dpp' in mn or any(k in mods for k in ('row_', 'quad_perm'))
        base = mn.replace('_dpp', '').replace('_e32', '').replace('_e64', '')
        self.base = base
        if mn.startswith('v_mfma'):
            self.kind = 'mfma'; self.w = set(R(0)); self.A = set(R(1)); self.B = set(R(2)); self.C = set(R(3))
            self.r = self.A | self.B | self.C
            self.passes = 8 if '32x32' in mn else 4
        elif mn.startswith('v_'):
            self.kind = 'valu'
            if base.startswith('v_permlane') and 'swap' in base:
                self.w = set(R(0) + R(1)); self.r = set(self.w); self.perm = True
            elif base.startswith('v_cmp'):
                self.w = set(R(0)); self.r = set(allr(1))
            elif base in ('v_add_co_u32', 'v_sub_co_u32'):
                self.w = set(R(0) + R(1)); self.r = set(allr(2))
            elif base in ('v_addc_co_u32',):
                self.w = set(R(0) + R(1)); self.r = set(allr(2))
            else:
                self.w = set(R(0)); self.r = set(allr(1))
                if base in ('v_fmac_f32', 'v_dot2c_f32_bf16', 'v_writelane_b32'): self.r |= set(R(0))
            self.dl = base.startswith('v_dot')
            self.trans = base in TRANS
        elif mn.startswith(('buffer_', 'global_')):
            self.kind = 'vmem'
            if 'load' in mn:
                if 'lds' in mods.split(): self.r = set(allr(0)) | {'m0'}
                else: self.w = set(R(0)); self.r = set(allr(1))
            else:
                self.r = set(allr(0))
                self.store = True
                wide = 'x4' in mn or 'x3' in mn
                self.sdata = set(R(0) if mn.startswith('buffer_') else R(1)) if wide else set()
        elif mn.startswith('ds_'):
            self.kind = 'ds'
            if mn.startswith('ds_read') or 'permute' in mn or 'swizzle' in mn or '_rtn' in mn:
                self.w = set(R(0)); self.r = set(allr(1))
            else: self.r = set(allr(0))
        elif mn.startswith('s_'):
            self.kind = 'salu'
            if mn.startswith(('s_cmp', 's_cbranch', 's_branch', 's_waitcnt', 's_barrier', 's_nop', 's_sleep', 's_setprio', 's_endpgm')):
                self.r = set(allr(0))
            else:
                self.w = set(R(0)); self.r = set(allr(1))
        self.states = 1
        if mn == 's_nop': self.states = int(ops[0]) + 1

def need(p, c):
    n = 0
    vw = {x for x in p.w if x[0] in 'va' and x != 'vcc'}
    sw = {x for x in p.w if x[0] == 's' or x == 'vcc'}
    if p.kind == 'valu':
        if vw:
            cv = c.r & vw
            if c.kind == 'valu':
                if c.dpp and cv: n = max(n, 2)
                if c.base in ('v_readlane_b32', 'v_readfirstlane_b32') and cv: n = max(n, 1)
                if getattr(c, 'perm', False) and cv: n = max(n, 2)
                if p.trans and cv and not c.trans: n = max(n, 1)
                if p.trans and cv and c.trans: n = max(n, 1)
            if c.kind == 'mfma' and cv: n = max(n, 2)
            if p.dl:
                touch = (c.r | c.w) & vw
                if touch and c.kind in ('valu', 'mfma', 'vmem', 'ds'):
                    same_acc = c.kind == 'valu' and c.base == p.base and not (set(regs_of(c.ops[1]) + regs_of(c.ops[2])) & vw)
                    if not same_acc: n = max(n, 3)
        if sw:
            cs = c.r & sw
            if cs:
                if c.kind == 'valu':
                    n = max(n, 4 if c.base in ('v_readlane_b32', 'v_writelane_b32') else 2)
                elif c.kind == 'vmem': n = max(n, 5)
                elif c.kind == 'salu': n = max(n, 1)
        if 'exec' in p.w: n = max(n, 5)
    if p.kind == 'mfma':
        full = {4: 8, 8: 12}[p.passes]
        if c.kind == 'mfma':
            if (c.A | c.B) & p.w: n = max(n, full)
            if c.C & p.w and c.C != p.w: n = max(n, full - 2)
            if c.w & p.w and c.C != p.w: n = max(n, full)
        elif (c.r | c.w) & p.w: n = max(n, full)
        if c.kind == 'valu' and c.w & p.C: n = max(n, p.passes - 1)
    if p.kind == 'vmem' and getattr(p, 'store', False) and p.sdata & c.w:
        n = max(n, 2)
    if p.kind == 'salu' and 'm0' in p.w and c.kind == 'vmem' and 'm0' in c.r: n = max(n, 1)
    return n

class Asm:
    def __init__(self):
        self.L = []
    def __call__(self, text):
        for line in text.split('\n'):
            if line.strip(): self.L.append(line.strip())
    def fix(self):
        out = []; hist = []
        for t in self.L:
            i = Ins(t)
            if i.kind == 'none':
                out.append(t); continue
            req = 0; dist = 0
            for p in reversed(hist):
                k = need(p, i) - dist
                if k > req: req = k
                dist += p.states
                if dist >= 12: break
            if req > 0:
                nop = Ins(f's_nop {req-1}')
                out.append(nop.text); hist.append(nop)
            out.append(t); hist.append(i)
            if i.mn in ('s_branch', 's_endpgm'): hist = []
        return out
```

```python
import sys
from asmlib import Asm
NAME = "recurrent_scan__mha_block_cached__glu_gated_glu__decode"
KN = NAME + "_kernel"

WS_A  = 0x00000
WS_O  = 0x40000
WS_S  = 0x60000
WS_Y  = 0x80000
WS_ML = 0xA0000
WS_ST = 0x100000
WS_BYTES = 268435456
LQ, LML, LPROG, LH, LO = 0, 256, 288, 320, 1024
LDS_BYTES = 3072
LOG2E = "0x3fb8aa3b"
SCALE = "0x3db504f3"
SPIN = 1 << 17

def gen(nslot=48, dfin=24, shrink=2, late=10, stamps=False, kvflags="nt", wflags="nt", dbg=None, prefetch=False):
    A = Asm()
    stamp_list = []
    def stamp(name, base=80):
        if stamps:
            k = len([x for x in stamp_list if x[0] == role[0]])
            stamp_list.append((role[0], name))
            A(f"s_memrealtime s[{base+2*k}:{base+2*k+1}]")
    role = ["S"]
    def rbf(dst, src):
        A(f"v_cvt_pk_bf16_f32 {dst}, {src}, {src}")
        A(f"v_and_b32 {dst}, 0xffff0000, {dst}")
    def masks(m0, lane, t0, t1):
        A(f"v_and_b32 v{t0}, 1, v{lane}")
        A(f"v_lshlrev_b32 v{t0}, 4, v{t0}")
        A(f"v_lshlrev_b32 v{t0}, v{t0}, s50")
        A(f"v_bfe_u32 v{t1}, v{lane}, 1, 2")
        for r in range(4):
            A(f"v_cmp_eq_u32 vcc, {r}, v{t1}")
            A(f"v_cndmask_b32 v{m0+r}, 0, v{t0}, vcc")
    def abuild(a0, p, m0, n):
        for r in range(4):
            A(f"v_and_b32_dpp v{a0+r}, v{p}, v{m0+r} row_newbcast:{n} row_mask:0xf bank_mask:0xf")
    def wave_red(op, v):
        for c in ("quad_perm:[1,0,3,2]", "quad_perm:[2,3,0,1]", "row_half_mirror", "row_mirror"):
            A(f"{op}_dpp v{v}, v{v}, v{v} {c} row_mask:0xf bank_mask:0xf")
        A(f"{op}_dpp v{v}, v{v}, v{v} row_bcast:15 row_mask:0xa bank_mask:0xf")
        A(f"{op}_dpp v{v}, v{v}, v{v} row_bcast:31 row_mask:0xc bank_mask:0xf")
    def srd(d, off, nbytes):
        A(f"s_load_dwordx2 s[{d}:{d+1}], s[0:1], {off}")
        A(f"s_mov_b32 s{d+2}, {nbytes}")
        A(f"s_mov_b32 s{d+3}, 0x20000")
    def dump_stamps():
        if not stamps: return
        mine = [x for x in stamp_list if x[0] == role[0]]
        A("s_mov_b64 exec, -1")
        A("s_waitcnt lgkmcnt(0)")
        for k in range(len(mine)):
            A(f"v_writelane_b32 v0, s{80+2*k}, {k}")
        A("s_getreg_b32 s48, hwreg(HW_REG_XCC_ID)")
        A("v_writelane_b32 v0, s48, 15")
        A("s_load_dwordx2 s[40:41], s[0:1], 88")
        A(f"s_mov_b32 s42, {WS_BYTES}")
        A("s_mov_b32 s43, 0x20000")
        A("s_mul_i32 s48, s2, 5"); A("s_add_u32 s48, s48, s3"); A("s_lshl_b32 s48, s48, 6"); A(f"s_add_u32 s48, s48, {WS_ST}")
        A("v_mbcnt_lo_u32_b32 v1, -1, 0"); A("v_lshlrev_b32 v1, 2, v1")
        A("s_mov_b64 exec, 0xffff")
        A("s_waitcnt lgkmcnt(0)")
        A("buffer_store_dword v0, v1, s[40:43], s48 offen")

    A(f"{KN}:")
    if stamps: A("s_memrealtime s[80:81]")
    A("v_lshrrev_b32 v1, 6, v0")
    A("s_cmp_ge_u32 s2, 256")
    A("s_cbranch_scc1 L_end")
    A("v_readfirstlane_b32 s3, v1")
    A("s_and_b32 s4, s2, 31")
    A("s_lshr_b32 s5, s2, 5")
    A("v_and_b32 v0, 63, v0")
    A("s_mov_b32 s50, 0xffff")
    A("s_cmp_eq_u32 s3, 4")
    A("s_cbranch_scc1 L_service")

    role[0] = "W"; stamp_list.append(("W", "start"));
    VL16, M0, Q0, S0, AB, D0, P0, T0, RING = 1, 2, 6, 10, 14, 22, 26, 42, 48
    srd(8, 8, 64 << 20); srd(12, 16, 64 << 20)
    A("s_lshl_b32 s48, s4, 21"); A("s_lshl_b32 s49, s5, 18"); A("s_add_u32 s48, s48, s49")
    A("s_lshl_b32 s49, s3, 12"); A("s_add_u32 s48, s48, s49")
    A("s_mov_b32 s49, s48")
    A(f"v_lshlrev_b32 v{VL16}, 4, v0")
    A("s_waitcnt lgkmcnt(0)")
    issued = [0]
    def issue():
        i = issued[0]; issued[0] += 1
        ii = i % 64; r = RING + 4 * (i % nslot); s = 8 if i < 64 else 12
        if i == 64: A("s_mov_b32 s49, s48")
        elif ii % 4 == 0 and i: A("s_addk_i32 s49, 0x4000")
        off = f" offset:{(ii%4)*1024}" if ii % 4 else ""
        A(f"buffer_load_dwordx4 v[{r}:{r+3}], v{VL16}, s[{s}:{s+3}], s49 offen{off} {kvflags}")
        if i == 127 - late:
            A(f"ds_write_b32 v{T0+4}, v{T0+5} offset:{LPROG}")
    for _ in range(8): issue()
    masks(M0, 0, T0, T0 + 1)
    A("s_mov_b32 s52, 0xcccccccc"); A("s_mov_b32 s53, 0xcccccccc")
    A("s_mov_b32 s54, 0xaaaaaaaa"); A("s_mov_b32 s55, 0xaaaaaaaa")
    A(f"v_and_b32 v{T0+2}, 15, v0"); A(f"v_lshlrev_b32 v{T0+2}, 4, v{T0+2}")
    A(f"v_mov_b32 v{T0+4}, s3"); A(f"v_lshlrev_b32 v{T0+4}, 2, v{T0+4}"); A(f"v_mov_b32 v{T0+5}, 1")
    for _ in range(nslot - 8): issue()
    stamp("issued")
    A("s_barrier")
    A(f"ds_read_b128 v[{Q0}:{Q0+3}], v{T0+2} offset:{LQ}")
    stamp("qready")
    A("s_waitcnt lgkmcnt(0)")
    def target(i):
        return max(dfin, nslot - (i + 1) // shrink) if shrink else nslot
    def wait_for(i):
        A(f"s_waitcnt vmcnt({issued[0] - 1 - i})")
    def maybe_issue(i):
        while issued[0] < 128 and issued[0] - (i + 1) < target(i): issue()
    for i in range(64):
        n = i % 16; r = RING + 4 * (i % nslot)
        A(f"v_mov_b32 v{P0+n}, 0")
        wait_for(i)
        for k in range(4): A(f"v_dot2c_f32_bf16 v{P0+n}, v{r+k}, v{Q0+k}")
        maybe_issue(i)
        if n == 15:
            a = i // 16
            for r_ in range(8):
                A(f"v_add_f32_dpp v{P0+r_}, v{P0+r_}, v{P0+r_} row_ror:8 row_mask:0xf bank_mask:0x3")
                A(f"v_add_f32_dpp v{P0+r_}, v{P0+r_+8}, v{P0+r_+8} row_ror:8 row_mask:0xf bank_mask:0xc")
            for r_ in range(4):
                A(f"v_add_f32_dpp v{P0+r_}, v{P0+r_}, v{P0+r_} row_half_mirror row_mask:0xf bank_mask:0x5")
                A(f"v_add_f32_dpp v{P0+r_}, v{P0+r_+4}, v{P0+r_+4} row_half_mirror row_mask:0xf bank_mask:0xa")
            for r_ in range(4):
                A(f"v_add_f32_dpp v{P0+r_}, v{P0+r_}, v{P0+r_} quad_perm:[2,3,0,1] row_mask:0xf bank_mask:0xf")
            A(f"v_cndmask_b32 v{P0}, v{P0}, v{P0+2}, s[52:53]")
            A(f"v_cndmask_b32 v{P0+1}, v{P0+1}, v{P0+3}, s[52:53]")
            for r_ in range(2):
                A(f"v_add_f32_dpp v{P0+r_}, v{P0+r_}, v{P0+r_} quad_perm:[1,0,3,2] row_mask:0xf bank_mask:0xf")
            A(f"v_cndmask_b32 v{S0+a}, v{P0}, v{P0+1}, s[54:55]")
            rbf(f"v{S0+a}", f"v{S0+a}")
            A(f"v_mul_f32 v{S0+a}, {SCALE}, v{S0+a}")
            rbf(f"v{S0+a}", f"v{S0+a}")
    stamp("kdone")
    A(f"v_max3_f32 v{T0}, v{S0}, v{S0+1}, v{S0+2}")
    A(f"v_max_f32 v{T0}, v{T0}, v{S0+3}")
    wave_red("v_max_f32", T0)
    A(f"v_readlane_b32 s51, v{T0}, 63")
    for a in range(4): A(f"v_subrev_f32 v{S0+a}, s51, v{S0+a}")
    for a in range(4): A(f"v_mul_f32 v{S0+a}, {LOG2E}, v{S0+a}")
    for a in range(4): A(f"v_exp_f32 v{S0+a}, v{S0+a}")
    A(f"v_add_f32 v{T0+1}, v{S0}, v{S0+1}")
    A(f"v_add_f32 v{T0+3}, v{S0+2}, v{S0+3}")
    A(f"v_add_f32 v{T0+1}, v{T0+1}, v{T0+3}")
    for a in range(4): A(f"v_cvt_pk_bf16_f32 v{S0+a}, v{S0+a}, v{S0+a}")
    abuild(AB, S0, M0, 0)
    wave_red("v_add_f32", T0 + 1)
    A(f"v_lshlrev_b32 v{T0+3}, 1, v{T0+4}")
    A("s_mov_b32 exec_lo, 0"); A("s_mov_b32 exec_hi, 0x80000000")
    A(f"ds_write_b64 v{T0+3}, v[{T0}:{T0+1}] offset:{LML}")
    A("s_mov_b64 exec, -1")
    for i in range(64, 128):
        n = i % 16; a = (i - 64) // 16; r = RING + 4 * (i % nslot); ab = AB + 4 * (i & 1)
        wait_for(i)
        c = f"v[{D0}:{D0+3}]" if i > 64 else "0"
        A(f"v_mfma_f32_16x16x32_bf16 v[{D0}:{D0+3}], v[{ab}:{ab+3}], v[{r}:{r+3}], {c}")
        if i < 127: abuild(AB + 4 * ((i + 1) & 1), S0 + (i + 1 - 64) // 16, M0, (i + 1) % 16)
        maybe_issue(i)
        if i == 124:
            A(f"v_and_b32 v{T0}, 15, v0"); A(f"v_lshlrev_b32 v{T0}, 5, v{T0}")
            A(f"v_and_b32 v{T0+1}, 16, v0"); A(f"v_add_u32 v{T0}, v{T0}, v{T0+1}")
            A(f"v_lshl_add_u32 v{T0}, v{T0+4}, 7, v{T0}")
    stamp("vdone")
    A("s_mov_b32 exec_hi, 0")
    A(f"ds_write_b128 v{T0}, v[{D0}:{D0+3}] offset:{LO}")
    A("s_waitcnt lgkmcnt(0)")
    A("s_barrier")
    dump_stamps()
    A("s_endpgm")

    role[0] = "S"; stamp_list.append(("S", "start"))
    G, J, M0, AB, DQ, DG, PD, T0 = 1, 2, 4, 8, 16, 20, 3, 24
    XA, XR, GA, VA, XF, PH = 40, 44, 46, 48, 49, 50
    WQ, GU = 64, 128
    A("L_service:")
    A("s_setprio 3")
    srd(16, 0, 1024); srd(20, 24, 4 << 20); srd(24, 32, 4 << 20); srd(28, 64, 1376 * 1024)
    srd(32, 72, 1024); srd(36, 80, 256); srd(40, 88, WS_BYTES)
    A("s_load_dwordx4 s[44:47], s[0:1], 48")
    A(f"v_lshrrev_b32 v{G}, 4, v0"); A(f"v_and_b32 v{J}, 15, v0")
    A("s_lshl_b32 s6, s4, 3"); A("s_add_u32 s6, s6, s5")
    A("s_and_b32 s7, s4, 7"); A("s_lshl_b32 s7, s7, 2"); A("s_lshr_b32 s48, s4, 3"); A("s_add_u32 s7, s7, s48")
    A("s_mul_i32 s56, s7, 43"); A("s_add_u32 s57, s56, 43"); A("s_lshr_b32 s56, s56, 3"); A("s_lshr_b32 s57, s57, 3")
    A("s_sub_u32 s57, s57, s56")
    A("s_and_b32 s58, s5, 3"); A("s_lshr_b32 s59, s5, 2")
    A(f"v_lshlrev_b32 v{T0}, 4, v0")
    A("s_lshl_b32 s48, s5, 7")
    A(f"v_lshlrev_b32 v{T0+1}, 1, v0")
    A(f"v_lshlrev_b32 v{T0+3}, 4, v{J}")
    A(f"v_lshl_add_u32 v{T0+2}, v{G}, 17, v{T0+3}")
    A("s_lshl_b32 s49, s5, 19"); A("s_lshl_b32 s51, s4, 8"); A("s_add_u32 s49, s49, s51")
    A(f"v_and_b32 v{T0+4}, 7, v0")
    A(f"v_cmp_gt_u32 vcc, s57, v{T0+4}")
    A(f"v_cndmask_b32 v{T0+4}, 0, v{T0+4}, vcc")
    A(f"v_add_u32 v{T0+4}, s56, v{T0+4}"); A(f"v_lshlrev_b32 v{T0+4}, 4, v{T0+4}")
    A("s_mov_b32 s51, 44032")
    A(f"v_mad_u32_u24 v{T0+4}, v{G}, s51, v{T0+4}")
    A("s_mul_i32 s51, s5, 176128"); A(f"v_add_u32 v{T0+4}, s51, v{T0+4}")
    A(f"v_mov_b32 v{T0+5}, 0")
    A(f"v_cmp_lt_u32 vcc, 7, v{J}")
    A("s_waitcnt lgkmcnt(0)")
    A(f"buffer_load_dwordx4 v[{XA}:{XA+3}], v{T0}, s[16:19], 0 offen")
    A(f"buffer_load_ushort v{XR}, v{T0+1}, s[16:19], s48 offen")
    A(f"v_mov_b32 v{T0+6}, s44"); A(f"v_mov_b32 v{T0+7}, s45"); A(f"v_mov_b32 v{T0+8}, s46"); A(f"v_mov_b32 v{T0+9}, s47")
    A(f"v_cndmask_b32 v{GA}, v{T0+6}, v{T0+8}, vcc"); A(f"v_cndmask_b32 v{GA+1}, v{T0+7}, v{T0+9}, vcc")
    A(f"v_lshl_add_u64 v[{GA}:{GA+1}], v[{T0+4}:{T0+5}], 0, v[{GA}:{GA+1}]")
    A("s_mov_b32 s60, 5504"); A("s_mov_b32 s61, 0")
    for n in range(16):
        A(f"buffer_load_dwordx4 v[{WQ+4*n}:{WQ+4*n+3}], v{T0+2}, s[20:23], s49 offen {wflags}")
        A(f"global_load_dwordx4 v[{GU+4*n}:{GU+4*n+3}], v[{GA}:{GA+1}], off{' offset:2752' if n & 1 else ''} {wflags}")
        if n < 15: A("s_addk_i32 s49, 0x2000")
        if n & 1 and n < 15: A(f"v_lshl_add_u64 v[{GA}:{GA+1}], v[{GA}:{GA+1}], 0, s[60:61]")
    stamp("issued")
    A(f"v_mov_b32 v{T0+6}, -1"); A(f"v_cmp_gt_u32 vcc, 8, v0"); A(f"v_cndmask_b32 v{T0+6}, 0, v{T0+6}, vcc")
    A(f"v_lshlrev_b32 v{T0+7}, 2, v0")
    A("s_mov_b64 exec, 0xffff")
    A(f"ds_write_b32 v{T0+7}, v{T0+6} offset:{LML}")
    A("s_mov_b64 exec, -1")
    masks(M0, 0, T0 + 6, T0 + 7)
    A("s_waitcnt vmcnt(32)")
    stamp("x")
    for k in range(4):
        A(f"v_lshlrev_b32 v{T0+2*k}, 16, v{XA+k}"); A(f"v_and_b32 v{T0+2*k+1}, 0xffff0000, v{XA+k}")
    A(f"v_add_f32 v{T0+8}, v{T0}, v{T0+1}"); A(f"v_add_f32 v{T0+9}, v{T0+2}, v{T0+3}")
    A(f"v_add_f32 v{T0+10}, v{T0+4}, v{T0+5}"); A(f"v_add_f32 v{T0+11}, v{T0+6}, v{T0+7}")
    A(f"v_add_f32 v{T0+8}, v{T0+8}, v{T0+9}"); A(f"v_add_f32 v{T0+10}, v{T0+10}, v{T0+11}")
    A(f"v_add_f32 v{T0+8}, v{T0+8}, v{T0+10}")
    wave_red("v_add_f32", T0 + 8)
    A(f"v_mul_f32 v{T0+8}, 0x3b000000, v{T0+8}")
    A(f"v_readlane_b32 s51, v{T0+8}, 63")
    for k in range(8): A(f"v_subrev_f32 v{T0+k}, s51, v{T0+k}")
    A(f"v_mul_f32 v{T0+9}, v{T0}, v{T0}"); A(f"v_mul_f32 v{T0+10}, v{T0+1}, v{T0+1}")
    for k in range(2, 8, 2):
        A(f"v_fmac_f32 v{T0+9}, v{T0+k}, v{T0+k}"); A(f"v_fmac_f32 v{T0+10}, v{T0+k+1}, v{T0+k+1}")
    A(f"v_add_f32 v{T0+9}, v{T0+9}, v{T0+10}")
    wave_red("v_add_f32", T0 + 9)
    A(f"v_mul_f32 v{T0+9}, 0x3b000000, v{T0+9}")
    rbf(f"v{T0+9}", f"v{T0+9}")
    A(f"v_add_f32 v{T0+9}, 0x3727c5ac, v{T0+9}")
    rbf(f"v{T0+9}", f"v{T0+9}")
    A(f"v_sqrt_f32 v{T0+9}, v{T0+9}")
    rbf(f"v{T0+8}", f"v{T0+8}")
    rbf(f"v{T0+9}", f"v{T0+9}")
    A(f"v_readlane_b32 s51, v{T0+8}, 63"); A(f"v_readlane_b32 s62, v{T0+9}, 63")
    A(f"v_lshlrev_b32 v{XR}, 16, v{XR}")
    A(f"v_rcp_f32 v{T0+10}, s62")
    A(f"v_subrev_f32 v{XR}, s51, v{XR}")
    rbf(f"v{XR}", f"v{XR}")
    A(f"v_mul_f32 v{T0+11}, v{XR}, v{T0+10}")
    A(f"v_fma_f32 v{T0+12}, -v{T0+11}, s62, v{XR}")
    A(f"v_fmac_f32 v{T0+11}, v{T0+12}, v{T0+10}")
    A(f"v_cvt_pk_bf16_f32 v{PD}, v{T0+11}, v{T0+11}")
    stamp("ln")
    abuild(AB, PD, M0, 0)
    for n in range(16):
        ab = AB + 4 * (n & 1)
        A(f"s_waitcnt vmcnt({30-2*n})")
        A(f"v_mfma_f32_16x16x32_bf16 v[{DQ}:{DQ+3}], v[{ab}:{ab+3}], v[{WQ+4*n}:{WQ+4*n+3}], {f'v[{DQ}:{DQ+3}]' if n else 0}")
        A(f"v_mfma_f32_16x16x32_bf16 v[{DG}:{DG+3}], v[{ab}:{ab+3}], v[{GU+4*n}:{GU+4*n+3}], {f'v[{DG}:{DG+3}]' if n else 0}")
        if n < 15: abuild(AB + 4 * ((n + 1) & 1), PD, M0, n + 1)
    L16 = T0 + 15; OUTA = VA
    A(f"v_lshlrev_b32 v{L16}, 4, v0")
    A(f"v_lshlrev_b32 v{OUTA}, 5, v{J}"); A(f"v_and_b32 v{T0}, 16, v0"); A(f"v_add_u32 v{OUTA}, v{OUTA}, v{T0}")
    A("s_lshl_b32 s63, s6, 9"); A(f"s_add_u32 s63, s63, {WS_O}")
    A("s_lshl_b32 s64, s58, 6"); A("s_lshl_b32 s48, s4, 1"); A("s_add_u32 s64, s64, s48"); A("s_add_u32 s64, s64, s59")
    A("s_lshl_b32 s64, s64, 9"); A(f"s_add_u32 s65, s64, {WS_Y}"); A(f"s_add_u32 s64, s64, {WS_S}")
    A("s_lshl_b32 s66, s6, 4"); A(f"s_add_u32 s66, s66, {WS_ML}")
    A("s_lshl_b32 s67, s6, 10")
    A("s_mov_b32 s68, 0"); A("s_mov_b32 s69, -1")
    A(f"v_and_b32 v{T0}, 0x1ff, v{L16}")
    A(f"v_mov_b32 v{T0+1}, s63"); A(f"v_mov_b32 v{T0+2}, s64"); A(f"v_cndmask_b32 v{T0+1}, v{T0+1}, v{T0+2}, s[68:69]")
    A(f"v_add_u32 v{T0+1}, v{T0+1}, v{T0}")
    A(f"v_mov_b32 v{T0+2}, s65"); A(f"v_mov_b32 v{T0+3}, s66"); A(f"v_cndmask_b32 v{T0+2}, v{T0+2}, v{T0+3}, s[68:69]")
    A(f"v_add_u32 v{T0+2}, v{T0+2}, v{T0}")
    for k in range(4): A(f"v_mov_b32 v{T0+4+k}, -1")
    for k in range(4): A(f"v_cndmask_b32 v{DQ+k}, v{DQ+k}, v{DG+k}, s[68:69]")
    A(f"buffer_store_dwordx4 v[{DQ}:{DQ+3}], v{L16}, s[40:43], s67 offen sc1")
    A(f"buffer_store_dwordx4 v[{T0+4}:{T0+7}], v{T0+1}, s[40:43], 0 offen sc1")
    A("s_mov_b32 exec_hi, 1")
    A(f"buffer_store_dwordx4 v[{T0+4}:{T0+7}], v{T0+2}, s[40:43], 0 offen sc1")
    A("s_mov_b64 exec, 1")
    stamp("apub")
    A(f"v_mov_b32 v{T0}, s6"); A(f"v_mov_b32 v{T0+1}, 0x80")
    A("s_lshl_b32 s48, s4, 3"); A(f"v_mov_b32 v{T0+2}, s48")
    A("s_waitcnt vmcnt(0)")
    A(f"buffer_store_byte v{T0+1}, v{T0}, s[36:39], 0 offen sc1")
    stamp("flag")
    A(f"s_mov_b32 s70, {SPIN}")
    A("L_pollA:")
    A(f"buffer_load_dwordx2 v[{T0+4}:{T0+5}], v{T0+2}, s[36:39], 0 offen sc1")
    A("s_sub_u32 s70, s70, 1"); A("s_cbranch_scc1 L_pollA_done")
    A("s_waitcnt vmcnt(0)")
    A(f"v_and_b32 v{T0+4}, v{T0+4}, v{T0+5}")
    A(f"v_cmp_ne_u32 vcc, 0x80808080, v{T0+4}")
    A("s_nop 1")
    A("s_cbranch_vccnz L_pollA")
    A("L_pollA_done:")
    A("s_mov_b64 exec, -1")
    stamp("flagseen")
    A("s_lshl_b32 s48, s4, 13")
    for k in range(8):
        A(f"buffer_load_dwordx4 v[{WQ+4*k}:{WQ+4*k+3}], v{L16}, s[40:43], s48 offen{f' offset:{(k&3)*1024}' if k & 3 else ''} sc1")
        if k == 3: A("s_addk_i32 s48, 0x1000")
    A(f"v_lshrrev_b32 v{T0}, 1, v{OUTA}")
    A("s_waitcnt vmcnt(0)")
    for k in range(4):
        A(f"v_add_f32 v{WQ+k}, v{WQ+k}, v{WQ+4+k}"); A(f"v_add_f32 v{WQ+8+k}, v{WQ+8+k}, v{WQ+12+k}")
        A(f"v_add_f32 v{WQ+16+k}, v{WQ+16+k}, v{WQ+20+k}"); A(f"v_add_f32 v{WQ+24+k}, v{WQ+24+k}, v{WQ+28+k}")
    for k in range(4):
        A(f"v_add_f32 v{WQ+k}, v{WQ+k}, v{WQ+8+k}"); A(f"v_add_f32 v{WQ+16+k}, v{WQ+16+k}, v{WQ+24+k}")
    for k in range(4): A(f"v_add_f32 v{WQ+k}, v{WQ+k}, v{WQ+16+k}")
    A(f"v_cvt_pk_bf16_f32 v{T0+2}, v{WQ}, v{WQ+1}"); A(f"v_cvt_pk_bf16_f32 v{T0+3}, v{WQ+2}, v{WQ+3}")
    A("s_mov_b32 exec_hi, 0")
    A(f"ds_write_b64 v{T0}, v[{T0+2}:{T0+3}] offset:{LQ}")
    A("s_mov_b64 exec, -1")
    A("s_waitcnt lgkmcnt(0)")
    A("s_barrier")
    stamp("qdone")
    A("s_setprio 0")
    for k in range(4): rbf(f"v{WQ+k}", f"v{WQ+k}")
    for k in range(4): A(f"v_mov_b32_dpp v{T0+4+k}, v{WQ+k} row_ror:8 row_mask:0xf bank_mask:0xf")
    for k in range(4): A(f"v_mul_f32 v{WQ+k}, 0xbfb8aa3b, v{WQ+k}")
    for k in range(4): A(f"v_exp_f32 v{WQ+k}, v{WQ+k}")
    for k in range(4): A(f"v_add_f32 v{WQ+k}, 1.0, v{WQ+k}")
    for k in range(4): A(f"v_rcp_f32 v{WQ+k}, v{WQ+k}")
    for k in range(4): rbf(f"v{WQ+k}", f"v{WQ+k}")
    for k in range(4): A(f"v_mul_f32 v{WQ+k}, v{WQ+k}, v{T0+4+k}")
    A(f"v_cmp_gt_u32 vcc, s57, v{J}")
    for k in range(4): A(f"v_cvt_pk_bf16_f32 v{WQ+k}, v{WQ+k}, v{WQ+k}")
    for k in range(4): A(f"v_cndmask_b32 v{WQ+k}, 0, v{WQ+k}, vcc")
    A("s_mov_b32 exec_lo, 0"); A("s_mov_b32 exec_hi, 0x00ff00ff")
    A(f"ds_write_b128 v{OUTA}, v[{WQ}:{WQ+3}] offset:{LH}")
    A("s_mov_b64 exec, -1")
    A("s_mul_i32 s48, s59, 24")
    A(f"v_mul_u32_u24 v{T0}, 6, v{G}"); A(f"v_add_u32 v{T0}, s48, v{T0}")
    A(f"v_add_lshl_u32 v{T0+1}, v{T0}, v{J}, 2")
    A("s_waitcnt lgkmcnt(0)")
    A(f"ds_read_b32 v{PH}, v{T0+1} offset:{LH}")
    WDA = 52
    A("s_lshl_b32 s48, s57, 3"); A("s_lshl_b32 s49, s56, 3")
    A(f"v_lshlrev_b32 v{T0+2}, 4, v{J}")
    for n in range(6):
        A(f"v_add_u32 v{T0+3}, {n}, v{T0}")
        A(f"v_cmp_gt_u32 vcc, s48, v{T0+3}")
        A(f"v_add_u32 v{T0+3}, s49, v{T0+3}")
        A(f"v_lshl_add_u32 v{T0+3}, v{T0+3}, 10, v{T0+2}")
        A(f"v_mov_b32 v{WDA+n}, 0x7ffffff0")
        A(f"v_cndmask_b32 v{WDA+n}, v{WDA+n}, v{T0+3}, vcc")
    WOA = 58
    A(f"v_lshl_add_u32 v{WOA}, v{G}, 14, v{T0+2}")
    A("s_lshl_b32 s71, s4, 17"); A("s_lshl_b32 s48, s59, 16"); A("s_add_u32 s71, s71, s48")
    A("s_lshl_b32 s72, s58, 8"); A("s_add_u32 s71, s71, s72")
    RA = 59
    A(f"v_and_b32 v{T0+3}, 3, v0"); A(f"v_lshl_add_u32 v{T0+4}, v{T0+3}, 2, v{G}")
    A("s_lshl_b32 s48, s4, 4"); A(f"v_add_lshl_u32 v{XF+0}, v{T0+4}, s48, 1")
    A(f"v_lshrrev_b32 v{RA}, 2, v0"); A(f"v_lshlrev_b32 v{RA}, 9, v{RA}"); A(f"v_lshl_add_u32 v{RA}, v{T0+3}, 4, v{RA}")
    A("s_and_b32 s48, s4, 7"); A("s_lshl_b32 s48, s48, 6"); A("s_lshr_b32 s73, s4, 3"); A("s_lshl_b32 s73, s73, 15"); A("s_add_u32 s73, s73, s48")
    A("s_cmp_lg_u32 s5, 0"); A("s_cbranch_scc1 L_notred0")
    A(f"buffer_load_ushort v{51}, v{XF}, s[16:19], 0 offen")
    A(f"v_lshlrev_b32 v{T0+3}, 2, v0")
    A(f"s_mov_b32 s70, {SPIN}")
    A("L_pollF:")
    A(f"buffer_load_dword v{T0+4}, v{T0+3}, s[36:39], 0 offen sc1")
    A("s_sub_u32 s70, s70, 1"); A("s_cbranch_scc1 L_pollF_done")
    A("s_waitcnt vmcnt(0)")
    A(f"v_cmp_ne_u32 vcc, 0x80808080, v{T0+4}")
    A("s_nop 1")
    A("s_cbranch_vccnz L_pollF")
    A("L_pollF_done:")
    A(f"v_lshlrev_b32 v51, 16, v51")
    A("L_notred0:")
    A(f"v_and_b32 v{T0}, 3, v0"); A(f"v_lshlrev_b32 v{T0}, 3, v{T0}")
    A(f"s_mov_b32 s70, {SPIN}")
    A("L_pollML:")
    A("s_sleep 2")
    A(f"ds_read_b64 v[{T0+2}:{T0+3}], v{T0} offset:{LML}")
    A("s_sub_u32 s70, s70, 1"); A("s_cbranch_scc1 L_pollML_done")
    A("s_waitcnt lgkmcnt(0)")
    A(f"v_cmp_eq_u32 vcc, -1, v{T0+3}")
    A("s_nop 1")
    A("s_cbranch_vccnz L_pollML")
    A("L_pollML_done:")
    stamp("ml")
    A(f"v_max_f32_dpp v{T0+4}, v{T0+2}, v{T0+2} quad_perm:[1,0,3,2] row_mask:0xf bank_mask:0xf")
    A(f"v_max_f32_dpp v{T0+4}, v{T0+4}, v{T0+4} quad_perm:[2,3,0,1] row_mask:0xf bank_mask:0xf")
    A(f"v_sub_f32 v{T0+5}, v{T0+2}, v{T0+4}"); A(f"v_mul_f32 v{T0+5}, {LOG2E}, v{T0+5}"); A(f"v_exp_f32 v{T0+5}, v{T0+5}")
    A(f"v_mul_f32 v{T0+5}, v{T0+5}, v{T0+3}")
    A(f"v_add_f32_dpp v{T0+5}, v{T0+5}, v{T0+5} quad_perm:[1,0,3,2] row_mask:0xf bank_mask:0xf")
    A(f"v_add_f32_dpp v{T0+5}, v{T0+5}, v{T0+5} quad_perm:[2,3,0,1] row_mask:0xf bank_mask:0xf")
    A(f"v_min_u32 v{T0+4}, -2, v{T0+4}"); A(f"v_min_u32 v{T0+5}, -2, v{T0+5}")
    A(f"v_mov_b32 v{T0+1}, 0")
    A("s_mov_b64 exec, 1")
    A(f"buffer_store_dwordx2 v[{T0+4}:{T0+5}], v{T0+1}, s[40:43], s66 offen sc1")
    A("s_mov_b64 exec, -1")
    A(f"v_and_b32 v{T0+1}, 7, v0"); A(f"v_lshlrev_b32 v{T0+1}, 4, v{T0+1}")
    A("s_lshl_b32 s48, s4, 7"); A(f"s_add_u32 s48, s48, {WS_ML}")
    A(f"s_mov_b32 s70, {SPIN}")
    A("L_pollML2:")
    A(f"buffer_load_dwordx2 v[{T0+4}:{T0+5}], v{T0+1}, s[40:43], s48 offen sc1")
    A("s_sub_u32 s70, s70, 1"); A("s_cbranch_scc1 L_pollML2_done")
    A("s_waitcnt vmcnt(0)")
    A(f"v_max_u32 v{T0+6}, v{T0+4}, v{T0+5}")
    A(f"v_cmp_eq_u32 vcc, -1, v{T0+6}")
    A("s_nop 1")
    A("s_cbranch_vccnz L_pollML2")
    A("L_pollML2_done:")
    A(f"v_max_f32_dpp v{T0+6}, v{T0+4}, v{T0+4} quad_perm:[1,0,3,2] row_mask:0xf bank_mask:0xf")
    A(f"v_max_f32_dpp v{T0+6}, v{T0+6}, v{T0+6} quad_perm:[2,3,0,1] row_mask:0xf bank_mask:0xf")
    A(f"v_max_f32_dpp v{T0+6}, v{T0+6}, v{T0+6} row_half_mirror row_mask:0xf bank_mask:0xf")
    A(f"v_sub_f32 v{T0+4}, v{T0+4}, v{T0+6}"); A(f"v_sub_f32 v{T0+2}, v{T0+2}, v{T0+6}")
    A(f"v_mul_f32 v{T0+4}, {LOG2E}, v{T0+4}"); A(f"v_mul_f32 v{T0+2}, {LOG2E}, v{T0+2}")
    A(f"v_exp_f32 v{T0+4}, v{T0+4}"); A(f"v_exp_f32 v{T0+2}, v{T0+2}")
    A(f"v_mul_f32 v{T0+4}, v{T0+4}, v{T0+5}")
    A(f"v_add_f32_dpp v{T0+4}, v{T0+4}, v{T0+4} quad_perm:[1,0,3,2] row_mask:0xf bank_mask:0xf")
    A(f"v_add_f32_dpp v{T0+4}, v{T0+4}, v{T0+4} quad_perm:[2,3,0,1] row_mask:0xf bank_mask:0xf")
    A(f"v_add_f32_dpp v{T0+4}, v{T0+4}, v{T0+4} row_half_mirror row_mask:0xf bank_mask:0xf")
    A(f"v_rcp_f32 v{T0+4}, v{T0+4}")
    A(f"v_mul_f32 v{T0+2}, v{T0+2}, v{T0+4}")
    for w in range(4): A(f"v_readlane_b32 s{74+w}, v{T0+2}, {w}")
    stamp("mlx")
    OGA = 60
    A("s_lshl_b32 s48, s59, 8"); A(f"v_lshl_add_u32 v{OGA}, v0, 2, s48")
    A("s_lshl_b32 s78, s4, 12"); A(f"s_add_u32 s78, s78, {WS_O}")
    A(f"v_mov_b32 v{T0}, 0")
    A(f"s_mov_b32 s70, {SPIN}")
    A("L_pollP:")
    A("s_sleep 2")
    A(f"ds_read_b128 v[{T0+4}:{T0+7}], v{T0} offset:{LPROG}")
    A("s_sub_u32 s70, s70, 1"); A("s_cbranch_scc1 L_pollP_done")
    A("s_waitcnt lgkmcnt(0)")
    A(f"v_or3_b32 v{T0+4}, v{T0+4}, v{T0+5}, v{T0+6}"); A(f"v_or_b32 v{T0+4}, v{T0+4}, v{T0+7}")
    A(f"v_cmp_eq_u32 vcc, 0, v{T0+4}")
    A("s_nop 1")
    A("s_cbranch_vccnz L_pollP")
    A("L_pollP_done:")
    A("s_setprio 3")
    WO, WD = 64, 128
    for n in range(6): A(f"buffer_load_dwordx4 v[{WD+4*n}:{WD+4*n+3}], v{WDA+n}, s[28:31], s72 offen {wflags}")
    for n in range(16):
        A(f"buffer_load_dwordx4 v[{WO+4*n}:{WO+4*n+3}], v{WOA}, s[24:27], s71 offen{f' offset:{(n&3)*1024}' if n & 3 else ''} {wflags}")
        if n & 3 == 3 and n < 15: A("s_addk_i32 s71, 0x1000")
    stamp("wiss")
    abuild(AB, PH, M0, 0)
    A("s_mov_b32 exec_hi, 0")
    A("s_barrier")
    for w in range(4): A(f"ds_read_b128 v[{T0+4*w}:{T0+4*w+3}], v{OUTA} offset:{LO+512*w}")
    stamp("bar2")
    for w in range(4):
        A(f"s_waitcnt lgkmcnt({3-w})") if not stamps else A("s_waitcnt lgkmcnt(0)")
        for k in range(4):
            if w == 0: A(f"v_mul_f32 v{DQ+k}, s74, v{T0+k}")
            else: A(f"v_fmac_f32 v{DQ+k}, s{74+w}, v{T0+4*w+k}")
    for k in range(4): A(f"v_min_u32 v{DQ+k}, -2, v{DQ+k}")
    A(f"buffer_store_dwordx4 v[{DQ}:{DQ+3}], v{OUTA}, s[40:43], s63 offen sc1")
    A("s_mov_b64 exec, -1")
    stamp("opub")
    for n in range(6):
        ab = AB + 4 * (n & 1)
        A(f"s_waitcnt vmcnt({21-n})")
        A(f"v_mfma_f32_16x16x32_bf16 v[{DG}:{DG+3}], v[{ab}:{ab+3}], v[{WD+4*n}:{WD+4*n+3}], {f'v[{DG}:{DG+3}]' if n else 0}")
        if n < 5: abuild(AB + 4 * ((n + 1) & 1), PH, M0, n + 1)
    A(f"s_mov_b32 s70, {SPIN}")
    for k in range(4): A(f"v_min_u32 v{DG+k}, -2, v{DG+k}")
    A("s_mov_b32 exec_hi, 0")
    A(f"buffer_store_dwordx4 v[{DG}:{DG+3}], v{OUTA}, s[40:43], s65 offen sc1")
    A("s_mov_b64 exec, -1")
    A("L_pollO:")
    for k in range(8): A(f"buffer_load_dword v{T0+k}, v{OGA}, s[40:43], s78 offen{f' offset:{k*512}' if k else ''} sc1")
    A("s_sub_u32 s70, s70, 1"); A("s_cbranch_scc1 L_pollO_done")
    A("s_waitcnt vmcnt(0)")
    A(f"v_max3_u32 v{T0+8}, v{T0}, v{T0+1}, v{T0+2}"); A(f"v_max3_u32 v{T0+9}, v{T0+3}, v{T0+4}, v{T0+5}")
    A(f"v_max3_u32 v{T0+8}, v{T0+8}, v{T0+6}, v{T0+7}"); A(f"v_max_u32 v{T0+8}, v{T0+8}, v{T0+9}")
    A(f"v_cmp_eq_u32 vcc, -1, v{T0+8}")
    A(f"v_add_f32 v{T0+10}, v{T0}, v{T0+1}"); A(f"v_add_f32 v{T0+11}, v{T0+2}, v{T0+3}")
    A("s_cbranch_vccnz L_pollO")
    A("L_pollO_done:")
    stamp("oseen")
    A(f"v_add_f32 v{T0+12}, v{T0+4}, v{T0+5}"); A(f"v_add_f32 v{T0+13}, v{T0+6}, v{T0+7}")
    A(f"v_add_f32 v{T0+10}, v{T0+10}, v{T0+11}"); A(f"v_add_f32 v{T0+12}, v{T0+12}, v{T0+13}")
    A(f"v_add_f32 v{T0+10}, v{T0+10}, v{T0+12}")
    A(f"v_cvt_pk_bf16_f32 v{PD}, v{T0+10}, v{T0+10}")
    abuild(AB, PD, M0, 0)
    for n in range(16):
        ab = AB + 4 * (n & 1)
        if n < 15: abuild(AB + 4 * ((n + 1) & 1), PD, M0, n + 1)
        A(f"v_mfma_f32_16x16x32_bf16 v[{DQ}:{DQ+3}], v[{ab}:{ab+3}], v[{WO+4*n}:{WO+4*n+3}], {f'v[{DQ}:{DQ+3}]' if n else 0}")
    A("s_mov_b32 exec_hi, 0")
    for k in range(4): A(f"v_min_u32 v{DQ+k}, -2, v{DQ+k}")
    A(f"buffer_store_dwordx4 v[{DQ}:{DQ+3}], v{OUTA}, s[40:43], s64 offen sc1")
    A("s_mov_b64 exec, -1")
    stamp("spub")
    A("s_cmp_lg_u32 s5, 0"); A("s_cbranch_scc1 L_sdone")
    YG, SG = 128, 144
    A(f"s_add_u32 s48, s73, {WS_Y}"); A(f"s_add_u32 s49, s73, {WS_S}")
    A(f"s_add_u32 s51, s48, 8192"); A(f"s_add_u32 s56, s48, 16384"); A(f"s_add_u32 s57, s48, 24576")
    A(f"s_add_u32 s60, s49, 8192"); A(f"s_add_u32 s61, s49, 16384"); A(f"s_add_u32 s62, s49, 24576")
    def gather(base, sregs):
        for k in range(4): A(f"buffer_load_dwordx4 v[{base+4*k}:{base+4*k+3}], v{RA}, s[40:43], s{sregs[k]} offen sc1")
    def valid(base):
        A(f"v_max3_u32 v{T0}, v{base}, v{base+1}, v{base+2}"); A(f"v_max3_u32 v{T0+1}, v{base+3}, v{base+4}, v{base+5}")
        for k in (6, 10):
            A(f"v_max3_u32 v{T0}, v{T0}, v{base+k}, v{base+k+1}"); A(f"v_max3_u32 v{T0+1}, v{T0+1}, v{base+k+2}, v{base+k+3}")
        A(f"v_max3_u32 v{T0}, v{T0}, v{base+14}, v{base+15}"); A(f"v_max_u32 v{T0}, v{T0}, v{T0+1}")
        A(f"v_cmp_eq_u32 vcc, -1, v{T0}")
        A("s_nop 1")
    def reduce(base):
        for k in range(4):
            A(f"v_add_f32 v{base+k}, v{base+k}, v{base+4+k}"); A(f"v_add_f32 v{base+8+k}, v{base+8+k}, v{base+12+k}")
        for k in range(4): A(f"v_add_f32 v{base+k}, v{base+k}, v{base+8+k}")
        A(f"v_permlane32_swap_b32 v{base}, v{base+2}"); A(f"v_permlane32_swap_b32 v{base+1}, v{base+3}")
        A(f"v_add_f32 v{base}, v{base}, v{base+2}"); A(f"v_add_f32 v{base+1}, v{base+1}, v{base+3}")
        A(f"v_permlane16_swap_b32 v{base}, v{base+1}")
        A(f"v_add_f32 v{base}, v{base}, v{base+1}")
        A(f"v_add_f32_dpp v{base}, v{base}, v{base} row_ror:4 row_mask:0xf bank_mask:0xf")
        A(f"v_add_f32_dpp v{base}, v{base}, v{base} row_ror:8 row_mask:0xf bank_mask:0xf")
        rbf(f"v{base}", f"v{base}")
    A(f"s_mov_b32 s70, {SPIN}")
    A("L_pollY:")
    gather(YG, (48, 51, 56, 57)); gather(SG, (49, 60, 61, 62))
    A("s_sub_u32 s70, s70, 1"); A("s_cbranch_scc1 L_pollY_done")
    A("s_waitcnt vmcnt(4)")
    valid(YG)
    A("s_cbranch_vccnz L_pollY")
    A("L_pollY_done:")
    reduce(YG)
    A(f"v_mul_f32 v{T0+4}, 0xbfb8aa3b, v{YG}"); A(f"v_exp_f32 v{T0+4}, v{T0+4}"); A(f"v_add_f32 v{T0+4}, 1.0, v{T0+4}")
    A(f"v_rcp_f32 v{T0+4}, v{T0+4}"); A(f"v_mul_f32 v{YG}, v{YG}, v{T0+4}")
    rbf(f"v{YG}", f"v{YG}")
    A("s_branch L_chkS")
    A("L_pollS:")
    gather(SG, (49, 60, 61, 62))
    A("s_sub_u32 s70, s70, 1"); A("s_cbranch_scc1 L_pollS_done")
    A("L_chkS:")
    A("s_waitcnt vmcnt(0)")
    valid(SG)
    A("s_cbranch_vccnz L_pollS")
    A("L_pollS_done:")
    stamp("sseen")
    reduce(SG)
    A(f"v_mul_f32 v{SG}, v{SG}, v{YG}")
    rbf(f"v{SG}", f"v{SG}")
    A(f"v_add_f32 v{SG}, v{SG}, v51")
    A(f"v_cvt_pk_bf16_f32 v{SG}, v{SG}, v{SG}")
    A("s_mov_b32 exec_lo, 0x000f000f"); A("s_mov_b32 exec_hi, 0x000f000f")
    A(f"buffer_store_short v{SG}, v{XF}, s[32:35], 0 offen")
    A("L_sdone:")
    if stamps:
        A("s_waitcnt vmcnt(0)")
    stamp("end")
    dump_stamps()
    A("L_end:")
    A("s_endpgm")

    body = A.fix()
    hdr = open("cdna_kernels/" + NAME + ".s.ref").read().split("\n")
    hdr = [l for l in hdr if l.startswith(";") and "@launch" not in l and "Override" not in l and "grid=ceil" not in l]
    out = hdr + [f"; @launch grid=(256,1,1) block=(320,1,1) lds={LDS_BYTES}",
                 '.amdgcn_target "amdgcn-amd-amdhsa--gfx950"', ".text", f".globl {KN}", ".p2align 8", f".type {KN},@function"]
    out += [l if l.endswith(":") else "    " + l for l in body]
    nv = 48 + 4 * nslot
    out += ['.section .rodata,"a"', ".p2align 6", f".amdhsa_kernel {KN}", f"  .amdhsa_next_free_vgpr {nv}",
            "  .amdhsa_next_free_sgpr 102", f"  .amdhsa_accum_offset {nv}", "  .amdhsa_group_segment_fixed_size 0",
            "  .amdhsa_kernarg_size 96", "  .amdhsa_user_sgpr_count 2", "  .amdhsa_user_sgpr_kernarg_segment_ptr 1",
            "  .amdhsa_system_sgpr_workgroup_id_x 1", ".end_amdhsa_kernel"]
    return "\n".join(out) + "\n", stamp_list

if __name__ == "__main__":
    kw = eval("dict(" + (sys.argv[2] if len(sys.argv) > 2 else "") + ")")
    open(sys.argv[1], "w").write(gen(**kw)[0])
```

```python
import sys
from asmlib import Asm
NAME = "recurrent_scan__mha_block_cached__glu_gated_glu__decode"
KN = NAME + "_kernel"

WS_A  = 0x00000
WS_O  = 0x40000
WS_S  = 0x60000
WS_Y  = 0x80000
WS_ML = 0xA0000
WS_ST = 0x100000
WS_BYTES = 268435456
LQ, LML, LPROG, LH, LO = 0, 256, 288, 320, 1024
LDS_BYTES = 3072
LOG2E = "0x3fb8aa3b"
SCALE = "0x3db504f3"
SPIN = 1 << 17

def gen(nslot=48, dfin=24, shrink=2, late=10, stamps=False, kvflags="nt", wflags="nt", dbg=None, prefetch=False):
    A = Asm()
    stamp_list = []
    sets = {"early": "issued x ln apub flag flagseen qdone ml mlx end qready kdone vdone",
            "late": "qdone mlx wiss bar2 opub oseen spub sseen end issued qready kdone vdone"}
    def stamp(name, base=80):
        if stamps and name in sets[stamps].split() and not (stamps == "late" and role[0] == "S" and name == "issued"):
            k = len([x for x in stamp_list if x[0] == role[0]])
            stamp_list.append((role[0], name))
            A(f"s_memrealtime s[{base+2*k}:{base+2*k+1}]")
    role = ["S"]
    def rbf(dst, src):
        A(f"v_cvt_pk_bf16_f32 {dst}, {src}, {src}")
        A(f"v_and_b32 {dst}, 0xffff0000, {dst}")
    def masks(m0, lane, t0, t1):
        A(f"v_and_b32 v{t0}, 1, v{lane}")
        A(f"v_lshlrev_b32 v{t0}, 4, v{t0}")
        A(f"v_lshlrev_b32 v{t0}, v{t0}, s50")
        A(f"v_bfe_u32 v{t1}, v{lane}, 1, 2")
        for r in range(4):
            A(f"v_cmp_eq_u32 vcc, {r}, v{t1}")
            A(f"v_cndmask_b32 v{m0+r}, 0, v{t0}, vcc")
    def abuild(a0, p, m0, n):
        for r in range(4):
            A(f"v_and_b32_dpp v{a0+r}, v{p}, v{m0+r} row_newbcast:{n} row_mask:0xf bank_mask:0xf")
    def wave_red(op, v):
        for c in ("quad_perm:[1,0,3,2]", "quad_perm:[2,3,0,1]", "row_half_mirror", "row_mirror"):
            A(f"{op}_dpp v{v}, v{v}, v{v} {c} row_mask:0xf bank_mask:0xf")
        A(f"{op}_dpp v{v}, v{v}, v{v} row_bcast:15 row_mask:0xa bank_mask:0xf")
        A(f"{op}_dpp v{v}, v{v}, v{v} row_bcast:31 row_mask:0xc bank_mask:0xf")
    def srd(d, off, nbytes):
        A(f"s_load_dwordx2 s[{d}:{d+1}], s[0:1], {off}")
        A(f"s_mov_b32 s{d+2}, {nbytes}")
        A(f"s_mov_b32 s{d+3}, 0x20000")
    def dump_stamps():
        if not stamps: return
        mine = [x for x in stamp_list if x[0] == role[0]]
        A("s_mov_b64 exec, -1")
        A("s_waitcnt lgkmcnt(0)")
        for k in range(len(mine)):
            A(f"v_writelane_b32 v0, s{80+2*k}, {k}")
        A("s_getreg_b32 s48, hwreg(HW_REG_XCC_ID)")
        A("v_writelane_b32 v0, s48, 15")
        A("s_load_dwordx2 s[40:41], s[0:1], 88")
        A(f"s_mov_b32 s42, {WS_BYTES}")
        A("s_mov_b32 s43, 0x20000")
        A("s_mul_i32 s48, s2, 5"); A("s_add_u32 s48, s48, s3"); A("s_lshl_b32 s48, s48, 6"); A(f"s_add_u32 s48, s48, {WS_ST}")
        A("v_mbcnt_lo_u32_b32 v1, -1, 0"); A("v_lshlrev_b32 v1, 2, v1")
        A("s_mov_b64 exec, 0xffff")
        A("s_waitcnt lgkmcnt(0)")
        A("buffer_store_dword v0, v1, s[40:43], s48 offen")

    A(f"{KN}:")
    if stamps: A("s_memrealtime s[80:81]")
    A("v_lshrrev_b32 v1, 6, v0")
    A("s_cmp_ge_u32 s2, 256")
    A("s_cbranch_scc1 L_end")
    A("v_readfirstlane_b32 s3, v1")
    A("s_and_b32 s4, s2, 31")
    A("s_lshr_b32 s5, s2, 5")
    A("v_and_b32 v0, 63, v0")
    A("s_mov_b32 s50, 0xffff")
    A("s_cmp_eq_u32 s3, 4")
    A("s_cbranch_scc1 L_service")

    role[0] = "W"; stamp_list.append(("W", "start"));
    VL16, M0, Q0, S0, AB, D0, P0, T0, RING = 1, 2, 6, 10, 14, 22, 26, 42, 48
    srd(8, 8, 64 << 20); srd(12, 16, 64 << 20)
    A("s_lshl_b32 s48, s4, 21"); A("s_lshl_b32 s49, s5, 18"); A("s_add_u32 s48, s48, s49")
    A("s_lshl_b32 s49, s3, 12"); A("s_add_u32 s48, s48, s49")
    A("s_mov_b32 s49, s48")
    A(f"v_lshlrev_b32 v{VL16}, 4, v0")
    A("s_waitcnt lgkmcnt(0)")
    issued = [0]
    def issue():
        i = issued[0]; issued[0] += 1
        ii = i % 64; r = RING + 4 * (i % nslot); s = 8 if i < 64 else 12
        if i == 64: A("s_mov_b32 s49, s48")
        elif ii % 4 == 0 and i: A("s_addk_i32 s49, 0x4000")
        off = f" offset:{(ii%4)*1024}" if ii % 4 else ""
        A(f"buffer_load_dwordx4 v[{r}:{r+3}], v{VL16}, s[{s}:{s+3}], s49 offen{off} {kvflags}")
        if i == 127 - late:
            A(f"ds_write_b32 v{T0+4}, v{T0+5} offset:{LPROG}")
    for _ in range(8): issue()
    masks(M0, 0, T0, T0 + 1)
    A("s_mov_b32 s52, 0xcccccccc"); A("s_mov_b32 s53, 0xcccccccc")
    A("s_mov_b32 s54, 0xaaaaaaaa"); A("s_mov_b32 s55, 0xaaaaaaaa")
    A(f"v_and_b32 v{T0+2}, 15, v0"); A(f"v_lshlrev_b32 v{T0+2}, 4, v{T0+2}")
    A(f"v_mov_b32 v{T0+4}, s3"); A(f"v_lshlrev_b32 v{T0+4}, 2, v{T0+4}"); A(f"v_mov_b32 v{T0+5}, 1")
    for _ in range(nslot - 8): issue()
    stamp("issued")
    A("s_barrier")
    A(f"ds_read_b128 v[{Q0}:{Q0+3}], v{T0+2} offset:{LQ}")
    stamp("qready")
    A("s_waitcnt lgkmcnt(0)")
    def target(i):
        return max(dfin, nslot - (i + 1) // shrink) if shrink else nslot
    def wait_for(i):
        A(f"s_waitcnt vmcnt({issued[0] - 1 - i})")
    def maybe_issue(i):
        while issued[0] < 128 and issued[0] - (i + 1) < target(i): issue()
    for i in range(64):
        n = i % 16; r = RING + 4 * (i % nslot)
        A(f"v_mov_b32 v{P0+n}, 0")
        wait_for(i)
        for k in range(4): A(f"v_dot2c_f32_bf16 v{P0+n}, v{r+k}, v{Q0+k}")
        maybe_issue(i)
        if n == 15:
            a = i // 16
            for r_ in range(8):
                A(f"v_add_f32_dpp v{P0+r_}, v{P0+r_}, v{P0+r_} row_ror:8 row_mask:0xf bank_mask:0x3")
                A(f"v_add_f32_dpp v{P0+r_}, v{P0+r_+8}, v{P0+r_+8} row_ror:8 row_mask:0xf bank_mask:0xc")
            for r_ in range(4):
                A(f"v_add_f32_dpp v{P0+r_}, v{P0+r_}, v{P0+r_} row_half_mirror row_mask:0xf bank_mask:0x5")
                A(f"v_add_f32_dpp v{P0+r_}, v{P0+r_+4}, v{P0+r_+4} row_half_mirror row_mask:0xf bank_mask:0xa")
            for r_ in range(4):
                A(f"v_add_f32_dpp v{P0+r_}, v{P0+r_}, v{P0+r_} quad_perm:[2,3,0,1] row_mask:0xf bank_mask:0xf")
            A(f"v_cndmask_b32 v{P0}, v{P0}, v{P0+2}, s[52:53]")
            A(f"v_cndmask_b32 v{P0+1}, v{P0+1}, v{P0+3}, s[52:53]")
            for r_ in range(2):
                A(f"v_add_f32_dpp v{P0+r_}, v{P0+r_}, v{P0+r_} quad_perm:[1,0,3,2] row_mask:0xf bank_mask:0xf")
            A(f"v_cndmask_b32 v{S0+a}, v{P0}, v{P0+1}, s[54:55]")
            rbf(f"v{S0+a}", f"v{S0+a}")
            A(f"v_mul_f32 v{S0+a}, {SCALE}, v{S0+a}")
            rbf(f"v{S0+a}", f"v{S0+a}")
    stamp("kdone")
    A(f"v_max3_f32 v{T0}, v{S0}, v{S0+1}, v{S0+2}")
    A(f"v_max_f32 v{T0}, v{T0}, v{S0+3}")
    wave_red("v_max_f32", T0)
    A(f"v_readlane_b32 s51, v{T0}, 63")
    for a in range(4): A(f"v_subrev_f32 v{S0+a}, s51, v{S0+a}")
    for a in range(4): A(f"v_mul_f32 v{S0+a}, {LOG2E}, v{S0+a}")
    for a in range(4): A(f"v_exp_f32 v{S0+a}, v{S0+a}")
    A(f"v_add_f32 v{T0+1}, v{S0}, v{S0+1}")
    A(f"v_add_f32 v{T0+3}, v{S0+2}, v{S0+3}")
    A(f"v_add_f32 v{T0+1}, v{T0+1}, v{T0+3}")
    for a in range(4): A(f"v_cvt_pk_bf16_f32 v{S0+a}, v{S0+a}, v{S0+a}")
    abuild(AB, S0, M0, 0)
    wave_red("v_add_f32", T0 + 1)
    A(f"v_lshlrev_b32 v{T0+3}, 1, v{T0+4}")
    A("s_mov_b32 exec_lo, 0"); A("s_mov_b32 exec_hi, 0x80000000")
    A(f"ds_write_b64 v{T0+3}, v[{T0}:{T0+1}] offset:{LML}")
    A("s_mov_b64 exec, -1")
    for i in range(64, 128):
        n = i % 16; a = (i - 64) // 16; r = RING + 4 * (i % nslot); ab = AB + 4 * (i & 1)
        wait_for(i)
        c = f"v[{D0}:{D0+3}]" if i > 64 else "0"
        A(f"v_mfma_f32_16x16x32_bf16 v[{D0}:{D0+3}], v[{ab}:{ab+3}], v[{r}:{r+3}], {c}")
        if i < 127: abuild(AB + 4 * ((i + 1) & 1), S0 + (i + 1 - 64) // 16, M0, (i + 1) % 16)
        maybe_issue(i)
        if i == 124:
            A(f"v_and_b32 v{T0}, 15, v0"); A(f"v_lshlrev_b32 v{T0}, 5, v{T0}")
            A(f"v_and_b32 v{T0+1}, 16, v0"); A(f"v_add_u32 v{T0}, v{T0}, v{T0+1}")
            A(f"v_lshl_add_u32 v{T0}, v{T0+4}, 7, v{T0}")
    stamp("vdone")
    A("s_mov_b32 exec_hi, 0")
    A(f"ds_write_b128 v{T0}, v[{D0}:{D0+3}] offset:{LO}")
    A("s_waitcnt lgkmcnt(0)")
    A("s_barrier")
    dump_stamps()
    A("s_endpgm")

    role[0] = "S"; stamp_list.append(("S", "start"))
    G, J, M0, AB, DQ, DG, PD, T0 = 1, 2, 4, 8, 16, 20, 3, 24
    XA, XR, GA, VA, XF, PH = 40, 44, 46, 48, 49, 50
    WQ, GU = 64, 128
    A("L_service:")
    A("s_setprio 3")
    srd(16, 0, 1024); srd(20, 24, 4 << 20); srd(24, 32, 4 << 20); srd(28, 64, 1376 * 1024)
    srd(32, 72, 1024); srd(36, 80, 256); srd(40, 88, WS_BYTES)
    A("s_load_dwordx4 s[44:47], s[0:1], 48")
    A(f"v_lshrrev_b32 v{G}, 4, v0"); A(f"v_and_b32 v{J}, 15, v0")
    A("s_lshl_b32 s6, s4, 3"); A("s_add_u32 s6, s6, s5")
    A("s_and_b32 s7, s4, 7"); A("s_lshl_b32 s7, s7, 2"); A("s_lshr_b32 s48, s4, 3"); A("s_add_u32 s7, s7, s48")
    A("s_mul_i32 s56, s7, 43"); A("s_add_u32 s57, s56, 43"); A("s_lshr_b32 s56, s56, 3"); A("s_lshr_b32 s57, s57, 3")
    A("s_sub_u32 s57, s57, s56")
    A("s_and_b32 s58, s5, 3"); A("s_lshr_b32 s59, s5, 2")
    A(f"v_lshlrev_b32 v{T0}, 4, v0")
    A("s_lshl_b32 s48, s5, 7")
    A(f"v_lshlrev_b32 v{T0+1}, 1, v0")
    A(f"v_lshlrev_b32 v{T0+3}, 4, v{J}")
    A(f"v_lshl_add_u32 v{T0+2}, v{G}, 17, v{T0+3}")
    A("s_lshl_b32 s49, s5, 19"); A("s_lshl_b32 s51, s4, 8"); A("s_add_u32 s49, s49, s51")
    A(f"v_and_b32 v{T0+4}, 7, v0")
    A(f"v_cmp_gt_u32 vcc, s57, v{T0+4}")
    A(f"v_cndmask_b32 v{T0+4}, 0, v{T0+4}, vcc")
    A(f"v_add_u32 v{T0+4}, s56, v{T0+4}"); A(f"v_lshlrev_b32 v{T0+4}, 4, v{T0+4}")
    A("s_mov_b32 s51, 44032")
    A(f"v_mad_u32_u24 v{T0+4}, v{G}, s51, v{T0+4}")
    A("s_mul_i32 s51, s5, 176128"); A(f"v_add_u32 v{T0+4}, s51, v{T0+4}")
    A(f"v_mov_b32 v{T0+5}, 0")
    A(f"v_cmp_lt_u32 vcc, 7, v{J}")
    A("s_waitcnt lgkmcnt(0)")
    A(f"buffer_load_dwordx4 v[{XA}:{XA+3}], v{T0}, s[16:19], 0 offen")
    A(f"buffer_load_ushort v{XR}, v{T0+1}, s[16:19], s48 offen")
    A(f"v_mov_b32 v{T0+6}, s44"); A(f"v_mov_b32 v{T0+7}, s45"); A(f"v_mov_b32 v{T0+8}, s46"); A(f"v_mov_b32 v{T0+9}, s47")
    A(f"v_cndmask_b32 v{GA}, v{T0+6}, v{T0+8}, vcc"); A(f"v_cndmask_b32 v{GA+1}, v{T0+7}, v{T0+9}, vcc")
    A(f"v_lshl_add_u64 v[{GA}:{GA+1}], v[{T0+4}:{T0+5}], 0, v[{GA}:{GA+1}]")
    A("s_mov_b32 s60, 5504"); A("s_mov_b32 s61, 0")
    for n in range(16):
        A(f"buffer_load_dwordx4 v[{WQ+4*n}:{WQ+4*n+3}], v{T0+2}, s[20:23], s49 offen {wflags}")
        A(f"global_load_dwordx4 v[{GU+4*n}:{GU+4*n+3}], v[{GA}:{GA+1}], off{' offset:2752' if n & 1 else ''} {wflags}")
        if n < 15: A("s_addk_i32 s49, 0x2000")
        if n & 1 and n < 15: A(f"v_lshl_add_u64 v[{GA}:{GA+1}], v[{GA}:{GA+1}], 0, s[60:61]")
    stamp("issued")
    A(f"v_mov_b32 v{T0+6}, -1"); A(f"v_cmp_gt_u32 vcc, 8, v0"); A(f"v_cndmask_b32 v{T0+6}, 0, v{T0+6}, vcc")
    A(f"v_lshlrev_b32 v{T0+7}, 2, v0")
    A("s_mov_b64 exec, 0xffff")
    A(f"ds_write_b32 v{T0+7}, v{T0+6} offset:{LML}")
    A("s_mov_b64 exec, -1")
    masks(M0, 0, T0 + 6, T0 + 7)
    A("s_waitcnt vmcnt(32)")
    stamp("x")
    for k in range(4):
        A(f"v_lshlrev_b32 v{T0+2*k}, 16, v{XA+k}"); A(f"v_and_b32 v{T0+2*k+1}, 0xffff0000, v{XA+k}")
    A(f"v_add_f32 v{T0+8}, v{T0}, v{T0+1}"); A(f"v_add_f32 v{T0+9}, v{T0+2}, v{T0+3}")
    A(f"v_add_f32 v{T0+10}, v{T0+4}, v{T0+5}"); A(f"v_add_f32 v{T0+11}, v{T0+6}, v{T0+7}")
    A(f"v_add_f32 v{T0+8}, v{T0+8}, v{T0+9}"); A(f"v_add_f32 v{T0+10}, v{T0+10}, v{T0+11}")
    A(f"v_add_f32 v{T0+8}, v{T0+8}, v{T0+10}")
    wave_red("v_add_f32", T0 + 8)
    A(f"v_mul_f32 v{T0+8}, 0x3b000000, v{T0+8}")
    A(f"v_readlane_b32 s51, v{T0+8}, 63")
    for k in range(8): A(f"v_subrev_f32 v{T0+k}, s51, v{T0+k}")
    A(f"v_mul_f32 v{T0+9}, v{T0}, v{T0}"); A(f"v_mul_f32 v{T0+10}, v{T0+1}, v{T0+1}")
    for k in range(2, 8, 2):
        A(f"v_fmac_f32 v{T0+9}, v{T0+k}, v{T0+k}"); A(f"v_fmac_f32 v{T0+10}, v{T0+k+1}, v{T0+k+1}")
    A(f"v_add_f32 v{T0+9}, v{T0+9}, v{T0+10}")
    wave_red("v_add_f32", T0 + 9)
    A(f"v_mul_f32 v{T0+9}, 0x3b000000, v{T0+9}")
    rbf(f"v{T0+9}", f"v{T0+9}")
    A(f"v_add_f32 v{T0+9}, 0x3727c5ac, v{T0+9}")
    rbf(f"v{T0+9}", f"v{T0+9}")
    A(f"v_sqrt_f32 v{T0+9}, v{T0+9}")
    rbf(f"v{T0+8}", f"v{T0+8}")
    rbf(f"v{T0+9}", f"v{T0+9}")
    A(f"v_readlane_b32 s51, v{T0+8}, 63"); A(f"v_readlane_b32 s62, v{T0+9}, 63")
    A(f"v_lshlrev_b32 v{XR}, 16, v{XR}")
    A(f"v_rcp_f32 v{T0+10}, s62")
    A(f"v_subrev_f32 v{XR}, s51, v{XR}")
    rbf(f"v{XR}", f"v{XR}")
    A(f"v_mul_f32 v{T0+11}, v{XR}, v{T0+10}")
    A(f"v_fma_f32 v{T0+12}, -v{T0+11}, s62, v{XR}")
    A(f"v_fmac_f32 v{T0+11}, v{T0+12}, v{T0+10}")
    A(f"v_cvt_pk_bf16_f32 v{PD}, v{T0+11}, v{T0+11}")
    stamp("ln")
    abuild(AB, PD, M0, 0)
    for n in range(16):
        ab = AB + 4 * (n & 1)
        A(f"s_waitcnt vmcnt({30-2*n})")
        A(f"v_mfma_f32_16x16x32_bf16 v[{DQ}:{DQ+3}], v[{ab}:{ab+3}], v[{WQ+4*n}:{WQ+4*n+3}], {f'v[{DQ}:{DQ+3}]' if n else 0}")
        A(f"v_mfma_f32_16x16x32_bf16 v[{DG}:{DG+3}], v[{ab}:{ab+3}], v[{GU+4*n}:{GU+4*n+3}], {f'v[{DG}:{DG+3}]' if n else 0}")
        if n < 15: abuild(AB + 4 * ((n + 1) & 1), PD, M0, n + 1)
    L16 = T0 + 15; OUTA = VA
    A(f"v_lshlrev_b32 v{L16}, 4, v0")
    A(f"v_lshlrev_b32 v{OUTA}, 5, v{J}"); A(f"v_and_b32 v{T0}, 16, v0"); A(f"v_add_u32 v{OUTA}, v{OUTA}, v{T0}")
    A("s_lshl_b32 s63, s6, 9"); A(f"s_add_u32 s63, s63, {WS_O}")
    A("s_lshl_b32 s64, s58, 6"); A("s_lshl_b32 s48, s4, 1"); A("s_add_u32 s64, s64, s48"); A("s_add_u32 s64, s64, s59")
    A("s_lshl_b32 s64, s64, 9"); A(f"s_add_u32 s65, s64, {WS_Y}"); A(f"s_add_u32 s64, s64, {WS_S}")
    A("s_lshl_b32 s66, s6, 4"); A(f"s_add_u32 s66, s66, {WS_ML}")
    A("s_lshl_b32 s67, s6, 10")
    A("s_mov_b32 s68, 0"); A("s_mov_b32 s69, -1")
    A(f"v_and_b32 v{T0}, 0x1ff, v{L16}")
    A(f"v_mov_b32 v{T0+1}, s63"); A(f"v_mov_b32 v{T0+2}, s64"); A(f"v_cndmask_b32 v{T0+1}, v{T0+1}, v{T0+2}, s[68:69]")
    A(f"v_add_u32 v{T0+1}, v{T0+1}, v{T0}")
    A(f"v_mov_b32 v{T0+2}, s65"); A(f"v_mov_b32 v{T0+3}, s66"); A(f"v_cndmask_b32 v{T0+2}, v{T0+2}, v{T0+3}, s[68:69]")
    A(f"v_add_u32 v{T0+2}, v{T0+2}, v{T0}")
    for k in range(4): A(f"v_mov_b32 v{T0+4+k}, -1")
    for k in range(4): A(f"v_cndmask_b32 v{DQ+k}, v{DQ+k}, v{DG+k}, s[68:69]")
    A(f"buffer_store_dwordx4 v[{DQ}:{DQ+3}], v{L16}, s[40:43], s67 offen sc1")
    A(f"buffer_store_dwordx4 v[{T0+4}:{T0+7}], v{T0+1}, s[40:43], 0 offen sc1")
    A("s_mov_b32 exec_hi, 1")
    A(f"buffer_store_dwordx4 v[{T0+4}:{T0+7}], v{T0+2}, s[40:43], 0 offen sc1")
    A("s_mov_b64 exec, 1")
    stamp("apub")
    A(f"v_mov_b32 v{T0}, s6"); A(f"v_mov_b32 v{T0+1}, 0x80")
    A("s_lshl_b32 s48, s4, 3"); A(f"v_mov_b32 v{T0+2}, s48")
    A("s_waitcnt vmcnt(0)")
    A(f"buffer_store_byte v{T0+1}, v{T0}, s[36:39], 0 offen sc1")
    stamp("flag")
    A(f"s_mov_b32 s70, {SPIN}")
    A("L_pollA:")
    A(f"buffer_load_dwordx2 v[{T0+4}:{T0+5}], v{T0+2}, s[36:39], 0 offen sc1")
    A("s_sub_u32 s70, s70, 1"); A("s_cbranch_scc1 L_pollA_done")
    A("s_waitcnt vmcnt(0)")
    A(f"v_and_b32 v{T0+4}, v{T0+4}, v{T0+5}")
    A(f"v_cmp_ne_u32 vcc, 0x80808080, v{T0+4}")
    A("s_nop 1")
    A("s_cbranch_vccnz L_pollA")
    A("L_pollA_done:")
    A("s_mov_b64 exec, -1")
    stamp("flagseen")
    A("s_lshl_b32 s48, s4, 13")
    for k in range(8):
        A(f"buffer_load_dwordx4 v[{WQ+4*k}:{WQ+4*k+3}], v{L16}, s[40:43], s48 offen{f' offset:{(k&3)*1024}' if k & 3 else ''} sc1")
        if k == 3: A("s_addk_i32 s48, 0x1000")
    A(f"v_lshrrev_b32 v{T0}, 1, v{OUTA}")
    A("s_waitcnt vmcnt(0)")
    for k in range(4):
        A(f"v_add_f32 v{WQ+k}, v{WQ+k}, v{WQ+4+k}"); A(f"v_add_f32 v{WQ+8+k}, v{WQ+8+k}, v{WQ+12+k}")
        A(f"v_add_f32 v{WQ+16+k}, v{WQ+16+k}, v{WQ+20+k}"); A(f"v_add_f32 v{WQ+24+k}, v{WQ+24+k}, v{WQ+28+k}")
    for k in range(4):
        A(f"v_add_f32 v{WQ+k}, v{WQ+k}, v{WQ+8+k}"); A(f"v_add_f32 v{WQ+16+k}, v{WQ+16+k}, v{WQ+24+k}")
    for k in range(4): A(f"v_add_f32 v{WQ+k}, v{WQ+k}, v{WQ+16+k}")
    A(f"v_cvt_pk_bf16_f32 v{T0+2}, v{WQ}, v{WQ+1}"); A(f"v_cvt_pk_bf16_f32 v{T0+3}, v{WQ+2}, v{WQ+3}")
    A("s_mov_b32 exec_hi, 0")
    A(f"ds_write_b64 v{T0}, v[{T0+2}:{T0+3}] offset:{LQ}")
    A("s_mov_b64 exec, -1")
    A("s_waitcnt lgkmcnt(0)")
    A("s_barrier")
    stamp("qdone")
    A("s_setprio 0")
    for k in range(4): rbf(f"v{WQ+k}", f"v{WQ+k}")
    for k in range(4): A(f"v_mov_b32_dpp v{T0+4+k}, v{WQ+k} row_ror:8 row_mask:0xf bank_mask:0xf")
    for k in range(4): A(f"v_mul_f32 v{WQ+k}, 0xbfb8aa3b, v{WQ+k}")
    for k in range(4): A(f"v_exp_f32 v{WQ+k}, v{WQ+k}")
    for k in range(4): A(f"v_add_f32 v{WQ+k}, 1.0, v{WQ+k}")
    for k in range(4): A(f"v_rcp_f32 v{WQ+k}, v{WQ+k}")
    for k in range(4): rbf(f"v{WQ+k}", f"v{WQ+k}")
    for k in range(4): A(f"v_mul_f32 v{WQ+k}, v{WQ+k}, v{T0+4+k}")
    A(f"v_cmp_gt_u32 vcc, s57, v{J}")
    for k in range(4): A(f"v_cvt_pk_bf16_f32 v{WQ+k}, v{WQ+k}, v{WQ+k}")
    for k in range(4): A(f"v_cndmask_b32 v{WQ+k}, 0, v{WQ+k}, vcc")
    A("s_mov_b32 exec_lo, 0"); A("s_mov_b32 exec_hi, 0x00ff00ff")
    A(f"ds_write_b128 v{OUTA}, v[{WQ}:{WQ+3}] offset:{LH}")
    A("s_mov_b64 exec, -1")
    A("s_mul_i32 s48, s59, 24")
    A(f"v_mul_u32_u24 v{T0}, 6, v{G}"); A(f"v_add_u32 v{T0}, s48, v{T0}")
    A(f"v_add_lshl_u32 v{T0+1}, v{T0}, v{J}, 2")
    A("s_waitcnt lgkmcnt(0)")
    A(f"ds_read_b32 v{PH}, v{T0+1} offset:{LH}")
    WDA = 52
    A("s_lshl_b32 s48, s57, 3"); A("s_lshl_b32 s49, s56, 3")
    A(f"v_lshlrev_b32 v{T0+2}, 4, v{J}")
    for n in range(6):
        A(f"v_add_u32 v{T0+3}, {n}, v{T0}")
        A(f"v_cmp_gt_u32 vcc, s48, v{T0+3}")
        A(f"v_add_u32 v{T0+3}, s49, v{T0+3}")
        A(f"v_lshl_add_u32 v{T0+3}, v{T0+3}, 10, v{T0+2}")
        A(f"v_mov_b32 v{WDA+n}, 0x7ffffff0")
        A(f"v_cndmask_b32 v{WDA+n}, v{WDA+n}, v{T0+3}, vcc")
    WOA = 58
    A(f"v_lshl_add_u32 v{WOA}, v{G}, 14, v{T0+2}")
    A("s_lshl_b32 s71, s4, 17"); A("s_lshl_b32 s48, s59, 16"); A("s_add_u32 s71, s71, s48")
    A("s_lshl_b32 s72, s58, 8"); A("s_add_u32 s71, s71, s72")
    RA = 59
    A(f"v_and_b32 v{T0+3}, 3, v0"); A(f"v_lshl_add_u32 v{T0+4}, v{T0+3}, 2, v{G}")
    A("s_lshl_b32 s48, s4, 4"); A(f"v_add_lshl_u32 v{XF+0}, v{T0+4}, s48, 1")
    A(f"v_lshrrev_b32 v{RA}, 2, v0"); A(f"v_lshlrev_b32 v{RA}, 9, v{RA}"); A(f"v_lshl_add_u32 v{RA}, v{T0+3}, 4, v{RA}")
    A("s_and_b32 s48, s4, 7"); A("s_lshl_b32 s48, s48, 6"); A("s_lshr_b32 s73, s4, 3"); A("s_lshl_b32 s73, s73, 15"); A("s_add_u32 s73, s73, s48")
    A("s_cmp_lg_u32 s5, 0"); A("s_cbranch_scc1 L_notred0")
    A(f"buffer_load_ushort v{51}, v{XF}, s[16:19], 0 offen")
    A(f"v_lshlrev_b32 v{T0+3}, 2, v0")
    A(f"s_mov_b32 s70, {SPIN}")
    A("L_pollF:")
    A(f"buffer_load_dword v{T0+4}, v{T0+3}, s[36:39], 0 offen sc1")
    A("s_sub_u32 s70, s70, 1"); A("s_cbranch_scc1 L_pollF_done")
    A("s_waitcnt vmcnt(0)")
    A(f"v_cmp_ne_u32 vcc, 0x80808080, v{T0+4}")
    A("s_nop 1")
    A("s_cbranch_vccnz L_pollF")
    A("L_pollF_done:")
    A(f"v_lshlrev_b32 v51, 16, v51")
    A("L_notred0:")
    A(f"v_and_b32 v{T0}, 3, v0"); A(f"v_lshlrev_b32 v{T0}, 3, v{T0}")
    A(f"s_mov_b32 s70, {SPIN}")
    A("L_pollML:")
    A("s_sleep 2")
    A(f"ds_read_b64 v[{T0+2}:{T0+3}], v{T0} offset:{LML}")
    A("s_sub_u32 s70, s70, 1"); A("s_cbranch_scc1 L_pollML_done")
    A("s_waitcnt lgkmcnt(0)")
    A(f"v_cmp_eq_u32 vcc, -1, v{T0+3}")
    A("s_nop 1")
    A("s_cbranch_vccnz L_pollML")
    A("L_pollML_done:")
    stamp("ml")
    A(f"v_max_f32_dpp v{T0+4}, v{T0+2}, v{T0+2} quad_perm:[1,0,3,2] row_mask:0xf bank_mask:0xf")
    A(f"v_max_f32_dpp v{T0+4}, v{T0+4}, v{T0+4} quad_perm:[2,3,0,1] row_mask:0xf bank_mask:0xf")
    A(f"v_sub_f32 v{T0+5}, v{T0+2}, v{T0+4}"); A(f"v_mul_f32 v{T0+5}, {LOG2E}, v{T0+5}"); A(f"v_exp_f32 v{T0+5}, v{T0+5}")
    A(f"v_mul_f32 v{T0+5}, v{T0+5}, v{T0+3}")
    A(f"v_add_f32_dpp v{T0+5}, v{T0+5}, v{T0+5} quad_perm:[1,0,3,2] row_mask:0xf bank_mask:0xf")
    A(f"v_add_f32_dpp v{T0+5}, v{T0+5}, v{T0+5} quad_perm:[2,3,0,1] row_mask:0xf bank_mask:0xf")
    A(f"v_min_u32 v{T0+4}, -2, v{T0+4}"); A(f"v_min_u32 v{T0+5}, -2, v{T0+5}")
    A(f"v_mov_b32 v{T0+1}, 0")
    A("s_mov_b64 exec, 1")
    A(f"buffer_store_dwordx2 v[{T0+4}:{T0+5}], v{T0+1}, s[40:43], s66 offen sc1")
    A("s_mov_b64 exec, -1")
    A(f"v_and_b32 v{T0+1}, 7, v0"); A(f"v_lshlrev_b32 v{T0+1}, 4, v{T0+1}")
    A("s_lshl_b32 s48, s4, 7"); A(f"s_add_u32 s48, s48, {WS_ML}")
    A(f"s_mov_b32 s70, {SPIN}")
    A("L_pollML2:")
    A(f"buffer_load_dwordx2 v[{T0+4}:{T0+5}], v{T0+1}, s[40:43], s48 offen sc1")
    A("s_sub_u32 s70, s70, 1"); A("s_cbranch_scc1 L_pollML2_done")
    A("s_waitcnt vmcnt(0)")
    A(f"v_max_u32 v{T0+6}, v{T0+4}, v{T0+5}")
    A(f"v_cmp_eq_u32 vcc, -1, v{T0+6}")
    A("s_nop 1")
    A("s_cbranch_vccnz L_pollML2")
    A("L_pollML2_done:")
    A(f"v_max_f32_dpp v{T0+6}, v{T0+4}, v{T0+4} quad_perm:[1,0,3,2] row_mask:0xf bank_mask:0xf")
    A(f"v_max_f32_dpp v{T0+6}, v{T0+6}, v{T0+6} quad_perm:[2,3,0,1] row_mask:0xf bank_mask:0xf")
    A(f"v_max_f32_dpp v{T0+6}, v{T0+6}, v{T0+6} row_half_mirror row_mask:0xf bank_mask:0xf")
    A(f"v_sub_f32 v{T0+4}, v{T0+4}, v{T0+6}"); A(f"v_sub_f32 v{T0+2}, v{T0+2}, v{T0+6}")
    A(f"v_mul_f32 v{T0+4}, {LOG2E}, v{T0+4}"); A(f"v_mul_f32 v{T0+2}, {LOG2E}, v{T0+2}")
    A(f"v_exp_f32 v{T0+4}, v{T0+4}"); A(f"v_exp_f32 v{T0+2}, v{T0+2}")
    A(f"v_mul_f32 v{T0+4}, v{T0+4}, v{T0+5}")
    A(f"v_add_f32_dpp v{T0+4}, v{T0+4}, v{T0+4} quad_perm:[1,0,3,2] row_mask:0xf bank_mask:0xf")
    A(f"v_add_f32_dpp v{T0+4}, v{T0+4}, v{T0+4} quad_perm:[2,3,0,1] row_mask:0xf bank_mask:0xf")
    A(f"v_add_f32_dpp v{T0+4}, v{T0+4}, v{T0+4} row_half_mirror row_mask:0xf bank_mask:0xf")
    A(f"v_rcp_f32 v{T0+4}, v{T0+4}")
    A(f"v_mul_f32 v{T0+2}, v{T0+2}, v{T0+4}")
    for w in range(4): A(f"v_readlane_b32 s{74+w}, v{T0+2}, {w}")
    stamp("mlx")
    OGA = 60
    A("s_lshl_b32 s48, s59, 8"); A(f"v_lshl_add_u32 v{OGA}, v0, 2, s48")
    A("s_lshl_b32 s78, s4, 12"); A(f"s_add_u32 s78, s78, {WS_O}")
    A(f"v_mov_b32 v{T0}, 0")
    A(f"s_mov_b32 s70, {SPIN}")
    A("L_pollP:")
    A("s_sleep 2")
    A(f"ds_read_b128 v[{T0+4}:{T0+7}], v{T0} offset:{LPROG}")
    A("s_sub_u32 s70, s70, 1"); A("s_cbranch_scc1 L_pollP_done")
    A("s_waitcnt lgkmcnt(0)")
    A(f"v_or3_b32 v{T0+4}, v{T0+4}, v{T0+5}, v{T0+6}"); A(f"v_or_b32 v{T0+4}, v{T0+4}, v{T0+7}")
    A(f"v_cmp_eq_u32 vcc, 0, v{T0+4}")
    A("s_nop 1")
    A("s_cbranch_vccnz L_pollP")
    A("L_pollP_done:")
    A("s_setprio 3")
    WO, WD = 64, 128
    for n in range(6): A(f"buffer_load_dwordx4 v[{WD+4*n}:{WD+4*n+3}], v{WDA+n}, s[28:31], s72 offen {wflags}")
    for n in range(16):
        A(f"buffer_load_dwordx4 v[{WO+4*n}:{WO+4*n+3}], v{WOA}, s[24:27], s71 offen{f' offset:{(n&3)*1024}' if n & 3 else ''} {wflags}")
        if n & 3 == 3 and n < 15: A("s_addk_i32 s71, 0x1000")
    stamp("wiss")
    abuild(AB, PH, M0, 0)
    A("s_mov_b32 exec_hi, 0")
    A("s_barrier")
    for w in range(4): A(f"ds_read_b128 v[{T0+4*w}:{T0+4*w+3}], v{OUTA} offset:{LO+512*w}")
    stamp("bar2")
    for w in range(4):
        A(f"s_waitcnt lgkmcnt({3-w})") if not stamps else A("s_waitcnt lgkmcnt(0)")
        for k in range(4):
            if w == 0: A(f"v_mul_f32 v{DQ+k}, s74, v{T0+k}")
            else: A(f"v_fmac_f32 v{DQ+k}, s{74+w}, v{T0+4*w+k}")
    for k in range(4): A(f"v_min_u32 v{DQ+k}, -2, v{DQ+k}")
    A(f"buffer_store_dwordx4 v[{DQ}:{DQ+3}], v{OUTA}, s[40:43], s63 offen sc1")
    A("s_mov_b64 exec, -1")
    stamp("opub")
    for n in range(6):
        ab = AB + 4 * (n & 1)
        A(f"s_waitcnt vmcnt({21-n})")
        A(f"v_mfma_f32_16x16x32_bf16 v[{DG}:{DG+3}], v[{ab}:{ab+3}], v[{WD+4*n}:{WD+4*n+3}], {f'v[{DG}:{DG+3}]' if n else 0}")
        if n < 5: abuild(AB + 4 * ((n + 1) & 1), PH, M0, n + 1)
    A(f"s_mov_b32 s70, {SPIN}")
    for k in range(4): A(f"v_min_u32 v{DG+k}, -2, v{DG+k}")
    A("s_mov_b32 exec_hi, 0")
    A(f"buffer_store_dwordx4 v[{DG}:{DG+3}], v{OUTA}, s[40:43], s65 offen sc1")
    A("s_mov_b64 exec, -1")
    A("L_pollO:")
    for k in range(8): A(f"buffer_load_dword v{T0+k}, v{OGA}, s[40:43], s78 offen{f' offset:{k*512}' if k else ''} sc1")
    A("s_sub_u32 s70, s70, 1"); A("s_cbranch_scc1 L_pollO_done")
    A("s_waitcnt vmcnt(0)")
    A(f"v_max3_u32 v{T0+8}, v{T0}, v{T0+1}, v{T0+2}"); A(f"v_max3_u32 v{T0+9}, v{T0+3}, v{T0+4}, v{T0+5}")
    A(f"v_max3_u32 v{T0+8}, v{T0+8}, v{T0+6}, v{T0+7}"); A(f"v_max_u32 v{T0+8}, v{T0+8}, v{T0+9}")
    A(f"v_cmp_eq_u32 vcc, -1, v{T0+8}")
    A(f"v_add_f32 v{T0+10}, v{T0}, v{T0+1}"); A(f"v_add_f32 v{T0+11}, v{T0+2}, v{T0+3}")
    A("s_cbranch_vccnz L_pollO")
    A("L_pollO_done:")
    stamp("oseen")
    A(f"v_add_f32 v{T0+12}, v{T0+4}, v{T0+5}"); A(f"v_add_f32 v{T0+13}, v{T0+6}, v{T0+7}")
    A(f"v_add_f32 v{T0+10}, v{T0+10}, v{T0+11}"); A(f"v_add_f32 v{T0+12}, v{T0+12}, v{T0+13}")
    A(f"v_add_f32 v{T0+10}, v{T0+10}, v{T0+12}")
    A(f"v_cvt_pk_bf16_f32 v{PD}, v{T0+10}, v{T0+10}")
    abuild(AB, PD, M0, 0)
    for n in range(16):
        ab = AB + 4 * (n & 1)
        if n < 15: abuild(AB + 4 * ((n + 1) & 1), PD, M0, n + 1)
        A(f"v_mfma_f32_16x16x32_bf16 v[{DQ}:{DQ+3}], v[{ab}:{ab+3}], v[{WO+4*n}:{WO+4*n+3}], {f'v[{DQ}:{DQ+3}]' if n else 0}")
    A("s_mov_b32 exec_hi, 0")
    for k in range(4): A(f"v_min_u32 v{DQ+k}, -2, v{DQ+k}")
    A(f"buffer_store_dwordx4 v[{DQ}:{DQ+3}], v{OUTA}, s[40:43], s64 offen sc1")
    A("s_mov_b64 exec, -1")
    stamp("spub")
    A("s_cmp_lg_u32 s5, 0"); A("s_cbranch_scc1 L_sdone")
    YG, SG = 128, 144
    A(f"s_add_u32 s48, s73, {WS_Y}"); A(f"s_add_u32 s49, s73, {WS_S}")
    A(f"s_add_u32 s51, s48, 8192"); A(f"s_add_u32 s56, s48, 16384"); A(f"s_add_u32 s57, s48, 24576")
    A(f"s_add_u32 s60, s49, 8192"); A(f"s_add_u32 s61, s49, 16384"); A(f"s_add_u32 s62, s49, 24576")
    def gather(base, sregs):
        for k in range(4): A(f"buffer_load_dwordx4 v[{base+4*k}:{base+4*k+3}], v{RA}, s[40:43], s{sregs[k]} offen sc1")
    def valid(base):
        A(f"v_max3_u32 v{T0}, v{base}, v{base+1}, v{base+2}"); A(f"v_max3_u32 v{T0+1}, v{base+3}, v{base+4}, v{base+5}")
        for k in (6, 10):
            A(f"v_max3_u32 v{T0}, v{T0}, v{base+k}, v{base+k+1}"); A(f"v_max3_u32 v{T0+1}, v{T0+1}, v{base+k+2}, v{base+k+3}")
        A(f"v_max3_u32 v{T0}, v{T0}, v{base+14}, v{base+15}"); A(f"v_max_u32 v{T0}, v{T0}, v{T0+1}")
        A(f"v_cmp_eq_u32 vcc, -1, v{T0}")
        A("s_nop 1")
    def reduce(base):
        for k in range(4):
            A(f"v_add_f32 v{base+k}, v{base+k}, v{base+4+k}"); A(f"v_add_f32 v{base+8+k}, v{base+8+k}, v{base+12+k}")
        for k in range(4): A(f"v_add_f32 v{base+k}, v{base+k}, v{base+8+k}")
        A(f"v_permlane32_swap_b32 v{base}, v{base+2}"); A(f"v_permlane32_swap_b32 v{base+1}, v{base+3}")
        A(f"v_add_f32 v{base}, v{base}, v{base+2}"); A(f"v_add_f32 v{base+1}, v{base+1}, v{base+3}")
        A(f"v_permlane16_swap_b32 v{base}, v{base+1}")
        A(f"v_add_f32 v{base}, v{base}, v{base+1}")
        A(f"v_add_f32_dpp v{base}, v{base}, v{base} row_ror:4 row_mask:0xf bank_mask:0xf")
        A(f"v_add_f32_dpp v{base}, v{base}, v{base} row_ror:8 row_mask:0xf bank_mask:0xf")
        rbf(f"v{base}", f"v{base}")
    A(f"s_mov_b32 s70, {SPIN}")
    A("L_pollY:")
    gather(YG, (48, 51, 56, 57)); gather(SG, (49, 60, 61, 62))
    A("s_sub_u32 s70, s70, 1"); A("s_cbranch_scc1 L_pollY_done")
    A("s_waitcnt vmcnt(4)")
    valid(YG)
    A("s_cbranch_vccnz L_pollY")
    A("L_pollY_done:")
    reduce(YG)
    A(f"v_mul_f32 v{T0+4}, 0xbfb8aa3b, v{YG}"); A(f"v_exp_f32 v{T0+4}, v{T0+4}"); A(f"v_add_f32 v{T0+4}, 1.0, v{T0+4}")
    A(f"v_rcp_f32 v{T0+4}, v{T0+4}"); A(f"v_mul_f32 v{YG}, v{YG}, v{T0+4}")
    rbf(f"v{YG}", f"v{YG}")
    A("s_branch L_chkS")
    A("L_pollS:")
    gather(SG, (49, 60, 61, 62))
    A("s_sub_u32 s70, s70, 1"); A("s_cbranch_scc1 L_pollS_done")
    A("L_chkS:")
    A("s_waitcnt vmcnt(0)")
    valid(SG)
    A("s_cbranch_vccnz L_pollS")
    A("L_pollS_done:")
    stamp("sseen")
    reduce(SG)
    A(f"v_mul_f32 v{SG}, v{SG}, v{YG}")
    rbf(f"v{SG}", f"v{SG}")
    A(f"v_add_f32 v{SG}, v{SG}, v51")
    A(f"v_cvt_pk_bf16_f32 v{SG}, v{SG}, v{SG}")
    A("s_mov_b32 exec_lo, 0x000f000f"); A("s_mov_b32 exec_hi, 0x000f000f")
    A(f"buffer_store_short v{SG}, v{XF}, s[32:35], 0 offen")
    A("L_sdone:")
    if stamps:
        A("s_waitcnt vmcnt(0)")
    stamp("end")
    dump_stamps()
    A("L_end:")
    A("s_endpgm")

    body = A.fix()
    hdr = open("cdna_kernels/" + NAME + ".s.ref").read().split("\n")
    hdr = [l for l in hdr if l.startswith(";") and "@launch" not in l and "Override" not in l and "grid=ceil" not in l]
    out = hdr + [f"; @launch grid=(256,1,1) block=(320,1,1) lds={LDS_BYTES}",
                 '.amdgcn_target "amdgcn-amd-amdhsa--gfx950"', ".text", f".globl {KN}", ".p2align 8", f".type {KN},@function"]
    out += [l if l.endswith(":") else "    " + l for l in body]
    nv = 48 + 4 * nslot
    out += ['.section .rodata,"a"', ".p2align 6", f".amdhsa_kernel {KN}", f"  .amdhsa_next_free_vgpr {nv}",
            "  .amdhsa_next_free_sgpr 102", f"  .amdhsa_accum_offset {nv}", "  .amdhsa_group_segment_fixed_size 0",
            "  .amdhsa_kernarg_size 96", "  .amdhsa_user_sgpr_count 2", "  .amdhsa_user_sgpr_kernarg_segment_ptr 1",
            "  .amdhsa_system_sgpr_workgroup_id_x 1", ".end_amdhsa_kernel"]
    return "\n".join(out) + "\n", stamp_list

if __name__ == "__main__":
    kw = eval("dict(" + (sys.argv[2] if len(sys.argv) > 2 else "") + ")")
    open(sys.argv[1], "w").write(gen(**kw)[0])
```

```python
import sys
from asmlib import Asm
NAME = "recurrent_scan__mha_block_cached__glu_gated_glu__decode"
KN = NAME + "_kernel"

WS_A  = 0x00000
WS_O  = 0x40000
WS_S  = 0x60000
WS_Y  = 0x80000
WS_ML = 0xA0000
WS_E  = 0xB0000
WS_ST = 0x100000
WS_BYTES = 268435456
LQ, LML, LPROG, LH, LO = 0, 256, 288, 320, 1024
LRING = 4096
LOG2E = "0x3fb8aa3b"
SCALE = "0x3db504f3"
SPIN = 1 << 17

def gen(nslot=48, nlds=32, npre=4, burst=4, every=6, dist=16, late=10, stamps=False, kvflags="nt", wflags="nt", psleep=0, asleep=30):
    A = Asm()
    stamp_list = []
    sets = {"early": "bar0 issued x ln apub aseen qdone ml mlx end qready kdone vdone",
            "late": "qdone mlx wiss bar2 opub oseen spub sseen end issued qready kdone vdone"}
    def stamp(name, base=80):
        if stamps and name in sets[stamps].split() and not (stamps == "late" and role[0] == "S" and name == "issued"):
            k = len([x for x in stamp_list if x[0] == role[0]])
            stamp_list.append((role[0], name))
            A(f"s_memrealtime s[{base+2*k}:{base+2*k+1}]")
    role = ["S"]
    def rbf(dst, src):
        A(f"v_cvt_pk_bf16_f32 {dst}, {src}, {src}")
        A(f"v_and_b32 {dst}, 0xffff0000, {dst}")
    def masks(m0, lane, t0, t1):
        A(f"v_and_b32 v{t0}, 1, v{lane}")
        A(f"v_lshlrev_b32 v{t0}, 4, v{t0}")
        A(f"v_lshlrev_b32 v{t0}, v{t0}, s50")
        A(f"v_bfe_u32 v{t1}, v{lane}, 1, 2")
        for r in range(4):
            A(f"v_cmp_eq_u32 vcc, {r}, v{t1}")
            A(f"v_cndmask_b32 v{m0+r}, 0, v{t0}, vcc")
    def abuild(a0, p, m0, n):
        for r in range(4):
            A(f"v_and_b32_dpp v{a0+r}, v{p}, v{m0+r} row_newbcast:{n} row_mask:0xf bank_mask:0xf")
    def wave_red(op, v):
        for c in ("quad_perm:[1,0,3,2]", "quad_perm:[2,3,0,1]", "row_half_mirror", "row_mirror"):
            A(f"{op}_dpp v{v}, v{v}, v{v} {c} row_mask:0xf bank_mask:0xf")
        A(f"{op}_dpp v{v}, v{v}, v{v} row_bcast:15 row_mask:0xa bank_mask:0xf")
        A(f"{op}_dpp v{v}, v{v}, v{v} row_bcast:31 row_mask:0xc bank_mask:0xf")
    def tag(regs, TAG):
        for r in regs: A(f"v_and_or_b32 v{r}, v{r}, s7, v{TAG}")
    def untag(regs):
        for r in regs: A(f"v_and_b32 v{r}, s7, v{r}")
    def check(regs, TAG, t):
        regs = list(regs); assert len(regs) % 2 == 0
        pairs = [regs[k:k+2] for k in range(0, len(regs), 2)]
        A(f"v_bitop3_b32 v{t}, v{pairs[0][0]}, v{pairs[0][1]}, v{TAG} bitop3:0x7e")
        rest = pairs[1:]
        while rest:
            take = rest[:2]; rest = rest[2:]
            for k, p in enumerate(take): A(f"v_bitop3_b32 v{t+1+k}, v{p[0]}, v{p[1]}, v{TAG} bitop3:0x7e")
            if len(take) == 2: A(f"v_or3_b32 v{t}, v{t}, v{t+1}, v{t+2}")
            else: A(f"v_or_b32 v{t}, v{t}, v{t+1}")
        A(f"v_and_b32 v{t}, 0x3ff, v{t}")
        A(f"v_cmp_ne_u32 vcc, 0, v{t}")
    def srd(d, off, nbytes):
        A(f"s_load_dwordx2 s[{d}:{d+1}], s[0:1], {off}")
        A(f"s_mov_b32 s{d+2}, {nbytes}")
        A(f"s_mov_b32 s{d+3}, 0x20000")
    def dump_stamps():
        if not stamps: return
        mine = [x for x in stamp_list if x[0] == role[0]]
        A("s_mov_b64 exec, -1")
        A("s_waitcnt lgkmcnt(0)")
        for k in range(len(mine)):
            A(f"v_writelane_b32 v0, s{80+2*k}, {k}")
        A("s_getreg_b32 s48, hwreg(HW_REG_XCC_ID)")
        A("v_writelane_b32 v0, s48, 15")
        A("s_load_dwordx2 s[40:41], s[0:1], 88")
        A(f"s_mov_b32 s42, {WS_BYTES}")
        A("s_mov_b32 s43, 0x20000")
        A("s_mul_i32 s48, s2, 5"); A("s_add_u32 s48, s48, s3"); A("s_lshl_b32 s48, s48, 6"); A(f"s_add_u32 s48, s48, {WS_ST}")
        A("v_mbcnt_lo_u32_b32 v1, -1, 0"); A("v_lshlrev_b32 v1, 2, v1")
        A("s_mov_b64 exec, 0xffff")
        A("s_waitcnt lgkmcnt(0)")
        A("buffer_store_dword v0, v1, s[40:43], s48 offen")

    A(f"{KN}:")
    if stamps: A("s_memrealtime s[80:81]")
    A("v_lshrrev_b32 v1, 6, v0")
    A("s_cmp_ge_u32 s2, 256")
    A("s_cbranch_scc1 L_end")
    A("v_readfirstlane_b32 s3, v1")
    A("s_and_b32 s4, s2, 31")
    A("s_lshr_b32 s5, s2, 5")
    A("v_and_b32 v0, 63, v0")
    A("s_mov_b32 s50, 0xffff")
    A("s_cmp_eq_u32 s3, 4")
    A("s_cbranch_scc1 L_service")

    role[0] = "W"; stamp_list.append(("W", "start"));
    VL16, M0, Q0, S0, AB, D0, P0, T0, RING = 1, 2, 6, 10, 14, 22, 26, 42, 48
    LA = T0 + 2; TB = RING + 4 * nslot
    srd(8, 8, 64 << 20); srd(12, 16, 64 << 20)
    A("s_lshl_b32 s48, s4, 21"); A("s_lshl_b32 s49, s5, 18"); A("s_add_u32 s48, s48, s49")
    A("s_lshl_b32 s49, s3, 12"); A("s_add_u32 s48, s48, s49")
    A("s_mov_b32 s49, s48")
    A(f"v_lshlrev_b32 v{VL16}, 4, v0")
    A("s_waitcnt lgkmcnt(0)")
    issued = [0]
    def slot(i):
        return RING + 4 * (i if i < nslot else (i - nslot - nlds) % nslot)
    def in_lds(i): return nslot <= i < nslot + nlds
    def issue():
        i = issued[0]; issued[0] += 1
        ii = i % 64; s = 8 if i < 64 else 12
        if i == 64: A("s_mov_b32 s49, s48")
        elif ii % 4 == 0 and i: A("s_addk_i32 s49, 0x4000")
        off = f" offset:{(ii%4)*1024}" if ii % 4 else ""
        if in_lds(i):
            if ii % 4 == 0:
                A(f"s_add_u32 m0, s56, {(i - nslot) * 1024}")
            A(f"buffer_load_dwordx4 v{VL16}, s[{s}:{s+3}], s49 offen{off} {kvflags} lds")
        else:
            r = slot(i)
            A(f"buffer_load_dwordx4 v[{r}:{r+3}], v{VL16}, s[{s}:{s+3}], s49 offen{off} {kvflags}")
        if i == 127 - late:
            A(f"ds_write_b32 v{T0+4}, v{T0+5} offset:{LPROG}")
    assert nslot % 4 == 0 and nlds % 4 == 0
    for _ in range(npre): issue()
    A("s_branch L_stream")
    stream_at = len(A.L)
    A("L_stream:")
    masks(M0, 0, T0, T0 + 1)
    A("s_mov_b32 s52, 0xcccccccc"); A("s_mov_b32 s53, 0xcccccccc")
    A("s_mov_b32 s54, 0xaaaaaaaa"); A("s_mov_b32 s55, 0xaaaaaaaa")
    A(f"v_and_b32 v{T0+2}, 15, v0"); A(f"v_lshlrev_b32 v{T0+2}, 4, v{T0+2}")
    A(f"v_mov_b32 v{T0+4}, s3"); A(f"v_lshlrev_b32 v{T0+4}, 2, v{T0+4}"); A(f"v_mov_b32 v{T0+5}, 1")
    A(f"s_mul_i32 s56, s3, {nlds*1024}"); A(f"s_add_u32 s56, s56, {LRING}")
    A("s_barrier")
    stamp("bar0")
    for _ in range(nslot + nlds - npre): issue()
    stamp("issued")
    A("s_barrier")
    A(f"ds_read_b128 v[{Q0}:{Q0+3}], v{T0+2} offset:{LQ}")
    stamp("qready")
    A("s_waitcnt lgkmcnt(0)")
    A(f"v_add_u32 v{LA}, s56, v{VL16}")
    def wait_for(i):
        A(f"s_waitcnt vmcnt({min(63, issued[0] - 1 - i)})")
    def maybe_issue(i):
        n0 = nslot + nlds
        want = n0 + min(i + 1, burst + i // every) if i < n0 else i + 1 + dist
        want = max(want, min(i + 1 + dist, n0 + i + 1))
        while issued[0] < min(128, want): issue()
    lds_rd = [nslot]
    def lds_fetch(upto, TB):
        while lds_rd[0] <= min(upto, nslot + nlds - 1):
            i = lds_rd[0]; lds_rd[0] += 1
            wait_for(i)
            t = TB + 4 * (i % 4)
            A(f"ds_read_b128 v[{t}:{t+3}], v{LA} offset:{(i - nslot) * 1024}")
    def operand(i, TB):
        if not in_lds(i):
            wait_for(i); return slot(i)
        lds_fetch(i + 2, TB)
        A(f"s_waitcnt lgkmcnt({min(lds_rd[0] - 1 - i, 2)})")
        return TB + 4 * (i % 4)
    for i in range(64):
        n = i % 16
        A(f"v_mov_b32 v{P0+n}, 0")
        r = operand(i, TB)
        for k in range(4): A(f"v_dot2c_f32_bf16 v{P0+n}, v{r+k}, v{Q0+k}")
        maybe_issue(i)
        if n == 15:
            a = i // 16
            for r_ in range(8):
                A(f"v_add_f32_dpp v{P0+r_}, v{P0+r_}, v{P0+r_} row_ror:8 row_mask:0xf bank_mask:0x3")
                A(f"v_add_f32_dpp v{P0+r_}, v{P0+r_+8}, v{P0+r_+8} row_ror:8 row_mask:0xf bank_mask:0xc")
            for r_ in range(4):
                A(f"v_add_f32_dpp v{P0+r_}, v{P0+r_}, v{P0+r_} row_half_mirror row_mask:0xf bank_mask:0x5")
                A(f"v_add_f32_dpp v{P0+r_}, v{P0+r_+4}, v{P0+r_+4} row_half_mirror row_mask:0xf bank_mask:0xa")
            for r_ in range(4):
                A(f"v_add_f32_dpp v{P0+r_}, v{P0+r_}, v{P0+r_} quad_perm:[2,3,0,1] row_mask:0xf bank_mask:0xf")
            A(f"v_cndmask_b32 v{P0}, v{P0}, v{P0+2}, s[52:53]")
            A(f"v_cndmask_b32 v{P0+1}, v{P0+1}, v{P0+3}, s[52:53]")
            for r_ in range(2):
                A(f"v_add_f32_dpp v{P0+r_}, v{P0+r_}, v{P0+r_} quad_perm:[1,0,3,2] row_mask:0xf bank_mask:0xf")
            A(f"v_cndmask_b32 v{S0+a}, v{P0}, v{P0+1}, s[54:55]")
            rbf(f"v{S0+a}", f"v{S0+a}")
            A(f"v_mul_f32 v{S0+a}, {SCALE}, v{S0+a}")
            rbf(f"v{S0+a}", f"v{S0+a}")
    stamp("kdone")
    A(f"v_max3_f32 v{T0}, v{S0}, v{S0+1}, v{S0+2}")
    A(f"v_max_f32 v{T0}, v{T0}, v{S0+3}")
    wave_red("v_max_f32", T0)
    A(f"v_readlane_b32 s51, v{T0}, 63")
    for a in range(4): A(f"v_subrev_f32 v{S0+a}, s51, v{S0+a}")
    for a in range(4): A(f"v_mul_f32 v{S0+a}, {LOG2E}, v{S0+a}")
    for a in range(4): A(f"v_exp_f32 v{S0+a}, v{S0+a}")
    A(f"v_add_f32 v{T0+1}, v{S0}, v{S0+1}")
    A(f"v_add_f32 v{T0+3}, v{S0+2}, v{S0+3}")
    A(f"v_add_f32 v{T0+1}, v{T0+1}, v{T0+3}")
    for a in range(4): A(f"v_cvt_pk_bf16_f32 v{S0+a}, v{S0+a}, v{S0+a}")
    abuild(AB, S0, M0, 0)
    wave_red("v_add_f32", T0 + 1)
    A(f"v_lshlrev_b32 v{T0+3}, 1, v{T0+4}")
    A("s_mov_b32 exec_lo, 0"); A("s_mov_b32 exec_hi, 0x80000000")
    A(f"ds_write_b64 v{T0+3}, v[{T0}:{T0+1}] offset:{LML}")
    A("s_mov_b64 exec, -1")
    for i in range(64, 128):
        n = i % 16; a = (i - 64) // 16; ab = AB + 4 * (i & 1)
        r = operand(i, TB)
        c = f"v[{D0}:{D0+3}]" if i > 64 else "0"
        A(f"v_mfma_f32_16x16x32_bf16 v[{D0}:{D0+3}], v[{ab}:{ab+3}], v[{r}:{r+3}], {c}")
        if i < 127: abuild(AB + 4 * ((i + 1) & 1), S0 + (i + 1 - 64) // 16, M0, (i + 1) % 16)
        maybe_issue(i)
        if i == 124:
            A(f"v_and_b32 v{T0}, 15, v0"); A(f"v_lshlrev_b32 v{T0}, 5, v{T0}")
            A(f"v_and_b32 v{T0+1}, 16, v0"); A(f"v_add_u32 v{T0}, v{T0}, v{T0+1}")
            A(f"v_lshl_add_u32 v{T0}, v{T0+4}, 7, v{T0}")
    stamp("vdone")
    A("s_mov_b32 exec_hi, 0")
    A(f"ds_write_b128 v{T0}, v[{D0}:{D0+3}] offset:{LO}")
    A("s_waitcnt lgkmcnt(0)")
    A("s_barrier")
    dump_stamps()
    A("s_endpgm")

    stream_body = A.L[stream_at:]; del A.L[stream_at:]
    role[0] = "S"; stamp_list.append(("S", "start"))
    G, J, M0, AB, DQ, DG, PD, T0 = 1, 2, 4, 8, 16, 20, 3, 24
    XA, XR, GA, VA, XF, PH, EP, TAG = 40, 44, 46, 48, 49, 50, 45, 61
    WQ, GU = 64, 128
    A("L_service:")
    A("s_setprio 3")
    srd(16, 0, 1024); srd(20, 24, 4 << 20); srd(24, 32, 4 << 20); srd(28, 64, 1376 * 1024)
    srd(32, 72, 1024); srd(40, 88, WS_BYTES)
    A("s_load_dwordx4 s[44:47], s[0:1], 48")
    A(f"v_lshrrev_b32 v{G}, 4, v0"); A(f"v_and_b32 v{J}, 15, v0")
    A("s_lshl_b32 s6, s4, 3"); A("s_add_u32 s6, s6, s5")
    A("s_and_b32 s7, s4, 7"); A("s_lshl_b32 s7, s7, 2"); A("s_lshr_b32 s48, s4, 3"); A("s_add_u32 s7, s7, s48")
    A("s_mul_i32 s56, s7, 43"); A("s_add_u32 s57, s56, 43"); A("s_lshr_b32 s56, s56, 3"); A("s_lshr_b32 s57, s57, 3")
    A("s_sub_u32 s57, s57, s56")
    A("s_and_b32 s58, s5, 3"); A("s_lshr_b32 s59, s5, 2")
    A(f"v_lshlrev_b32 v{T0}, 4, v0")
    A("s_lshl_b32 s48, s5, 7")
    A(f"v_lshlrev_b32 v{T0+1}, 1, v0")
    A(f"v_lshlrev_b32 v{T0+3}, 4, v{J}")
    A(f"v_lshl_add_u32 v{T0+2}, v{G}, 17, v{T0+3}")
    A("s_lshl_b32 s49, s5, 19"); A("s_lshl_b32 s51, s4, 8"); A("s_add_u32 s49, s49, s51")
    A(f"v_and_b32 v{T0+4}, 7, v0")
    A(f"v_cmp_gt_u32 vcc, s57, v{T0+4}")
    A(f"v_cndmask_b32 v{T0+4}, 0, v{T0+4}, vcc")
    A(f"v_add_u32 v{T0+4}, s56, v{T0+4}"); A(f"v_lshlrev_b32 v{T0+4}, 4, v{T0+4}")
    A("s_mov_b32 s51, 44032")
    A(f"v_mad_u32_u24 v{T0+4}, v{G}, s51, v{T0+4}")
    A("s_mul_i32 s51, s5, 176128"); A(f"v_add_u32 v{T0+4}, s51, v{T0+4}")
    A(f"v_mov_b32 v{T0+5}, 0")
    A(f"v_cmp_lt_u32 vcc, 7, v{J}")
    A(f"s_mov_b32 s79, {WS_E}")
    A("s_waitcnt lgkmcnt(0)")
    A(f"buffer_load_dwordx4 v[{XA}:{XA+3}], v{T0}, s[16:19], 0 offen")
    A(f"buffer_load_ushort v{XR}, v{T0+1}, s[16:19], s48 offen")
    A(f"buffer_load_dword v{EP}, v{T0+5}, s[40:43], s79 offen sc1")
    A(f"v_mov_b32 v{T0+6}, s44"); A(f"v_mov_b32 v{T0+7}, s45"); A(f"v_mov_b32 v{T0+8}, s46"); A(f"v_mov_b32 v{T0+9}, s47")
    A(f"v_cndmask_b32 v{GA}, v{T0+6}, v{T0+8}, vcc"); A(f"v_cndmask_b32 v{GA+1}, v{T0+7}, v{T0+9}, vcc")
    A(f"v_lshl_add_u64 v[{GA}:{GA+1}], v[{T0+4}:{T0+5}], 0, v[{GA}:{GA+1}]")
    A("s_mov_b32 s60, 5504"); A("s_mov_b32 s61, 0")
    for n in range(16):
        A(f"buffer_load_dwordx4 v[{WQ+4*n}:{WQ+4*n+3}], v{T0+2}, s[20:23], s49 offen {wflags}")
        A(f"global_load_dwordx4 v[{GU+4*n}:{GU+4*n+3}], v[{GA}:{GA+1}], off{' offset:2752' if n & 1 else ''} {wflags}")
        if n < 15: A("s_addk_i32 s49, 0x2000")
        if n & 1 and n < 15: A(f"v_lshl_add_u64 v[{GA}:{GA+1}], v[{GA}:{GA+1}], 0, s[60:61]")
    A("s_barrier")
    stamp("issued")
    A(f"v_mov_b32 v{T0+6}, -1"); A(f"v_cmp_gt_u32 vcc, 8, v0"); A(f"v_cndmask_b32 v{T0+6}, 0, v{T0+6}, vcc")
    A(f"v_lshlrev_b32 v{T0+7}, 2, v0")
    A("s_mov_b64 exec, 0xffff")
    A(f"ds_write_b32 v{T0+7}, v{T0+6} offset:{LML}")
    A("s_mov_b64 exec, -1")
    masks(M0, 0, T0 + 6, T0 + 7)
    A("s_waitcnt vmcnt(32)")
    stamp("x")
    A(f"v_add_u32 v{EP}, 1, v{EP}"); A(f"v_and_b32 v{TAG}, 0x3ff, v{EP}")
    A("s_mov_b32 s7, 0xfffffc00")
    for k in range(4):
        A(f"v_lshlrev_b32 v{T0+2*k}, 16, v{XA+k}"); A(f"v_and_b32 v{T0+2*k+1}, 0xffff0000, v{XA+k}")
    A(f"v_add_f32 v{T0+8}, v{T0}, v{T0+1}"); A(f"v_add_f32 v{T0+9}, v{T0+2}, v{T0+3}")
    A(f"v_add_f32 v{T0+10}, v{T0+4}, v{T0+5}"); A(f"v_add_f32 v{T0+11}, v{T0+6}, v{T0+7}")
    A(f"v_add_f32 v{T0+8}, v{T0+8}, v{T0+9}"); A(f"v_add_f32 v{T0+10}, v{T0+10}, v{T0+11}")
    A(f"v_add_f32 v{T0+8}, v{T0+8}, v{T0+10}")
    wave_red("v_add_f32", T0 + 8)
    A(f"v_mul_f32 v{T0+8}, 0x3b000000, v{T0+8}")
    A(f"v_readlane_b32 s51, v{T0+8}, 63")
    for k in range(8): A(f"v_subrev_f32 v{T0+k}, s51, v{T0+k}")
    A(f"v_mul_f32 v{T0+9}, v{T0}, v{T0}"); A(f"v_mul_f32 v{T0+10}, v{T0+1}, v{T0+1}")
    for k in range(2, 8, 2):
        A(f"v_fmac_f32 v{T0+9}, v{T0+k}, v{T0+k}"); A(f"v_fmac_f32 v{T0+10}, v{T0+k+1}, v{T0+k+1}")
    A(f"v_add_f32 v{T0+9}, v{T0+9}, v{T0+10}")
    wave_red("v_add_f32", T0 + 9)
    A(f"v_mul_f32 v{T0+9}, 0x3b000000, v{T0+9}")
    rbf(f"v{T0+9}", f"v{T0+9}")
    A(f"v_add_f32 v{T0+9}, 0x3727c5ac, v{T0+9}")
    rbf(f"v{T0+9}", f"v{T0+9}")
    A(f"v_sqrt_f32 v{T0+9}, v{T0+9}")
    rbf(f"v{T0+8}", f"v{T0+8}")
    rbf(f"v{T0+9}", f"v{T0+9}")
    A(f"v_readlane_b32 s51, v{T0+8}, 63"); A(f"v_readlane_b32 s62, v{T0+9}, 63")
    A(f"v_lshlrev_b32 v{XR}, 16, v{XR}")
    A(f"v_rcp_f32 v{T0+10}, s62")
    A(f"v_subrev_f32 v{XR}, s51, v{XR}")
    rbf(f"v{XR}", f"v{XR}")
    A(f"v_mul_f32 v{T0+11}, v{XR}, v{T0+10}")
    A(f"v_fma_f32 v{T0+12}, -v{T0+11}, s62, v{XR}")
    A(f"v_fmac_f32 v{T0+11}, v{T0+12}, v{T0+10}")
    A(f"v_cvt_pk_bf16_f32 v{PD}, v{T0+11}, v{T0+11}")
    stamp("ln")
    abuild(AB, PD, M0, 0)
    for n in range(16):
        ab = AB + 4 * (n & 1)
        A(f"s_waitcnt vmcnt({30-2*n})")
        A(f"v_mfma_f32_16x16x32_bf16 v[{DQ}:{DQ+3}], v[{ab}:{ab+3}], v[{WQ+4*n}:{WQ+4*n+3}], {f'v[{DQ}:{DQ+3}]' if n else 0}")
        A(f"v_mfma_f32_16x16x32_bf16 v[{DG}:{DG+3}], v[{ab}:{ab+3}], v[{GU+4*n}:{GU+4*n+3}], {f'v[{DG}:{DG+3}]' if n else 0}")
        if n < 15: abuild(AB + 4 * ((n + 1) & 1), PD, M0, n + 1)
    L16 = T0 + 15; OUTA = VA
    A(f"v_lshlrev_b32 v{L16}, 4, v0")
    A(f"v_lshlrev_b32 v{OUTA}, 5, v{J}"); A(f"v_and_b32 v{T0}, 16, v0"); A(f"v_add_u32 v{OUTA}, v{OUTA}, v{T0}")
    A("s_lshl_b32 s63, s6, 9"); A(f"s_add_u32 s63, s63, {WS_O}")
    A("s_lshl_b32 s64, s58, 6"); A("s_lshl_b32 s48, s4, 1"); A("s_add_u32 s64, s64, s48"); A("s_add_u32 s64, s64, s59")
    A("s_lshl_b32 s64, s64, 9"); A(f"s_add_u32 s65, s64, {WS_Y}"); A(f"s_add_u32 s64, s64, {WS_S}")
    A("s_lshl_b32 s66, s6, 4"); A(f"s_add_u32 s66, s66, {WS_ML}")
    A("s_lshl_b32 s67, s6, 10")
    A("s_mov_b32 s68, 0"); A("s_mov_b32 s69, -1")
    for k in range(4): A(f"v_cndmask_b32 v{DQ+k}, v{DQ+k}, v{DG+k}, s[68:69]")
    tag(range(DQ, DQ + 4), TAG)
    A(f"buffer_store_dwordx4 v[{DQ}:{DQ+3}], v{L16}, s[40:43], s67 offen sc1")
    stamp("apub")
    A("s_lshl_b32 s48, s4, 13"); A("s_add_u32 s49, s48, 0x1000")
    A(f"v_lshrrev_b32 v{T0+3}, 1, v{OUTA}")
    A(f"s_mov_b32 s70, {SPIN}")
    A("L_pollA:")
    if asleep: A(f"s_sleep {asleep}")
    for k in range(8):
        A(f"buffer_load_dwordx4 v[{WQ+4*k}:{WQ+4*k+3}], v{L16}, s[40:43], s{48 + k // 4} offen{f' offset:{(k&3)*1024}' if k & 3 else ''} sc1")
    A("s_sub_u32 s70, s70, 1"); A("s_cbranch_scc1 L_pollA_done")
    A("s_waitcnt vmcnt(0)")
    check(range(WQ, WQ + 32), TAG, T0)
    A("s_nop 1")
    A("s_cbranch_vccnz L_pollA")
    A("L_pollA_done:")
    stamp("aseen")
    untag(range(WQ, WQ + 32))
    for k in range(4):
        A(f"v_add_f32 v{WQ+k}, v{WQ+k}, v{WQ+4+k}"); A(f"v_add_f32 v{WQ+8+k}, v{WQ+8+k}, v{WQ+12+k}")
        A(f"v_add_f32 v{WQ+16+k}, v{WQ+16+k}, v{WQ+20+k}"); A(f"v_add_f32 v{WQ+24+k}, v{WQ+24+k}, v{WQ+28+k}")
    for k in range(4):
        A(f"v_add_f32 v{WQ+k}, v{WQ+k}, v{WQ+8+k}"); A(f"v_add_f32 v{WQ+16+k}, v{WQ+16+k}, v{WQ+24+k}")
    for k in range(4): A(f"v_add_f32 v{WQ+k}, v{WQ+k}, v{WQ+16+k}")
    A(f"v_cvt_pk_bf16_f32 v{T0+4}, v{WQ}, v{WQ+1}"); A(f"v_cvt_pk_bf16_f32 v{T0+5}, v{WQ+2}, v{WQ+3}")
    A("s_mov_b32 exec_hi, 0")
    A(f"ds_write_b64 v{T0+3}, v[{T0+4}:{T0+5}] offset:{LQ}")
    A("s_mov_b64 exec, -1")
    A("s_waitcnt lgkmcnt(0)")
    A("s_barrier")
    stamp("qdone")
    A("s_setprio 0")
    for k in range(4): rbf(f"v{WQ+k}", f"v{WQ+k}")
    for k in range(4): A(f"v_mov_b32_dpp v{T0+4+k}, v{WQ+k} row_ror:8 row_mask:0xf bank_mask:0xf")
    for k in range(4): A(f"v_mul_f32 v{WQ+k}, 0xbfb8aa3b, v{WQ+k}")
    for k in range(4): A(f"v_exp_f32 v{WQ+k}, v{WQ+k}")
    for k in range(4): A(f"v_add_f32 v{WQ+k}, 1.0, v{WQ+k}")
    for k in range(4): A(f"v_rcp_f32 v{WQ+k}, v{WQ+k}")
    for k in range(4): rbf(f"v{WQ+k}", f"v{WQ+k}")
    for k in range(4): A(f"v_mul_f32 v{WQ+k}, v{WQ+k}, v{T0+4+k}")
    A(f"v_cmp_gt_u32 vcc, s57, v{J}")
    for k in range(4): A(f"v_cvt_pk_bf16_f32 v{WQ+k}, v{WQ+k}, v{WQ+k}")
    for k in range(4): A(f"v_cndmask_b32 v{WQ+k}, 0, v{WQ+k}, vcc")
    A("s_mov_b32 exec_lo, 0"); A("s_mov_b32 exec_hi, 0x00ff00ff")
    A(f"ds_write_b128 v{OUTA}, v[{WQ}:{WQ+3}] offset:{LH}")
    A("s_mov_b64 exec, -1")
    A("s_mul_i32 s48, s59, 24")
    A(f"v_mul_u32_u24 v{T0}, 6, v{G}"); A(f"v_add_u32 v{T0}, s48, v{T0}")
    A(f"v_add_lshl_u32 v{T0+1}, v{T0}, v{J}, 2")
    A("s_waitcnt lgkmcnt(0)")
    A(f"ds_read_b32 v{PH}, v{T0+1} offset:{LH}")
    WDA = 52
    A("s_lshl_b32 s48, s57, 3"); A("s_lshl_b32 s49, s56, 3")
    A(f"v_lshlrev_b32 v{T0+2}, 4, v{J}")
    for n in range(6):
        A(f"v_add_u32 v{T0+3}, {n}, v{T0}")
        A(f"v_cmp_gt_u32 vcc, s48, v{T0+3}")
        A(f"v_add_u32 v{T0+3}, s49, v{T0+3}")
        A(f"v_lshl_add_u32 v{T0+3}, v{T0+3}, 10, v{T0+2}")
        A(f"v_mov_b32 v{WDA+n}, 0x7ffffff0")
        A(f"v_cndmask_b32 v{WDA+n}, v{WDA+n}, v{T0+3}, vcc")
    WOA = 58
    A(f"v_lshl_add_u32 v{WOA}, v{G}, 14, v{T0+2}")
    A("s_lshl_b32 s71, s4, 17"); A("s_lshl_b32 s48, s59, 16"); A("s_add_u32 s71, s71, s48")
    A("s_lshl_b32 s72, s58, 8"); A("s_add_u32 s71, s71, s72")
    RA = 59
    A(f"v_and_b32 v{T0+3}, 3, v0"); A(f"v_lshl_add_u32 v{T0+4}, v{T0+3}, 2, v{G}")
    A("s_lshl_b32 s48, s4, 4"); A(f"v_add_lshl_u32 v{XF+0}, v{T0+4}, s48, 1")
    A(f"v_lshrrev_b32 v{RA}, 2, v0"); A(f"v_lshlrev_b32 v{RA}, 9, v{RA}"); A(f"v_lshl_add_u32 v{RA}, v{T0+3}, 4, v{RA}")
    A("s_and_b32 s48, s4, 7"); A("s_lshl_b32 s48, s48, 6"); A("s_lshr_b32 s73, s4, 3"); A("s_lshl_b32 s73, s73, 15"); A("s_add_u32 s73, s73, s48")
    A(f"buffer_load_ushort v{51}, v{XF}, s[16:19], 0 offen")
    A(f"v_and_b32 v{T0}, 3, v0"); A(f"v_lshlrev_b32 v{T0}, 3, v{T0}")
    A(f"s_mov_b32 s70, {SPIN}")
    A("L_pollML:")
    A("s_sleep 2")
    A(f"ds_read_b64 v[{T0+2}:{T0+3}], v{T0} offset:{LML}")
    A("s_sub_u32 s70, s70, 1"); A("s_cbranch_scc1 L_pollML_done")
    A("s_waitcnt lgkmcnt(0)")
    A(f"v_cmp_eq_u32 vcc, -1, v{T0+3}")
    A("s_nop 1")
    A("s_cbranch_vccnz L_pollML")
    A("L_pollML_done:")
    stamp("ml")
    A(f"v_max_f32_dpp v{T0+4}, v{T0+2}, v{T0+2} quad_perm:[1,0,3,2] row_mask:0xf bank_mask:0xf")
    A(f"v_max_f32_dpp v{T0+4}, v{T0+4}, v{T0+4} quad_perm:[2,3,0,1] row_mask:0xf bank_mask:0xf")
    A(f"v_sub_f32 v{T0+5}, v{T0+2}, v{T0+4}"); A(f"v_mul_f32 v{T0+5}, {LOG2E}, v{T0+5}"); A(f"v_exp_f32 v{T0+5}, v{T0+5}")
    A(f"v_mul_f32 v{T0+5}, v{T0+5}, v{T0+3}")
    A(f"v_add_f32_dpp v{T0+5}, v{T0+5}, v{T0+5} quad_perm:[1,0,3,2] row_mask:0xf bank_mask:0xf")
    A(f"v_add_f32_dpp v{T0+5}, v{T0+5}, v{T0+5} quad_perm:[2,3,0,1] row_mask:0xf bank_mask:0xf")
    tag((T0 + 4, T0 + 5), TAG)
    A(f"v_mov_b32 v{T0+1}, 0")
    A("s_mov_b64 exec, 1")
    A(f"buffer_store_dwordx2 v[{T0+4}:{T0+5}], v{T0+1}, s[40:43], s66 offen sc1")
    A("s_mov_b64 exec, -1")
    A(f"v_and_b32 v{T0+1}, 7, v0"); A(f"v_lshlrev_b32 v{T0+1}, 4, v{T0+1}")
    A("s_lshl_b32 s48, s4, 7"); A(f"s_add_u32 s48, s48, {WS_ML}")
    A(f"s_mov_b32 s70, {SPIN}")
    A("L_pollML2:")
    if psleep: A(f"s_sleep {psleep}")
    A(f"buffer_load_dwordx2 v[{T0+4}:{T0+5}], v{T0+1}, s[40:43], s48 offen sc1")
    A("s_sub_u32 s70, s70, 1"); A("s_cbranch_scc1 L_pollML2_done")
    A("s_waitcnt vmcnt(0)")
    check((T0 + 4, T0 + 5), TAG, T0 + 6)
    A("s_nop 1")
    A("s_cbranch_vccnz L_pollML2")
    A("L_pollML2_done:")
    untag((T0 + 4, T0 + 5))
    A(f"v_lshlrev_b32 v51, 16, v51")
    A(f"v_max_f32_dpp v{T0+6}, v{T0+4}, v{T0+4} quad_perm:[1,0,3,2] row_mask:0xf bank_mask:0xf")
    A(f"v_max_f32_dpp v{T0+6}, v{T0+6}, v{T0+6} quad_perm:[2,3,0,1] row_mask:0xf bank_mask:0xf")
    A(f"v_max_f32_dpp v{T0+6}, v{T0+6}, v{T0+6} row_half_mirror row_mask:0xf bank_mask:0xf")
    A(f"v_sub_f32 v{T0+4}, v{T0+4}, v{T0+6}"); A(f"v_sub_f32 v{T0+2}, v{T0+2}, v{T0+6}")
    A(f"v_mul_f32 v{T0+4}, {LOG2E}, v{T0+4}"); A(f"v_mul_f32 v{T0+2}, {LOG2E}, v{T0+2}")
    A(f"v_exp_f32 v{T0+4}, v{T0+4}"); A(f"v_exp_f32 v{T0+2}, v{T0+2}")
    A(f"v_mul_f32 v{T0+4}, v{T0+4}, v{T0+5}")
    A(f"v_add_f32_dpp v{T0+4}, v{T0+4}, v{T0+4} quad_perm:[1,0,3,2] row_mask:0xf bank_mask:0xf")
    A(f"v_add_f32_dpp v{T0+4}, v{T0+4}, v{T0+4} quad_perm:[2,3,0,1] row_mask:0xf bank_mask:0xf")
    A(f"v_add_f32_dpp v{T0+4}, v{T0+4}, v{T0+4} row_half_mirror row_mask:0xf bank_mask:0xf")
    A(f"v_rcp_f32 v{T0+4}, v{T0+4}")
    A(f"v_mul_f32 v{T0+2}, v{T0+2}, v{T0+4}")
    for w in range(4): A(f"v_readlane_b32 s{74+w}, v{T0+2}, {w}")
    stamp("mlx")
    OGA = 60
    A("s_lshl_b32 s48, s59, 8"); A(f"v_lshl_add_u32 v{OGA}, v0, 2, s48")
    A("s_lshl_b32 s78, s4, 12"); A(f"s_add_u32 s78, s78, {WS_O}")
    A(f"v_mov_b32 v{T0}, 0")
    A(f"s_mov_b32 s70, {SPIN}")
    A("L_pollP:")
    A("s_sleep 2")
    A(f"ds_read_b128 v[{T0+4}:{T0+7}], v{T0} offset:{LPROG}")
    A("s_sub_u32 s70, s70, 1"); A("s_cbranch_scc1 L_pollP_done")
    A("s_waitcnt lgkmcnt(0)")
    A(f"v_or3_b32 v{T0+4}, v{T0+4}, v{T0+5}, v{T0+6}"); A(f"v_or_b32 v{T0+4}, v{T0+4}, v{T0+7}")
    A(f"v_cmp_eq_u32 vcc, 0, v{T0+4}")
    A("s_nop 1")
    A("s_cbranch_vccnz L_pollP")
    A("L_pollP_done:")
    A("s_setprio 3")
    WO, WD = 64, 128
    for n in range(6): A(f"buffer_load_dwordx4 v[{WD+4*n}:{WD+4*n+3}], v{WDA+n}, s[28:31], s72 offen {wflags}")
    for n in range(16):
        A(f"buffer_load_dwordx4 v[{WO+4*n}:{WO+4*n+3}], v{WOA}, s[24:27], s71 offen{f' offset:{(n&3)*1024}' if n & 3 else ''} {wflags}")
        if n & 3 == 3 and n < 15: A("s_addk_i32 s71, 0x1000")
    stamp("wiss")
    abuild(AB, PH, M0, 0)
    A("s_mov_b32 exec_hi, 0")
    A("s_barrier")
    for w in range(4): A(f"ds_read_b128 v[{T0+4*w}:{T0+4*w+3}], v{OUTA} offset:{LO+512*w}")
    stamp("bar2")
    for w in range(4):
        A(f"s_waitcnt lgkmcnt({3-w})") if not stamps else A("s_waitcnt lgkmcnt(0)")
        for k in range(4):
            if w == 0: A(f"v_mul_f32 v{DQ+k}, s74, v{T0+k}")
            else: A(f"v_fmac_f32 v{DQ+k}, s{74+w}, v{T0+4*w+k}")
    tag(range(DQ, DQ + 4), TAG)
    A(f"buffer_store_dwordx4 v[{DQ}:{DQ+3}], v{OUTA}, s[40:43], s63 offen sc1")
    A("s_mov_b64 exec, -1")
    stamp("opub")
    for n in range(6):
        ab = AB + 4 * (n & 1)
        A(f"s_waitcnt vmcnt({21-n})")
        A(f"v_mfma_f32_16x16x32_bf16 v[{DG}:{DG+3}], v[{ab}:{ab+3}], v[{WD+4*n}:{WD+4*n+3}], {f'v[{DG}:{DG+3}]' if n else 0}")
        if n < 5: abuild(AB + 4 * ((n + 1) & 1), PH, M0, n + 1)
    A(f"s_mov_b32 s70, {SPIN}")
    tag(range(DG, DG + 4), TAG)
    A("s_mov_b32 exec_hi, 0")
    A(f"buffer_store_dwordx4 v[{DG}:{DG+3}], v{OUTA}, s[40:43], s65 offen sc1")
    A("s_mov_b64 exec, -1")
    A("L_pollO:")
    for k in range(8): A(f"buffer_load_dword v{T0+k}, v{OGA}, s[40:43], s78 offen{f' offset:{k*512}' if k else ''} sc1")
    A("s_sub_u32 s70, s70, 1"); A("s_cbranch_scc1 L_pollO_done")
    A("s_waitcnt vmcnt(0)")
    check(range(T0, T0 + 8), TAG, T0 + 8)
    untag(range(T0, T0 + 2))
    A("s_cbranch_vccnz L_pollO")
    A("L_pollO_done:")
    stamp("oseen")
    untag(range(T0 + 2, T0 + 8))
    A(f"v_add_f32 v{T0+10}, v{T0}, v{T0+1}"); A(f"v_add_f32 v{T0+11}, v{T0+2}, v{T0+3}")
    A(f"v_add_f32 v{T0+12}, v{T0+4}, v{T0+5}"); A(f"v_add_f32 v{T0+13}, v{T0+6}, v{T0+7}")
    A(f"v_add_f32 v{T0+10}, v{T0+10}, v{T0+11}"); A(f"v_add_f32 v{T0+12}, v{T0+12}, v{T0+13}")
    A(f"v_add_f32 v{T0+10}, v{T0+10}, v{T0+12}")
    A(f"v_cvt_pk_bf16_f32 v{PD}, v{T0+10}, v{T0+10}")
    abuild(AB, PD, M0, 0)
    for n in range(16):
        ab = AB + 4 * (n & 1)
        if n < 15: abuild(AB + 4 * ((n + 1) & 1), PD, M0, n + 1)
        A(f"v_mfma_f32_16x16x32_bf16 v[{DQ}:{DQ+3}], v[{ab}:{ab+3}], v[{WO+4*n}:{WO+4*n+3}], {f'v[{DQ}:{DQ+3}]' if n else 0}")
    A("s_mov_b32 exec_hi, 0")
    tag(range(DQ, DQ + 4), TAG)
    A(f"buffer_store_dwordx4 v[{DQ}:{DQ+3}], v{OUTA}, s[40:43], s64 offen sc1")
    A("s_mov_b64 exec, -1")
    stamp("spub")
    A("s_cmp_lg_u32 s5, 0"); A("s_cbranch_scc1 L_sdone")
    YG, SG = 128, 144
    A(f"s_add_u32 s48, s73, {WS_Y}"); A(f"s_add_u32 s49, s73, {WS_S}")
    A(f"s_add_u32 s51, s48, 8192"); A(f"s_add_u32 s56, s48, 16384"); A(f"s_add_u32 s57, s48, 24576")
    A(f"s_add_u32 s60, s49, 8192"); A(f"s_add_u32 s61, s49, 16384"); A(f"s_add_u32 s62, s49, 24576")
    def gather(base, sregs):
        for k in range(4): A(f"buffer_load_dwordx4 v[{base+4*k}:{base+4*k+3}], v{RA}, s[40:43], s{sregs[k]} offen sc1")
    def valid(base):
        check(range(base, base + 16), TAG, T0)
        untag(range(base, base + 2))
    def reduce(base):
        untag(range(base + 2, base + 16))
        for k in range(4):
            A(f"v_add_f32 v{base+k}, v{base+k}, v{base+4+k}"); A(f"v_add_f32 v{base+8+k}, v{base+8+k}, v{base+12+k}")
        for k in range(4): A(f"v_add_f32 v{base+k}, v{base+k}, v{base+8+k}")
        A(f"v_permlane32_swap_b32 v{base}, v{base+2}"); A(f"v_permlane32_swap_b32 v{base+1}, v{base+3}")
        A(f"v_add_f32 v{base}, v{base}, v{base+2}"); A(f"v_add_f32 v{base+1}, v{base+1}, v{base+3}")
        A(f"v_permlane16_swap_b32 v{base}, v{base+1}")
        A(f"v_add_f32 v{base}, v{base}, v{base+1}")
        A(f"v_add_f32_dpp v{base}, v{base}, v{base} row_ror:4 row_mask:0xf bank_mask:0xf")
        A(f"v_add_f32_dpp v{base}, v{base}, v{base} row_ror:8 row_mask:0xf bank_mask:0xf")
        rbf(f"v{base}", f"v{base}")
    A(f"s_mov_b32 s70, {SPIN}")
    A("L_pollY:")
    gather(YG, (48, 51, 56, 57)); gather(SG, (49, 60, 61, 62))
    A("s_sub_u32 s70, s70, 1"); A("s_cbranch_scc1 L_pollY_done")
    A("s_waitcnt vmcnt(4)")
    valid(YG)
    A("s_cbranch_vccnz L_pollY")
    A("L_pollY_done:")
    reduce(YG)
    A(f"v_mul_f32 v{T0+4}, 0xbfb8aa3b, v{YG}"); A(f"v_exp_f32 v{T0+4}, v{T0+4}"); A(f"v_add_f32 v{T0+4}, 1.0, v{T0+4}")
    A(f"v_rcp_f32 v{T0+4}, v{T0+4}"); A(f"v_mul_f32 v{YG}, v{YG}, v{T0+4}")
    rbf(f"v{YG}", f"v{YG}")
    A("s_branch L_chkS")
    A("L_pollS:")
    gather(SG, (49, 60, 61, 62))
    A("s_sub_u32 s70, s70, 1"); A("s_cbranch_scc1 L_pollS_done")
    A("L_chkS:")
    A("s_waitcnt vmcnt(0)")
    valid(SG)
    A("s_cbranch_vccnz L_pollS")
    A("L_pollS_done:")
    stamp("sseen")
    reduce(SG)
    A(f"v_mul_f32 v{SG}, v{SG}, v{YG}")
    rbf(f"v{SG}", f"v{SG}")
    A(f"v_add_f32 v{SG}, v{SG}, v51")
    A(f"v_cvt_pk_bf16_f32 v{SG}, v{SG}, v{SG}")
    A("s_mov_b32 exec_lo, 0x000f000f"); A("s_mov_b32 exec_hi, 0x000f000f")
    A(f"buffer_store_short v{SG}, v{XF}, s[32:35], 0 offen")
    A("s_cmp_lg_u32 s2, 0"); A("s_cbranch_scc1 L_sdone")
    A("s_mov_b64 exec, 1")
    A(f"v_mov_b32 v{T0}, 0")
    A(f"buffer_store_dword v{EP}, v{T0}, s[40:43], s79 offen sc1")
    A("L_sdone:")
    if stamps:
        A("s_waitcnt vmcnt(0)")
    stamp("end")
    dump_stamps()
    A("L_end:")
    A("s_endpgm")
    A.L += stream_body

    body = A.fix()
    hdr = open("cdna_kernels/" + NAME + ".s.ref").read().split("\n")
    hdr = [l for l in hdr if l.startswith(";") and "@launch" not in l and "Override" not in l and "grid=ceil" not in l]
    out = hdr + [f"; @launch grid=(256,1,1) block=(320,1,1) lds={LRING + 4 * nlds * 1024}",
                 '.amdgcn_target "amdgcn-amd-amdhsa--gfx950"', ".text", f".globl {KN}", ".p2align 8", f".type {KN},@function"]
    out += [l if l.endswith(":") else "    " + l for l in body]
    nv = 256
    out += ['.section .rodata,"a"', ".p2align 6", f".amdhsa_kernel {KN}", f"  .amdhsa_next_free_vgpr {nv}",
            "  .amdhsa_next_free_sgpr 102", f"  .amdhsa_accum_offset {nv}", "  .amdhsa_group_segment_fixed_size 0",
            "  .amdhsa_kernarg_size 96", "  .amdhsa_user_sgpr_count 2", "  .amdhsa_user_sgpr_kernarg_segment_ptr 1",
            "  .amdhsa_system_sgpr_workgroup_id_x 1", ".end_amdhsa_kernel"]
    return "\n".join(out) + "\n", stamp_list

if __name__ == "__main__":
    kw = eval("dict(" + (sys.argv[2] if len(sys.argv) > 2 else "") + ")")
    open(sys.argv[1], "w").write(gen(**kw)[0])
```

```python
import sys
from asmlib import Asm
NAME = "recurrent_scan__mha_block_cached__glu_gated_glu__decode"
KN = NAME + "_kernel"

WS_A  = 0x00000
WS_O  = 0x40000
WS_S  = 0x60000
WS_Y  = 0x80000
WS_ML = 0xA0000
WS_E  = 0xB0000
WS_ST = 0x100000
WS_BYTES = 268435456
LQ, LML, LPROG, LQF, LH, LO = 0, 256, 288, 304, 320, 1024
LRING = 4096
LOG2E = "0x3fb8aa3b"
SCALE = "0x3db504f3"
SPIN = 1 << 17

def gen(nslot=48, nlds=32, npre=4, burst=4, every=6, dist=16, late=10, stamps=False, kvflags="nt", wflags="nt", psleep=0, asleep=30, skip='', lsleep=2, qflag=True, cap=0, capfn=None, olate=0, plate=None, pall=False, mapx=False, gflags=None):
    A = Asm()
    stamp_list = []
    sets = {"early": "bar0 issued x ln apub aseen qdone ml mlx end qready kdone vdone",
            "prog": "bar0 i16 i32 i48 i64 i80 i96 i112 i127 vdone apub aseen mlx end",
            "late": "qdone mlx wiss bar2 opub oseen spub sseen end issued qready kdone vdone"}
    def stamp(name, base=80):
        if stamps and name in sets[stamps].split() and not (stamps == "late" and role[0] == "S" and name == "issued"):
            k = len([x for x in stamp_list if x[0] == role[0]])
            stamp_list.append((role[0], name))
            A(f"s_memrealtime s[{base+2*k}:{base+2*k+1}]")
    role = ["S"]
    def rbf(dst, src):
        A(f"v_cvt_pk_bf16_f32 {dst}, {src}, {src}")
        A(f"v_and_b32 {dst}, 0xffff0000, {dst}")
    def masks(m0, lane, t0, t1):
        A(f"v_and_b32 v{t0}, 1, v{lane}")
        A(f"v_lshlrev_b32 v{t0}, 4, v{t0}")
        A(f"v_lshlrev_b32 v{t0}, v{t0}, s50")
        A(f"v_bfe_u32 v{t1}, v{lane}, 1, 2")
        for r in range(4):
            A(f"v_cmp_eq_u32 vcc, {r}, v{t1}")
            A(f"v_cndmask_b32 v{m0+r}, 0, v{t0}, vcc")
    def abuild(a0, p, m0, n):
        for r in range(4):
            A(f"v_and_b32_dpp v{a0+r}, v{p}, v{m0+r} row_newbcast:{n} row_mask:0xf bank_mask:0xf")
    def wave_red(op, v):
        for c in ("quad_perm:[1,0,3,2]", "quad_perm:[2,3,0,1]", "row_half_mirror", "row_mirror"):
            A(f"{op}_dpp v{v}, v{v}, v{v} {c} row_mask:0xf bank_mask:0xf")
        A(f"{op}_dpp v{v}, v{v}, v{v} row_bcast:15 row_mask:0xa bank_mask:0xf")
        A(f"{op}_dpp v{v}, v{v}, v{v} row_bcast:31 row_mask:0xc bank_mask:0xf")
    def tag(regs, TAG):
        for r in regs: A(f"v_and_or_b32 v{r}, v{r}, s7, v{TAG}")
    def untag(regs):
        for r in regs: A(f"v_and_b32 v{r}, s7, v{r}")
    def check(regs, TAG, t):
        regs = list(regs); assert len(regs) % 2 == 0
        pairs = [regs[k:k+2] for k in range(0, len(regs), 2)]
        A(f"v_bitop3_b32 v{t}, v{pairs[0][0]}, v{pairs[0][1]}, v{TAG} bitop3:0x7e")
        rest = pairs[1:]
        while rest:
            take = rest[:2]; rest = rest[2:]
            for k, p in enumerate(take): A(f"v_bitop3_b32 v{t+1+k}, v{p[0]}, v{p[1]}, v{TAG} bitop3:0x7e")
            if len(take) == 2: A(f"v_or3_b32 v{t}, v{t}, v{t+1}, v{t+2}")
            else: A(f"v_or_b32 v{t}, v{t}, v{t+1}")
        A(f"v_and_b32 v{t}, 0x3ff, v{t}")
        A(f"v_cmp_ne_u32 vcc, 0, v{t}")
    def srd(d, off, nbytes):
        A(f"s_load_dwordx2 s[{d}:{d+1}], s[0:1], {off}")
        A(f"s_mov_b32 s{d+2}, {nbytes}")
        A(f"s_mov_b32 s{d+3}, 0x20000")
    def dump_stamps():
        if not stamps: return
        mine = [x for x in stamp_list if x[0] == role[0]]
        A("s_mov_b64 exec, -1")
        A("s_waitcnt lgkmcnt(0)")
        for k in range(len(mine)):
            A(f"v_writelane_b32 v0, s{80+2*k}, {k}")
        A("s_getreg_b32 s48, hwreg(HW_REG_XCC_ID)")
        A("v_writelane_b32 v0, s48, 15")
        A("s_load_dwordx2 s[40:41], s[0:1], 88")
        A(f"s_mov_b32 s42, {WS_BYTES}")
        A("s_mov_b32 s43, 0x20000")
        A("s_mul_i32 s48, s2, 5"); A("s_add_u32 s48, s48, s3"); A("s_lshl_b32 s48, s48, 6"); A(f"s_add_u32 s48, s48, {WS_ST}")
        A("v_mbcnt_lo_u32_b32 v1, -1, 0"); A("v_lshlrev_b32 v1, 2, v1")
        A("s_mov_b64 exec, 0xffff")
        A("s_waitcnt lgkmcnt(0)")
        A("buffer_store_dword v0, v1, s[40:43], s48 offen")

    A(f"{KN}:")
    if stamps: A("s_memrealtime s[80:81]")
    A("v_lshrrev_b32 v1, 6, v0")
    A("s_cmp_ge_u32 s2, 256")
    A("s_cbranch_scc1 L_end")
    A("v_readfirstlane_b32 s3, v1")
    if mapx:
        A("s_lshr_b32 s4, s2, 3")
        A("s_and_b32 s5, s2, 7")
    else:
        A("s_and_b32 s4, s2, 31")
        A("s_lshr_b32 s5, s2, 5")
    A("v_and_b32 v0, 63, v0")
    A("s_mov_b32 s50, 0xffff")
    A("s_cmp_eq_u32 s3, 4")
    A("s_cbranch_scc1 L_service")

    role[0] = "W"; stamp_list.append(("W", "start"));
    VL16, M0, Q0, S0, AB, D0, P0, T0, RING = 1, 2, 6, 10, 14, 22, 26, 42, 48
    LA = T0 + 2; TB = RING + 4 * nslot
    srd(8, 8, 64 << 20); srd(12, 16, 64 << 20)
    A("s_lshl_b32 s48, s4, 21"); A("s_lshl_b32 s49, s5, 18"); A("s_add_u32 s48, s48, s49")
    A("s_lshl_b32 s49, s3, 12"); A("s_add_u32 s48, s48, s49")
    A("s_mov_b32 s49, s48")
    A(f"v_lshlrev_b32 v{VL16}, 4, v0")
    A("s_waitcnt lgkmcnt(0)")
    issued = [0]
    def slot(i):
        return RING + 4 * (i if i < nslot else (i - nslot - nlds) % nslot)
    def in_lds(i): return nslot <= i < nslot + nlds
    def issue():
        i = issued[0]; issued[0] += 1
        ii = i % 64; s = 8 if i < 64 else 12
        if i == 64: A("s_mov_b32 s49, s48")
        elif ii % 4 == 0 and i: A("s_addk_i32 s49, 0x4000")
        off = f" offset:{(ii%4)*1024}" if ii % 4 else ""
        c_ = capfn(i) if capfn else cap
        if c_ and i >= c_: A(f"s_waitcnt vmcnt({c_-1})")
        if in_lds(i):
            if ii % 4 == 0:
                A(f"s_add_u32 m0, s56, {(i - nslot) * 1024}")
            A(f"buffer_load_dwordx4 v{VL16}, s[{s}:{s+3}], s49 offen{off} {kvflags} lds")
        else:
            r = slot(i)
            A(f"buffer_load_dwordx4 v[{r}:{r+3}], v{VL16}, s[{s}:{s+3}], s49 offen{off} {kvflags}")
        stamp(f"i{i}")
        if i == 127 - late and olate == 0 and plate is None:
            A(f"ds_write_b32 v{T0+4}, v{T0+5} offset:{LPROG}")
    assert nslot % 4 == 0 and nlds % 4 == 0
    for _ in range(npre): issue()
    A("s_branch L_stream")
    stream_at = len(A.L)
    A("L_stream:")
    masks(M0, 0, T0, T0 + 1)
    A("s_mov_b32 s52, 0xcccccccc"); A("s_mov_b32 s53, 0xcccccccc")
    A("s_mov_b32 s54, 0xaaaaaaaa"); A("s_mov_b32 s55, 0xaaaaaaaa")
    A(f"v_and_b32 v{T0+2}, 15, v0"); A(f"v_lshlrev_b32 v{T0+2}, 4, v{T0+2}")
    A(f"v_mov_b32 v{T0+4}, s3"); A(f"v_lshlrev_b32 v{T0+4}, 2, v{T0+4}"); A(f"v_mov_b32 v{T0+5}, 1")
    A(f"s_mul_i32 s56, s3, {nlds*1024}"); A(f"s_add_u32 s56, s56, {LRING}")
    A("s_barrier")
    stamp("bar0")
    for _ in range(nslot + nlds - npre): issue()
    stamp("issued")
    if qflag:
        A(f"v_mov_b32 v{T0+1}, 0")
        A(f"s_mov_b32 s57, {SPIN * 8}")
        A("L_pollQ:")
        A(f"ds_read_b32 v{T0}, v{T0+1} offset:{LQF}")
        A(f"ds_read_b128 v[{Q0}:{Q0+3}], v{T0+2} offset:{LQ}")
        A("s_sub_u32 s57, s57, 1"); A("s_cbranch_scc1 L_pollQ_done")
        A("s_waitcnt lgkmcnt(0)")
        A(f"v_cmp_eq_u32 vcc, 0, v{T0}")
        A("s_nop 1")
        A("s_cbranch_vccnz L_pollQ")
        A("L_pollQ_done:")
        stamp("qready")
    else:
        A("s_barrier")
        A(f"ds_read_b128 v[{Q0}:{Q0+3}], v{T0+2} offset:{LQ}")
        stamp("qready")
        A("s_waitcnt lgkmcnt(0)")
    A(f"v_add_u32 v{LA}, s56, v{VL16}")
    def wait_for(i):
        A(f"s_waitcnt vmcnt({min(63, issued[0] - 1 - i)})")
    def maybe_issue(i):
        n0 = nslot + nlds
        want = n0 + min(i + 1, burst + i // every) if i < n0 else i + 1 + dist
        want = max(want, min(i + 1 + dist, n0 + i + 1))
        while issued[0] < min(128, want): issue()
    lds_rd = [nslot]
    def lds_fetch(upto, TB):
        while lds_rd[0] <= min(upto, nslot + nlds - 1):
            i = lds_rd[0]; lds_rd[0] += 1
            wait_for(i)
            t = TB + 4 * (i % 4)
            A(f"ds_read_b128 v[{t}:{t+3}], v{LA} offset:{(i - nslot) * 1024}")
    def operand(i, TB):
        if not in_lds(i):
            wait_for(i); return slot(i)
        lds_fetch(i + 2, TB)
        A(f"s_waitcnt lgkmcnt({min(lds_rd[0] - 1 - i, 2)})")
        return TB + 4 * (i % 4)
    for i in range(64):
        n = i % 16
        A(f"v_mov_b32 v{P0+n}, 0")
        r = operand(i, TB)
        if 'K' not in skip:
            for k in range(4): A(f"v_dot2c_f32_bf16 v{P0+n}, v{r+k}, v{Q0+k}")
        maybe_issue(i)
        if n == 15 and 'K' not in skip:
            a = i // 16
            for r_ in range(8):
                A(f"v_add_f32_dpp v{P0+r_}, v{P0+r_}, v{P0+r_} row_ror:8 row_mask:0xf bank_mask:0x3")
                A(f"v_add_f32_dpp v{P0+r_}, v{P0+r_+8}, v{P0+r_+8} row_ror:8 row_mask:0xf bank_mask:0xc")
            for r_ in range(4):
                A(f"v_add_f32_dpp v{P0+r_}, v{P0+r_}, v{P0+r_} row_half_mirror row_mask:0xf bank_mask:0x5")
                A(f"v_add_f32_dpp v{P0+r_}, v{P0+r_+4}, v{P0+r_+4} row_half_mirror row_mask:0xf bank_mask:0xa")
            for r_ in range(4):
                A(f"v_add_f32_dpp v{P0+r_}, v{P0+r_}, v{P0+r_} quad_perm:[2,3,0,1] row_mask:0xf bank_mask:0xf")
            A(f"v_cndmask_b32 v{P0}, v{P0}, v{P0+2}, s[52:53]")
            A(f"v_cndmask_b32 v{P0+1}, v{P0+1}, v{P0+3}, s[52:53]")
            for r_ in range(2):
                A(f"v_add_f32_dpp v{P0+r_}, v{P0+r_}, v{P0+r_} quad_perm:[1,0,3,2] row_mask:0xf bank_mask:0xf")
            A(f"v_cndmask_b32 v{S0+a}, v{P0}, v{P0+1}, s[54:55]")
            rbf(f"v{S0+a}", f"v{S0+a}")
            A(f"v_mul_f32 v{S0+a}, {SCALE}, v{S0+a}")
            rbf(f"v{S0+a}", f"v{S0+a}")
    stamp("kdone")
    A(f"v_max3_f32 v{T0}, v{S0}, v{S0+1}, v{S0+2}")
    A(f"v_max_f32 v{T0}, v{T0}, v{S0+3}")
    wave_red("v_max_f32", T0)
    A(f"v_readlane_b32 s51, v{T0}, 63")
    for a in range(4): A(f"v_subrev_f32 v{S0+a}, s51, v{S0+a}")
    for a in range(4): A(f"v_mul_f32 v{S0+a}, {LOG2E}, v{S0+a}")
    for a in range(4): A(f"v_exp_f32 v{S0+a}, v{S0+a}")
    A(f"v_add_f32 v{T0+1}, v{S0}, v{S0+1}")
    A(f"v_add_f32 v{T0+3}, v{S0+2}, v{S0+3}")
    A(f"v_add_f32 v{T0+1}, v{T0+1}, v{T0+3}")
    for a in range(4): A(f"v_cvt_pk_bf16_f32 v{S0+a}, v{S0+a}, v{S0+a}")
    abuild(AB, S0, M0, 0)
    wave_red("v_add_f32", T0 + 1)
    A(f"v_lshlrev_b32 v{T0+3}, 1, v{T0+4}")
    A("s_mov_b32 exec_lo, 0"); A("s_mov_b32 exec_hi, 0x80000000")
    A(f"ds_write_b64 v{T0+3}, v[{T0}:{T0+1}] offset:{LML}")
    A("s_mov_b64 exec, -1")
    for i in range(64, 128):
        n = i % 16; a = (i - 64) // 16; ab = AB + 4 * (i & 1)
        r = operand(i, TB)
        c = f"v[{D0}:{D0+3}]" if i > 64 else "0"
        if 'V' not in skip: A(f"v_mfma_f32_16x16x32_bf16 v[{D0}:{D0+3}], v[{ab}:{ab+3}], v[{r}:{r+3}], {c}")
        if i < 127 and 'V' not in skip: abuild(AB + 4 * ((i + 1) & 1), S0 + (i + 1 - 64) // 16, M0, (i + 1) % 16)
        maybe_issue(i)
        if plate is not None and i == 127 - plate and olate == 0:
            A(f"ds_write_b32 v{T0+4}, v{T0+5} offset:{LPROG}")
        if i == 120:
            A(f"v_and_b32 v{T0}, 15, v0"); A(f"v_lshlrev_b32 v{T0}, 5, v{T0}")
            A(f"v_and_b32 v{T0+1}, 16, v0"); A(f"v_add_u32 v{T0}, v{T0}, v{T0+1}")
            A(f"v_lshl_add_u32 v{T0}, v{T0+4}, 7, v{T0}")
    stamp("vdone")
    A("s_mov_b32 exec_hi, 0")
    A(f"ds_write_b128 v{T0}, v[{D0}:{D0+3}] offset:{LO}")
    A("s_waitcnt lgkmcnt(0)")
    A("s_barrier")
    dump_stamps()
    A("s_endpgm")

    stream_body = A.L[stream_at:]; del A.L[stream_at:]
    role[0] = "S"; stamp_list.append(("S", "start"))
    G, J, M0, AB, DQ, DG, PD, T0 = 1, 2, 4, 8, 16, 20, 3, 24
    XA, XR, GA, VA, XF, PH, EP, TAG = 40, 44, 46, 48, 49, 50, 45, 61
    WQ, GU = 64, 128
    A("L_service:")
    A("s_setprio 3")
    srd(16, 0, 1024); srd(20, 24, 4 << 20); srd(24, 32, 4 << 20); srd(28, 64, 1376 * 1024)
    srd(32, 72, 1024); srd(40, 88, WS_BYTES)
    A("s_load_dwordx4 s[44:47], s[0:1], 48")
    A(f"v_lshrrev_b32 v{G}, 4, v0"); A(f"v_and_b32 v{J}, 15, v0")
    A("s_lshl_b32 s6, s4, 3"); A("s_add_u32 s6, s6, s5")
    if mapx: A("s_mov_b32 s7, s4")
    else:
        A("s_and_b32 s7, s4, 7"); A("s_lshl_b32 s7, s7, 2"); A("s_lshr_b32 s48, s4, 3"); A("s_add_u32 s7, s7, s48")
    A("s_mul_i32 s56, s7, 43"); A("s_add_u32 s57, s56, 43"); A("s_lshr_b32 s56, s56, 3"); A("s_lshr_b32 s57, s57, 3")
    A("s_sub_u32 s57, s57, s56")
    A("s_and_b32 s58, s5, 3"); A("s_lshr_b32 s59, s5, 2")
    A(f"v_lshlrev_b32 v{T0}, 4, v0")
    A("s_lshl_b32 s48, s5, 7")
    A(f"v_lshlrev_b32 v{T0+1}, 1, v0")
    A(f"v_lshlrev_b32 v{T0+3}, 4, v{J}")
    A(f"v_lshl_add_u32 v{T0+2}, v{G}, 17, v{T0+3}")
    A("s_lshl_b32 s49, s5, 19"); A("s_lshl_b32 s51, s4, 8"); A("s_add_u32 s49, s49, s51")
    A(f"v_and_b32 v{T0+4}, 7, v0")
    A(f"v_cmp_gt_u32 vcc, s57, v{T0+4}")
    A(f"v_cndmask_b32 v{T0+4}, 0, v{T0+4}, vcc")
    A(f"v_add_u32 v{T0+4}, s56, v{T0+4}"); A(f"v_lshlrev_b32 v{T0+4}, 4, v{T0+4}")
    A("s_mov_b32 s51, 44032")
    A(f"v_mad_u32_u24 v{T0+4}, v{G}, s51, v{T0+4}")
    A("s_mul_i32 s51, s5, 176128"); A(f"v_add_u32 v{T0+4}, s51, v{T0+4}")
    A(f"v_mov_b32 v{T0+5}, 0")
    A(f"v_cmp_lt_u32 vcc, 7, v{J}")
    A(f"s_mov_b32 s79, {WS_E}")
    A("s_waitcnt lgkmcnt(0)")
    A(f"buffer_load_dwordx4 v[{XA}:{XA+3}], v{T0}, s[16:19], 0 offen")
    A(f"buffer_load_ushort v{XR}, v{T0+1}, s[16:19], s48 offen")
    A(f"buffer_load_dword v{EP}, v{T0+5}, s[40:43], s79 offen sc1")
    A(f"v_mov_b32 v{T0+6}, s44"); A(f"v_mov_b32 v{T0+7}, s45"); A(f"v_mov_b32 v{T0+8}, s46"); A(f"v_mov_b32 v{T0+9}, s47")
    A(f"v_cndmask_b32 v{GA}, v{T0+6}, v{T0+8}, vcc"); A(f"v_cndmask_b32 v{GA+1}, v{T0+7}, v{T0+9}, vcc")
    A(f"v_lshl_add_u64 v[{GA}:{GA+1}], v[{T0+4}:{T0+5}], 0, v[{GA}:{GA+1}]")
    A("s_mov_b32 s60, 5504"); A("s_mov_b32 s61, 0")
    for n in range(16):
        if 'W' in skip: A(f"buffer_load_dword v{WQ+4*n}, v{T0+5}, s[16:19], 0 offen")
        else: A(f"buffer_load_dwordx4 v[{WQ+4*n}:{WQ+4*n+3}], v{T0+2}, s[20:23], s49 offen {wflags}")
        if 'G' in skip: A(f"buffer_load_dword v{GU+4*n}, v{T0+5}, s[16:19], 0 offen")
        else: A(f"global_load_dwordx4 v[{GU+4*n}:{GU+4*n+3}], v[{GA}:{GA+1}], off{' offset:2752' if n & 1 else ''} {wflags if gflags is None else gflags}")
        if n < 15: A("s_addk_i32 s49, 0x2000")
        if n & 1 and n < 15: A(f"v_lshl_add_u64 v[{GA}:{GA+1}], v[{GA}:{GA+1}], 0, s[60:61]")
    A(f"v_mov_b32 v{T0+6}, -1"); A(f"v_cmp_gt_u32 vcc, 8, v0"); A(f"v_cndmask_b32 v{T0+6}, 0, v{T0+6}, vcc")
    A(f"v_lshlrev_b32 v{T0+7}, 2, v0")
    A("s_mov_b64 exec, 0xffff")
    A(f"ds_write_b32 v{T0+7}, v{T0+6} offset:{LML}")
    A("s_mov_b64 exec, -1")
    A("s_waitcnt lgkmcnt(0)")
    A("s_barrier")
    stamp("issued")
    masks(M0, 0, T0 + 6, T0 + 7)
    A("s_waitcnt vmcnt(32)")
    stamp("x")
    A(f"v_add_u32 v{EP}, 1, v{EP}"); A(f"v_and_b32 v{TAG}, 0x3ff, v{EP}")
    A("s_mov_b32 s7, 0xfffffc00")
    for k in range(4):
        A(f"v_lshlrev_b32 v{T0+2*k}, 16, v{XA+k}"); A(f"v_and_b32 v{T0+2*k+1}, 0xffff0000, v{XA+k}")
    A(f"v_add_f32 v{T0+8}, v{T0}, v{T0+1}"); A(f"v_add_f32 v{T0+9}, v{T0+2}, v{T0+3}")
    A(f"v_add_f32 v{T0+10}, v{T0+4}, v{T0+5}"); A(f"v_add_f32 v{T0+11}, v{T0+6}, v{T0+7}")
    A(f"v_add_f32 v{T0+8}, v{T0+8}, v{T0+9}"); A(f"v_add_f32 v{T0+10}, v{T0+10}, v{T0+11}")
    A(f"v_add_f32 v{T0+8}, v{T0+8}, v{T0+10}")
    wave_red("v_add_f32", T0 + 8)
    A(f"v_mul_f32 v{T0+8}, 0x3b000000, v{T0+8}")
    A(f"v_readlane_b32 s51, v{T0+8}, 63")
    for k in range(8): A(f"v_subrev_f32 v{T0+k}, s51, v{T0+k}")
    A(f"v_mul_f32 v{T0+9}, v{T0}, v{T0}"); A(f"v_mul_f32 v{T0+10}, v{T0+1}, v{T0+1}")
    for k in range(2, 8, 2):
        A(f"v_fmac_f32 v{T0+9}, v{T0+k}, v{T0+k}"); A(f"v_fmac_f32 v{T0+10}, v{T0+k+1}, v{T0+k+1}")
    A(f"v_add_f32 v{T0+9}, v{T0+9}, v{T0+10}")
    wave_red("v_add_f32", T0 + 9)
    A(f"v_mul_f32 v{T0+9}, 0x3b000000, v{T0+9}")
    rbf(f"v{T0+9}", f"v{T0+9}")
    A(f"v_add_f32 v{T0+9}, 0x3727c5ac, v{T0+9}")
    rbf(f"v{T0+9}", f"v{T0+9}")
    A(f"v_sqrt_f32 v{T0+9}, v{T0+9}")
    rbf(f"v{T0+8}", f"v{T0+8}")
    rbf(f"v{T0+9}", f"v{T0+9}")
    A(f"v_readlane_b32 s51, v{T0+8}, 63"); A(f"v_readlane_b32 s62, v{T0+9}, 63")
    A(f"v_lshlrev_b32 v{XR}, 16, v{XR}")
    A(f"v_rcp_f32 v{T0+10}, s62")
    A(f"v_subrev_f32 v{XR}, s51, v{XR}")
    rbf(f"v{XR}", f"v{XR}")
    A(f"v_mul_f32 v{T0+11}, v{XR}, v{T0+10}")
    A(f"v_fma_f32 v{T0+12}, -v{T0+11}, s62, v{XR}")
    A(f"v_fmac_f32 v{T0+11}, v{T0+12}, v{T0+10}")
    A(f"v_cvt_pk_bf16_f32 v{PD}, v{T0+11}, v{T0+11}")
    stamp("ln")
    abuild(AB, PD, M0, 0)
    for n in range(16):
        ab = AB + 4 * (n & 1)
        A(f"s_waitcnt vmcnt({30-2*n})")
        A(f"v_mfma_f32_16x16x32_bf16 v[{DQ}:{DQ+3}], v[{ab}:{ab+3}], v[{WQ+4*n}:{WQ+4*n+3}], {f'v[{DQ}:{DQ+3}]' if n else 0}")
        A(f"v_mfma_f32_16x16x32_bf16 v[{DG}:{DG+3}], v[{ab}:{ab+3}], v[{GU+4*n}:{GU+4*n+3}], {f'v[{DG}:{DG+3}]' if n else 0}")
        if n < 15: abuild(AB + 4 * ((n + 1) & 1), PD, M0, n + 1)
    L16 = T0 + 15; OUTA = VA
    A(f"v_lshlrev_b32 v{L16}, 4, v0")
    A(f"v_lshlrev_b32 v{OUTA}, 5, v{J}"); A(f"v_and_b32 v{T0}, 16, v0"); A(f"v_add_u32 v{OUTA}, v{OUTA}, v{T0}")
    A("s_lshl_b32 s63, s6, 9"); A(f"s_add_u32 s63, s63, {WS_O}")
    A("s_lshl_b32 s64, s58, 6"); A("s_lshl_b32 s48, s4, 1"); A("s_add_u32 s64, s64, s48"); A("s_add_u32 s64, s64, s59")
    A("s_lshl_b32 s64, s64, 9"); A(f"s_add_u32 s65, s64, {WS_Y}"); A(f"s_add_u32 s64, s64, {WS_S}")
    A("s_lshl_b32 s66, s6, 4"); A(f"s_add_u32 s66, s66, {WS_ML}")
    A("s_lshl_b32 s67, s6, 10")
    A("s_mov_b32 s68, 0"); A("s_mov_b32 s69, -1")
    for k in range(4): A(f"v_cndmask_b32 v{DQ+k}, v{DQ+k}, v{DG+k}, s[68:69]")
    tag(range(DQ, DQ + 4), TAG)
    A(f"buffer_store_dwordx4 v[{DQ}:{DQ+3}], v{L16}, s[40:43], s67 offen sc1")
    stamp("apub")
    A("s_lshl_b32 s48, s4, 13"); A("s_add_u32 s49, s48, 0x1000")
    A(f"v_lshrrev_b32 v{T0+3}, 1, v{OUTA}")
    A(f"s_mov_b32 s70, {SPIN}")
    A("L_pollA:")
    if asleep: A(f"s_sleep {asleep}")
    for k in range(8):
        A(f"buffer_load_dwordx4 v[{WQ+4*k}:{WQ+4*k+3}], v{L16}, s[40:43], s{48 + k // 4} offen{f' offset:{(k&3)*1024}' if k & 3 else ''} sc1")
    A("s_sub_u32 s70, s70, 1"); A("s_cbranch_scc1 L_pollA_done")
    A("s_waitcnt vmcnt(0)")
    check(range(WQ, WQ + 32), TAG, T0)
    A("s_nop 1")
    if 'A' not in skip: A("s_cbranch_vccnz L_pollA")
    A("L_pollA_done:")
    stamp("aseen")
    untag(range(WQ, WQ + 32))
    for k in range(4):
        A(f"v_add_f32 v{WQ+k}, v{WQ+k}, v{WQ+4+k}"); A(f"v_add_f32 v{WQ+8+k}, v{WQ+8+k}, v{WQ+12+k}")
        A(f"v_add_f32 v{WQ+16+k}, v{WQ+16+k}, v{WQ+20+k}"); A(f"v_add_f32 v{WQ+24+k}, v{WQ+24+k}, v{WQ+28+k}")
    for k in range(4):
        A(f"v_add_f32 v{WQ+k}, v{WQ+k}, v{WQ+8+k}"); A(f"v_add_f32 v{WQ+16+k}, v{WQ+16+k}, v{WQ+24+k}")
    for k in range(4): A(f"v_add_f32 v{WQ+k}, v{WQ+k}, v{WQ+16+k}")
    A(f"v_cvt_pk_bf16_f32 v{T0+4}, v{WQ}, v{WQ+1}"); A(f"v_cvt_pk_bf16_f32 v{T0+5}, v{WQ+2}, v{WQ+3}")
    A("s_mov_b32 exec_hi, 0")
    A(f"ds_write_b64 v{T0+3}, v[{T0+4}:{T0+5}] offset:{LQ}")
    if qflag:
        A(f"v_mov_b32 v{T0+6}, 0"); A(f"v_mov_b32 v{T0+7}, 1")
        A(f"ds_write_b32 v{T0+6}, v{T0+7} offset:{LQF}")
        A("s_mov_b64 exec, -1")
    else:
        A("s_mov_b64 exec, -1")
        A("s_waitcnt lgkmcnt(0)")
        A("s_barrier")
    stamp("qdone")
    A("s_setprio 0")
    for k in range(4): rbf(f"v{WQ+k}", f"v{WQ+k}")
    for k in range(4): A(f"v_mov_b32_dpp v{T0+4+k}, v{WQ+k} row_ror:8 row_mask:0xf bank_mask:0xf")
    for k in range(4): A(f"v_mul_f32 v{WQ+k}, 0xbfb8aa3b, v{WQ+k}")
    for k in range(4): A(f"v_exp_f32 v{WQ+k}, v{WQ+k}")
    for k in range(4): A(f"v_add_f32 v{WQ+k}, 1.0, v{WQ+k}")
    for k in range(4): A(f"v_rcp_f32 v{WQ+k}, v{WQ+k}")
    for k in range(4): rbf(f"v{WQ+k}", f"v{WQ+k}")
    for k in range(4): A(f"v_mul_f32 v{WQ+k}, v{WQ+k}, v{T0+4+k}")
    A(f"v_cmp_gt_u32 vcc, s57, v{J}")
    for k in range(4): A(f"v_cvt_pk_bf16_f32 v{WQ+k}, v{WQ+k}, v{WQ+k}")
    for k in range(4): A(f"v_cndmask_b32 v{WQ+k}, 0, v{WQ+k}, vcc")
    A("s_mov_b32 exec_lo, 0"); A("s_mov_b32 exec_hi, 0x00ff00ff")
    A(f"ds_write_b128 v{OUTA}, v[{WQ}:{WQ+3}] offset:{LH}")
    A("s_mov_b64 exec, -1")
    A("s_mul_i32 s48, s59, 24")
    A(f"v_mul_u32_u24 v{T0}, 6, v{G}"); A(f"v_add_u32 v{T0}, s48, v{T0}")
    A(f"v_add_lshl_u32 v{T0+1}, v{T0}, v{J}, 2")
    A("s_waitcnt lgkmcnt(0)")
    A(f"ds_read_b32 v{PH}, v{T0+1} offset:{LH}")
    WDA = 52
    A("s_lshl_b32 s48, s57, 3"); A("s_lshl_b32 s49, s56, 3")
    A(f"v_lshlrev_b32 v{T0+2}, 4, v{J}")
    for n in range(6):
        A(f"v_add_u32 v{T0+3}, {n}, v{T0}")
        A(f"v_cmp_gt_u32 vcc, s48, v{T0+3}")
        A(f"v_add_u32 v{T0+3}, s49, v{T0+3}")
        A(f"v_lshl_add_u32 v{T0+3}, v{T0+3}, 10, v{T0+2}")
        A(f"v_mov_b32 v{WDA+n}, 0x7ffffff0")
        A(f"v_cndmask_b32 v{WDA+n}, v{WDA+n}, v{T0+3}, vcc")
    WOA = 58
    A(f"v_lshl_add_u32 v{WOA}, v{G}, 14, v{T0+2}")
    A("s_lshl_b32 s71, s4, 17"); A("s_lshl_b32 s48, s59, 16"); A("s_add_u32 s71, s71, s48")
    A("s_lshl_b32 s72, s58, 8"); A("s_add_u32 s71, s71, s72")
    RA = 59
    A(f"v_and_b32 v{T0+3}, 3, v0"); A(f"v_lshl_add_u32 v{T0+4}, v{T0+3}, 2, v{G}")
    A("s_lshl_b32 s48, s4, 4"); A(f"v_add_lshl_u32 v{XF+0}, v{T0+4}, s48, 1")
    A(f"v_lshrrev_b32 v{RA}, 2, v0"); A(f"v_lshlrev_b32 v{RA}, 9, v{RA}"); A(f"v_lshl_add_u32 v{RA}, v{T0+3}, 4, v{RA}")
    A("s_and_b32 s48, s4, 7"); A("s_lshl_b32 s48, s48, 6"); A("s_lshr_b32 s73, s4, 3"); A("s_lshl_b32 s73, s73, 15"); A("s_add_u32 s73, s73, s48")
    A(f"buffer_load_ushort v{51}, v{XF}, s[16:19], 0 offen")
    A(f"v_and_b32 v{T0}, 3, v0"); A(f"v_lshlrev_b32 v{T0}, 3, v{T0}")
    A(f"s_mov_b32 s70, {SPIN}")
    A("L_pollML:")
    A(f"s_sleep {lsleep}")
    A(f"ds_read_b64 v[{T0+2}:{T0+3}], v{T0} offset:{LML}")
    A("s_sub_u32 s70, s70, 1"); A("s_cbranch_scc1 L_pollML_done")
    A("s_waitcnt lgkmcnt(0)")
    A(f"v_cmp_eq_u32 vcc, -1, v{T0+3}")
    A("s_nop 1")
    A("s_cbranch_vccnz L_pollML")
    A("L_pollML_done:")
    stamp("ml")
    A(f"v_max_f32_dpp v{T0+4}, v{T0+2}, v{T0+2} quad_perm:[1,0,3,2] row_mask:0xf bank_mask:0xf")
    A(f"v_max_f32_dpp v{T0+4}, v{T0+4}, v{T0+4} quad_perm:[2,3,0,1] row_mask:0xf bank_mask:0xf")
    A(f"v_sub_f32 v{T0+5}, v{T0+2}, v{T0+4}"); A(f"v_mul_f32 v{T0+5}, {LOG2E}, v{T0+5}"); A(f"v_exp_f32 v{T0+5}, v{T0+5}")
    A(f"v_mul_f32 v{T0+5}, v{T0+5}, v{T0+3}")
    A(f"v_add_f32_dpp v{T0+5}, v{T0+5}, v{T0+5} quad_perm:[1,0,3,2] row_mask:0xf bank_mask:0xf")
    A(f"v_add_f32_dpp v{T0+5}, v{T0+5}, v{T0+5} quad_perm:[2,3,0,1] row_mask:0xf bank_mask:0xf")
    tag((T0 + 4, T0 + 5), TAG)
    A(f"v_mov_b32 v{T0+1}, 0")
    A("s_mov_b64 exec, 1")
    A(f"buffer_store_dwordx2 v[{T0+4}:{T0+5}], v{T0+1}, s[40:43], s66 offen sc1")
    A("s_mov_b64 exec, -1")
    A(f"v_and_b32 v{T0+1}, 7, v0"); A(f"v_lshlrev_b32 v{T0+1}, 4, v{T0+1}")
    A("s_lshl_b32 s48, s4, 7"); A(f"s_add_u32 s48, s48, {WS_ML}")
    A(f"s_mov_b32 s70, {SPIN}")
    A("L_pollML2:")
    if psleep: A(f"s_sleep {psleep}")
    A(f"buffer_load_dwordx2 v[{T0+4}:{T0+5}], v{T0+1}, s[40:43], s48 offen sc1")
    A("s_sub_u32 s70, s70, 1"); A("s_cbranch_scc1 L_pollML2_done")
    A("s_waitcnt vmcnt(0)")
    check((T0 + 4, T0 + 5), TAG, T0 + 6)
    A("s_nop 1")
    if 'M' not in skip: A("s_cbranch_vccnz L_pollML2")
    A("L_pollML2_done:")
    untag((T0 + 4, T0 + 5))
    A(f"v_lshlrev_b32 v51, 16, v51")
    A(f"v_max_f32_dpp v{T0+6}, v{T0+4}, v{T0+4} quad_perm:[1,0,3,2] row_mask:0xf bank_mask:0xf")
    A(f"v_max_f32_dpp v{T0+6}, v{T0+6}, v{T0+6} quad_perm:[2,3,0,1] row_mask:0xf bank_mask:0xf")
    A(f"v_max_f32_dpp v{T0+6}, v{T0+6}, v{T0+6} row_half_mirror row_mask:0xf bank_mask:0xf")
    A(f"v_sub_f32 v{T0+4}, v{T0+4}, v{T0+6}"); A(f"v_sub_f32 v{T0+2}, v{T0+2}, v{T0+6}")
    A(f"v_mul_f32 v{T0+4}, {LOG2E}, v{T0+4}"); A(f"v_mul_f32 v{T0+2}, {LOG2E}, v{T0+2}")
    A(f"v_exp_f32 v{T0+4}, v{T0+4}"); A(f"v_exp_f32 v{T0+2}, v{T0+2}")
    A(f"v_mul_f32 v{T0+4}, v{T0+4}, v{T0+5}")
    A(f"v_add_f32_dpp v{T0+4}, v{T0+4}, v{T0+4} quad_perm:[1,0,3,2] row_mask:0xf bank_mask:0xf")
    A(f"v_add_f32_dpp v{T0+4}, v{T0+4}, v{T0+4} quad_perm:[2,3,0,1] row_mask:0xf bank_mask:0xf")
    A(f"v_add_f32_dpp v{T0+4}, v{T0+4}, v{T0+4} row_half_mirror row_mask:0xf bank_mask:0xf")
    A(f"v_rcp_f32 v{T0+4}, v{T0+4}")
    A(f"v_mul_f32 v{T0+2}, v{T0+2}, v{T0+4}")
    for w in range(4): A(f"v_readlane_b32 s{74+w}, v{T0+2}, {w}")
    stamp("mlx")
    OGA = 60
    A("s_lshl_b32 s48, s59, 8"); A(f"v_lshl_add_u32 v{OGA}, v0, 2, s48")
    A("s_lshl_b32 s78, s4, 12"); A(f"s_add_u32 s78, s78, {WS_O}")
    WO, WD = 64, 128
    def oloads():
        for n in range(6):
            if 'O' not in skip: A(f"buffer_load_dwordx4 v[{WD+4*n}:{WD+4*n+3}], v{WDA+n}, s[28:31], s72 offen {wflags}")
        for n in range(16):
            if 'O' not in skip: A(f"buffer_load_dwordx4 v[{WO+4*n}:{WO+4*n+3}], v{WOA}, s[24:27], s71 offen{f' offset:{(n&3)*1024}' if n & 3 else ''} {wflags}")
            if n & 3 == 3 and n < 15: A("s_addk_i32 s71, 0x1000")
        stamp("wiss")
    if olate == 0:
        A(f"v_mov_b32 v{T0}, 0")
        A(f"s_mov_b32 s70, {SPIN}")
        A("L_pollP:")
        A(f"s_sleep {lsleep}")
        A(f"ds_read_b128 v[{T0+4}:{T0+7}], v{T0} offset:{LPROG}")
        A("s_sub_u32 s70, s70, 1"); A("s_cbranch_scc1 L_pollP_done")
        A("s_waitcnt lgkmcnt(0)")
        if pall:
            A(f"v_and_b32 v{T0+4}, v{T0+4}, v{T0+5}"); A(f"v_and_b32 v{T0+6}, v{T0+6}, v{T0+7}"); A(f"v_and_b32 v{T0+4}, v{T0+4}, v{T0+6}")
        else:
            A(f"v_or3_b32 v{T0+4}, v{T0+4}, v{T0+5}, v{T0+6}"); A(f"v_or_b32 v{T0+4}, v{T0+4}, v{T0+7}")
        A(f"v_cmp_eq_u32 vcc, 0, v{T0+4}")
        A("s_nop 1")
        A("s_cbranch_vccnz L_pollP")
        A("L_pollP_done:")
        A("s_setprio 3")
        oloads()
    else:
        A("s_setprio 3")
    abuild(AB, PH, M0, 0)
    A("s_barrier")
    A("s_mov_b32 exec_hi, 0")
    for w in range(4): A(f"ds_read_b128 v[{T0+4*w}:{T0+4*w+3}], v{OUTA} offset:{LO+512*w}")
    stamp("bar2")
    if olate == 1:
        A("s_mov_b64 exec, -1"); oloads(); A("s_mov_b32 exec_hi, 0")
    for w in range(4):
        A(f"s_waitcnt lgkmcnt({3-w})") if not stamps else A("s_waitcnt lgkmcnt(0)")
        for k in range(4):
            if w == 0: A(f"v_mul_f32 v{DQ+k}, s74, v{T0+k}")
            else: A(f"v_fmac_f32 v{DQ+k}, s{74+w}, v{T0+4*w+k}")
    tag(range(DQ, DQ + 4), TAG)
    A(f"buffer_store_dwordx4 v[{DQ}:{DQ+3}], v{OUTA}, s[40:43], s63 offen sc1")
    A("s_mov_b64 exec, -1")
    stamp("opub")
    if olate == 2: oloads()
    for n in range(6):
        ab = AB + 4 * (n & 1)
        A(f"s_waitcnt vmcnt({21-n})")
        A(f"v_mfma_f32_16x16x32_bf16 v[{DG}:{DG+3}], v[{ab}:{ab+3}], v[{WD+4*n}:{WD+4*n+3}], {f'v[{DG}:{DG+3}]' if n else 0}")
        if n < 5: abuild(AB + 4 * ((n + 1) & 1), PH, M0, n + 1)
    A(f"s_mov_b32 s70, {SPIN}")
    tag(range(DG, DG + 4), TAG)
    A("s_mov_b32 exec_hi, 0")
    A(f"buffer_store_dwordx4 v[{DG}:{DG+3}], v{OUTA}, s[40:43], s65 offen sc1")
    A("s_mov_b64 exec, -1")
    A("L_pollO:")
    for k in range(8): A(f"buffer_load_dword v{T0+k}, v{OGA}, s[40:43], s78 offen{f' offset:{k*512}' if k else ''} sc1")
    A("s_sub_u32 s70, s70, 1"); A("s_cbranch_scc1 L_pollO_done")
    A("s_waitcnt vmcnt(0)")
    check(range(T0, T0 + 8), TAG, T0 + 8)
    untag(range(T0, T0 + 2))
    A("s_cbranch_vccnz L_pollO")
    A("L_pollO_done:")
    stamp("oseen")
    untag(range(T0 + 2, T0 + 8))
    A(f"v_add_f32 v{T0+10}, v{T0}, v{T0+1}"); A(f"v_add_f32 v{T0+11}, v{T0+2}, v{T0+3}")
    A(f"v_add_f32 v{T0+12}, v{T0+4}, v{T0+5}"); A(f"v_add_f32 v{T0+13}, v{T0+6}, v{T0+7}")
    A(f"v_add_f32 v{T0+10}, v{T0+10}, v{T0+11}"); A(f"v_add_f32 v{T0+12}, v{T0+12}, v{T0+13}")
    A(f"v_add_f32 v{T0+10}, v{T0+10}, v{T0+12}")
    A(f"v_cvt_pk_bf16_f32 v{PD}, v{T0+10}, v{T0+10}")
    abuild(AB, PD, M0, 0)
    for n in range(16):
        ab = AB + 4 * (n & 1)
        if n < 15: abuild(AB + 4 * ((n + 1) & 1), PD, M0, n + 1)
        A(f"v_mfma_f32_16x16x32_bf16 v[{DQ}:{DQ+3}], v[{ab}:{ab+3}], v[{WO+4*n}:{WO+4*n+3}], {f'v[{DQ}:{DQ+3}]' if n else 0}")
    A("s_mov_b32 exec_hi, 0")
    tag(range(DQ, DQ + 4), TAG)
    A(f"buffer_store_dwordx4 v[{DQ}:{DQ+3}], v{OUTA}, s[40:43], s64 offen sc1")
    A("s_mov_b64 exec, -1")
    stamp("spub")
    if mapx:
        A("s_and_b32 s48, s4, 7"); A("s_cmp_lg_u32 s5, s48")
    else: A("s_cmp_lg_u32 s5, 0")
    A("s_cbranch_scc1 L_sdone")
    YG, SG = 128, 144
    A(f"s_add_u32 s48, s73, {WS_Y}"); A(f"s_add_u32 s49, s73, {WS_S}")
    A(f"s_add_u32 s51, s48, 8192"); A(f"s_add_u32 s56, s48, 16384"); A(f"s_add_u32 s57, s48, 24576")
    A(f"s_add_u32 s60, s49, 8192"); A(f"s_add_u32 s61, s49, 16384"); A(f"s_add_u32 s62, s49, 24576")
    def gather(base, sregs):
        for k in range(4): A(f"buffer_load_dwordx4 v[{base+4*k}:{base+4*k+3}], v{RA}, s[40:43], s{sregs[k]} offen sc1")
    def valid(base):
        check(range(base, base + 16), TAG, T0)
        untag(range(base, base + 2))
    def reduce(base):
        untag(range(base + 2, base + 16))
        for k in range(4):
            A(f"v_add_f32 v{base+k}, v{base+k}, v{base+4+k}"); A(f"v_add_f32 v{base+8+k}, v{base+8+k}, v{base+12+k}")
        for k in range(4): A(f"v_add_f32 v{base+k}, v{base+k}, v{base+8+k}")
        A(f"v_permlane32_swap_b32 v{base}, v{base+2}"); A(f"v_permlane32_swap_b32 v{base+1}, v{base+3}")
        A(f"v_add_f32 v{base}, v{base}, v{base+2}"); A(f"v_add_f32 v{base+1}, v{base+1}, v{base+3}")
        A(f"v_permlane16_swap_b32 v{base}, v{base+1}")
        A(f"v_add_f32 v{base}, v{base}, v{base+1}")
        A(f"v_add_f32_dpp v{base}, v{base}, v{base} row_ror:4 row_mask:0xf bank_mask:0xf")
        A(f"v_add_f32_dpp v{base}, v{base}, v{base} row_ror:8 row_mask:0xf bank_mask:0xf")
        rbf(f"v{base}", f"v{base}")
    A(f"s_mov_b32 s70, {SPIN}")
    A("L_pollY:")
    gather(YG, (48, 51, 56, 57)); gather(SG, (49, 60, 61, 62))
    A("s_sub_u32 s70, s70, 1"); A("s_cbranch_scc1 L_pollY_done")
    A("s_waitcnt vmcnt(4)")
    valid(YG)
    A("s_cbranch_vccnz L_pollY")
    A("L_pollY_done:")
    reduce(YG)
    A(f"v_mul_f32 v{T0+4}, 0xbfb8aa3b, v{YG}"); A(f"v_exp_f32 v{T0+4}, v{T0+4}"); A(f"v_add_f32 v{T0+4}, 1.0, v{T0+4}")
    A(f"v_rcp_f32 v{T0+4}, v{T0+4}"); A(f"v_mul_f32 v{YG}, v{YG}, v{T0+4}")
    rbf(f"v{YG}", f"v{YG}")
    A("s_branch L_chkS")
    A("L_pollS:")
    gather(SG, (49, 60, 61, 62))
    A("s_sub_u32 s70, s70, 1"); A("s_cbranch_scc1 L_pollS_done")
    A("L_chkS:")
    A("s_waitcnt vmcnt(0)")
    valid(SG)
    A("s_cbranch_vccnz L_pollS")
    A("L_pollS_done:")
    stamp("sseen")
    reduce(SG)
    A(f"v_mul_f32 v{SG}, v{SG}, v{YG}")
    rbf(f"v{SG}", f"v{SG}")
    A(f"v_add_f32 v{SG}, v{SG}, v51")
    A(f"v_cvt_pk_bf16_f32 v{SG}, v{SG}, v{SG}")
    A("s_mov_b32 exec_lo, 0x000f000f"); A("s_mov_b32 exec_hi, 0x000f000f")
    A(f"buffer_store_short v{SG}, v{XF}, s[32:35], 0 offen")
    A("s_cmp_lg_u32 s2, 0"); A("s_cbranch_scc1 L_sdone")
    A("s_mov_b64 exec, 1")
    A(f"v_mov_b32 v{T0}, 0")
    A(f"buffer_store_dword v{EP}, v{T0}, s[40:43], s79 offen sc1")
    A("L_sdone:")
    if stamps:
        A("s_waitcnt vmcnt(0)")
    stamp("end")
    dump_stamps()
    A("L_end:")
    A("s_endpgm")
    A.L += stream_body

    body = A.fix()
    hdr = open("cdna_kernels/" + NAME + ".s.ref").read().split("\n")
    hdr = [l for l in hdr if l.startswith(";") and "@launch" not in l and "Override" not in l and "grid=ceil" not in l]
    out = hdr + [f"; @launch grid=(256,1,1) block=(320,1,1) lds={LRING + 4 * nlds * 1024}",
                 '.amdgcn_target "amdgcn-amd-amdhsa--gfx950"', ".text", f".globl {KN}", ".p2align 8", f".type {KN},@function"]
    out += [l if l.endswith(":") else "    " + l for l in body]
    nv = 256
    out += ['.section .rodata,"a"', ".p2align 6", f".amdhsa_kernel {KN}", f"  .amdhsa_next_free_vgpr {nv}",
            "  .amdhsa_next_free_sgpr 102", f"  .amdhsa_accum_offset {nv}", "  .amdhsa_group_segment_fixed_size 0",
            "  .amdhsa_kernarg_size 96", "  .amdhsa_user_sgpr_count 2", "  .amdhsa_user_sgpr_kernarg_segment_ptr 1",
            "  .amdhsa_system_sgpr_workgroup_id_x 1", ".end_amdhsa_kernel"]
    return "\n".join(out) + "\n", stamp_list

if __name__ == "__main__":
    kw = eval("dict(" + (sys.argv[2] if len(sys.argv) > 2 else "") + ")")
    open(sys.argv[1], "w").write(gen(**kw)[0])
```

```python
import sys
from asmlib import Asm
NAME = "recurrent_scan__mha_block_cached__glu_gated_glu__decode"
KN = NAME + "_kernel"

WS_A  = 0x00000
WS_O  = 0x40000
WS_S  = 0x60000
WS_Y  = 0x80000
WS_ML = 0xA0000
WS_E  = 0xB0000
WS_ST = 0x100000
WS_BYTES = 268435456
LQ, LML, LPROG, LQF, LH, LO = 0, 256, 288, 304, 320, 1024
LRING = 4096
LOG2E = "0x3fb8aa3b"
SCALE = "0x3db504f3"
SPIN = 1 << 17

def gen(nslot=48, nlds=32, npre=4, burst=4, every=6, dist=16, late=10, stamps=False, kvflags="nt", wflags="nt", psleep=0, asleep=30, skip='', lsleep=2, qflag=True, cap=0, capfn=None, olate=0, plate=None, pall=False, mapx=False, gflags=None, probe=None, probek=8):
    A = Asm()
    stamp_list = []
    sets = {"early": "bar0 issued x ln apub aseen qdone ml mlx end qready kdone vdone",
            "prog": "bar0 i16 i32 i48 i64 i80 i96 i112 i127 vdone apub aseen mlx end",
            "late": "qdone mlx wiss bar2 opub oseen spub sseen end issued qready kdone vdone"}
    def stamp(name, base=80):
        if probe and role[0] == "S" and name == probe:
            A("s_memrealtime s[82:83]")
        if stamps and name in sets[stamps].split() and not (stamps == "late" and role[0] == "S" and name == "issued"):
            k = len([x for x in stamp_list if x[0] == role[0]])
            stamp_list.append((role[0], name))
            A(f"s_memrealtime s[{base+2*k}:{base+2*k+1}]")
    role = ["S"]
    def rbf(dst, src):
        A(f"v_cvt_pk_bf16_f32 {dst}, {src}, {src}")
        A(f"v_and_b32 {dst}, 0xffff0000, {dst}")
    def masks(m0, lane, t0, t1):
        A(f"v_and_b32 v{t0}, 1, v{lane}")
        A(f"v_lshlrev_b32 v{t0}, 4, v{t0}")
        A(f"v_lshlrev_b32 v{t0}, v{t0}, s50")
        A(f"v_bfe_u32 v{t1}, v{lane}, 1, 2")
        for r in range(4):
            A(f"v_cmp_eq_u32 vcc, {r}, v{t1}")
            A(f"v_cndmask_b32 v{m0+r}, 0, v{t0}, vcc")
    def abuild(a0, p, m0, n):
        for r in range(4):
            A(f"v_and_b32_dpp v{a0+r}, v{p}, v{m0+r} row_newbcast:{n} row_mask:0xf bank_mask:0xf")
    def wave_red(op, v):
        for c in ("quad_perm:[1,0,3,2]", "quad_perm:[2,3,0,1]", "row_half_mirror", "row_mirror"):
            A(f"{op}_dpp v{v}, v{v}, v{v} {c} row_mask:0xf bank_mask:0xf")
        A(f"{op}_dpp v{v}, v{v}, v{v} row_bcast:15 row_mask:0xa bank_mask:0xf")
        A(f"{op}_dpp v{v}, v{v}, v{v} row_bcast:31 row_mask:0xc bank_mask:0xf")
    def tag(regs, TAG):
        for r in regs: A(f"v_and_or_b32 v{r}, v{r}, s7, v{TAG}")
    def untag(regs):
        for r in regs: A(f"v_and_b32 v{r}, s7, v{r}")
    def check(regs, TAG, t):
        regs = list(regs); assert len(regs) % 2 == 0
        pairs = [regs[k:k+2] for k in range(0, len(regs), 2)]
        A(f"v_bitop3_b32 v{t}, v{pairs[0][0]}, v{pairs[0][1]}, v{TAG} bitop3:0x7e")
        rest = pairs[1:]
        while rest:
            take = rest[:2]; rest = rest[2:]
            for k, p in enumerate(take): A(f"v_bitop3_b32 v{t+1+k}, v{p[0]}, v{p[1]}, v{TAG} bitop3:0x7e")
            if len(take) == 2: A(f"v_or3_b32 v{t}, v{t}, v{t+1}, v{t+2}")
            else: A(f"v_or_b32 v{t}, v{t}, v{t+1}")
        A(f"v_and_b32 v{t}, 0x3ff, v{t}")
        A(f"v_cmp_ne_u32 vcc, 0, v{t}")
    def srd(d, off, nbytes):
        A(f"s_load_dwordx2 s[{d}:{d+1}], s[0:1], {off}")
        A(f"s_mov_b32 s{d+2}, {nbytes}")
        A(f"s_mov_b32 s{d+3}, 0x20000")
    def dump_stamps():
        if not stamps: return
        mine = [x for x in stamp_list if x[0] == role[0]]
        A("s_mov_b64 exec, -1")
        A("s_waitcnt lgkmcnt(0)")
        for k in range(len(mine)):
            A(f"v_writelane_b32 v0, s{80+2*k}, {k}")
        A("s_getreg_b32 s48, hwreg(HW_REG_XCC_ID)")
        A("v_writelane_b32 v0, s48, 15")
        A("s_load_dwordx2 s[40:41], s[0:1], 88")
        A(f"s_mov_b32 s42, {WS_BYTES}")
        A("s_mov_b32 s43, 0x20000")
        A("s_mul_i32 s48, s2, 5"); A("s_add_u32 s48, s48, s3"); A("s_lshl_b32 s48, s48, 6"); A(f"s_add_u32 s48, s48, {WS_ST}")
        A("v_mbcnt_lo_u32_b32 v1, -1, 0"); A("v_lshlrev_b32 v1, 2, v1")
        A("s_mov_b64 exec, 0xffff")
        A("s_waitcnt lgkmcnt(0)")
        A("buffer_store_dword v0, v1, s[40:43], s48 offen")

    A(f"{KN}:")
    if stamps or probe: A("s_memrealtime s[80:81]")
    A("v_lshrrev_b32 v1, 6, v0")
    A("s_cmp_ge_u32 s2, 256")
    A("s_cbranch_scc1 L_end")
    A("v_readfirstlane_b32 s3, v1")
    if mapx:
        A("s_lshr_b32 s4, s2, 3")
        A("s_and_b32 s5, s2, 7")
    else:
        A("s_and_b32 s4, s2, 31")
        A("s_lshr_b32 s5, s2, 5")
    A("v_and_b32 v0, 63, v0")
    A("s_mov_b32 s50, 0xffff")
    A("s_cmp_eq_u32 s3, 4")
    A("s_cbranch_scc1 L_service")

    role[0] = "W"; stamp_list.append(("W", "start"));
    VL16, M0, Q0, S0, AB, D0, P0, T0, RING = 1, 2, 6, 10, 14, 22, 26, 42, 48
    LA = T0 + 2; TB = RING + 4 * nslot
    srd(8, 8, 64 << 20); srd(12, 16, 64 << 20)
    A("s_lshl_b32 s48, s4, 21"); A("s_lshl_b32 s49, s5, 18"); A("s_add_u32 s48, s48, s49")
    A("s_lshl_b32 s49, s3, 12"); A("s_add_u32 s48, s48, s49")
    A("s_mov_b32 s49, s48")
    A(f"v_lshlrev_b32 v{VL16}, 4, v0")
    A("s_waitcnt lgkmcnt(0)")
    issued = [0]
    def slot(i):
        return RING + 4 * (i if i < nslot else (i - nslot - nlds) % nslot)
    def in_lds(i): return nslot <= i < nslot + nlds
    def issue():
        i = issued[0]; issued[0] += 1
        ii = i % 64; s = 8 if i < 64 else 12
        if i == 64: A("s_mov_b32 s49, s48")
        elif ii % 4 == 0 and i: A("s_addk_i32 s49, 0x4000")
        off = f" offset:{(ii%4)*1024}" if ii % 4 else ""
        c_ = capfn(i) if capfn else cap
        if c_ and i >= c_: A(f"s_waitcnt vmcnt({c_-1})")
        if in_lds(i):
            if ii % 4 == 0:
                A(f"s_add_u32 m0, s56, {(i - nslot) * 1024}")
            A(f"buffer_load_dwordx4 v{VL16}, s[{s}:{s+3}], s49 offen{off} {kvflags} lds")
        else:
            r = slot(i)
            A(f"buffer_load_dwordx4 v[{r}:{r+3}], v{VL16}, s[{s}:{s+3}], s49 offen{off} {kvflags}")
        stamp(f"i{i}")
        if i == 127 - late and olate == 0 and plate is None:
            A(f"ds_write_b32 v{T0+4}, v{T0+5} offset:{LPROG}")
    assert nslot % 4 == 0 and nlds % 4 == 0
    for _ in range(npre): issue()
    A("s_branch L_stream")
    stream_at = len(A.L)
    A("L_stream:")
    masks(M0, 0, T0, T0 + 1)
    A("s_mov_b32 s52, 0xcccccccc"); A("s_mov_b32 s53, 0xcccccccc")
    A("s_mov_b32 s54, 0xaaaaaaaa"); A("s_mov_b32 s55, 0xaaaaaaaa")
    A(f"v_and_b32 v{T0+2}, 15, v0"); A(f"v_lshlrev_b32 v{T0+2}, 4, v{T0+2}")
    A(f"v_mov_b32 v{T0+4}, s3"); A(f"v_lshlrev_b32 v{T0+4}, 2, v{T0+4}"); A(f"v_mov_b32 v{T0+5}, 1")
    A(f"s_mul_i32 s56, s3, {nlds*1024}"); A(f"s_add_u32 s56, s56, {LRING}")
    A("s_barrier")
    stamp("bar0")
    for _ in range(nslot + nlds - npre): issue()
    stamp("issued")
    if qflag:
        A(f"v_mov_b32 v{T0+1}, 0")
        A(f"s_mov_b32 s57, {SPIN * 8}")
        A("L_pollQ:")
        A(f"ds_read_b32 v{T0}, v{T0+1} offset:{LQF}")
        A(f"ds_read_b128 v[{Q0}:{Q0+3}], v{T0+2} offset:{LQ}")
        A("s_sub_u32 s57, s57, 1"); A("s_cbranch_scc1 L_pollQ_done")
        A("s_waitcnt lgkmcnt(0)")
        A(f"v_cmp_eq_u32 vcc, 0, v{T0}")
        A("s_nop 1")
        A("s_cbranch_vccnz L_pollQ")
        A("L_pollQ_done:")
        stamp("qready")
    else:
        A("s_barrier")
        A(f"ds_read_b128 v[{Q0}:{Q0+3}], v{T0+2} offset:{LQ}")
        stamp("qready")
        A("s_waitcnt lgkmcnt(0)")
    A(f"v_add_u32 v{LA}, s56, v{VL16}")
    def wait_for(i):
        A(f"s_waitcnt vmcnt({min(63, issued[0] - 1 - i)})")
    def maybe_issue(i):
        n0 = nslot + nlds
        want = n0 + min(i + 1, burst + i // every) if i < n0 else i + 1 + dist
        want = max(want, min(i + 1 + dist, n0 + i + 1))
        while issued[0] < min(128, want): issue()
    lds_rd = [nslot]
    def lds_fetch(upto, TB):
        while lds_rd[0] <= min(upto, nslot + nlds - 1):
            i = lds_rd[0]; lds_rd[0] += 1
            wait_for(i)
            t = TB + 4 * (i % 4)
            A(f"ds_read_b128 v[{t}:{t+3}], v{LA} offset:{(i - nslot) * 1024}")
    def operand(i, TB):
        if not in_lds(i):
            wait_for(i); return slot(i)
        lds_fetch(i + 2, TB)
        A(f"s_waitcnt lgkmcnt({min(lds_rd[0] - 1 - i, 2)})")
        return TB + 4 * (i % 4)
    for i in range(64):
        n = i % 16
        A(f"v_mov_b32 v{P0+n}, 0")
        r = operand(i, TB)
        if 'K' not in skip:
            for k in range(4): A(f"v_dot2c_f32_bf16 v{P0+n}, v{r+k}, v{Q0+k}")
        maybe_issue(i)
        if n == 15 and 'K' not in skip:
            a = i // 16
            for r_ in range(8):
                A(f"v_add_f32_dpp v{P0+r_}, v{P0+r_}, v{P0+r_} row_ror:8 row_mask:0xf bank_mask:0x3")
                A(f"v_add_f32_dpp v{P0+r_}, v{P0+r_+8}, v{P0+r_+8} row_ror:8 row_mask:0xf bank_mask:0xc")
            for r_ in range(4):
                A(f"v_add_f32_dpp v{P0+r_}, v{P0+r_}, v{P0+r_} row_half_mirror row_mask:0xf bank_mask:0x5")
                A(f"v_add_f32_dpp v{P0+r_}, v{P0+r_+4}, v{P0+r_+4} row_half_mirror row_mask:0xf bank_mask:0xa")
            for r_ in range(4):
                A(f"v_add_f32_dpp v{P0+r_}, v{P0+r_}, v{P0+r_} quad_perm:[2,3,0,1] row_mask:0xf bank_mask:0xf")
            A(f"v_cndmask_b32 v{P0}, v{P0}, v{P0+2}, s[52:53]")
            A(f"v_cndmask_b32 v{P0+1}, v{P0+1}, v{P0+3}, s[52:53]")
            for r_ in range(2):
                A(f"v_add_f32_dpp v{P0+r_}, v{P0+r_}, v{P0+r_} quad_perm:[1,0,3,2] row_mask:0xf bank_mask:0xf")
            A(f"v_cndmask_b32 v{S0+a}, v{P0}, v{P0+1}, s[54:55]")
            rbf(f"v{S0+a}", f"v{S0+a}")
            A(f"v_mul_f32 v{S0+a}, {SCALE}, v{S0+a}")
            rbf(f"v{S0+a}", f"v{S0+a}")
    stamp("kdone")
    A(f"v_max3_f32 v{T0}, v{S0}, v{S0+1}, v{S0+2}")
    A(f"v_max_f32 v{T0}, v{T0}, v{S0+3}")
    wave_red("v_max_f32", T0)
    A(f"v_readlane_b32 s51, v{T0}, 63")
    for a in range(4): A(f"v_subrev_f32 v{S0+a}, s51, v{S0+a}")
    for a in range(4): A(f"v_mul_f32 v{S0+a}, {LOG2E}, v{S0+a}")
    for a in range(4): A(f"v_exp_f32 v{S0+a}, v{S0+a}")
    A(f"v_add_f32 v{T0+1}, v{S0}, v{S0+1}")
    A(f"v_add_f32 v{T0+3}, v{S0+2}, v{S0+3}")
    A(f"v_add_f32 v{T0+1}, v{T0+1}, v{T0+3}")
    for a in range(4): A(f"v_cvt_pk_bf16_f32 v{S0+a}, v{S0+a}, v{S0+a}")
    abuild(AB, S0, M0, 0)
    wave_red("v_add_f32", T0 + 1)
    A(f"v_lshlrev_b32 v{T0+3}, 1, v{T0+4}")
    A("s_mov_b32 exec_lo, 0"); A("s_mov_b32 exec_hi, 0x80000000")
    A(f"ds_write_b64 v{T0+3}, v[{T0}:{T0+1}] offset:{LML}")
    A("s_mov_b64 exec, -1")
    for i in range(64, 128):
        n = i % 16; a = (i - 64) // 16; ab = AB + 4 * (i & 1)
        r = operand(i, TB)
        c = f"v[{D0}:{D0+3}]" if i > 64 else "0"
        if 'V' not in skip: A(f"v_mfma_f32_16x16x32_bf16 v[{D0}:{D0+3}], v[{ab}:{ab+3}], v[{r}:{r+3}], {c}")
        if i < 127 and 'V' not in skip: abuild(AB + 4 * ((i + 1) & 1), S0 + (i + 1 - 64) // 16, M0, (i + 1) % 16)
        maybe_issue(i)
        if plate is not None and i == 127 - plate and olate == 0:
            A(f"ds_write_b32 v{T0+4}, v{T0+5} offset:{LPROG}")
        if i == 120:
            A(f"v_and_b32 v{T0}, 15, v0"); A(f"v_lshlrev_b32 v{T0}, 5, v{T0}")
            A(f"v_and_b32 v{T0+1}, 16, v0"); A(f"v_add_u32 v{T0}, v{T0}, v{T0+1}")
            A(f"v_lshl_add_u32 v{T0}, v{T0+4}, 7, v{T0}")
    stamp("vdone")
    A("s_mov_b32 exec_hi, 0")
    A(f"ds_write_b128 v{T0}, v[{D0}:{D0+3}] offset:{LO}")
    A("s_waitcnt lgkmcnt(0)")
    A("s_barrier")
    dump_stamps()
    A("s_endpgm")

    stream_body = A.L[stream_at:]; del A.L[stream_at:]
    role[0] = "S"; stamp_list.append(("S", "start"))
    G, J, M0, AB, DQ, DG, PD, T0 = 1, 2, 4, 8, 16, 20, 3, 24
    XA, XR, GA, VA, XF, PH, EP, TAG = 40, 44, 46, 48, 49, 50, 45, 61
    WQ, GU = 64, 128
    A("L_service:")
    A("s_setprio 3")
    srd(16, 0, 1024); srd(20, 24, 4 << 20); srd(24, 32, 4 << 20); srd(28, 64, 1376 * 1024)
    srd(32, 72, 1024); srd(40, 88, WS_BYTES)
    A("s_load_dwordx4 s[44:47], s[0:1], 48")
    A(f"v_lshrrev_b32 v{G}, 4, v0"); A(f"v_and_b32 v{J}, 15, v0")
    A("s_lshl_b32 s6, s4, 3"); A("s_add_u32 s6, s6, s5")
    if mapx: A("s_mov_b32 s7, s4")
    else:
        A("s_and_b32 s7, s4, 7"); A("s_lshl_b32 s7, s7, 2"); A("s_lshr_b32 s48, s4, 3"); A("s_add_u32 s7, s7, s48")
    A("s_mul_i32 s56, s7, 43"); A("s_add_u32 s57, s56, 43"); A("s_lshr_b32 s56, s56, 3"); A("s_lshr_b32 s57, s57, 3")
    A("s_sub_u32 s57, s57, s56")
    A("s_and_b32 s58, s5, 3"); A("s_lshr_b32 s59, s5, 2")
    A(f"v_lshlrev_b32 v{T0}, 4, v0")
    A("s_lshl_b32 s48, s5, 7")
    A(f"v_lshlrev_b32 v{T0+1}, 1, v0")
    A(f"v_lshlrev_b32 v{T0+3}, 4, v{J}")
    A(f"v_lshl_add_u32 v{T0+2}, v{G}, 17, v{T0+3}")
    A("s_lshl_b32 s49, s5, 19"); A("s_lshl_b32 s51, s4, 8"); A("s_add_u32 s49, s49, s51")
    A(f"v_and_b32 v{T0+4}, 7, v0")
    A(f"v_cmp_gt_u32 vcc, s57, v{T0+4}")
    A(f"v_cndmask_b32 v{T0+4}, 0, v{T0+4}, vcc")
    A(f"v_add_u32 v{T0+4}, s56, v{T0+4}"); A(f"v_lshlrev_b32 v{T0+4}, 4, v{T0+4}")
    A("s_mov_b32 s51, 44032")
    A(f"v_mad_u32_u24 v{T0+4}, v{G}, s51, v{T0+4}")
    A("s_mul_i32 s51, s5, 176128"); A(f"v_add_u32 v{T0+4}, s51, v{T0+4}")
    A(f"v_mov_b32 v{T0+5}, 0")
    A(f"v_cmp_lt_u32 vcc, 7, v{J}")
    A(f"s_mov_b32 s79, {WS_E}")
    A("s_waitcnt lgkmcnt(0)")
    A(f"buffer_load_dwordx4 v[{XA}:{XA+3}], v{T0}, s[16:19], 0 offen")
    A(f"buffer_load_ushort v{XR}, v{T0+1}, s[16:19], s48 offen")
    A(f"buffer_load_dword v{EP}, v{T0+5}, s[40:43], s79 offen sc1")
    A(f"v_mov_b32 v{T0+6}, s44"); A(f"v_mov_b32 v{T0+7}, s45"); A(f"v_mov_b32 v{T0+8}, s46"); A(f"v_mov_b32 v{T0+9}, s47")
    A(f"v_cndmask_b32 v{GA}, v{T0+6}, v{T0+8}, vcc"); A(f"v_cndmask_b32 v{GA+1}, v{T0+7}, v{T0+9}, vcc")
    A(f"v_lshl_add_u64 v[{GA}:{GA+1}], v[{T0+4}:{T0+5}], 0, v[{GA}:{GA+1}]")
    A("s_mov_b32 s60, 5504"); A("s_mov_b32 s61, 0")
    for n in range(16):
        if 'W' in skip: A(f"buffer_load_dword v{WQ+4*n}, v{T0+5}, s[16:19], 0 offen")
        else: A(f"buffer_load_dwordx4 v[{WQ+4*n}:{WQ+4*n+3}], v{T0+2}, s[20:23], s49 offen {wflags}")
        if 'G' in skip: A(f"buffer_load_dword v{GU+4*n}, v{T0+5}, s[16:19], 0 offen")
        else: A(f"global_load_dwordx4 v[{GU+4*n}:{GU+4*n+3}], v[{GA}:{GA+1}], off{' offset:2752' if n & 1 else ''} {wflags if gflags is None else gflags}")
        if n < 15: A("s_addk_i32 s49, 0x2000")
        if n & 1 and n < 15: A(f"v_lshl_add_u64 v[{GA}:{GA+1}], v[{GA}:{GA+1}], 0, s[60:61]")
    A(f"v_mov_b32 v{T0+6}, -1"); A(f"v_cmp_gt_u32 vcc, 8, v0"); A(f"v_cndmask_b32 v{T0+6}, 0, v{T0+6}, vcc")
    A(f"v_lshlrev_b32 v{T0+7}, 2, v0")
    A("s_mov_b64 exec, 0xffff")
    A(f"ds_write_b32 v{T0+7}, v{T0+6} offset:{LML}")
    A("s_mov_b64 exec, -1")
    A("s_waitcnt lgkmcnt(0)")
    A("s_barrier")
    stamp("issued")
    masks(M0, 0, T0 + 6, T0 + 7)
    A("s_waitcnt vmcnt(32)")
    stamp("x")
    A(f"v_add_u32 v{EP}, 1, v{EP}"); A(f"v_and_b32 v{TAG}, 0x3ff, v{EP}")
    A("s_mov_b32 s7, 0xfffffc00")
    for k in range(4):
        A(f"v_lshlrev_b32 v{T0+2*k}, 16, v{XA+k}"); A(f"v_and_b32 v{T0+2*k+1}, 0xffff0000, v{XA+k}")
    A(f"v_add_f32 v{T0+8}, v{T0}, v{T0+1}"); A(f"v_add_f32 v{T0+9}, v{T0+2}, v{T0+3}")
    A(f"v_add_f32 v{T0+10}, v{T0+4}, v{T0+5}"); A(f"v_add_f32 v{T0+11}, v{T0+6}, v{T0+7}")
    A(f"v_add_f32 v{T0+8}, v{T0+8}, v{T0+9}"); A(f"v_add_f32 v{T0+10}, v{T0+10}, v{T0+11}")
    A(f"v_add_f32 v{T0+8}, v{T0+8}, v{T0+10}")
    wave_red("v_add_f32", T0 + 8)
    A(f"v_mul_f32 v{T0+8}, 0x3b000000, v{T0+8}")
    A(f"v_readlane_b32 s51, v{T0+8}, 63")
    for k in range(8): A(f"v_subrev_f32 v{T0+k}, s51, v{T0+k}")
    A(f"v_mul_f32 v{T0+9}, v{T0}, v{T0}"); A(f"v_mul_f32 v{T0+10}, v{T0+1}, v{T0+1}")
    for k in range(2, 8, 2):
        A(f"v_fmac_f32 v{T0+9}, v{T0+k}, v{T0+k}"); A(f"v_fmac_f32 v{T0+10}, v{T0+k+1}, v{T0+k+1}")
    A(f"v_add_f32 v{T0+9}, v{T0+9}, v{T0+10}")
    wave_red("v_add_f32", T0 + 9)
    A(f"v_mul_f32 v{T0+9}, 0x3b000000, v{T0+9}")
    rbf(f"v{T0+9}", f"v{T0+9}")
    A(f"v_add_f32 v{T0+9}, 0x3727c5ac, v{T0+9}")
    rbf(f"v{T0+9}", f"v{T0+9}")
    A(f"v_sqrt_f32 v{T0+9}, v{T0+9}")
    rbf(f"v{T0+8}", f"v{T0+8}")
    rbf(f"v{T0+9}", f"v{T0+9}")
    A(f"v_readlane_b32 s51, v{T0+8}, 63"); A(f"v_readlane_b32 s62, v{T0+9}, 63")
    A(f"v_lshlrev_b32 v{XR}, 16, v{XR}")
    A(f"v_rcp_f32 v{T0+10}, s62")
    A(f"v_subrev_f32 v{XR}, s51, v{XR}")
    rbf(f"v{XR}", f"v{XR}")
    A(f"v_mul_f32 v{T0+11}, v{XR}, v{T0+10}")
    A(f"v_fma_f32 v{T0+12}, -v{T0+11}, s62, v{XR}")
    A(f"v_fmac_f32 v{T0+11}, v{T0+12}, v{T0+10}")
    A(f"v_cvt_pk_bf16_f32 v{PD}, v{T0+11}, v{T0+11}")
    stamp("ln")
    abuild(AB, PD, M0, 0)
    for n in range(16):
        ab = AB + 4 * (n & 1)
        A(f"s_waitcnt vmcnt({30-2*n})")
        A(f"v_mfma_f32_16x16x32_bf16 v[{DQ}:{DQ+3}], v[{ab}:{ab+3}], v[{WQ+4*n}:{WQ+4*n+3}], {f'v[{DQ}:{DQ+3}]' if n else 0}")
        A(f"v_mfma_f32_16x16x32_bf16 v[{DG}:{DG+3}], v[{ab}:{ab+3}], v[{GU+4*n}:{GU+4*n+3}], {f'v[{DG}:{DG+3}]' if n else 0}")
        if n < 15: abuild(AB + 4 * ((n + 1) & 1), PD, M0, n + 1)
    L16 = T0 + 15; OUTA = VA
    A(f"v_lshlrev_b32 v{L16}, 4, v0")
    A(f"v_lshlrev_b32 v{OUTA}, 5, v{J}"); A(f"v_and_b32 v{T0}, 16, v0"); A(f"v_add_u32 v{OUTA}, v{OUTA}, v{T0}")
    A("s_lshl_b32 s63, s6, 9"); A(f"s_add_u32 s63, s63, {WS_O}")
    A("s_lshl_b32 s64, s58, 6"); A("s_lshl_b32 s48, s4, 1"); A("s_add_u32 s64, s64, s48"); A("s_add_u32 s64, s64, s59")
    A("s_lshl_b32 s64, s64, 9"); A(f"s_add_u32 s65, s64, {WS_Y}"); A(f"s_add_u32 s64, s64, {WS_S}")
    A("s_lshl_b32 s66, s6, 4"); A(f"s_add_u32 s66, s66, {WS_ML}")
    A("s_lshl_b32 s67, s6, 10")
    A("s_mov_b32 s68, 0"); A("s_mov_b32 s69, -1")
    for k in range(4): A(f"v_cndmask_b32 v{DQ+k}, v{DQ+k}, v{DG+k}, s[68:69]")
    tag(range(DQ, DQ + 4), TAG)
    A(f"buffer_store_dwordx4 v[{DQ}:{DQ+3}], v{L16}, s[40:43], s67 offen sc1")
    stamp("apub")
    A("s_lshl_b32 s48, s4, 13"); A("s_add_u32 s49, s48, 0x1000")
    A(f"v_lshrrev_b32 v{T0+3}, 1, v{OUTA}")
    A(f"s_mov_b32 s70, {SPIN}")
    A("L_pollA:")
    if asleep: A(f"s_sleep {asleep}")
    for k in range(8):
        A(f"buffer_load_dwordx4 v[{WQ+4*k}:{WQ+4*k+3}], v{L16}, s[40:43], s{48 + k // 4} offen{f' offset:{(k&3)*1024}' if k & 3 else ''} sc1")
    A("s_sub_u32 s70, s70, 1"); A("s_cbranch_scc1 L_pollA_done")
    A("s_waitcnt vmcnt(0)")
    check(range(WQ, WQ + 32), TAG, T0)
    A("s_nop 1")
    if 'A' not in skip: A("s_cbranch_vccnz L_pollA")
    A("L_pollA_done:")
    stamp("aseen")
    untag(range(WQ, WQ + 32))
    for k in range(4):
        A(f"v_add_f32 v{WQ+k}, v{WQ+k}, v{WQ+4+k}"); A(f"v_add_f32 v{WQ+8+k}, v{WQ+8+k}, v{WQ+12+k}")
        A(f"v_add_f32 v{WQ+16+k}, v{WQ+16+k}, v{WQ+20+k}"); A(f"v_add_f32 v{WQ+24+k}, v{WQ+24+k}, v{WQ+28+k}")
    for k in range(4):
        A(f"v_add_f32 v{WQ+k}, v{WQ+k}, v{WQ+8+k}"); A(f"v_add_f32 v{WQ+16+k}, v{WQ+16+k}, v{WQ+24+k}")
    for k in range(4): A(f"v_add_f32 v{WQ+k}, v{WQ+k}, v{WQ+16+k}")
    A(f"v_cvt_pk_bf16_f32 v{T0+4}, v{WQ}, v{WQ+1}"); A(f"v_cvt_pk_bf16_f32 v{T0+5}, v{WQ+2}, v{WQ+3}")
    A("s_mov_b32 exec_hi, 0")
    A(f"ds_write_b64 v{T0+3}, v[{T0+4}:{T0+5}] offset:{LQ}")
    if qflag:
        A(f"v_mov_b32 v{T0+6}, 0"); A(f"v_mov_b32 v{T0+7}, 1")
        A(f"ds_write_b32 v{T0+6}, v{T0+7} offset:{LQF}")
        A("s_mov_b64 exec, -1")
    else:
        A("s_mov_b64 exec, -1")
        A("s_waitcnt lgkmcnt(0)")
        A("s_barrier")
    stamp("qdone")
    A("s_setprio 0")
    for k in range(4): rbf(f"v{WQ+k}", f"v{WQ+k}")
    for k in range(4): A(f"v_mov_b32_dpp v{T0+4+k}, v{WQ+k} row_ror:8 row_mask:0xf bank_mask:0xf")
    for k in range(4): A(f"v_mul_f32 v{WQ+k}, 0xbfb8aa3b, v{WQ+k}")
    for k in range(4): A(f"v_exp_f32 v{WQ+k}, v{WQ+k}")
    for k in range(4): A(f"v_add_f32 v{WQ+k}, 1.0, v{WQ+k}")
    for k in range(4): A(f"v_rcp_f32 v{WQ+k}, v{WQ+k}")
    for k in range(4): rbf(f"v{WQ+k}", f"v{WQ+k}")
    for k in range(4): A(f"v_mul_f32 v{WQ+k}, v{WQ+k}, v{T0+4+k}")
    A(f"v_cmp_gt_u32 vcc, s57, v{J}")
    for k in range(4): A(f"v_cvt_pk_bf16_f32 v{WQ+k}, v{WQ+k}, v{WQ+k}")
    for k in range(4): A(f"v_cndmask_b32 v{WQ+k}, 0, v{WQ+k}, vcc")
    A("s_mov_b32 exec_lo, 0"); A("s_mov_b32 exec_hi, 0x00ff00ff")
    A(f"ds_write_b128 v{OUTA}, v[{WQ}:{WQ+3}] offset:{LH}")
    A("s_mov_b64 exec, -1")
    A("s_mul_i32 s48, s59, 24")
    A(f"v_mul_u32_u24 v{T0}, 6, v{G}"); A(f"v_add_u32 v{T0}, s48, v{T0}")
    A(f"v_add_lshl_u32 v{T0+1}, v{T0}, v{J}, 2")
    A("s_waitcnt lgkmcnt(0)")
    A(f"ds_read_b32 v{PH}, v{T0+1} offset:{LH}")
    WDA = 52
    A("s_lshl_b32 s48, s57, 3"); A("s_lshl_b32 s49, s56, 3")
    A(f"v_lshlrev_b32 v{T0+2}, 4, v{J}")
    for n in range(6):
        A(f"v_add_u32 v{T0+3}, {n}, v{T0}")
        A(f"v_cmp_gt_u32 vcc, s48, v{T0+3}")
        A(f"v_add_u32 v{T0+3}, s49, v{T0+3}")
        A(f"v_lshl_add_u32 v{T0+3}, v{T0+3}, 10, v{T0+2}")
        A(f"v_mov_b32 v{WDA+n}, 0x7ffffff0")
        A(f"v_cndmask_b32 v{WDA+n}, v{WDA+n}, v{T0+3}, vcc")
    WOA = 58
    A(f"v_lshl_add_u32 v{WOA}, v{G}, 14, v{T0+2}")
    A("s_lshl_b32 s71, s4, 17"); A("s_lshl_b32 s48, s59, 16"); A("s_add_u32 s71, s71, s48")
    A("s_lshl_b32 s72, s58, 8"); A("s_add_u32 s71, s71, s72")
    RA = 59
    A(f"v_and_b32 v{T0+3}, 3, v0"); A(f"v_lshl_add_u32 v{T0+4}, v{T0+3}, 2, v{G}")
    A("s_lshl_b32 s48, s4, 4"); A(f"v_add_lshl_u32 v{XF+0}, v{T0+4}, s48, 1")
    A(f"v_lshrrev_b32 v{RA}, 2, v0"); A(f"v_lshlrev_b32 v{RA}, 9, v{RA}"); A(f"v_lshl_add_u32 v{RA}, v{T0+3}, 4, v{RA}")
    A("s_and_b32 s48, s4, 7"); A("s_lshl_b32 s48, s48, 6"); A("s_lshr_b32 s73, s4, 3"); A("s_lshl_b32 s73, s73, 15"); A("s_add_u32 s73, s73, s48")
    A(f"buffer_load_ushort v{51}, v{XF}, s[16:19], 0 offen")
    A(f"v_and_b32 v{T0}, 3, v0"); A(f"v_lshlrev_b32 v{T0}, 3, v{T0}")
    A(f"s_mov_b32 s70, {SPIN}")
    A("L_pollML:")
    A(f"s_sleep {lsleep}")
    A(f"ds_read_b64 v[{T0+2}:{T0+3}], v{T0} offset:{LML}")
    A("s_sub_u32 s70, s70, 1"); A("s_cbranch_scc1 L_pollML_done")
    A("s_waitcnt lgkmcnt(0)")
    A(f"v_cmp_eq_u32 vcc, -1, v{T0+3}")
    A("s_nop 1")
    A("s_cbranch_vccnz L_pollML")
    A("L_pollML_done:")
    stamp("ml")
    A(f"v_max_f32_dpp v{T0+4}, v{T0+2}, v{T0+2} quad_perm:[1,0,3,2] row_mask:0xf bank_mask:0xf")
    A(f"v_max_f32_dpp v{T0+4}, v{T0+4}, v{T0+4} quad_perm:[2,3,0,1] row_mask:0xf bank_mask:0xf")
    A(f"v_sub_f32 v{T0+5}, v{T0+2}, v{T0+4}"); A(f"v_mul_f32 v{T0+5}, {LOG2E}, v{T0+5}"); A(f"v_exp_f32 v{T0+5}, v{T0+5}")
    A(f"v_mul_f32 v{T0+5}, v{T0+5}, v{T0+3}")
    A(f"v_add_f32_dpp v{T0+5}, v{T0+5}, v{T0+5} quad_perm:[1,0,3,2] row_mask:0xf bank_mask:0xf")
    A(f"v_add_f32_dpp v{T0+5}, v{T0+5}, v{T0+5} quad_perm:[2,3,0,1] row_mask:0xf bank_mask:0xf")
    tag((T0 + 4, T0 + 5), TAG)
    A(f"v_mov_b32 v{T0+1}, 0")
    A("s_mov_b64 exec, 1")
    A(f"buffer_store_dwordx2 v[{T0+4}:{T0+5}], v{T0+1}, s[40:43], s66 offen sc1")
    A("s_mov_b64 exec, -1")
    A(f"v_and_b32 v{T0+1}, 7, v0"); A(f"v_lshlrev_b32 v{T0+1}, 4, v{T0+1}")
    A("s_lshl_b32 s48, s4, 7"); A(f"s_add_u32 s48, s48, {WS_ML}")
    A(f"s_mov_b32 s70, {SPIN}")
    A("L_pollML2:")
    if psleep: A(f"s_sleep {psleep}")
    A(f"buffer_load_dwordx2 v[{T0+4}:{T0+5}], v{T0+1}, s[40:43], s48 offen sc1")
    A("s_sub_u32 s70, s70, 1"); A("s_cbranch_scc1 L_pollML2_done")
    A("s_waitcnt vmcnt(0)")
    check((T0 + 4, T0 + 5), TAG, T0 + 6)
    A("s_nop 1")
    if 'M' not in skip: A("s_cbranch_vccnz L_pollML2")
    A("L_pollML2_done:")
    untag((T0 + 4, T0 + 5))
    A(f"v_lshlrev_b32 v51, 16, v51")
    A(f"v_max_f32_dpp v{T0+6}, v{T0+4}, v{T0+4} quad_perm:[1,0,3,2] row_mask:0xf bank_mask:0xf")
    A(f"v_max_f32_dpp v{T0+6}, v{T0+6}, v{T0+6} quad_perm:[2,3,0,1] row_mask:0xf bank_mask:0xf")
    A(f"v_max_f32_dpp v{T0+6}, v{T0+6}, v{T0+6} row_half_mirror row_mask:0xf bank_mask:0xf")
    A(f"v_sub_f32 v{T0+4}, v{T0+4}, v{T0+6}"); A(f"v_sub_f32 v{T0+2}, v{T0+2}, v{T0+6}")
    A(f"v_mul_f32 v{T0+4}, {LOG2E}, v{T0+4}"); A(f"v_mul_f32 v{T0+2}, {LOG2E}, v{T0+2}")
    A(f"v_exp_f32 v{T0+4}, v{T0+4}"); A(f"v_exp_f32 v{T0+2}, v{T0+2}")
    A(f"v_mul_f32 v{T0+4}, v{T0+4}, v{T0+5}")
    A(f"v_add_f32_dpp v{T0+4}, v{T0+4}, v{T0+4} quad_perm:[1,0,3,2] row_mask:0xf bank_mask:0xf")
    A(f"v_add_f32_dpp v{T0+4}, v{T0+4}, v{T0+4} quad_perm:[2,3,0,1] row_mask:0xf bank_mask:0xf")
    A(f"v_add_f32_dpp v{T0+4}, v{T0+4}, v{T0+4} row_half_mirror row_mask:0xf bank_mask:0xf")
    A(f"v_rcp_f32 v{T0+4}, v{T0+4}")
    A(f"v_mul_f32 v{T0+2}, v{T0+2}, v{T0+4}")
    for w in range(4): A(f"v_readlane_b32 s{74+w}, v{T0+2}, {w}")
    stamp("mlx")
    OGA = 60
    A("s_lshl_b32 s48, s59, 8"); A(f"v_lshl_add_u32 v{OGA}, v0, 2, s48")
    A("s_lshl_b32 s78, s4, 12"); A(f"s_add_u32 s78, s78, {WS_O}")
    WO, WD = 64, 128
    def oloads():
        for n in range(6):
            if 'O' not in skip: A(f"buffer_load_dwordx4 v[{WD+4*n}:{WD+4*n+3}], v{WDA+n}, s[28:31], s72 offen {wflags}")
        for n in range(16):
            if 'O' not in skip: A(f"buffer_load_dwordx4 v[{WO+4*n}:{WO+4*n+3}], v{WOA}, s[24:27], s71 offen{f' offset:{(n&3)*1024}' if n & 3 else ''} {wflags}")
            if n & 3 == 3 and n < 15: A("s_addk_i32 s71, 0x1000")
        stamp("wiss")
    if olate == 0:
        A(f"v_mov_b32 v{T0}, 0")
        A(f"s_mov_b32 s70, {SPIN}")
        A("L_pollP:")
        A(f"s_sleep {lsleep}")
        A(f"ds_read_b128 v[{T0+4}:{T0+7}], v{T0} offset:{LPROG}")
        A("s_sub_u32 s70, s70, 1"); A("s_cbranch_scc1 L_pollP_done")
        A("s_waitcnt lgkmcnt(0)")
        if pall:
            A(f"v_and_b32 v{T0+4}, v{T0+4}, v{T0+5}"); A(f"v_and_b32 v{T0+6}, v{T0+6}, v{T0+7}"); A(f"v_and_b32 v{T0+4}, v{T0+4}, v{T0+6}")
        else:
            A(f"v_or3_b32 v{T0+4}, v{T0+4}, v{T0+5}, v{T0+6}"); A(f"v_or_b32 v{T0+4}, v{T0+4}, v{T0+7}")
        A(f"v_cmp_eq_u32 vcc, 0, v{T0+4}")
        A("s_nop 1")
        A("s_cbranch_vccnz L_pollP")
        A("L_pollP_done:")
        A("s_setprio 3")
        oloads()
    else:
        A("s_setprio 3")
    abuild(AB, PH, M0, 0)
    A("s_barrier")
    A("s_mov_b32 exec_hi, 0")
    for w in range(4): A(f"ds_read_b128 v[{T0+4*w}:{T0+4*w+3}], v{OUTA} offset:{LO+512*w}")
    stamp("bar2")
    if olate == 1:
        A("s_mov_b64 exec, -1"); oloads(); A("s_mov_b32 exec_hi, 0")
    for w in range(4):
        A(f"s_waitcnt lgkmcnt({3-w})") if not (stamps or probe) else A("s_waitcnt lgkmcnt(0)")
        for k in range(4):
            if w == 0: A(f"v_mul_f32 v{DQ+k}, s74, v{T0+k}")
            else: A(f"v_fmac_f32 v{DQ+k}, s{74+w}, v{T0+4*w+k}")
    tag(range(DQ, DQ + 4), TAG)
    A(f"buffer_store_dwordx4 v[{DQ}:{DQ+3}], v{OUTA}, s[40:43], s63 offen sc1")
    A("s_mov_b64 exec, -1")
    stamp("opub")
    if olate == 2: oloads()
    for n in range(6):
        ab = AB + 4 * (n & 1)
        A(f"s_waitcnt vmcnt({21-n})")
        A(f"v_mfma_f32_16x16x32_bf16 v[{DG}:{DG+3}], v[{ab}:{ab+3}], v[{WD+4*n}:{WD+4*n+3}], {f'v[{DG}:{DG+3}]' if n else 0}")
        if n < 5: abuild(AB + 4 * ((n + 1) & 1), PH, M0, n + 1)
    A(f"s_mov_b32 s70, {SPIN}")
    tag(range(DG, DG + 4), TAG)
    A("s_mov_b32 exec_hi, 0")
    A(f"buffer_store_dwordx4 v[{DG}:{DG+3}], v{OUTA}, s[40:43], s65 offen sc1")
    A("s_mov_b64 exec, -1")
    A("L_pollO:")
    for k in range(8): A(f"buffer_load_dword v{T0+k}, v{OGA}, s[40:43], s78 offen{f' offset:{k*512}' if k else ''} sc1")
    A("s_sub_u32 s70, s70, 1"); A("s_cbranch_scc1 L_pollO_done")
    A("s_waitcnt vmcnt(0)")
    check(range(T0, T0 + 8), TAG, T0 + 8)
    untag(range(T0, T0 + 2))
    A("s_cbranch_vccnz L_pollO")
    A("L_pollO_done:")
    stamp("oseen")
    untag(range(T0 + 2, T0 + 8))
    A(f"v_add_f32 v{T0+10}, v{T0}, v{T0+1}"); A(f"v_add_f32 v{T0+11}, v{T0+2}, v{T0+3}")
    A(f"v_add_f32 v{T0+12}, v{T0+4}, v{T0+5}"); A(f"v_add_f32 v{T0+13}, v{T0+6}, v{T0+7}")
    A(f"v_add_f32 v{T0+10}, v{T0+10}, v{T0+11}"); A(f"v_add_f32 v{T0+12}, v{T0+12}, v{T0+13}")
    A(f"v_add_f32 v{T0+10}, v{T0+10}, v{T0+12}")
    A(f"v_cvt_pk_bf16_f32 v{PD}, v{T0+10}, v{T0+10}")
    abuild(AB, PD, M0, 0)
    for n in range(16):
        ab = AB + 4 * (n & 1)
        if n < 15: abuild(AB + 4 * ((n + 1) & 1), PD, M0, n + 1)
        A(f"v_mfma_f32_16x16x32_bf16 v[{DQ}:{DQ+3}], v[{ab}:{ab+3}], v[{WO+4*n}:{WO+4*n+3}], {f'v[{DQ}:{DQ+3}]' if n else 0}")
    A("s_mov_b32 exec_hi, 0")
    tag(range(DQ, DQ + 4), TAG)
    A(f"buffer_store_dwordx4 v[{DQ}:{DQ+3}], v{OUTA}, s[40:43], s64 offen sc1")
    A("s_mov_b64 exec, -1")
    stamp("spub")
    if mapx:
        A("s_and_b32 s48, s4, 7"); A("s_cmp_lg_u32 s5, s48")
    else: A("s_cmp_lg_u32 s5, 0")
    A("s_cbranch_scc1 L_sdone")
    YG, SG = 128, 144
    A(f"s_add_u32 s48, s73, {WS_Y}"); A(f"s_add_u32 s49, s73, {WS_S}")
    A(f"s_add_u32 s51, s48, 8192"); A(f"s_add_u32 s56, s48, 16384"); A(f"s_add_u32 s57, s48, 24576")
    A(f"s_add_u32 s60, s49, 8192"); A(f"s_add_u32 s61, s49, 16384"); A(f"s_add_u32 s62, s49, 24576")
    def gather(base, sregs):
        for k in range(4): A(f"buffer_load_dwordx4 v[{base+4*k}:{base+4*k+3}], v{RA}, s[40:43], s{sregs[k]} offen sc1")
    def valid(base):
        check(range(base, base + 16), TAG, T0)
        untag(range(base, base + 2))
    def reduce(base):
        untag(range(base + 2, base + 16))
        for k in range(4):
            A(f"v_add_f32 v{base+k}, v{base+k}, v{base+4+k}"); A(f"v_add_f32 v{base+8+k}, v{base+8+k}, v{base+12+k}")
        for k in range(4): A(f"v_add_f32 v{base+k}, v{base+k}, v{base+8+k}")
        A(f"v_permlane32_swap_b32 v{base}, v{base+2}"); A(f"v_permlane32_swap_b32 v{base+1}, v{base+3}")
        A(f"v_add_f32 v{base}, v{base}, v{base+2}"); A(f"v_add_f32 v{base+1}, v{base+1}, v{base+3}")
        A(f"v_permlane16_swap_b32 v{base}, v{base+1}")
        A(f"v_add_f32 v{base}, v{base}, v{base+1}")
        A(f"v_add_f32_dpp v{base}, v{base}, v{base} row_ror:4 row_mask:0xf bank_mask:0xf")
        A(f"v_add_f32_dpp v{base}, v{base}, v{base} row_ror:8 row_mask:0xf bank_mask:0xf")
        rbf(f"v{base}", f"v{base}")
    A(f"s_mov_b32 s70, {SPIN}")
    A("L_pollY:")
    gather(YG, (48, 51, 56, 57)); gather(SG, (49, 60, 61, 62))
    A("s_sub_u32 s70, s70, 1"); A("s_cbranch_scc1 L_pollY_done")
    A("s_waitcnt vmcnt(4)")
    valid(YG)
    A("s_cbranch_vccnz L_pollY")
    A("L_pollY_done:")
    reduce(YG)
    A(f"v_mul_f32 v{T0+4}, 0xbfb8aa3b, v{YG}"); A(f"v_exp_f32 v{T0+4}, v{T0+4}"); A(f"v_add_f32 v{T0+4}, 1.0, v{T0+4}")
    A(f"v_rcp_f32 v{T0+4}, v{T0+4}"); A(f"v_mul_f32 v{YG}, v{YG}, v{T0+4}")
    rbf(f"v{YG}", f"v{YG}")
    A("s_branch L_chkS")
    A("L_pollS:")
    gather(SG, (49, 60, 61, 62))
    A("s_sub_u32 s70, s70, 1"); A("s_cbranch_scc1 L_pollS_done")
    A("L_chkS:")
    A("s_waitcnt vmcnt(0)")
    valid(SG)
    A("s_cbranch_vccnz L_pollS")
    A("L_pollS_done:")
    stamp("sseen")
    reduce(SG)
    A(f"v_mul_f32 v{SG}, v{SG}, v{YG}")
    rbf(f"v{SG}", f"v{SG}")
    A(f"v_add_f32 v{SG}, v{SG}, v51")
    A(f"v_cvt_pk_bf16_f32 v{SG}, v{SG}, v{SG}")
    A("s_mov_b32 exec_lo, 0x000f000f"); A("s_mov_b32 exec_hi, 0x000f000f")
    A(f"buffer_store_short v{SG}, v{XF}, s[32:35], 0 offen")
    A("s_cmp_lg_u32 s2, 0"); A("s_cbranch_scc1 L_sdone")
    A("s_mov_b64 exec, 1")
    A(f"v_mov_b32 v{T0}, 0")
    A(f"buffer_store_dword v{EP}, v{T0}, s[40:43], s79 offen sc1")
    A("L_sdone:")
    if stamps:
        A("s_waitcnt vmcnt(0)")
    if probe:
        A("s_waitcnt vmcnt(0)")
    stamp("end")
    if probe:
        A("s_cmp_lg_u32 s2, 0"); A("s_cbranch_scc1 L_end")
        A("s_memrealtime s[84:85]"); A("s_waitcnt lgkmcnt(0)")
        A("s_sub_u32 s82, s82, s80"); A(f"s_mul_i32 s82, s82, {probek}"); A("s_min_u32 s82, s82, 100000")
        A("L_probe:")
        A("s_memrealtime s[86:87]"); A("s_waitcnt lgkmcnt(0)")
        A("s_sub_u32 s86, s86, s84"); A("s_cmp_lt_u32 s86, s82"); A("s_cbranch_scc1 L_probe")
    dump_stamps()
    A("L_end:")
    A("s_endpgm")
    A.L += stream_body

    body = A.fix()
    hdr = open("cdna_kernels/" + NAME + ".s.ref").read().split("\n")
    hdr = [l for l in hdr if l.startswith(";") and "@launch" not in l and "Override" not in l and "grid=ceil" not in l]
    out = hdr + [f"; @launch grid=(256,1,1) block=(320,1,1) lds={LRING + 4 * nlds * 1024}",
                 '.amdgcn_target "amdgcn-amd-amdhsa--gfx950"', ".text", f".globl {KN}", ".p2align 8", f".type {KN},@function"]
    out += [l if l.endswith(":") else "    " + l for l in body]
    nv = 256
    out += ['.section .rodata,"a"', ".p2align 6", f".amdhsa_kernel {KN}", f"  .amdhsa_next_free_vgpr {nv}",
            "  .amdhsa_next_free_sgpr 102", f"  .amdhsa_accum_offset {nv}", "  .amdhsa_group_segment_fixed_size 0",
            "  .amdhsa_kernarg_size 96", "  .amdhsa_user_sgpr_count 2", "  .amdhsa_user_sgpr_kernarg_segment_ptr 1",
            "  .amdhsa_system_sgpr_workgroup_id_x 1", ".end_amdhsa_kernel"]
    return "\n".join(out) + "\n", stamp_list

if __name__ == "__main__":
    kw = eval("dict(" + (sys.argv[2] if len(sys.argv) > 2 else "") + ")")
    open(sys.argv[1], "w").write(gen(**kw)[0])
```

```python
import sys
from asmlib import Asm
NAME = "recurrent_scan__mha_block_cached__glu_gated_glu__decode"
KN = NAME + "_kernel"

WS_A  = 0x00000
WS_O  = 0x40000
WS_S  = 0x60000
WS_Y  = 0x80000
WS_ML = 0xA0000
WS_E  = 0xB0000
WS_C  = 0xB8000
WS_B  = 0x200000
WS_P  = 0xC0000
WS_ST = 0x100000
WS_BYTES = 268435456
LQ, LML, LPROG, LQF, LH, LO = 0, 256, 288, 304, 320, 1024
LGO, LPF, LLV = 308, 312, 316
LF, LREC, LP, LPT = 576, 640, 3072, 4096
END = 0x7fffffff
LOG2E = "0x3fb8aa3b"
SCALE = "0x3db504f3"
SPIN = 1 << 17

SETS = {"early": "bar0 issued x ln apub aseen qdone ypub ml mlx end qready kdone vdone",
        "prog": "bar0 i16 i32 i48 i64 i80 i96 i112 i127 vdone apub aseen mlx end",
        "clk": "bar0 clk0 i64 clk1 vdone clk2 end",
        "steal2": "mlx table end i96 i102 i111 rec0 rec1 rec2 static tready vdone",
        "steal": "mlx table wiss bar2 opub oseen spub sseen end kdone static tready vdone qdone issued qready",
        "late": "qdone mlx wiss bar2 opub oseen spub sseen end issued qready kdone vdone"}

def gen(nslot=48, npre=4, burst=4, every=6, cap=6, dist=None, plate=1, stamps=False, kvflags="nt", wflags="nt", gflags="",
        asleep=30, lsleep=1, psleep=4, mapx=False, r1=3, r2=3, d1=2, d2=2, local=False, skip="", probe=None, probek=8, touch=False, bar0=16, scap=0, amap=False, gap=0, steal=False, np_=8, ah=5, golate=2, noatom=False, aflags='sc0 sc1', capl=0, capsel=1, capfrom=0, bal=False, tk=4, th=4, lv=(5, 6, 7), bfrom=12, bto=108, bgrp=3, bstr=2, mlstr=4, mlat=None, oflags='', fast=False, pre='', preflags=''):
    A = Asm()
    stamp_list = []
    role = ["S"]
    if bal: cap = lv[2]
    if dist is None: dist = cap
    def stamp(name):
        if probe and role[0] == "S" and name == probe:
            A("s_memrealtime s[82:83]")
        if stamps and name in SETS[stamps].split() and not (stamps in ("late", "steal") and role[0] == "S" and name == "issued"):
            k = len([x for x in stamp_list if x[0] == role[0]])
            stamp_list.append((role[0], name))
            A(f"{'s_memtime' if name.startswith('clk') else 's_memrealtime'} s[{80+2*k}:{81+2*k}]")
    def rbf(r):
        A(f"v_cvt_pk_bf16_f32 v{r}, v{r}, v{r}")
        A(f"v_and_b32 v{r}, 0xffff0000, v{r}")
    def masks(m0, t0, t1):
        A(f"v_and_b32 v{t0}, 1, v0")
        A(f"v_lshlrev_b32 v{t0}, 4, v{t0}")
        A(f"v_lshlrev_b32 v{t0}, v{t0}, s50")
        A(f"v_bfe_u32 v{t1}, v0, 1, 2")
        for r in range(4): A(f"v_cmp_eq_u32 s[{84+2*r if not (stamps or probe) else 60+2*r}:{85+2*r if not (stamps or probe) else 61+2*r}], {r}, v{t1}")
        for r in range(4): A(f"v_cndmask_b32 v{m0+r}, 0, v{t0}, s[{84+2*r if not (stamps or probe) else 60+2*r}:{85+2*r if not (stamps or probe) else 61+2*r}]")
    def abuild(a0, p, m0, n):
        for r in range(4):
            A(f"v_and_b32_dpp v{a0+r}, v{p}, v{m0+r} row_newbcast:{n} row_mask:0xf bank_mask:0xf")
    def dpp(op, d, s, ctl, rm="0xf", bm="0xf"):
        A(f"{op}_dpp v{d}, v{s}, v{s} {ctl} row_mask:{rm} bank_mask:{bm}")
    def wave_red(op, v):
        for c in ("quad_perm:[1,0,3,2]", "quad_perm:[2,3,0,1]", "row_half_mirror", "row_mirror"): dpp(op, v, v, c)
        dpp(op, v, v, "row_bcast:15", "0xa"); dpp(op, v, v, "row_bcast:31", "0xc")
    def mfma(d, a, b, first):
        A(f"v_mfma_f32_16x16x32_bf16 v[{d}:{d+3}], v[{a}:{a+3}], v[{b}:{b+3}], {0 if first else f'v[{d}:{d+3}]'}")
    def srd(d, off, nbytes):
        A(f"s_load_dwordx2 s[{d}:{d+1}], s[0:1], {off}")
        A(f"s_mov_b32 s{d+2}, {nbytes}")
        A(f"s_mov_b32 s{d+3}, 0x20000")
    def off(n): return f" offset:{n}" if n else ""
    def dump_stamps():
        if not stamps: return
        mine = [x for x in stamp_list if x[0] == role[0]]
        A("s_mov_b64 exec, -1")
        A("s_waitcnt lgkmcnt(0)")
        for k in range(len(mine)): A(f"v_writelane_b32 v0, s{80+2*k}, {k}")
        A("s_getreg_b32 s48, hwreg(HW_REG_XCC_ID)"); A("v_writelane_b32 v0, s48, 15")
        A("s_getreg_b32 s48, hwreg(HW_REG_HW_ID)"); A("v_writelane_b32 v0, s48, 14")
        A("s_load_dwordx2 s[40:41], s[0:1], 88"); A(f"s_mov_b32 s42, {WS_BYTES}"); A("s_mov_b32 s43, 0x20000")
        A("s_mul_i32 s48, s2, 5"); A("s_add_u32 s48, s48, s3"); A("s_lshl_b32 s48, s48, 6"); A(f"s_add_u32 s48, s48, {WS_ST}")
        A("v_mbcnt_lo_u32_b32 v1, -1, 0"); A("v_lshlrev_b32 v1, 2, v1")
        A("s_mov_b64 exec, 0xffff")
        A("s_waitcnt lgkmcnt(0)")
        A("buffer_store_dword v0, v1, s[40:43], s48 offen")

    A(f"{KN}:")
    if stamps or probe: A("s_memrealtime s[80:81]")
    if fast:
        A("s_load_dwordx2 s[8:9], s[0:1], 8"); A("s_load_dwordx2 s[12:13], s[0:1], 16")
    A("v_lshrrev_b32 v1, 6, v0")
    A("s_cmp_ge_u32 s2, 256")
    A("s_cbranch_scc1 L_end")
    A("v_readfirstlane_b32 s3, v1")
    if mapx:
        A("s_lshr_b32 s4, s2, 3"); A("s_and_b32 s5, s2, 7")
    else:
        A("s_and_b32 s4, s2, 31"); A("s_lshr_b32 s5, s2, 5")
    A("v_and_b32 v0, 63, v0")
    A("s_mov_b32 s50, 0xffff")
    A("s_cmp_eq_u32 s3, 4")
    A("s_cbranch_scc1 L_service")
    if steal or bal:
        A("s_cmp_eq_u32 s3, 5")
        A("s_cbranch_scc1 L_claim")
    nst = 128 - 2 * np_ if steal else 128

    role[0] = "W"; stamp_list.append(("W", "start"))
    VL16, M0, Q0, S0, AB, D0, P0, T0, RING = 1, 2, 6, 10, 14, 22, 26, 42, 48
    LVR, LVA = RING + 4 * nslot, RING + 4 * nslot + 1
    if fast:
        for d in (8, 12): A(f"s_mov_b32 s{d+2}, {64 << 20}"); A(f"s_mov_b32 s{d+3}, 0x20000")
    else:
        srd(8, 8, 64 << 20); srd(12, 16, 64 << 20)
    A("s_lshl_b32 s48, s4, 21"); A("s_lshl_b32 s49, s5, 18"); A("s_add_u32 s48, s48, s49")
    A("s_lshl_b32 s49, s3, 12"); A("s_add_u32 s48, s48, s49")
    A("s_mov_b32 s49, s48")
    A(f"v_lshlrev_b32 v{VL16}, 4, v0")
    A("s_waitcnt lgkmcnt(0)")
    issued = [0]; waited = [-1]
    def slot(i): return RING + 4 * (i % nslot)
    extra = [None]
    def wait_for(i):
        if i > waited[0]:
            n = issued[0] - 1 - i + (1 if extra[0] is not None and i < extra[0] else 0)
            A(f"s_waitcnt vmcnt({n})"); waited[0] = i
    def tick():
        A(f"ds_write_b32 v{T0+4}, v{T0+5} offset:{LPROG}")
        A(f"v_add_u32 v{T0+5}, 1, v{T0+5}")
    def issue():
        i = issued[0]
        ii = i % 64; s = 8 if i < 64 else 12
        if i == 64: A("s_mov_b32 s49, s48")
        elif ii % 4 == 0 and i:
            A("s_addk_i32 s49, 0x4000")
        if bal and i >= npre and ii % tk == 0 and bfrom <= i <= bto + tk:
            if i > bfrom:
                A("s_waitcnt lgkmcnt(0)"); A(f"v_readfirstlane_b32 s58, v{LVR}")
                A("s_and_b32 vcc_lo, s58, 2")
            if i <= bto:
                tick(); A(f"ds_read_b32 v{LVR}, v{LVA} offset:{LLV}")
        if bal and i >= npre and ii % 4 == 0: A("s_cmp_eq_u32 s58, 0")
        if cap and i >= cap: wait_for(i - cap)
        if bal and i >= max(npre, lv[0]):
            A(f"s_cbranch_vccnz L_c{i}")
            if i >= lv[1]: A(f"s_waitcnt vmcnt({lv[1] - 1})")
            A(f"s_cbranch_scc1 L_c{i}"); A(f"s_waitcnt vmcnt({lv[0] - 1})"); A(f"L_c{i}:")
        if capl and i >= max(capl, capfrom, npre) and i - capl > waited[0]:
            A(f"s_cbranch_vccnz L_c{i}"); A(f"s_waitcnt vmcnt({capl - 1})"); A(f"L_c{i}:")
        issued[0] += 1
        r = slot(i)
        A(f"buffer_load_dwordx4 v[{r}:{r+3}], v{VL16}, s[{s}:{s+3}], s49 offen{off((ii%4)*1024)} {kvflags}")
        stamp(f"i{i}")
        if steal and i >= nst - 2 * ah and (nst - i) % 2 == 0: tick()
        if i == 64: stamp("clk1")
    for _ in range(npre): issue()
    if touch:
        A(f"buffer_load_dword v{T0+3}, v{VL16}, s[12:15], s48 offen {kvflags}")
        extra[0] = issued[0]
    A("s_branch L_stream")
    stream_at = len(A.L)
    A("L_stream:")
    masks(M0, T0, T0 + 1)
    A("s_mov_b32 s52, 0xcccccccc"); A("s_mov_b32 s53, 0xcccccccc")
    A("s_mov_b32 s54, 0xaaaaaaaa"); A("s_mov_b32 s55, 0xaaaaaaaa")
    A(f"v_and_b32 v{T0+2}, 15, v0"); A(f"v_lshlrev_b32 v{T0+2}, 4, v{T0+2}")
    A(f"v_mov_b32 v{T0+4}, s3"); A(f"v_lshlrev_b32 v{T0+4}, 2, v{T0+4}"); A(f"v_mov_b32 v{T0+5}, 1")
    def setlevel():
        if bal:
            A("s_and_b32 vcc_lo, s58, 2"); A("s_mov_b32 vcc_hi, 0"); A("s_cmp_eq_u32 s58, 0")
        if capl:
            A(f"s_and_b32 vcc_lo, s3, {capsel}"); A("s_mov_b32 vcc_hi, 0")
    if bal:
        A("s_mov_b32 s58, 0"); A(f"v_mov_b32 v{LVA}, 0")
    setlevel()
    A("s_barrier")
    stamp("bar0"); stamp("clk0")
    for _ in range(nslot - npre): issue()
    stamp("issued")
    A(f"v_mov_b32 v{T0+1}, 0")
    A(f"s_mov_b32 s57, {SPIN * 8}")
    A("L_pollQ:")
    A(f"ds_read_b32 v{T0}, v{T0+1} offset:{LQF}")
    A(f"ds_read_b128 v[{Q0}:{Q0+3}], v{T0+2} offset:{LQ}")
    A("s_sub_u32 s57, s57, 1"); A("s_cbranch_scc1 L_pollQ_done")
    A("s_waitcnt lgkmcnt(0)")
    A(f"v_cmp_eq_u32 vcc, 0, v{T0}")
    A("s_nop 1")
    A("s_cbranch_vccnz L_pollQ")
    A("L_pollQ_done:")
    setlevel()
    stamp("qready")
    def maybe_issue(i):
        want = max(nslot + min(i + 1, burst + i // every) if i < nslot else 0, min(i + 1 + dist, nslot + i + 1))
        while issued[0] < min(nst, want): issue()
    for i in range(64):
        n = i % 16; r = slot(i)
        A(f"v_mov_b32 v{P0+n}, 0")
        wait_for(i)
        for k in range(4): A(f"v_dot2c_f32_bf16 v{P0+n}, v{r+k}, v{Q0+k}")
        maybe_issue(i)
        if n == 15:
            a = i // 16
            for k in range(8):
                dpp("v_add_f32", P0 + k, P0 + k, "row_ror:8", bm="0x3"); dpp("v_add_f32", P0 + k, P0 + k + 8, "row_ror:8", bm="0xc")
            if gap and i >= nslot - 1 and gap > 1: issue()
            for k in range(4):
                dpp("v_add_f32", P0 + k, P0 + k, "row_half_mirror", bm="0x5"); dpp("v_add_f32", P0 + k, P0 + k + 4, "row_half_mirror", bm="0xa")
            for k in range(4): dpp("v_add_f32", P0 + k, P0 + k, "quad_perm:[2,3,0,1]")
            A(f"v_cndmask_b32 v{P0}, v{P0}, v{P0+2}, s[52:53]")
            A(f"v_cndmask_b32 v{P0+1}, v{P0+1}, v{P0+3}, s[52:53]")
            for k in range(2): dpp("v_add_f32", P0 + k, P0 + k, "quad_perm:[1,0,3,2]")
            A(f"v_cndmask_b32 v{S0+a}, v{P0}, v{P0+1}, s[54:55]")
            rbf(S0 + a)
            A(f"v_mul_f32 v{S0+a}, {SCALE}, v{S0+a}")
            rbf(S0 + a)
    stamp("kdone")
    A(f"v_max3_f32 v{T0}, v{S0}, v{S0+1}, v{S0+2}")
    A(f"v_max_f32 v{T0}, v{T0}, v{S0+3}")
    wave_red("v_max_f32", T0)
    if gap: issue()
    A(f"v_readlane_b32 s51, v{T0}, 63")
    for a in range(4): A(f"v_subrev_f32 v{S0+a}, s51, v{S0+a}")
    for a in range(4): A(f"v_mul_f32 v{S0+a}, {LOG2E}, v{S0+a}")
    for a in range(4): A(f"v_exp_f32 v{S0+a}, v{S0+a}")
    A(f"v_add_f32 v{T0+1}, v{S0}, v{S0+1}")
    A(f"v_add_f32 v{T0+3}, v{S0+2}, v{S0+3}")
    A(f"v_add_f32 v{T0+1}, v{T0+1}, v{T0+3}")
    if steal:
        A(f"v_bfe_u32 v{P0}, v0, 2, 2"); A(f"v_and_b32 v{P0+1}, 3, v0"); A(f"v_lshrrev_b32 v{P0+2}, 4, v0")
        A(f"v_lshlrev_b32 v{P0}, 8, v{P0}"); A(f"v_lshl_add_u32 v{P0}, v{P0+1}, 4, v{P0}"); A(f"v_lshl_add_u32 v{P0}, v{P0+2}, 2, v{P0}")
        A(f"v_lshl_add_u32 v{P0}, v{T0+4}, 4, v{P0}")
        A(f"ds_write_b32 v{P0}, v{S0+3} offset:{LP}")
    for a in range(4): A(f"v_cvt_pk_bf16_f32 v{S0+a}, v{S0+a}, v{S0+a}")
    abuild(AB, S0, M0, 0)
    if gap: issue()
    wave_red("v_add_f32", T0 + 1)
    A(f"v_lshlrev_b32 v{T0+3}, 1, v{T0+4}")
    A("s_mov_b32 exec_lo, 0"); A("s_mov_b32 exec_hi, 0x80000000")
    A(f"ds_write_b64 v{T0+3}, v[{T0}:{T0+1}] offset:{LML}")
    A("s_mov_b64 exec, -1")
    A(f"v_and_b32 v{T0}, 15, v0"); A(f"v_lshlrev_b32 v{T0}, 5, v{T0}")
    A(f"v_and_b32 v{T0+2}, 16, v0"); A(f"v_add_u32 v{T0}, v{T0}, v{T0+2}")
    A(f"v_lshl_add_u32 v{T0}, v{T0+4}, 7, v{T0}")
    if mlat: A(f"v_mov_b32 v{T0+1}, 0")
    def procv(i):
        wait_for(i)
        mfma(D0, AB + 4 * (i & 1), slot(i), i == 64)
        if i < nst - 1: abuild(AB + 4 * ((i + 1) & 1), S0 + (i + 1 - 64) // 16, M0, (i + 1) % 16)
    if not steal:
        for i in range(64, 128):
            procv(i); maybe_issue(i)
            if i == mlat: A(f"ds_write_b32 v{T0+4}, v{T0+5} offset:{LPROG}")
            if i == 127 - plate:
                if mlat: A(f"ds_write_b32 v{T0+1}, v{T0+5} offset:{LGO}")
                elif bal: A(f"ds_write_b32 v{LVA}, v{T0+5} offset:{LGO}")
                else: A(f"ds_write_b32 v{T0+4}, v{T0+5} offset:{LPROG}")
    else:
        assert dist == 6 and cap == 6
        PR, RECA, PTA = P0, P0 + 4, P0 + 5
        UB = [slot(nst + 2 * k) for k in range(4)]
        assert UB[3] + 8 <= RING + 4 * nslot and UB == [UB[0] + 8 * k for k in range(4)]
        A(f"v_mov_b32 v{RECA}, {LREC}")
        A(f"v_and_b32 v{PTA}, 1, v0"); A(f"v_lshrrev_b32 v{P0+6}, 4, v0"); A(f"v_lshl_add_u32 v{PTA}, v{PTA}, 2, v{P0+6}")
        A(f"v_lshlrev_b32 v{PTA}, 2, v{PTA}"); A(f"v_lshl_add_u32 v{PTA}, v{T0+4}, 3, v{PTA}")
        A("s_lshl_b32 s58, s4, 21"); A("s_lshl_b32 s59, s3, 11"); A("s_add_u32 s58, s58, s59"); A(f"s_add_u32 s58, s58, {(1024 - 32 * np_) * 256}")
        A("s_mov_b32 s59, 0x10000")
        A("s_mov_b32 s68, 0x7fff0000")
        for i in range(64, nst - 6):
            procv(i); maybe_issue(i)
        assert issued[0] == nst
        lab = [0]
        def fetch(k):
            n = lab[0]; lab[0] += 1
            tick()
            A("s_mov_b32 s64, s68")
            A("s_cmp_lt_u32 s59, 4"); A(f"s_cbranch_scc1 L_go{n}")
            A(f"s_mov_b32 s57, {SPIN * 8}")
            A(f"L_rec{n}:")
            A(f"ds_read_b32 v{P0+6}, v{RECA}")
            A("s_sub_u32 s57, s57, 1"); A(f"s_cbranch_scc1 L_stop{n}")
            A("s_waitcnt lgkmcnt(0)")
            A(f"v_readfirstlane_b32 s65, v{P0+6}")
            A("s_cmp_eq_u32 s65, -1"); A(f"s_cbranch_scc1 L_rec{n}")
            A(f"s_cmp_lt_u32 s65, {8 * np_}"); A(f"s_cbranch_scc1 L_unit{n}")
            A(f"L_stop{n}:")
            A("s_mov_b32 s59, 3")
            A(f"s_branch L_go{n}")
            A(f"L_unit{n}:")
            A("s_and_b32 s66, s65, 7"); A("s_lshl_b32 s66, s66, 18"); A("s_lshr_b32 s67, s65, 3"); A("s_lshl_b32 s67, s67, 13")
            A("s_add_u32 s64, s58, s66"); A("s_add_u32 s64, s64, s67")
            A(f"s_lshl_b32 s{60+k}, s65, 7")
            A(f"v_add_u32 v{RECA}, 4, v{RECA}")
            A(f"L_go{n}:")
            if n < 3: stamp(f"rec{n}")
            for b in range(2): A(f"buffer_load_dwordx4 v[{UB[k]+4*b}:{UB[k]+4*b+3}], v{VL16}, s[12:15], s64 offen{off(1024*b)} {kvflags}")
        def pread(k):
            A(f"v_add_u32 v{P0+7}, s{60+k}, v{PTA}")
            A(f"ds_read_b32 v{PR+k}, v{P0+7} offset:{LPT}")
        for k in range(4): A(f"s_mov_b32 s{60+k}, 0")
        for k in range(3):
            fetch(k)
            for i in (nst - 6 + 2 * k, nst - 5 + 2 * k):
                A(f"s_waitcnt vmcnt({nst - 1 - i + 2 * (k + 1)})"); waited[0] = i
                procv(i)
            A("s_sub_u32 s59, s59, 1")
        stamp("static")
        A(f"v_mov_b32 v{P0+6}, 0")
        A(f"s_mov_b32 s57, {SPIN * 8}")
        A("L_pollT:")
        A(f"ds_read_b32 v{P0+7}, v{P0+6} offset:{LPF}")
        A(f"ds_read_b32 v{P0+8}, v{T0+4} offset:{LF}")
        A("s_sub_u32 s57, s57, 1"); A("s_cbranch_scc1 L_pollT_done")
        A("s_waitcnt lgkmcnt(0)")
        A(f"v_cmp_eq_u32 vcc, 0, v{P0+7}")
        A("s_nop 1")
        A("s_cbranch_vccnz L_pollT")
        A("L_pollT_done:")
        stamp("tready")
        pread(0)
        A("s_nop 7")
        for k in range(4): A(f"v_mul_f32 v{D0+k}, v{D0+k}, v{P0+8}")
        A("s_cmp_eq_u32 s59, 0"); A("s_cbranch_scc1 L_pool_done")
        A("L_pool:")
        for k in range(4):
            fetch((k + 3) % 4)
            A("s_waitcnt lgkmcnt(0)")
            abuild(AB, PR + k, M0, 0); abuild(AB + 4, PR + k, M0, 1)
            pread((k + 1) % 4)
            A("s_waitcnt vmcnt(7)")
            mfma(D0, AB, UB[k], False)
            A("s_waitcnt vmcnt(6)")
            mfma(D0, AB + 4, UB[k] + 4, False)
            A("s_sub_u32 s59, s59, 1"); A("s_cmp_eq_u32 s59, 0")
            A("s_cbranch_scc1 L_pool_done" if k < 3 else "s_cbranch_scc0 L_pool")
        A("L_pool_done:")
        A("s_nop 5")
    stamp("vdone"); stamp("clk2")
    A("s_mov_b32 exec_hi, 0")
    A(f"ds_write_b128 v{T0}, v[{D0}:{D0+3}] offset:{LO}")
    A("s_waitcnt lgkmcnt(0)")
    A("s_barrier")
    dump_stamps()
    A("s_endpgm")
    if steal:
        A("L_claim:")
        srd(40, 88, WS_BYTES)
        A("s_lshl_b32 s48, s4, 7"); A(f"s_add_u32 s48, s48, {WS_C}")
        A("v_mov_b32 v1, 0"); A(f"v_mov_b32 v3, {LREC}"); A(f"v_mov_b32 v12, {END}")
        A("s_mov_b32 s49, 0")
        A("s_barrier")
        A("s_waitcnt lgkmcnt(0)")
        A("s_mov_b64 exec, 1")
        cl = [0]
        def wait_prog(lim):
            n = cl[0]; cl[0] += 1
            A(f"s_mov_b32 s57, {SPIN * 8}")
            A(f"L_cw{n}:")
            A(f"s_sleep {lsleep}")
            A(f"ds_read_b128 v[4:7], v1 offset:{LPROG}")
            A("s_sub_u32 s57, s57, 1"); A("s_cbranch_scc1 L_claim_end")
            A("s_waitcnt lgkmcnt(0)")
            A("v_max3_u32 v4, v4, v5, v6"); A("v_max_u32 v4, v4, v7")
            A(f"v_cmp_ge_u32 vcc, s{lim}, v4")
            A("s_nop 1")
            A(f"s_cbranch_vccnz L_cw{n}")
        def claim(k):
            wait_prog(49)
            if noatom:
                A("s_lshl_b32 s51, s49, 3"); A("s_add_u32 s51, s51, s5"); A(f"v_mov_b32 v{8+k}, s51")
            else:
                A(f"v_mov_b32 v{8+k}, 1")
                A(f"buffer_atomic_add v{8+k}, v1, s[40:43], s48 offen {aflags}")
            A("s_add_u32 s49, s49, 1")
        for k in range(3): claim(k)
        A("L_claim_loop:")
        for k in range(4):
            claim((k + 3) % 4)
            A("s_waitcnt vmcnt(3)")
            A(f"ds_write_b32 v3, v{8+k}")
            A(f"v_cmp_le_u32 vcc, {8 * np_}, v{8+k}")
            A("v_add_u32 v3, 4, v3")
            A("s_nop 0")
            A("s_cbranch_vccnz L_claim_done" if k < 3 else "s_cbranch_vccz L_claim_loop")
        A("L_claim_done:")
        A(f"s_add_u32 s49, s49, {ah - 4 + golate}")
        wait_prog(49)
        A("L_claim_end:")
        A("ds_write_b32 v3, v12")
        A("v_mov_b32 v2, 1")
        A(f"ds_write_b32 v1, v2 offset:{LGO}")
        A("s_waitcnt lgkmcnt(0)")
        A("s_endpgm")
    if bal:
        nt = (bto - bfrom) // tk + 1
        A("L_claim:")
        srd(40, 88, WS_BYTES)
        A(f"s_lshr_b32 s48, s2, {bgrp}"); A(f"s_lshl_b32 s48, s48, {max(7, bgrp + bstr)}"); A(f"s_add_u32 s48, s48, {WS_B}")
        A(f"s_and_b32 s51, s2, {(1 << bgrp) - 1}")
        A("v_mov_b32 v1, 0"); A(f"v_and_b32 v2, {(1 << bgrp) - 1}, v0"); A(f"v_lshlrev_b32 v2, {bstr}, v2")
        A(f"s_lshl_b32 s52, s51, {bstr}"); A("v_mov_b32 v3, s52")
        A(f"s_mov_b32 s79, {WS_E}")
        A("s_mov_b32 s49, 0")
        A("s_barrier")
        A("s_waitcnt lgkmcnt(0)")
        A("buffer_load_dword v8, v1, s[40:43], s79 offen sc1")
        A("s_waitcnt vmcnt(0)")
        A("v_add_u32 v8, 1, v8"); A("v_and_b32 v8, 0x3ff, v8")
        A("L_bal:")
        A(f"s_mov_b32 s57, {SPIN * 8}")
        A("L_balw:")
        A(f"s_sleep {lsleep}")
        A(f"ds_read_b128 v[4:7], v1 offset:{LPROG}")
        A("s_sub_u32 s57, s57, 1"); A("s_cbranch_scc1 L_bal_end")
        A("s_waitcnt lgkmcnt(0)")
        A("v_min3_u32 v4, v4, v5, v6"); A("v_min_u32 v4, v4, v7")
        A("v_readfirstlane_b32 s53, v4")
        A("s_cmp_le_u32 s53, s49"); A("s_cbranch_scc1 L_balw")
        A("s_mov_b32 s49, s53")
        A("v_lshl_or_b32 v4, v4, 10, v8")
        A("s_mov_b64 exec, 1")
        A("buffer_store_dword v4, v3, s[40:43], s48 offen sc1")
        A("s_mov_b64 exec, -1")
        A("buffer_load_dword v5, v2, s[40:43], s48 offen sc1")
        A("s_waitcnt vmcnt(0)")
        A("v_and_b32 v6, 0x3ff, v5"); A("v_cmp_eq_u32 vcc, v6, v8"); A("v_lshrrev_b32 v5, 10, v5")
        A("v_cndmask_b32 v5, 0, v5, vcc")
        A("v_readlane_b32 s54, v5, s51")
        for c in ("quad_perm:[1,0,3,2]", "quad_perm:[2,3,0,1]", "row_half_mirror") + (("row_mirror",) if bgrp > 3 else ()):
            A(f"v_add_u32_dpp v5, v5, v5 {c} row_mask:0xf bank_mask:0xf")
        A("v_readfirstlane_b32 s55, v5")
        A(f"s_lshl_b32 s54, s54, {bgrp}"); A("s_sub_i32 s55, s55, s54")
        A("s_mov_b32 s56, 0")
        A(f"s_cmp_gt_i32 s55, {th}"); A("s_cselect_b32 s56, 2, s56")
        A(f"s_cmp_lt_i32 s55, {-th}"); A("s_cselect_b32 s56, 1, s56")
        A("v_mov_b32 v6, s56")
        A(f"ds_write_b32 v1, v6 offset:{LLV}")
        A(f"s_cmp_lt_u32 s49, {nt}"); A("s_cbranch_scc1 L_bal")
        A("L_bal_end:")
        A("s_waitcnt lgkmcnt(0)")
        A("s_endpgm")
    stream_body = A.L[stream_at:]; del A.L[stream_at:]

    role[0] = "S"; stamp_list.append(("S", "start"))
    G, J, PD, M0, AB, DQ, DG, T0 = 1, 2, 3, 4, 8, 16, 20, 24
    XA, XR, EP, GA, OUTA, XF, PH, XV, WDA, WOA, RA, OGA, TAG, GV, L16 = 40, 44, 45, 46, 48, 49, 50, 51, 52, 58, 59, 60, 61, 62, 63
    WQ, GU = 64, 128
    WO, WD, PS = 64, 128, 160
    def tag(regs):
        for r in regs: A(f"v_and_or_b32 v{r}, v{r}, s7, v{TAG}")
    def untag(regs):
        for r in regs: A(f"v_and_b32 v{r}, s7, v{r}")
    def check(regs, t):
        regs = list(regs)
        pairs = [regs[k:k+2] for k in range(0, len(regs), 2)]
        A(f"v_bitop3_b32 v{t}, v{pairs[0][0]}, v{pairs[0][1]}, v{TAG} bitop3:0x7e")
        rest = pairs[1:]
        while rest:
            take = rest[:2]; rest = rest[2:]
            for k, p in enumerate(take): A(f"v_bitop3_b32 v{t+1+k}, v{p[0]}, v{p[1]}, v{TAG} bitop3:0x7e")
            if len(take) == 2: A(f"v_or3_b32 v{t}, v{t}, v{t+1}, v{t+2}")
            else: A(f"v_or_b32 v{t}, v{t}, v{t+1}")
        A(f"v_and_b32 v{t}, 0x3ff, v{t}")
        A(f"v_cmp_ne_u32 vcc, 0, v{t}")
    def strip(regs, t):
        regs = list(regs)
        for r in regs[::2]: A(f"v_lshl_add_u64 v[{r}:{r+1}], v[{r}:{r+1}], 0, s[14:15]")
        acc = [t, t + 1]; rest = regs[:]
        for a in acc: A(f"v_or3_b32 v{a}, v{rest[0]}, v{rest[1]}, v{rest[2]}"); rest = rest[3:]
        k = 0
        while len(rest) > 2 or (len(rest) == 2 and k & 1):
            A(f"v_or3_b32 v{acc[k&1]}, v{acc[k&1]}, v{rest[0]}, v{rest[1]}"); rest = rest[2:]; k += 1
        if len(rest) == 2:
            A(f"v_or3_b32 v{t}, v{t}, v{rest[0]}, v{rest[1]}"); rest = []
        assert not rest
        A(f"v_bitop3_b32 v{t}, v{t}, v{t+1}, s7 bitop3:0x54")
        A(f"v_cmp_ne_u32 vcc, 0, v{t}")
    def pkadd(d, a, b): A(f"v_pk_add_f32 v[{d}:{d+1}], v[{a}:{a+1}], v[{b}:{b+1}]")
    def poll(name, loads, regs, t, sleep):
        A(f"s_mov_b32 s70, {SPIN}")
        A(f"L_{name}:")
        if sleep: A(f"s_sleep {sleep}")
        loads()
        A("s_sub_u32 s70, s70, 1"); A(f"s_cbranch_scc1 L_{name}_done")
        A("s_waitcnt vmcnt(0)")
        check(regs, t)
        A("s_nop 1")
        if name not in skip.split(): A(f"s_cbranch_vccnz L_{name}")
        A(f"L_{name}_done:")
    def poll_pipe(name, R, delay, nreg, nld, loads, finish):
        A(f"s_mov_b32 s70, {SPIN}")
        for k in range(R - 1):
            loads(PS + nreg * k)
            if delay: A(f"s_sleep {delay}")
        A(f"L_{name}:")
        for k in range(R):
            loads(PS + nreg * ((k + R - 1) % R))
            if k == 0:
                A("s_sub_u32 s70, s70, 1"); A(f"s_cbranch_scc1 L_{name}_ok0")
            A(f"s_waitcnt vmcnt({nld * (R - 1)})")
            b = PS + nreg * k
            (strip if fast else check)(range(b, b + nreg), T0)
            A("s_nop 1")
            A(f"s_cbranch_vccz L_{name}_ok{k}" if k < R - 1 else f"s_cbranch_vccnz L_{name}")
        for k in reversed(range(R)):
            A(f"L_{name}_ok{k}:")
            finish(PS + nreg * k)
            if k: A(f"s_branch L_{name}_done")
        A(f"L_{name}_done:")

    A("L_service:")
    A("s_setprio 3")
    srd(16, 0, 1024); srd(20, 24, 4 << 20); srd(40, 88, WS_BYTES)
    A("s_load_dwordx4 s[44:47], s[0:1], 48")
    srd(24, 32, 4 << 20); srd(28, 64, 1376 * 1024); srd(32, 72, 1024)
    A(f"v_lshrrev_b32 v{G}, 4, v0"); A(f"v_and_b32 v{J}, 15, v0")
    if amap:
        HP, SP = 38, 39
        A("s_lshr_b32 s38, s2, 3"); A("s_and_b32 s39, s2, 7")
    else: HP, SP = 4, 5
    def chunks(hreg):
        if mapx or amap: A(f"s_mul_i32 s56, s{hreg}, 43")
        else:
            A(f"s_and_b32 s7, s{hreg}, 7"); A("s_lshl_b32 s7, s7, 2"); A(f"s_lshr_b32 s48, s{hreg}, 3"); A("s_add_u32 s7, s7, s48")
            A("s_mul_i32 s56, s7, 43")
        A("s_add_u32 s57, s56, 43"); A("s_lshr_b32 s56, s56, 3"); A("s_lshr_b32 s57, s57, 3")
        A("s_sub_u32 s57, s57, s56")
    chunks(HP)
    A(f"v_lshlrev_b32 v{L16}, 4, v0")
    A(f"s_lshl_b32 s48, s{SP}, 7")
    A(f"v_lshlrev_b32 v{T0+1}, 1, v0")
    A(f"v_lshlrev_b32 v{T0+3}, 4, v{J}")
    A(f"v_lshl_add_u32 v{T0+2}, v{G}, 17, v{T0+3}")
    A(f"s_lshl_b32 s49, s{SP}, 19"); A(f"s_lshl_b32 s51, s{HP}, 8"); A("s_add_u32 s49, s49, s51")
    A(f"v_and_b32 v{T0+4}, 7, v0")
    A(f"v_cmp_gt_u32 vcc, s57, v{T0+4}")
    A("s_mov_b32 s51, 44032"); A(f"s_mul_i32 s58, s{SP}, 176128")
    A(f"v_cndmask_b32 v{T0+4}, 0, v{T0+4}, vcc")
    A(f"v_add_lshl_u32 v{T0+4}, v{T0+4}, s56, 4")
    A(f"v_mad_u32_u24 v{T0+4}, v{G}, s51, v{T0+4}")
    A(f"v_add_u32 v{T0+4}, s58, v{T0+4}")
    A(f"v_mov_b32 v{T0+5}, 0")
    A(f"v_cmp_lt_u32 vcc, 7, v{J}")
    A(f"s_mov_b32 s79, {WS_E}")
    A("s_mov_b32 s60, 5504"); A("s_mov_b32 s61, 0")
    A("s_waitcnt lgkmcnt(0)")
    if steal:
        A(f"s_cmp_lg_u32 s{SP}, 0"); A("s_cbranch_scc1 L_noreset")
        A(f"s_lshl_b32 s51, s{HP}, 7"); A(f"s_add_u32 s51, s51, {WS_C}")
        A("s_mov_b64 exec, 1")
        A(f"buffer_store_dword v{T0+5}, v{T0+5}, s[40:43], s51 offen sc1")
        A("s_mov_b64 exec, -1")
        A("L_noreset:")
    if pre:
        A("s_lshl_b32 s6, s4, 3"); A("s_add_u32 s6, s6, s5")
        if "A" in pre:
            A(f"s_lshl_b32 s51, s{2 if amap else 6}, 10")
            A(f"buffer_load_dword v{T0+10}, v{L16}, s[40:43], s51 offen {preflags}")
        if "Y" in pre:
            A("s_lshl_b32 s51, s2, 9"); A(f"s_add_u32 s51, s51, {WS_Y}"); A(f"v_lshrrev_b32 v{T0+11}, 1, v{L16}")
            A(f"buffer_load_dword v{T0+10}, v{T0+11}, s[40:43], s51 offen {preflags}")
        if "S" in pre:
            A("s_lshl_b32 s51, s2, 9"); A(f"s_add_u32 s51, s51, {WS_S}"); A(f"v_lshrrev_b32 v{T0+11}, 1, v{L16}")
            A(f"buffer_load_dword v{T0+10}, v{T0+11}, s[40:43], s51 offen {preflags}")
    A(f"buffer_load_dwordx4 v[{XA}:{XA+3}], v{L16}, s[16:19], 0 offen")
    A(f"buffer_load_ushort v{XR}, v{T0+1}, s[16:19], s48 offen")
    A(f"buffer_load_dword v{EP}, v{T0+5}, s[40:43], s79 offen sc1")
    A(f"v_mov_b32 v{T0+6}, s44"); A(f"v_mov_b32 v{T0+7}, s45"); A(f"v_mov_b32 v{T0+8}, s46"); A(f"v_mov_b32 v{T0+9}, s47")
    A(f"v_cndmask_b32 v{GA}, v{T0+6}, v{T0+8}, vcc"); A(f"v_cndmask_b32 v{GA+1}, v{T0+7}, v{T0+9}, vcc")
    A(f"v_lshl_add_u64 v[{GA}:{GA+1}], v[{T0+4}:{T0+5}], 0, v[{GA}:{GA+1}]")
    def lds_init():
        A(f"v_cmp_gt_u32 vcc, 8, v0"); A(f"v_lshlrev_b32 v{T0+7}, 2, v0"); A("s_mov_b32 s7, 0xfffffc00")
        A(f"v_cndmask_b32 v{T0+6}, 0, -1, vcc")
        A("s_mov_b64 exec, 0xffff")
        A(f"ds_write_b32 v{T0+7}, v{T0+6} offset:{LML}")
        A("s_mov_b64 exec, -1")
        if steal:
            A(f"v_mov_b32 v{T0+6}, -1")
            A(f"ds_write_b32 v{T0+7}, v{T0+6} offset:{LREC}"); A(f"ds_write_b32 v{T0+7}, v{T0+6} offset:{LREC+64}")
        A("s_waitcnt lgkmcnt(0)")
        A("s_barrier")
    for n in range(16):
        if n == bar0: lds_init()
        if scap and 2 * n + 3 >= scap: A(f"s_waitcnt vmcnt({scap - 2})")
        if "W" in skip.split(): A(f"buffer_load_dword v{WQ+4*n}, v{T0+5}, s[16:19], 0 offen")
        else: A(f"buffer_load_dwordx4 v[{WQ+4*n}:{WQ+4*n+3}], v{T0+2}, s[20:23], s49 offen {wflags}")
        if "G" in skip.split(): A(f"buffer_load_dword v{GU+4*n}, v{T0+5}, s[16:19], 0 offen")
        else: A(f"global_load_dwordx4 v[{GU+4*n}:{GU+4*n+3}], v[{GA}:{GA+1}], off{off(2752 * (n & 1))} {gflags}")
        if n < 15: A("s_addk_i32 s49, 0x2000")
        if n & 1 and n < 15: A(f"v_lshl_add_u64 v[{GA}:{GA+1}], v[{GA}:{GA+1}], 0, s[60:61]")
    if bar0 == 16: lds_init()
    stamp("issued")
    masks(M0, T0 + 6, T0 + 7)
    A("s_and_b32 s58, s5, 3"); A("s_lshr_b32 s59, s5, 2")
    A("s_lshl_b32 s6, s4, 3"); A("s_add_u32 s6, s6, s5")
    A(f"v_lshlrev_b32 v{OUTA}, 5, v{J}"); A(f"v_and_b32 v{T0}, 16, v0"); A(f"v_add_u32 v{OUTA}, v{OUTA}, v{T0}")
    A("s_lshl_b32 s63, s6, 9"); A(f"s_add_u32 s63, s63, {WS_O}")
    A("s_lshl_b32 s64, s58, 6"); A("s_lshl_b32 s48, s4, 1"); A("s_add_u32 s64, s64, s48"); A("s_add_u32 s64, s64, s59")
    A("s_lshl_b32 s64, s64, 9"); A(f"s_add_u32 s65, s64, {WS_Y}"); A(f"s_add_u32 s64, s64, {WS_S}")
    A(f"s_lshl_b32 s66, s6, {mlstr}"); A(f"s_add_u32 s66, s66, {WS_ML}")
    A(f"s_lshl_b32 s67, s{2 if amap else 6}, 10")
    if amap: chunks(4)
    A("s_mov_b32 s68, 0"); A("s_mov_b32 s69, -1")
    A("s_waitcnt vmcnt(32)")
    stamp("x")
    for k in range(4):
        A(f"v_lshlrev_b32 v{T0+2*k}, 16, v{XA+k}"); A(f"v_and_b32 v{T0+2*k+1}, 0xffff0000, v{XA+k}")
    A(f"v_add_f32 v{T0+8}, v{T0}, v{T0+1}"); A(f"v_add_f32 v{T0+9}, v{T0+2}, v{T0+3}")
    A(f"v_add_f32 v{T0+10}, v{T0+4}, v{T0+5}"); A(f"v_add_f32 v{T0+11}, v{T0+6}, v{T0+7}")
    A(f"v_add_f32 v{T0+8}, v{T0+8}, v{T0+9}"); A(f"v_add_f32 v{T0+10}, v{T0+10}, v{T0+11}")
    A(f"v_add_f32 v{T0+8}, v{T0+8}, v{T0+10}")
    A(f"v_add_u32 v{EP}, 1, v{EP}"); A(f"v_and_b32 v{TAG}, 0x3ff, v{EP}")
    if fast:
        A(f"v_readfirstlane_b32 s13, v{TAG}"); A("s_sub_u32 s14, 0, s13"); A("s_subb_u32 s15, 0, s13")
    wave_red("v_add_f32", T0 + 8)
    A(f"v_mul_f32 v{T0+8}, 0x3b000000, v{T0+8}")
    A(f"v_readlane_b32 s51, v{T0+8}, 63")
    for k in range(8): A(f"v_subrev_f32 v{T0+k}, s51, v{T0+k}")
    A(f"v_mul_f32 v{T0+9}, v{T0}, v{T0}"); A(f"v_mul_f32 v{T0+10}, v{T0+1}, v{T0+1}")
    for k in range(2, 8, 2):
        A(f"v_fmac_f32 v{T0+9}, v{T0+k}, v{T0+k}"); A(f"v_fmac_f32 v{T0+10}, v{T0+k+1}, v{T0+k+1}")
    A(f"v_add_f32 v{T0+9}, v{T0+9}, v{T0+10}")
    rbf(T0 + 8)
    wave_red("v_add_f32", T0 + 9)
    A(f"v_mul_f32 v{T0+9}, 0x3b000000, v{T0+9}")
    rbf(T0 + 9)
    A(f"v_add_f32 v{T0+9}, 0x3727c5ac, v{T0+9}")
    rbf(T0 + 9)
    A(f"v_sqrt_f32 v{T0+9}, v{T0+9}")
    A(f"v_readlane_b32 s51, v{T0+8}, 63")
    rbf(T0 + 9)
    A(f"v_lshlrev_b32 v{XR}, 16, v{XR}")
    A(f"v_readlane_b32 s62, v{T0+9}, 63")
    A(f"v_subrev_f32 v{XR}, s51, v{XR}")
    rbf(XR)
    A(f"v_rcp_f32 v{T0+10}, s62")
    A(f"v_mul_f32 v{T0+11}, v{XR}, v{T0+10}")
    A(f"v_fma_f32 v{T0+12}, -v{T0+11}, s62, v{XR}")
    A(f"v_fmac_f32 v{T0+11}, v{T0+12}, v{T0+10}")
    A(f"v_cvt_pk_bf16_f32 v{PD}, v{T0+11}, v{T0+11}")
    stamp("ln")
    abuild(AB, PD, M0, 0)
    for n in range(16):
        ab = AB + 4 * (n & 1)
        if n < 15: abuild(AB + 4 * ((n + 1) & 1), PD, M0, n + 1)
        A(f"s_waitcnt vmcnt({30-2*n})")
        mfma(DQ, ab, WQ + 4 * n, n == 0); mfma(DG, ab, GU + 4 * n, n == 0)
    A("s_lshl_b32 s48, s4, 13"); A("s_add_u32 s49, s48, 0x1000")
    A(f"v_lshrrev_b32 v{T0+3}, 1, v{OUTA}")
    for k in range(4): A(f"v_cndmask_b32 v{DQ+k}, v{DQ+k}, v{DG+k}, s[68:69]")
    tag(range(DQ, DQ + 4))
    if "Ast" not in skip.split(): A(f"buffer_store_dwordx4 v[{DQ}:{DQ+3}], v{L16}, s[40:43], s67 offen {'' if 'Aplain' in skip.split() else 'sc1'}")
    stamp("apub")
    def a_loads():
        for k in range(8):
            if "Ald" not in skip.split(): A(f"buffer_load_dwordx4 v[{WQ+4*k}:{WQ+4*k+3}], v{L16}, s[40:43], s{48 + k // 4} offen{off((k&3)*1024)} sc1")
    poll("pollA", a_loads, range(WQ, WQ + 32), T0, asleep)
    stamp("aseen")
    untag(range(WQ, WQ + 32))
    for k in range(4):
        A(f"v_add_f32 v{WQ+k}, v{WQ+k}, v{WQ+4+k}"); A(f"v_add_f32 v{WQ+8+k}, v{WQ+8+k}, v{WQ+12+k}")
        A(f"v_add_f32 v{WQ+16+k}, v{WQ+16+k}, v{WQ+20+k}"); A(f"v_add_f32 v{WQ+24+k}, v{WQ+24+k}, v{WQ+28+k}")
    for k in range(4):
        A(f"v_add_f32 v{WQ+k}, v{WQ+k}, v{WQ+8+k}"); A(f"v_add_f32 v{WQ+16+k}, v{WQ+16+k}, v{WQ+24+k}")
    for k in range(4): A(f"v_add_f32 v{WQ+k}, v{WQ+k}, v{WQ+16+k}")
    A(f"v_cvt_pk_bf16_f32 v{T0+4}, v{WQ}, v{WQ+1}"); A(f"v_cvt_pk_bf16_f32 v{T0+5}, v{WQ+2}, v{WQ+3}")
    A(f"v_mov_b32 v{T0+6}, 0"); A(f"v_mov_b32 v{T0+7}, 1")
    A("s_mov_b32 exec_hi, 0")
    A(f"ds_write_b64 v{T0+3}, v[{T0+4}:{T0+5}] offset:{LQ}")
    A(f"ds_write_b32 v{T0+6}, v{T0+7} offset:{LQF}")
    A("s_mov_b64 exec, -1")
    stamp("qdone")
    A("s_setprio 0")
    A("s_mul_i32 s48, s59, 24")
    A(f"v_mul_u32_u24 v{T0}, 6, v{G}"); A(f"v_add_u32 v{T0}, s48, v{T0}")
    A("s_lshl_b32 s48, s57, 3"); A("s_lshl_b32 s49, s56, 3"); A("s_lshl_b32 s72, s58, 8")
    A(f"v_lshlrev_b32 v{T0+2}, 4, v{J}")
    for n in range(6):
        A(f"v_add_u32 v{T0+3}, {n}, v{T0}")
        A(f"v_cmp_gt_u32 vcc, s48, v{T0+3}")
        A(f"v_add_u32 v{T0+3}, s49, v{T0+3}")
        A(f"v_lshl_add_u32 v{T0+3}, v{T0+3}, 10, v{T0+2}")
        A(f"v_mov_b32 v{WDA}, 0x7ffffff0")
        A(f"v_cndmask_b32 v{WDA}, v{WDA}, v{T0+3}, vcc")
        if "D" not in skip.split(): A(f"buffer_load_dwordx4 v[{WD+4*n}:{WD+4*n+3}], v{WDA}, s[28:31], s72 offen {wflags}")
    for k in range(4): rbf(WQ + k)
    for k in range(4): A(f"v_mov_b32_dpp v{T0+4+k}, v{WQ+k} row_ror:8 row_mask:0xf bank_mask:0xf")
    for k in range(4): A(f"v_mul_f32 v{WQ+k}, 0xbfb8aa3b, v{WQ+k}")
    for k in range(4): A(f"v_exp_f32 v{WQ+k}, v{WQ+k}")
    for k in range(4): A(f"v_add_f32 v{WQ+k}, 1.0, v{WQ+k}")
    for k in range(4): A(f"v_rcp_f32 v{WQ+k}, v{WQ+k}")
    for k in range(4): rbf(WQ + k)
    for k in range(4): A(f"v_mul_f32 v{WQ+k}, v{WQ+k}, v{T0+4+k}")
    A(f"v_cmp_gt_u32 vcc, s57, v{J}")
    for k in range(4): A(f"v_cvt_pk_bf16_f32 v{WQ+k}, v{WQ+k}, v{WQ+k}")
    for k in range(4): A(f"v_cndmask_b32 v{WQ+k}, 0, v{WQ+k}, vcc")
    A("s_mov_b32 exec_lo, 0"); A("s_mov_b32 exec_hi, 0x00ff00ff")
    A(f"ds_write_b128 v{OUTA}, v[{WQ}:{WQ+3}] offset:{LH}")
    A("s_mov_b64 exec, -1")
    A(f"v_add_lshl_u32 v{T0+1}, v{T0}, v{J}, 2")
    A("s_waitcnt lgkmcnt(0)")
    A(f"ds_read_b32 v{PH}, v{T0+1} offset:{LH}")
    A(f"v_lshl_add_u32 v{WOA}, v{G}, 14, v{T0+2}")
    A("s_lshl_b32 s71, s4, 17"); A("s_lshl_b32 s48, s59, 16"); A("s_add_u32 s71, s71, s48"); A("s_add_u32 s71, s71, s72")
    A(f"v_and_b32 v{T0+3}, 3, v0"); A(f"v_lshl_add_u32 v{T0+4}, v{T0+3}, 2, v{G}")
    A("s_lshl_b32 s48, s4, 4"); A(f"v_add_lshl_u32 v{XF}, v{T0+4}, s48, 1")
    A(f"v_lshrrev_b32 v{RA}, 2, v0"); A(f"v_lshlrev_b32 v{RA}, 9, v{RA}"); A(f"v_lshl_add_u32 v{RA}, v{T0+3}, 4, v{RA}")
    A("s_and_b32 s48, s4, 7"); A("s_lshl_b32 s49, s48, 6"); A("s_lshr_b32 s73, s4, 3"); A("s_lshl_b32 s73, s73, 15"); A("s_add_u32 s73, s73, s49")
    if mapx: A("s_sub_u32 s36, s5, s48")
    else: A("s_mov_b32 s36, s5")
    A(f"buffer_load_ushort v{XV}, v{XF}, s[16:19], 0 offen")
    A("s_lshl_b32 s48, s59, 8"); A(f"v_lshl_add_u32 v{OGA}, v0, 2, s48")
    A("s_lshl_b32 s78, s4, 12"); A(f"s_add_u32 s78, s78, {WS_O}")
    A("s_waitcnt lgkmcnt(0)")
    abuild(AB, PH, M0, 0)
    for n in range(6):
        if n < 5: abuild(AB + 4 * ((n + 1) & 1), PH, M0, n + 1)
        A(f"s_waitcnt vmcnt({6-n})")
        mfma(DG, AB + 4 * (n & 1), WD + 4 * n, n == 0)
    tag(range(DG, DG + 4))
    A("s_mov_b32 exec_hi, 0")
    if "Yst" not in skip.split(): A(f"buffer_store_dwordx4 v[{DG}:{DG+3}], v{OUTA}, s[40:43], s65 offen sc1")
    A("s_mov_b64 exec, -1")
    stamp("ypub")
    A(f"v_and_b32 v{T0}, 3, v0"); A(f"v_lshlrev_b32 v{T0}, 3, v{T0}")
    A(f"s_mov_b32 s70, {SPIN * 8}")
    A("L_pollML:")
    A(f"s_sleep {lsleep}")
    A(f"ds_read_b64 v[{T0+2}:{T0+3}], v{T0} offset:{LML}")
    A("s_sub_u32 s70, s70, 1"); A("s_cbranch_scc1 L_pollML_done")
    A("s_waitcnt lgkmcnt(0)")
    A(f"v_cmp_eq_u32 vcc, -1, v{T0+3}")
    A("s_nop 1")
    A("s_cbranch_vccnz L_pollML")
    A("L_pollML_done:")
    stamp("ml")
    dpp("v_max_f32", T0 + 4, T0 + 2, "quad_perm:[1,0,3,2]"); dpp("v_max_f32", T0 + 4, T0 + 4, "quad_perm:[2,3,0,1]")
    A(f"v_sub_f32 v{T0+5}, v{T0+2}, v{T0+4}"); A(f"v_mul_f32 v{T0+5}, {LOG2E}, v{T0+5}"); A(f"v_exp_f32 v{T0+5}, v{T0+5}")
    A(f"v_mul_f32 v{T0+5}, v{T0+5}, v{T0+3}")
    dpp("v_add_f32", T0 + 5, T0 + 5, "quad_perm:[1,0,3,2]"); dpp("v_add_f32", T0 + 5, T0 + 5, "quad_perm:[2,3,0,1]")
    if steal:
        A(f"v_bfe_u32 v{T0+6}, v0, 2, 2"); A(f"v_lshlrev_b32 v{T0+6}, 3, v{T0+6}")
        A(f"ds_read_b32 v{T0+7}, v{T0+6} offset:{LML}")
        A(f"ds_read_b128 v[{T0+8}:{T0+11}], v{L16} offset:{LP}")
        A("s_lshl_b32 s51, s6, 10"); A(f"s_add_u32 s51, s51, {WS_P}")
        A("s_waitcnt lgkmcnt(0)")
        A(f"v_sub_f32 v{T0+7}, v{T0+7}, v{T0+4}"); A(f"v_mul_f32 v{T0+7}, {LOG2E}, v{T0+7}"); A(f"v_exp_f32 v{T0+7}, v{T0+7}")
        for k in range(4): A(f"v_mul_f32 v{T0+8+k}, v{T0+8+k}, v{T0+7}")
        tag(range(T0 + 8, T0 + 12))
        A(f"buffer_store_dwordx4 v[{T0+8}:{T0+11}], v{L16}, s[40:43], s51 offen sc1")
    tag((T0 + 4, T0 + 5))
    if local:
        A("s_getreg_b32 s37, hwreg(HW_REG_XCC_ID, 0, 4)"); A("s_lshl_b32 s37, s37, 10")
        A(f"v_or_b32 v{T0+4}, s37, v{T0+4}")
    A(f"v_mov_b32 v{T0+1}, 0")
    A("s_mov_b64 exec, 1")
    if "Mst" not in skip.split(): A(f"buffer_store_dwordx2 v[{T0+4}:{T0+5}], v{T0+1}, s[40:43], s66 offen {'' if 'Mplain' in skip.split() else 'sc1'}")
    A("s_mov_b64 exec, -1")
    A(f"v_and_b32 v{T0+1}, 7, v0"); A(f"v_lshlrev_b32 v{T0+1}, {mlstr}, v{T0+1}")
    A(f"s_lshl_b32 s48, s4, {mlstr + 3}"); A(f"s_add_u32 s48, s48, {WS_ML}")
    if mlat:
        A(f"v_mov_b32 v{T0+8}, 0")
        A(f"s_mov_b32 s70, {SPIN * 8}")
        A("L_pollM:")
        A(f"s_sleep {max(lsleep, 4)}")
        A(f"ds_read_b128 v[{T0+4}:{T0+7}], v{T0+8} offset:{LPROG}")
        A("s_sub_u32 s70, s70, 1"); A("s_cbranch_scc1 L_pollM_done")
        A("s_waitcnt lgkmcnt(0)")
        A(f"v_or3_b32 v{T0+4}, v{T0+4}, v{T0+5}, v{T0+6}"); A(f"v_or_b32 v{T0+4}, v{T0+4}, v{T0+7}")
        A(f"v_cmp_eq_u32 vcc, 0, v{T0+4}")
        A("s_nop 1")
        A("s_cbranch_vccnz L_pollM")
        A("L_pollM_done:")
    poll("pollML2", lambda: A(f"buffer_load_dwordx2 v[{T0+4}:{T0+5}], v{T0+1}, s[40:43], s48 offen sc1"), (T0 + 4, T0 + 5), T0 + 6, psleep)
    if local:
        A(f"v_and_b32 v{T0+6}, 0x3c00, v{T0+4}"); A(f"v_cmp_ne_u32 vcc, s37, v{T0+6}")
        A("s_nop 1"); A("s_or_b32 s37, vcc_lo, vcc_hi")
    A(f"v_and_b32 v{T0+4}, 0xffff0000, v{T0+4}"); untag((T0 + 5,))
    A(f"v_lshlrev_b32 v{XV}, 16, v{XV}")
    for c in ("quad_perm:[1,0,3,2]",): dpp("v_max_f32", T0 + 6, T0 + 4, c)
    for c in ("quad_perm:[2,3,0,1]", "row_half_mirror"): dpp("v_max_f32", T0 + 6, T0 + 6, c)
    A(f"v_sub_f32 v{T0+4}, v{T0+4}, v{T0+6}"); A(f"v_sub_f32 v{T0+2}, v{T0+2}, v{T0+6}")
    A(f"v_mul_f32 v{T0+4}, {LOG2E}, v{T0+4}"); A(f"v_mul_f32 v{T0+2}, {LOG2E}, v{T0+2}")
    A(f"v_exp_f32 v{T0+4}, v{T0+4}"); A(f"v_exp_f32 v{T0+2}, v{T0+2}")
    A(f"v_mul_f32 v{T0+5}, v{T0+4}, v{T0+5}")
    for c in ("quad_perm:[1,0,3,2]", "quad_perm:[2,3,0,1]", "row_half_mirror"): dpp("v_add_f32", T0 + 5, T0 + 5, c)
    A(f"v_rcp_f32 v{T0+5}, v{T0+5}")
    A(f"v_mul_f32 v{T0+2}, v{T0+2}, v{T0+5}")
    if not steal:
        for w in range(4): A(f"v_readlane_b32 s{74+w}, v{T0+2}, {w}")
        stamp("mlx")
    else:
        A(f"v_mul_f32 v{T0+4}, v{T0+4}, v{T0+5}")
        A(f"v_lshrrev_b32 v{T0}, 1, v{T0}")
        A(f"ds_write_b32 v{T0}, v{T0+2} offset:{LF}")
        stamp("mlx")
        A("s_lshl_b32 s48, s4, 13"); A(f"s_add_u32 s48, s48, {WS_P}"); A("s_add_u32 s49, s48, 0x1000")
        poll("pollPT", a_loads, range(WQ, WQ + 32), T0 + 6, 0)
        untag(range(WQ, WQ + 32))
        A(f"v_lshrrev_b32 v{T0+6}, 3, v0"); A(f"v_and_b32 v{T0+7}, 7, v0"); A(f"v_lshlrev_b32 v{T0+6}, 10, v{T0+6}")
        A(f"v_lshl_add_u32 v{T0+6}, v{T0+7}, 4, v{T0+6}")
        if np_ < 8:
            A(f"v_subrev_u32 v{T0+6}, {(8 - np_) * 1024}, v{T0+6}")
            m = (~((1 << (8 * (8 - np_))) - 1)) & (2**64 - 1)
            A(f"s_mov_b32 exec_lo, {hex(m & 0xffffffff)}"); A(f"s_mov_b32 exec_hi, {hex(m >> 32)}")
        for k in range(8):
            A(f"v_readlane_b32 s51, v{T0+4}, {k}")
            for r in range(4): A(f"v_mul_f32 v{WQ+4*k+r}, s51, v{WQ+4*k+r}")
            for r in range(4): A(f"v_cvt_pk_bf16_f32 v{WQ+4*k+r}, v{WQ+4*k+r}, v{WQ+4*k+r}")
            A(f"ds_write_b128 v{T0+6}, v[{WQ+4*k}:{WQ+4*k+3}] offset:{LPT + 128*k}")
        A("s_mov_b64 exec, -1")
        A(f"v_mov_b32 v{T0+6}, 0"); A(f"v_mov_b32 v{T0+7}, 1")
        A(f"ds_write_b32 v{T0+6}, v{T0+7} offset:{LPF}")
        stamp("table")
    def reduce(base):
        untag(range(base, base + 16))
        for k in range(4):
            A(f"v_add_f32 v{base+k}, v{base+k}, v{base+4+k}"); A(f"v_add_f32 v{base+8+k}, v{base+8+k}, v{base+12+k}")
        for k in range(4): A(f"v_add_f32 v{T0+4+k}, v{base+k}, v{base+8+k}")
    def reduce2():
        b = T0 + 4
        A(f"v_permlane32_swap_b32 v{b}, v{b+2}"); A(f"v_permlane32_swap_b32 v{b+1}, v{b+3}")
        A(f"v_add_f32 v{b}, v{b}, v{b+2}"); A(f"v_add_f32 v{b+1}, v{b+1}, v{b+3}")
        A(f"v_permlane16_swap_b32 v{b}, v{b+1}")
        A(f"v_add_f32 v{b}, v{b}, v{b+1}")
        dpp("v_add_f32", b, b, "row_ror:4"); dpp("v_add_f32", b, b, "row_ror:8")
        rbf(b)
    def gather(sregs):
        def f(base=PS):
            for k in range(4): A(f"buffer_load_dwordx4 v[{base+4*k}:{base+4*k+3}], v{RA}, s[40:43], s{sregs[k]} offen sc1")
        return f
    A("s_cmp_lg_u32 s36, 0"); A("s_cbranch_scc1 L_noY")
    A(f"s_add_u32 s48, s73, {WS_Y}")
    A(f"s_add_u32 s49, s48, 8192"); A(f"s_add_u32 s56, s48, 16384"); A(f"s_add_u32 s57, s48, 24576")
    poll("pollY", gather((48, 49, 56, 57)), range(PS, PS + 16), T0, psleep)
    reduce(PS); reduce2()
    A(f"v_mul_f32 v{T0}, 0xbfb8aa3b, v{T0+4}"); A(f"v_exp_f32 v{T0}, v{T0}"); A(f"v_add_f32 v{T0}, 1.0, v{T0}")
    A(f"v_rcp_f32 v{T0}, v{T0}"); A(f"v_mul_f32 v{GV}, v{T0+4}, v{T0}")
    rbf(GV)
    A("s_cmp_lg_u32 s2, 0"); A("s_cbranch_scc1 L_noY")
    A("s_mov_b64 exec, 1")
    A(f"v_mov_b32 v{T0}, 0")
    A(f"buffer_store_dword v{EP}, v{T0}, s[40:43], s79 offen sc1")
    A("s_mov_b64 exec, -1")
    A("L_noY:")
    A(f"s_add_u32 s48, s73, {WS_S}")
    A(f"s_add_u32 s49, s48, 8192"); A(f"s_add_u32 s56, s48, 16384"); A(f"s_add_u32 s57, s48, 24576")
    A(f"v_mov_b32 v{T0}, 0")
    A(f"s_mov_b32 s70, {SPIN * 8}")
    A("L_pollP:")
    A(f"s_sleep {lsleep}")
    if steal or bal or mlat: A(f"ds_read_b32 v{T0+4}, v{T0} offset:{LGO}")
    else: A(f"ds_read_b128 v[{T0+4}:{T0+7}], v{T0} offset:{LPROG}")
    A("s_sub_u32 s70, s70, 1"); A("s_cbranch_scc1 L_pollP_done")
    A("s_waitcnt lgkmcnt(0)")
    if not (steal or bal or mlat):
        A(f"v_or3_b32 v{T0+4}, v{T0+4}, v{T0+5}, v{T0+6}"); A(f"v_or_b32 v{T0+4}, v{T0+4}, v{T0+7}")
    A(f"v_cmp_eq_u32 vcc, 0, v{T0+4}")
    A("s_nop 1")
    A("s_cbranch_vccnz L_pollP")
    A("L_pollP_done:")
    A("s_setprio 3")
    for n in range(16):
        A(f"buffer_load_dwordx4 v[{WO+4*n}:{WO+4*n+3}], v{WOA}, s[24:27], s71 offen{off((n&3)*1024)} {wflags}")
        if n & 3 == 3 and n < 15: A("s_addk_i32 s71, 0x1000")
    stamp("wiss")
    A("s_mov_b32 exec_hi, 0")
    A("s_barrier")
    for w in range(4): A(f"ds_read_b128 v[{T0+4*w}:{T0+4*w+3}], v{OUTA} offset:{LO+512*w}")
    stamp("bar2")
    for w in range(4):
        A(f"s_waitcnt lgkmcnt({3-w})" if not (stamps or probe) else "s_waitcnt lgkmcnt(0)")
        if fast and not steal:
            p = 74 + (w & 2); sel = "op_sel:[0,1] op_sel_hi:[1,1]" if w & 1 else "op_sel_hi:[1,0]"
            for k in (0, 2):
                if w == 0: A(f"v_pk_mul_f32 v[{DQ+k}:{DQ+k+1}], v[{T0+k}:{T0+k+1}], s[{p}:{p+1}] {sel}")
                else:
                    sel3 = "op_sel:[0,1,0] op_sel_hi:[1,1,1]" if w & 1 else "op_sel_hi:[1,0,1]"
                    A(f"v_pk_fma_f32 v[{DQ+k}:{DQ+k+1}], v[{T0+4*w+k}:{T0+4*w+k+1}], s[{p}:{p+1}], v[{DQ+k}:{DQ+k+1}] {sel3}")
            continue
        for k in range(4):
            if steal:
                if w == 1: A(f"v_add_f32 v{DQ+k}, v{T0+k}, v{T0+4+k}")
                elif w > 1: A(f"v_add_f32 v{DQ+k}, v{DQ+k}, v{T0+4*w+k}")
            elif w == 0: A(f"v_mul_f32 v{DQ+k}, s74, v{T0+k}")
            else: A(f"v_fmac_f32 v{DQ+k}, s{74+w}, v{T0+4*w+k}")
    tag(range(DQ, DQ + 4))
    if local:
        A("s_cmp_lg_u32 s37, 0"); A("s_cbranch_scc1 L_far")
        A(f"buffer_store_dwordx4 v[{DQ}:{DQ+3}], v{OUTA}, s[40:43], s63 offen")
        A("s_branch L_near")
        A("L_far:")
    A(f"buffer_store_dwordx4 v[{DQ}:{DQ+3}], v{OUTA}, s[40:43], s63 offen sc1")
    if local: A("L_near:")
    A("s_mov_b64 exec, -1")
    stamp("opub")
    def o_loads(base):
        for k in range(8): A(f"buffer_load_dword v{base+k}, v{OGA}, s[40:43], s78 offen{off(k*512)} sc1")
    def o_finish(b):
        if fast:
            pkadd(b, b, b + 2); pkadd(b + 4, b + 4, b + 6); pkadd(b, b, b + 4)
            A(f"v_add_f32 v{T0+3}, v{b}, v{b+1}")
            return
        untag(range(b, b + 8))
        for k in range(4): A(f"v_add_f32 v{b+2*k}, v{b+2*k}, v{b+2*k+1}")
        A(f"v_add_f32 v{b}, v{b}, v{b+2}"); A(f"v_add_f32 v{b+4}, v{b+4}, v{b+6}")
        A(f"v_add_f32 v{T0+3}, v{b}, v{b+4}")
    poll_pipe("pollO", r1, d1, 8, 8, o_loads, o_finish)
    stamp("oseen")
    A(f"v_cvt_pk_bf16_f32 v{PD}, v{T0+3}, v{T0+3}")
    abuild(AB, PD, M0, 0)
    for n in range(16):
        if n < 15: abuild(AB + 4 * ((n + 1) & 1), PD, M0, n + 1)
        mfma(DQ, AB + 4 * (n & 1), WO + 4 * n, n == 0)
    A("s_mov_b32 exec_hi, 0")
    tag(range(DQ, DQ + 4))
    A(f"buffer_store_dwordx4 v[{DQ}:{DQ+3}], v{OUTA}, s[40:43], s64 offen sc1")
    A("s_mov_b64 exec, -1")
    stamp("spub")
    A("s_cmp_lg_u32 s36, 0"); A("s_cbranch_scc1 L_sdone")
    PS = 64
    def s_finish(b):
        for k in (0, 2): pkadd(b + k, b + k, b + 4 + k); pkadd(b + 8 + k, b + 8 + k, b + 12 + k)
        for k in (0, 2): pkadd(T0 + 4 + k, b + k, b + 8 + k)
    poll_pipe("pollS", r2, d2, 16, 4, gather((48, 49, 56, 57)), s_finish if fast else reduce)
    stamp("sseen")
    reduce2()
    A(f"v_mul_f32 v{T0+4}, v{T0+4}, v{GV}")
    rbf(T0 + 4)
    A(f"v_add_f32 v{T0+4}, v{T0+4}, v{XV}")
    A(f"v_cvt_pk_bf16_f32 v{T0+4}, v{T0+4}, v{T0+4}")
    A("s_mov_b32 exec_lo, 0x000f000f"); A("s_mov_b32 exec_hi, 0x000f000f")
    A(f"buffer_store_short v{T0+4}, v{XF}, s[32:35], 0 offen {oflags}")
    A("L_sdone:")
    if stamps or probe: A("s_waitcnt vmcnt(0)")
    stamp("end")
    if probe:
        A("s_cmp_lg_u32 s2, 0"); A("s_cbranch_scc1 L_end")
        A("s_memrealtime s[84:85]"); A("s_waitcnt lgkmcnt(0)")
        A("s_sub_u32 s82, s82, s80"); A(f"s_mul_i32 s82, s82, {probek}"); A("s_min_u32 s82, s82, 100000")
        A("L_probe:")
        A("s_memrealtime s[86:87]"); A("s_waitcnt lgkmcnt(0)")
        A("s_sub_u32 s86, s86, s84"); A("s_cmp_lt_u32 s86, s82"); A("s_cbranch_scc1 L_probe")
    dump_stamps()
    A("L_end:")
    A("s_endpgm")
    A.L += stream_body

    body = A.fix()
    hdr = open("cdna_kernels/" + NAME + ".s.ref").read().split("\n")
    hdr = [l for l in hdr if l.startswith(";") and "@launch" not in l and "Override" not in l and "grid=ceil" not in l]
    out = hdr + [f"; @launch grid=(256,1,1) block=({384 if steal or bal else 320},1,1) lds={12288 if steal else 3072}",
                 '.amdgcn_target "amdgcn-amd-amdhsa--gfx950"', ".text", f".globl {KN}", ".p2align 8", f".type {KN},@function"]
    out += [l if l.endswith(":") else "    " + l for l in body]
    nv = max(48 + 4 * nslot + (4 if bal else 0), 224)
    out += ['.section .rodata,"a"', ".p2align 6", f".amdhsa_kernel {KN}", f"  .amdhsa_next_free_vgpr {nv}",
            "  .amdhsa_next_free_sgpr 102", f"  .amdhsa_accum_offset {nv}", "  .amdhsa_group_segment_fixed_size 0",
            "  .amdhsa_kernarg_size 96", "  .amdhsa_user_sgpr_count 2", "  .amdhsa_user_sgpr_kernarg_segment_ptr 1",
            "  .amdhsa_system_sgpr_workgroup_id_x 1", ".end_amdhsa_kernel"]
    return "\n".join(out) + "\n", stamp_list

if __name__ == "__main__":
    kw = eval("dict(" + (sys.argv[2] if len(sys.argv) > 2 else "") + ")")
    open(sys.argv[1], "w").write(gen(**kw)[0])
```

```python
import sys
from asmlib import Asm
NAME = "recurrent_scan__mha_block_cached__glu_gated_glu__decode"
KN = NAME + "_kernel"

WS_A  = 0x00000
WS_O  = 0x40000
WS_S  = 0x60000
WS_Y  = 0x80000
WS_ML = 0xA0000
WS_E  = 0xB0000
WS_C  = 0xB8000
WS_B  = 0x200000
WS_P  = 0xC0000
WS_ST = 0x100000
WS_BYTES = 268435456
LQ, LML, LPROG, LQF, LH, LO = 0, 256, 288, 304, 320, 1024
LGO, LPF, LLV = 308, 312, 316
LF, LREC, LP, LPT = 576, 640, 3072, 4096
END = 0x7fffffff
LOG2E = "0x3fb8aa3b"
SCALE = "0x3db504f3"
SPIN = 1 << 17

SETS = {"early": "bar0 issued x ln apub aseen qdone ypub ml mlx end qready kdone vdone",
        "prog": "bar0 i16 i32 i48 i64 i80 i96 i112 i127 vdone apub aseen mlx end",
        "clk": "bar0 clk0 i64 clk1 vdone clk2 end",
        "steal2": "mlx table end i96 i102 i111 rec0 rec1 rec2 static tready vdone",
        "steal": "mlx table wiss bar2 opub oseen spub sseen end kdone static tready vdone qdone issued qready",
        "boot": "karg pre far bar0 i8 i12 skarg sx s8 s16 issued x ln",
        "late": "qdone mlx wiss bar2 opub oseen spub sseen end issued qready kdone vdone"}

def gen(nslot=48, npre=4, burst=4, every=6, cap=6, dist=None, plate=1, stamps=False, kvflags="nt", wflags="nt", gflags="",
        asleep=30, lsleep=1, psleep=4, mapx=False, r1=3, r2=3, d1=2, d2=2, local=False, skip="", probe=None, probek=8, touch=False, bar0=16, scap=0, amap=False, gap=0, steal=False, np_=8, ah=5, golate=2, noatom=False, aflags='sc0 sc1', capl=0, capsel=1, capfrom=0, bal=False, tk=4, th=4, lv=(5, 6, 7), bfrom=12, bto=108, bgrp=3, bstr=2, mlstr=4, mlat=None, oflags='', fast=False, pre='', preflags='', rnd='', sched=None, pat=None, ph=(0, 0, 0)):
    A = Asm()
    stamp_list = []
    role = ["S"]
    if bal: cap = lv[2]
    if dist is None: dist = cap
    def stamp(name):
        if probe and role[0] == "S" and name == probe:
            A("s_memrealtime s[82:83]")
        if stamps and name in SETS[stamps].split() and not (stamps in ("late", "steal") and role[0] == "S" and name == "issued"):
            k = len([x for x in stamp_list if x[0] == role[0]])
            stamp_list.append((role[0], name))
            A(f"{'s_memtime' if name.startswith('clk') else 's_memrealtime'} s[{80+2*k}:{81+2*k}]")
    def rbf(r):
        A(f"v_cvt_pk_bf16_f32 v{r}, v{r}, v{r}")
        A(f"v_and_b32 v{r}, 0xffff0000, v{r}")
    def masks(m0, t0, t1):
        A(f"v_and_b32 v{t0}, 1, v0")
        A(f"v_lshlrev_b32 v{t0}, 4, v{t0}")
        A(f"v_lshlrev_b32 v{t0}, v{t0}, s50")
        A(f"v_bfe_u32 v{t1}, v0, 1, 2")
        for r in range(4): A(f"v_cmp_eq_u32 s[{84+2*r if not (stamps or probe) else 62+2*r}:{85+2*r if not (stamps or probe) else 63+2*r}], {r}, v{t1}")
        for r in range(4): A(f"v_cndmask_b32 v{m0+r}, 0, v{t0}, s[{84+2*r if not (stamps or probe) else 62+2*r}:{85+2*r if not (stamps or probe) else 63+2*r}]")
    def abuild(a0, p, m0, n):
        for r in range(4):
            A(f"v_and_b32_dpp v{a0+r}, v{p}, v{m0+r} row_newbcast:{n} row_mask:0xf bank_mask:0xf")
    def dpp(op, d, s, ctl, rm="0xf", bm="0xf"):
        A(f"{op}_dpp v{d}, v{s}, v{s} {ctl} row_mask:{rm} bank_mask:{bm}")
    def wave_red(op, v):
        for c in ("quad_perm:[1,0,3,2]", "quad_perm:[2,3,0,1]", "row_half_mirror", "row_mirror"): dpp(op, v, v, c)
        dpp(op, v, v, "row_bcast:15", "0xa"); dpp(op, v, v, "row_bcast:31", "0xc")
    def mfma(d, a, b, first):
        A(f"v_mfma_f32_16x16x32_bf16 v[{d}:{d+3}], v[{a}:{a+3}], v[{b}:{b+3}], {0 if first else f'v[{d}:{d+3}]'}")
    def srd(d, off, nbytes):
        A(f"s_load_dwordx2 s[{d}:{d+1}], s[0:1], {off}")
        A(f"s_mov_b32 s{d+2}, {nbytes}")
        A(f"s_mov_b32 s{d+3}, 0x20000")
    def off(n): return f" offset:{n}" if n else ""
    def dump_stamps():
        if not stamps: return
        mine = [x for x in stamp_list if x[0] == role[0]]
        A("s_mov_b64 exec, -1")
        A("s_waitcnt lgkmcnt(0)")
        for k in range(len(mine)): A(f"v_writelane_b32 v0, s{80+2*k}, {k}")
        A("s_getreg_b32 s48, hwreg(HW_REG_XCC_ID)"); A("v_writelane_b32 v0, s48, 15")
        A("s_getreg_b32 s48, hwreg(HW_REG_HW_ID)"); A("v_writelane_b32 v0, s48, 14")
        A("s_load_dwordx2 s[40:41], s[0:1], 88"); A(f"s_mov_b32 s42, {WS_BYTES}"); A("s_mov_b32 s43, 0x20000")
        A("s_mul_i32 s48, s2, 5"); A("s_add_u32 s48, s48, s3"); A("s_lshl_b32 s48, s48, 6"); A(f"s_add_u32 s48, s48, {WS_ST}")
        A("v_mbcnt_lo_u32_b32 v1, -1, 0"); A("v_lshlrev_b32 v1, 2, v1")
        A("s_mov_b64 exec, 0xffff")
        A("s_waitcnt lgkmcnt(0)")
        A("buffer_store_dword v0, v1, s[40:43], s48 offen")

    A(f"{KN}:")
    if stamps or probe: A("s_memrealtime s[80:81]")
    if fast:
        A("s_load_dwordx2 s[8:9], s[0:1], 8"); A("s_load_dwordx2 s[12:13], s[0:1], 16")
    A("v_lshrrev_b32 v1, 6, v0")
    A("s_cmp_ge_u32 s2, 256")
    A("s_cbranch_scc1 L_end")
    A("v_readfirstlane_b32 s3, v1")
    if mapx:
        A("s_lshr_b32 s4, s2, 3"); A("s_and_b32 s5, s2, 7")
    else:
        A("s_and_b32 s4, s2, 31"); A("s_lshr_b32 s5, s2, 5")
    A("v_and_b32 v0, 63, v0")
    A("s_mov_b32 s50, 0xffff")
    A("s_cmp_eq_u32 s3, 4")
    A("s_cbranch_scc1 L_service")
    if steal or bal:
        A("s_cmp_eq_u32 s3, 5")
        A("s_cbranch_scc1 L_claim")
    nst = 128 - 2 * np_ if steal else 128

    role[0] = "W"; stamp_list.append(("W", "start"))
    VL16, M0, Q0, S0, AB, D0, P0, T0, RING = 1, 2, 6, 10, 14, 22, 26, 42, 48
    LVR, LVA = RING + 4 * nslot, RING + 4 * nslot + 1
    if fast:
        for d in (8, 12): A(f"s_mov_b32 s{d+2}, {64 << 20}"); A(f"s_mov_b32 s{d+3}, 0x20000")
    else:
        srd(8, 8, 64 << 20); srd(12, 16, 64 << 20)
    A("s_lshl_b32 s48, s4, 21"); A("s_lshl_b32 s49, s5, 18"); A("s_add_u32 s48, s48, s49")
    if not pat:
        A("s_lshl_b32 s49, s3, 12"); A("s_add_u32 s48, s48, s49")
        A("s_mov_b32 s49, s48")
        A(f"v_lshlrev_b32 v{VL16}, 4, v0")
    else:
        assert not steal
        sh = {n: 8 + k for k, n in enumerate(pat.split())}
        assert sh["c0"] < sh["c1"] <= 11 and sh["c1"] < sh["c2"] < sh["c3"] < sh["c4"] < sh["c5"] and all(x % 4 == 0 for x in ph)
        CM = sum(1 << sh[f"c{k}"] for k in range(2, 6))
        for k in range(2):
            A(f"s_bfe_u32 s49, s3, {k | (1 << 16)}"); A(f"s_lshl_b32 s49, s49, {sh[f'w{k}']}"); A("s_add_u32 s48, s48, s49")
        A(f"v_and_b32 v{VL16}, 15, v0"); A(f"v_lshlrev_b32 v{VL16}, 4, v{VL16}")
        for k in range(2):
            A(f"v_bfe_u32 v2, v0, {4 + k}, 1"); A(f"v_lshl_add_u32 v{VL16}, v2, {sh[f'g{k}']}, v{VL16}")
        A(f"s_mul_i32 s59, s5, {ph[1]}")
        if ph[0]: A("s_and_b32 s49, s4, 7"); A(f"s_mul_i32 s49, s49, {ph[0]}"); A("s_add_u32 s59, s59, s49")
        if ph[2]: A("s_lshr_b32 s49, s4, 3"); A(f"s_mul_i32 s49, s49, {ph[2]}"); A("s_add_u32 s59, s59, s49")
        A("s_mov_b32 s56, 0")
        for k in range(2, 6):
            A(f"s_bfe_u32 s49, s59, {k | (1 << 16)}"); A(f"s_lshl_b32 s49, s49, {sh[f'c{k}']}"); A("s_add_u32 s56, s56, s49")
        A("s_add_u32 s49, s48, s56")
        A(f"s_mov_b32 s60, {hex(CM)}")
    A("s_waitcnt lgkmcnt(0)")
    stamp("karg")
    issued = [0]; waited = [-1]
    def slot(i): return RING + 4 * (i % nslot)
    extra = [None]
    def wait_for(i):
        if i > waited[0]:
            n = issued[0] - 1 - i + (1 if extra[0] is not None and i < extra[0] else 0)
            A(f"s_waitcnt vmcnt({n})"); waited[0] = i
    def capof(i):
        if not sched: return cap
        c = cap
        for frm, val in sched:
            if i >= frm: c = val
        return c[i % len(c)] if isinstance(c, tuple) else c
    def tick():
        A(f"ds_write_b32 v{T0+4}, v{T0+5} offset:{LPROG}")
        A(f"v_add_u32 v{T0+5}, 1, v{T0+5}")
    def issue():
        i = issued[0]
        ii = i % 64; s = 8 if i < 64 else 12
        if pat:
            if ii % 4 == 0 and i:
                A("s_orn2_b32 s56, s56, s60"); A(f"s_add_u32 s56, s56, {1 << sh['c2']}"); A("s_and_b32 s56, s56, s60"); A("s_add_u32 s49, s48, s56")
        elif i == 64: A("s_mov_b32 s49, s48")
        elif ii % 4 == 0 and i:
            A("s_addk_i32 s49, 0x4000")
        if bal and i >= npre and ii % tk == 0 and bfrom <= i <= bto + tk:
            if i > bfrom:
                A("s_waitcnt lgkmcnt(0)"); A(f"v_readfirstlane_b32 s58, v{LVR}")
                A("s_and_b32 vcc_lo, s58, 2")
            if i <= bto:
                tick(); A(f"ds_read_b32 v{LVR}, v{LVA} offset:{LLV}")
        if bal and i >= npre and ii % 4 == 0: A("s_cmp_eq_u32 s58, 0")
        c_ = capof(i)
        if c_ and i >= c_: wait_for(i - c_)
        if bal and i >= max(npre, lv[0]):
            A(f"s_cbranch_vccnz L_c{i}")
            if i >= lv[1]: A(f"s_waitcnt vmcnt({lv[1] - 1})")
            A(f"s_cbranch_scc1 L_c{i}"); A(f"s_waitcnt vmcnt({lv[0] - 1})"); A(f"L_c{i}:")
        if capl and i >= max(capl, capfrom, npre) and i - capl > waited[0]:
            A(f"s_cbranch_vccnz L_c{i}"); A(f"s_waitcnt vmcnt({capl - 1})"); A(f"L_c{i}:")
        issued[0] += 1
        r = slot(i)
        imm = ((ii & 1) << sh["c0"]) + ((ii >> 1 & 1) << sh["c1"]) if pat else (ii % 4) * 1024
        A(f"buffer_load_dwordx4 v[{r}:{r+3}], v{VL16}, s[{s}:{s+3}], s49 offen{off(imm)} {kvflags}")
        stamp(f"i{i}")
        if steal and i >= nst - 2 * ah and (nst - i) % 2 == 0: tick()
        if i == 64: stamp("clk1")
    for _ in range(npre): issue()
    if touch:
        A(f"buffer_load_dword v{T0+3}, v{VL16}, s[12:15], s48 offen {kvflags}")
        extra[0] = issued[0]
    stamp("pre")
    A("s_branch L_stream")
    stream_at = len(A.L)
    A("L_stream:")
    stamp("far")
    masks(M0, T0, T0 + 1)
    A("s_mov_b32 s52, 0xcccccccc"); A("s_mov_b32 s53, 0xcccccccc")
    A("s_mov_b32 s54, 0xaaaaaaaa"); A("s_mov_b32 s55, 0xaaaaaaaa")
    A(f"v_and_b32 v{T0+2}, 15, v0"); A(f"v_lshlrev_b32 v{T0+2}, 4, v{T0+2}")
    A(f"v_mov_b32 v{T0+4}, s3"); A(f"v_lshlrev_b32 v{T0+4}, 2, v{T0+4}"); A(f"v_mov_b32 v{T0+5}, 1")
    def setlevel():
        if bal:
            A("s_and_b32 vcc_lo, s58, 2"); A("s_mov_b32 vcc_hi, 0"); A("s_cmp_eq_u32 s58, 0")
        if capl:
            A(f"s_and_b32 vcc_lo, s3, {capsel}"); A("s_mov_b32 vcc_hi, 0")
    if bal:
        A("s_mov_b32 s58, 0"); A(f"v_mov_b32 v{LVA}, 0")
    setlevel()
    A("s_barrier")
    stamp("bar0"); stamp("clk0")
    for _ in range(nslot - npre): issue()
    stamp("issued")
    A(f"v_mov_b32 v{T0+1}, 0")
    A(f"s_mov_b32 s57, {SPIN * 8}")
    A("L_pollQ:")
    A(f"ds_read_b32 v{T0}, v{T0+1} offset:{LQF}")
    A(f"ds_read_b128 v[{Q0}:{Q0+3}], v{T0+2} offset:{LQ}")
    A("s_sub_u32 s57, s57, 1"); A("s_cbranch_scc1 L_pollQ_done")
    A("s_waitcnt lgkmcnt(0)")
    A(f"v_cmp_eq_u32 vcc, 0, v{T0}")
    A("s_nop 1")
    A("s_cbranch_vccnz L_pollQ")
    A("L_pollQ_done:")
    setlevel()
    stamp("qready")
    def maybe_issue(i):
        want = max(nslot + min(i + 1, burst + i // every) if i < nslot else 0, min(i + 1 + (max(capof(i + 1 + k) for k in range(13)) if sched else dist), nslot + i + 1))
        while issued[0] < min(nst, want): issue()
    for i in range(64):
        n = i % 16; r = slot(i)
        A(f"v_mov_b32 v{P0+n}, 0")
        wait_for(i)
        for k in range(4): A(f"v_dot2c_f32_bf16 v{P0+n}, v{r+k}, v{Q0+k}")
        maybe_issue(i)
        if n == 15:
            a = i // 16
            for k in range(8):
                dpp("v_add_f32", P0 + k, P0 + k, "row_ror:8", bm="0x3"); dpp("v_add_f32", P0 + k, P0 + k + 8, "row_ror:8", bm="0xc")
            if gap and i >= nslot - 1 and gap > 1: issue()
            for k in range(4):
                dpp("v_add_f32", P0 + k, P0 + k, "row_half_mirror", bm="0x5"); dpp("v_add_f32", P0 + k, P0 + k + 4, "row_half_mirror", bm="0xa")
            for k in range(4): dpp("v_add_f32", P0 + k, P0 + k, "quad_perm:[2,3,0,1]")
            A(f"v_cndmask_b32 v{P0}, v{P0}, v{P0+2}, s[52:53]")
            A(f"v_cndmask_b32 v{P0+1}, v{P0+1}, v{P0+3}, s[52:53]")
            for k in range(2): dpp("v_add_f32", P0 + k, P0 + k, "quad_perm:[1,0,3,2]")
            A(f"v_cndmask_b32 v{S0+a}, v{P0}, v{P0+1}, s[54:55]")
            rbf(S0 + a)
            A(f"v_mul_f32 v{S0+a}, {SCALE}, v{S0+a}")
            rbf(S0 + a)
    stamp("kdone")
    A(f"v_max3_f32 v{T0}, v{S0}, v{S0+1}, v{S0+2}")
    A(f"v_max_f32 v{T0}, v{T0}, v{S0+3}")
    wave_red("v_max_f32", T0)
    if gap: issue()
    A(f"v_readlane_b32 s51, v{T0}, 63")
    for a in range(4): A(f"v_subrev_f32 v{S0+a}, s51, v{S0+a}")
    for a in range(4): A(f"v_mul_f32 v{S0+a}, {LOG2E}, v{S0+a}")
    for a in range(4): A(f"v_exp_f32 v{S0+a}, v{S0+a}")
    A(f"v_add_f32 v{T0+1}, v{S0}, v{S0+1}")
    A(f"v_add_f32 v{T0+3}, v{S0+2}, v{S0+3}")
    A(f"v_add_f32 v{T0+1}, v{T0+1}, v{T0+3}")
    if steal:
        A(f"v_bfe_u32 v{P0}, v0, 2, 2"); A(f"v_and_b32 v{P0+1}, 3, v0"); A(f"v_lshrrev_b32 v{P0+2}, 4, v0")
        A(f"v_lshlrev_b32 v{P0}, 8, v{P0}"); A(f"v_lshl_add_u32 v{P0}, v{P0+1}, 4, v{P0}"); A(f"v_lshl_add_u32 v{P0}, v{P0+2}, 2, v{P0}")
        A(f"v_lshl_add_u32 v{P0}, v{T0+4}, 4, v{P0}")
        A(f"ds_write_b32 v{P0}, v{S0+3} offset:{LP}")
    for a in range(4): A(f"v_cvt_pk_bf16_f32 v{S0+a}, v{S0+a}, v{S0+a}")
    abuild(AB, S0, M0, 0)
    if gap: issue()
    wave_red("v_add_f32", T0 + 1)
    A(f"v_lshlrev_b32 v{T0+3}, 1, v{T0+4}")
    A("s_mov_b32 exec_lo, 0"); A("s_mov_b32 exec_hi, 0x80000000")
    A(f"ds_write_b64 v{T0+3}, v[{T0}:{T0+1}] offset:{LML}")
    A("s_mov_b64 exec, -1")
    A(f"v_and_b32 v{T0}, 15, v0"); A(f"v_lshlrev_b32 v{T0}, 5, v{T0}")
    A(f"v_and_b32 v{T0+2}, 16, v0"); A(f"v_add_u32 v{T0}, v{T0}, v{T0+2}")
    A(f"v_lshl_add_u32 v{T0}, v{T0+4}, 7, v{T0}")
    if mlat: A(f"v_mov_b32 v{T0+1}, 0")
    def procv(i):
        wait_for(i)
        mfma(D0, AB + 4 * (i & 1), slot(i), i == 64)
        if i < nst - 1: abuild(AB + 4 * ((i + 1) & 1), S0 + (i + 1 - 64) // 16, M0, (i + 1) % 16)
    if not steal:
        for i in range(64, 128):
            procv(i); maybe_issue(i)
            if i == mlat: A(f"ds_write_b32 v{T0+4}, v{T0+5} offset:{LPROG}")
            if i == 127 - plate:
                if mlat: A(f"ds_write_b32 v{T0+1}, v{T0+5} offset:{LGO}")
                elif bal: A(f"ds_write_b32 v{LVA}, v{T0+5} offset:{LGO}")
                else: A(f"ds_write_b32 v{T0+4}, v{T0+5} offset:{LPROG}")
    else:
        assert dist == 6 and cap == 6
        PR, RECA, PTA = P0, P0 + 4, P0 + 5
        UB = [slot(nst + 2 * k) for k in range(4)]
        assert UB[3] + 8 <= RING + 4 * nslot and UB == [UB[0] + 8 * k for k in range(4)]
        A(f"v_mov_b32 v{RECA}, {LREC}")
        A(f"v_and_b32 v{PTA}, 1, v0"); A(f"v_lshrrev_b32 v{P0+6}, 4, v0"); A(f"v_lshl_add_u32 v{PTA}, v{PTA}, 2, v{P0+6}")
        A(f"v_lshlrev_b32 v{PTA}, 2, v{PTA}"); A(f"v_lshl_add_u32 v{PTA}, v{T0+4}, 3, v{PTA}")
        A("s_lshl_b32 s58, s4, 21"); A("s_lshl_b32 s59, s3, 11"); A("s_add_u32 s58, s58, s59"); A(f"s_add_u32 s58, s58, {(1024 - 32 * np_) * 256}")
        A("s_mov_b32 s59, 0x10000")
        A("s_mov_b32 s68, 0x7fff0000")
        for i in range(64, nst - 6):
            procv(i); maybe_issue(i)
        assert issued[0] == nst
        lab = [0]
        def fetch(k):
            n = lab[0]; lab[0] += 1
            tick()
            A("s_mov_b32 s64, s68")
            A("s_cmp_lt_u32 s59, 4"); A(f"s_cbranch_scc1 L_go{n}")
            A(f"s_mov_b32 s57, {SPIN * 8}")
            A(f"L_rec{n}:")
            A(f"ds_read_b32 v{P0+6}, v{RECA}")
            A("s_sub_u32 s57, s57, 1"); A(f"s_cbranch_scc1 L_stop{n}")
            A("s_waitcnt lgkmcnt(0)")
            A(f"v_readfirstlane_b32 s65, v{P0+6}")
            A("s_cmp_eq_u32 s65, -1"); A(f"s_cbranch_scc1 L_rec{n}")
            A(f"s_cmp_lt_u32 s65, {8 * np_}"); A(f"s_cbranch_scc1 L_unit{n}")
            A(f"L_stop{n}:")
            A("s_mov_b32 s59, 3")
            A(f"s_branch L_go{n}")
            A(f"L_unit{n}:")
            A("s_and_b32 s66, s65, 7"); A("s_lshl_b32 s66, s66, 18"); A("s_lshr_b32 s67, s65, 3"); A("s_lshl_b32 s67, s67, 13")
            A("s_add_u32 s64, s58, s66"); A("s_add_u32 s64, s64, s67")
            A(f"s_lshl_b32 s{60+k}, s65, 7")
            A(f"v_add_u32 v{RECA}, 4, v{RECA}")
            A(f"L_go{n}:")
            if n < 3: stamp(f"rec{n}")
            for b in range(2): A(f"buffer_load_dwordx4 v[{UB[k]+4*b}:{UB[k]+4*b+3}], v{VL16}, s[12:15], s64 offen{off(1024*b)} {kvflags}")
        def pread(k):
            A(f"v_add_u32 v{P0+7}, s{60+k}, v{PTA}")
            A(f"ds_read_b32 v{PR+k}, v{P0+7} offset:{LPT}")
        for k in range(4): A(f"s_mov_b32 s{60+k}, 0")
        for k in range(3):
            fetch(k)
            for i in (nst - 6 + 2 * k, nst - 5 + 2 * k):
                A(f"s_waitcnt vmcnt({nst - 1 - i + 2 * (k + 1)})"); waited[0] = i
                procv(i)
            A("s_sub_u32 s59, s59, 1")
        stamp("static")
        A(f"v_mov_b32 v{P0+6}, 0")
        A(f"s_mov_b32 s57, {SPIN * 8}")
        A("L_pollT:")
        A(f"ds_read_b32 v{P0+7}, v{P0+6} offset:{LPF}")
        A(f"ds_read_b32 v{P0+8}, v{T0+4} offset:{LF}")
        A("s_sub_u32 s57, s57, 1"); A("s_cbranch_scc1 L_pollT_done")
        A("s_waitcnt lgkmcnt(0)")
        A(f"v_cmp_eq_u32 vcc, 0, v{P0+7}")
        A("s_nop 1")
        A("s_cbranch_vccnz L_pollT")
        A("L_pollT_done:")
        stamp("tready")
        pread(0)
        A("s_nop 7")
        for k in range(4): A(f"v_mul_f32 v{D0+k}, v{D0+k}, v{P0+8}")
        A("s_cmp_eq_u32 s59, 0"); A("s_cbranch_scc1 L_pool_done")
        A("L_pool:")
        for k in range(4):
            fetch((k + 3) % 4)
            A("s_waitcnt lgkmcnt(0)")
            abuild(AB, PR + k, M0, 0); abuild(AB + 4, PR + k, M0, 1)
            pread((k + 1) % 4)
            A("s_waitcnt vmcnt(7)")
            mfma(D0, AB, UB[k], False)
            A("s_waitcnt vmcnt(6)")
            mfma(D0, AB + 4, UB[k] + 4, False)
            A("s_sub_u32 s59, s59, 1"); A("s_cmp_eq_u32 s59, 0")
            A("s_cbranch_scc1 L_pool_done" if k < 3 else "s_cbranch_scc0 L_pool")
        A("L_pool_done:")
        A("s_nop 5")
    stamp("vdone"); stamp("clk2")
    A("s_mov_b32 exec_hi, 0")
    A(f"ds_write_b128 v{T0}, v[{D0}:{D0+3}] offset:{LO}")
    A("s_waitcnt lgkmcnt(0)")
    A("s_barrier")
    dump_stamps()
    A("s_endpgm")
    if steal:
        A("L_claim:")
        srd(40, 88, WS_BYTES)
        A("s_lshl_b32 s48, s4, 7"); A(f"s_add_u32 s48, s48, {WS_C}")
        A("v_mov_b32 v1, 0"); A(f"v_mov_b32 v3, {LREC}"); A(f"v_mov_b32 v12, {END}")
        A("s_mov_b32 s49, 0")
        A("s_barrier")
        A("s_waitcnt lgkmcnt(0)")
        A("s_mov_b64 exec, 1")
        cl = [0]
        def wait_prog(lim):
            n = cl[0]; cl[0] += 1
            A(f"s_mov_b32 s57, {SPIN * 8}")
            A(f"L_cw{n}:")
            A(f"s_sleep {lsleep}")
            A(f"ds_read_b128 v[4:7], v1 offset:{LPROG}")
            A("s_sub_u32 s57, s57, 1"); A("s_cbranch_scc1 L_claim_end")
            A("s_waitcnt lgkmcnt(0)")
            A("v_max3_u32 v4, v4, v5, v6"); A("v_max_u32 v4, v4, v7")
            A(f"v_cmp_ge_u32 vcc, s{lim}, v4")
            A("s_nop 1")
            A(f"s_cbranch_vccnz L_cw{n}")
        def claim(k):
            wait_prog(49)
            if noatom:
                A("s_lshl_b32 s51, s49, 3"); A("s_add_u32 s51, s51, s5"); A(f"v_mov_b32 v{8+k}, s51")
            else:
                A(f"v_mov_b32 v{8+k}, 1")
                A(f"buffer_atomic_add v{8+k}, v1, s[40:43], s48 offen {aflags}")
            A("s_add_u32 s49, s49, 1")
        for k in range(3): claim(k)
        A("L_claim_loop:")
        for k in range(4):
            claim((k + 3) % 4)
            A("s_waitcnt vmcnt(3)")
            A(f"ds_write_b32 v3, v{8+k}")
            A(f"v_cmp_le_u32 vcc, {8 * np_}, v{8+k}")
            A("v_add_u32 v3, 4, v3")
            A("s_nop 0")
            A("s_cbranch_vccnz L_claim_done" if k < 3 else "s_cbranch_vccz L_claim_loop")
        A("L_claim_done:")
        A(f"s_add_u32 s49, s49, {ah - 4 + golate}")
        wait_prog(49)
        A("L_claim_end:")
        A("ds_write_b32 v3, v12")
        A("v_mov_b32 v2, 1")
        A(f"ds_write_b32 v1, v2 offset:{LGO}")
        A("s_waitcnt lgkmcnt(0)")
        A("s_endpgm")
    if bal:
        nt = (bto - bfrom) // tk + 1
        A("L_claim:")
        srd(40, 88, WS_BYTES)
        A(f"s_lshr_b32 s48, s2, {bgrp}"); A(f"s_lshl_b32 s48, s48, {max(7, bgrp + bstr)}"); A(f"s_add_u32 s48, s48, {WS_B}")
        A(f"s_and_b32 s51, s2, {(1 << bgrp) - 1}")
        A("v_mov_b32 v1, 0"); A(f"v_and_b32 v2, {(1 << bgrp) - 1}, v0"); A(f"v_lshlrev_b32 v2, {bstr}, v2")
        A(f"s_lshl_b32 s52, s51, {bstr}"); A("v_mov_b32 v3, s52")
        A(f"s_mov_b32 s79, {WS_E}")
        A("s_mov_b32 s49, 0")
        A("s_barrier")
        A("s_waitcnt lgkmcnt(0)")
        A("buffer_load_dword v8, v1, s[40:43], s79 offen sc1")
        A("s_waitcnt vmcnt(0)")
        A("v_add_u32 v8, 1, v8"); A("v_and_b32 v8, 0x3ff, v8")
        A("L_bal:")
        A(f"s_mov_b32 s57, {SPIN * 8}")
        A("L_balw:")
        A(f"s_sleep {lsleep}")
        A(f"ds_read_b128 v[4:7], v1 offset:{LPROG}")
        A("s_sub_u32 s57, s57, 1"); A("s_cbranch_scc1 L_bal_end")
        A("s_waitcnt lgkmcnt(0)")
        A("v_min3_u32 v4, v4, v5, v6"); A("v_min_u32 v4, v4, v7")
        A("v_readfirstlane_b32 s53, v4")
        A("s_cmp_le_u32 s53, s49"); A("s_cbranch_scc1 L_balw")
        A("s_mov_b32 s49, s53")
        A("v_lshl_or_b32 v4, v4, 10, v8")
        A("s_mov_b64 exec, 1")
        A("buffer_store_dword v4, v3, s[40:43], s48 offen sc1")
        A("s_mov_b64 exec, -1")
        A("buffer_load_dword v5, v2, s[40:43], s48 offen sc1")
        A("s_waitcnt vmcnt(0)")
        A("v_and_b32 v6, 0x3ff, v5"); A("v_cmp_eq_u32 vcc, v6, v8"); A("v_lshrrev_b32 v5, 10, v5")
        A("v_cndmask_b32 v5, 0, v5, vcc")
        A("v_readlane_b32 s54, v5, s51")
        for c in ("quad_perm:[1,0,3,2]", "quad_perm:[2,3,0,1]", "row_half_mirror") + (("row_mirror",) if bgrp > 3 else ()):
            A(f"v_add_u32_dpp v5, v5, v5 {c} row_mask:0xf bank_mask:0xf")
        A("v_readfirstlane_b32 s55, v5")
        A(f"s_lshl_b32 s54, s54, {bgrp}"); A("s_sub_i32 s55, s55, s54")
        A("s_mov_b32 s56, 0")
        A(f"s_cmp_gt_i32 s55, {th}"); A("s_cselect_b32 s56, 2, s56")
        A(f"s_cmp_lt_i32 s55, {-th}"); A("s_cselect_b32 s56, 1, s56")
        A("v_mov_b32 v6, s56")
        A(f"ds_write_b32 v1, v6 offset:{LLV}")
        A(f"s_cmp_lt_u32 s49, {nt}"); A("s_cbranch_scc1 L_bal")
        A("L_bal_end:")
        A("s_waitcnt lgkmcnt(0)")
        A("s_endpgm")
    stream_body = A.L[stream_at:]; del A.L[stream_at:]

    role[0] = "S"; stamp_list.append(("S", "start"))
    G, J, PD, M0, AB, DQ, DG, T0 = 1, 2, 3, 4, 8, 16, 20, 24
    XA, XR, EP, GA, OUTA, XF, PH, XV, WDA, WOA, RA, OGA, TAG, GV, L16 = 40, 44, 45, 46, 48, 49, 50, 51, 52, 58, 59, 60, 61, 62, 63
    WQ, GU = 64, 128
    WO, WD, PS = 64, 128, 160
    def tag(regs, kind=""):
        if kind and kind in rnd:
            for r in regs: A(f"v_add_u32 v{r}, 0x200, v{r}")
        for r in regs: A(f"v_and_or_b32 v{r}, v{r}, s7, v{TAG}")
    def untag(regs):
        for r in regs: A(f"v_and_b32 v{r}, s7, v{r}")
    def check(regs, t):
        regs = list(regs)
        pairs = [regs[k:k+2] for k in range(0, len(regs), 2)]
        A(f"v_bitop3_b32 v{t}, v{pairs[0][0]}, v{pairs[0][1]}, v{TAG} bitop3:0x7e")
        rest = pairs[1:]
        while rest:
            take = rest[:2]; rest = rest[2:]
            for k, p in enumerate(take): A(f"v_bitop3_b32 v{t+1+k}, v{p[0]}, v{p[1]}, v{TAG} bitop3:0x7e")
            if len(take) == 2: A(f"v_or3_b32 v{t}, v{t}, v{t+1}, v{t+2}")
            else: A(f"v_or_b32 v{t}, v{t}, v{t+1}")
        A(f"v_and_b32 v{t}, 0x3ff, v{t}")
        A(f"v_cmp_ne_u32 vcc, 0, v{t}")
    def strip(regs, t):
        regs = list(regs)
        for r in regs[::2]: A(f"v_lshl_add_u64 v[{r}:{r+1}], v[{r}:{r+1}], 0, s[14:15]")
        acc = [t, t + 1]; rest = regs[:]
        for a in acc: A(f"v_or3_b32 v{a}, v{rest[0]}, v{rest[1]}, v{rest[2]}"); rest = rest[3:]
        k = 0
        while len(rest) > 2 or (len(rest) == 2 and k & 1):
            A(f"v_or3_b32 v{acc[k&1]}, v{acc[k&1]}, v{rest[0]}, v{rest[1]}"); rest = rest[2:]; k += 1
        if len(rest) == 2:
            A(f"v_or3_b32 v{t}, v{t}, v{rest[0]}, v{rest[1]}"); rest = []
        assert not rest
        A(f"v_bitop3_b32 v{t}, v{t}, v{t+1}, s7 bitop3:0x54")
        A(f"v_cmp_ne_u32 vcc, 0, v{t}")
    def pkadd(d, a, b): A(f"v_pk_add_f32 v[{d}:{d+1}], v[{a}:{a+1}], v[{b}:{b+1}]")
    def poll(name, loads, regs, t, sleep):
        A(f"s_mov_b32 s70, {SPIN}")
        A(f"L_{name}:")
        if sleep: A(f"s_sleep {sleep}")
        loads()
        A("s_sub_u32 s70, s70, 1"); A(f"s_cbranch_scc1 L_{name}_done")
        A("s_waitcnt vmcnt(0)")
        if callable(regs): regs()
        else: check(regs, t)
        A("s_nop 1")
        if name not in skip.split(): A(f"s_cbranch_vccnz L_{name}")
        A(f"L_{name}_done:")
    def poll_pipe(name, R, delay, nreg, nld, loads, finish):
        A(f"s_mov_b32 s70, {SPIN}")
        for k in range(R - 1):
            loads(PS + nreg * k)
            if delay: A(f"s_sleep {delay}")
        A(f"L_{name}:")
        for k in range(R):
            loads(PS + nreg * ((k + R - 1) % R))
            if k == 0:
                A("s_sub_u32 s70, s70, 1"); A(f"s_cbranch_scc1 L_{name}_ok0")
            A(f"s_waitcnt vmcnt({nld * (R - 1)})")
            b = PS + nreg * k
            (strip if fast else check)(range(b, b + nreg), T0)
            A("s_nop 1")
            A(f"s_cbranch_vccz L_{name}_ok{k}" if k < R - 1 else f"s_cbranch_vccnz L_{name}")
        for k in reversed(range(R)):
            A(f"L_{name}_ok{k}:")
            finish(PS + nreg * k)
            if k: A(f"s_branch L_{name}_done")
        A(f"L_{name}_done:")

    A("L_service:")
    A("s_setprio 3")
    srd(16, 0, 1024); srd(20, 24, 4 << 20); srd(40, 88, WS_BYTES)
    A("s_load_dwordx4 s[44:47], s[0:1], 48")
    srd(24, 32, 4 << 20); srd(28, 64, 1376 * 1024); srd(32, 72, 1024)
    A(f"v_lshrrev_b32 v{G}, 4, v0"); A(f"v_and_b32 v{J}, 15, v0")
    if amap:
        HP, SP = 38, 39
        A("s_lshr_b32 s38, s2, 3"); A("s_and_b32 s39, s2, 7")
    else: HP, SP = 4, 5
    def chunks(hreg):
        if mapx or amap: A(f"s_mul_i32 s56, s{hreg}, 43")
        else:
            A(f"s_and_b32 s7, s{hreg}, 7"); A("s_lshl_b32 s7, s7, 2"); A(f"s_lshr_b32 s48, s{hreg}, 3"); A("s_add_u32 s7, s7, s48")
            A("s_mul_i32 s56, s7, 43")
        A("s_add_u32 s57, s56, 43"); A("s_lshr_b32 s56, s56, 3"); A("s_lshr_b32 s57, s57, 3")
        A("s_sub_u32 s57, s57, s56")
    chunks(HP)
    A(f"v_lshlrev_b32 v{L16}, 4, v0")
    A(f"s_lshl_b32 s48, s{SP}, 7")
    A(f"v_lshlrev_b32 v{T0+1}, 1, v0")
    A(f"v_lshlrev_b32 v{T0+3}, 4, v{J}")
    A(f"v_lshl_add_u32 v{T0+2}, v{G}, 17, v{T0+3}")
    A(f"s_lshl_b32 s49, s{SP}, 19"); A(f"s_lshl_b32 s51, s{HP}, 8"); A("s_add_u32 s49, s49, s51")
    A(f"v_and_b32 v{T0+4}, 7, v0")
    A(f"v_cmp_gt_u32 vcc, s57, v{T0+4}")
    A("s_mov_b32 s51, 44032"); A(f"s_mul_i32 s58, s{SP}, 176128")
    A(f"v_cndmask_b32 v{T0+4}, 0, v{T0+4}, vcc")
    A(f"v_add_lshl_u32 v{T0+4}, v{T0+4}, s56, 4")
    A(f"v_mad_u32_u24 v{T0+4}, v{G}, s51, v{T0+4}")
    A(f"v_add_u32 v{T0+4}, s58, v{T0+4}")
    A(f"v_mov_b32 v{T0+5}, 0")
    A(f"v_cmp_lt_u32 vcc, 7, v{J}")
    A(f"s_mov_b32 s79, {WS_E}")
    A("s_mov_b32 s60, 5504"); A("s_mov_b32 s61, 0")
    A("s_waitcnt lgkmcnt(0)")
    stamp("skarg")
    if steal:
        A(f"s_cmp_lg_u32 s{SP}, 0"); A("s_cbranch_scc1 L_noreset")
        A(f"s_lshl_b32 s51, s{HP}, 7"); A(f"s_add_u32 s51, s51, {WS_C}")
        A("s_mov_b64 exec, 1")
        A(f"buffer_store_dword v{T0+5}, v{T0+5}, s[40:43], s51 offen sc1")
        A("s_mov_b64 exec, -1")
        A("L_noreset:")
    if pre:
        A("s_lshl_b32 s6, s4, 3"); A("s_add_u32 s6, s6, s5")
        if "A" in pre:
            A(f"s_lshl_b32 s51, s{2 if amap else 6}, 10")
            A(f"buffer_load_dword v{T0+10}, v{L16}, s[40:43], s51 offen {preflags}")
        if "Y" in pre:
            A("s_lshl_b32 s51, s2, 9"); A(f"s_add_u32 s51, s51, {WS_Y}"); A(f"v_lshrrev_b32 v{T0+11}, 1, v{L16}")
            A(f"buffer_load_dword v{T0+10}, v{T0+11}, s[40:43], s51 offen {preflags}")
        if "S" in pre:
            A("s_lshl_b32 s51, s2, 9"); A(f"s_add_u32 s51, s51, {WS_S}"); A(f"v_lshrrev_b32 v{T0+11}, 1, v{L16}")
            A(f"buffer_load_dword v{T0+10}, v{T0+11}, s[40:43], s51 offen {preflags}")
    A(f"buffer_load_dwordx4 v[{XA}:{XA+3}], v{L16}, s[16:19], 0 offen")
    A(f"buffer_load_ushort v{XR}, v{T0+1}, s[16:19], s48 offen")
    A(f"buffer_load_dword v{EP}, v{T0+5}, s[40:43], s79 offen sc1")
    stamp("sx")
    A(f"v_mov_b32 v{T0+6}, s44"); A(f"v_mov_b32 v{T0+7}, s45"); A(f"v_mov_b32 v{T0+8}, s46"); A(f"v_mov_b32 v{T0+9}, s47")
    A(f"v_cndmask_b32 v{GA}, v{T0+6}, v{T0+8}, vcc"); A(f"v_cndmask_b32 v{GA+1}, v{T0+7}, v{T0+9}, vcc")
    A(f"v_lshl_add_u64 v[{GA}:{GA+1}], v[{T0+4}:{T0+5}], 0, v[{GA}:{GA+1}]")
    def lds_init():
        A(f"v_cmp_gt_u32 vcc, 8, v0"); A(f"v_lshlrev_b32 v{T0+7}, 2, v0"); A("s_mov_b32 s7, 0xfffffc00")
        A(f"v_cndmask_b32 v{T0+6}, 0, -1, vcc")
        A("s_mov_b64 exec, 0xffff")
        A(f"ds_write_b32 v{T0+7}, v{T0+6} offset:{LML}")
        A("s_mov_b64 exec, -1")
        if steal:
            A(f"v_mov_b32 v{T0+6}, -1")
            A(f"ds_write_b32 v{T0+7}, v{T0+6} offset:{LREC}"); A(f"ds_write_b32 v{T0+7}, v{T0+6} offset:{LREC+64}")
        A("s_waitcnt lgkmcnt(0)")
        A("s_barrier")
    for n in range(16):
        if n in (4, 8): stamp(f"s{2*n}")
        if n == bar0: lds_init()
        if scap and 2 * n + 3 >= scap: A(f"s_waitcnt vmcnt({scap - 2})")
        if "W" in skip.split(): A(f"buffer_load_dword v{WQ+4*n}, v{T0+5}, s[16:19], 0 offen")
        else: A(f"buffer_load_dwordx4 v[{WQ+4*n}:{WQ+4*n+3}], v{T0+2}, s[20:23], s49 offen {wflags}")
        if "G" in skip.split(): A(f"buffer_load_dword v{GU+4*n}, v{T0+5}, s[16:19], 0 offen")
        else: A(f"global_load_dwordx4 v[{GU+4*n}:{GU+4*n+3}], v[{GA}:{GA+1}], off{off(2752 * (n & 1))} {gflags}")
        if n < 15: A("s_addk_i32 s49, 0x2000")
        if n & 1 and n < 15: A(f"v_lshl_add_u64 v[{GA}:{GA+1}], v[{GA}:{GA+1}], 0, s[60:61]")
    if bar0 == 16: lds_init()
    stamp("issued")
    masks(M0, T0 + 6, T0 + 7)
    A("s_and_b32 s58, s5, 3"); A("s_lshr_b32 s59, s5, 2")
    A("s_lshl_b32 s6, s4, 3"); A("s_add_u32 s6, s6, s5")
    A(f"v_lshlrev_b32 v{OUTA}, 5, v{J}"); A(f"v_and_b32 v{T0}, 16, v0"); A(f"v_add_u32 v{OUTA}, v{OUTA}, v{T0}")
    A("s_lshl_b32 s63, s6, 9"); A(f"s_add_u32 s63, s63, {WS_O}")
    A("s_lshl_b32 s64, s58, 6"); A("s_lshl_b32 s48, s4, 1"); A("s_add_u32 s64, s64, s48"); A("s_add_u32 s64, s64, s59")
    A("s_lshl_b32 s64, s64, 9"); A(f"s_add_u32 s65, s64, {WS_Y}"); A(f"s_add_u32 s64, s64, {WS_S}")
    A(f"s_lshl_b32 s66, s6, {mlstr}"); A(f"s_add_u32 s66, s66, {WS_ML}")
    A(f"s_lshl_b32 s67, s{2 if amap else 6}, 10")
    if amap: chunks(4)
    A("s_mov_b32 s68, 0"); A("s_mov_b32 s69, -1")
    A("s_waitcnt vmcnt(32)")
    stamp("x")
    for k in range(4):
        A(f"v_lshlrev_b32 v{T0+2*k}, 16, v{XA+k}"); A(f"v_and_b32 v{T0+2*k+1}, 0xffff0000, v{XA+k}")
    A(f"v_add_f32 v{T0+8}, v{T0}, v{T0+1}"); A(f"v_add_f32 v{T0+9}, v{T0+2}, v{T0+3}")
    A(f"v_add_f32 v{T0+10}, v{T0+4}, v{T0+5}"); A(f"v_add_f32 v{T0+11}, v{T0+6}, v{T0+7}")
    A(f"v_add_f32 v{T0+8}, v{T0+8}, v{T0+9}"); A(f"v_add_f32 v{T0+10}, v{T0+10}, v{T0+11}")
    A(f"v_add_f32 v{T0+8}, v{T0+8}, v{T0+10}")
    A(f"v_add_u32 v{EP}, 1, v{EP}"); A(f"v_and_b32 v{TAG}, 0x3ff, v{EP}")
    if fast:
        A(f"v_readfirstlane_b32 s13, v{TAG}"); A("s_sub_u32 s14, 0, s13"); A("s_subb_u32 s15, 0, s13")
    wave_red("v_add_f32", T0 + 8)
    A(f"v_mul_f32 v{T0+8}, 0x3b000000, v{T0+8}")
    A(f"v_readlane_b32 s51, v{T0+8}, 63")
    for k in range(8): A(f"v_subrev_f32 v{T0+k}, s51, v{T0+k}")
    A(f"v_mul_f32 v{T0+9}, v{T0}, v{T0}"); A(f"v_mul_f32 v{T0+10}, v{T0+1}, v{T0+1}")
    for k in range(2, 8, 2):
        A(f"v_fmac_f32 v{T0+9}, v{T0+k}, v{T0+k}"); A(f"v_fmac_f32 v{T0+10}, v{T0+k+1}, v{T0+k+1}")
    A(f"v_add_f32 v{T0+9}, v{T0+9}, v{T0+10}")
    rbf(T0 + 8)
    wave_red("v_add_f32", T0 + 9)
    A(f"v_mul_f32 v{T0+9}, 0x3b000000, v{T0+9}")
    rbf(T0 + 9)
    A(f"v_add_f32 v{T0+9}, 0x3727c5ac, v{T0+9}")
    rbf(T0 + 9)
    A(f"v_sqrt_f32 v{T0+9}, v{T0+9}")
    A(f"v_readlane_b32 s51, v{T0+8}, 63")
    rbf(T0 + 9)
    A(f"v_lshlrev_b32 v{XR}, 16, v{XR}")
    A(f"v_readlane_b32 s62, v{T0+9}, 63")
    A(f"v_subrev_f32 v{XR}, s51, v{XR}")
    rbf(XR)
    A(f"v_rcp_f32 v{T0+10}, s62")
    A(f"v_mul_f32 v{T0+11}, v{XR}, v{T0+10}")
    A(f"v_fma_f32 v{T0+12}, -v{T0+11}, s62, v{XR}")
    A(f"v_fmac_f32 v{T0+11}, v{T0+12}, v{T0+10}")
    A(f"v_cvt_pk_bf16_f32 v{PD}, v{T0+11}, v{T0+11}")
    stamp("ln")
    abuild(AB, PD, M0, 0)
    for n in range(16):
        ab = AB + 4 * (n & 1)
        if n < 15: abuild(AB + 4 * ((n + 1) & 1), PD, M0, n + 1)
        A(f"s_waitcnt vmcnt({30-2*n})")
        mfma(DQ, ab, WQ + 4 * n, n == 0); mfma(DG, ab, GU + 4 * n, n == 0)
    A("s_lshl_b32 s48, s4, 13"); A("s_add_u32 s49, s48, 0x1000")
    A(f"v_lshrrev_b32 v{T0+3}, 1, v{OUTA}")
    for k in range(4): A(f"v_cndmask_b32 v{DQ+k}, v{DQ+k}, v{DG+k}, s[68:69]")
    tag(range(DQ, DQ + 4), "A")
    if "Ast" not in skip.split(): A(f"buffer_store_dwordx4 v[{DQ}:{DQ+3}], v{L16}, s[40:43], s67 offen {'' if 'Aplain' in skip.split() else 'sc1'}")
    stamp("apub")
    def a_loads():
        for k in range(8):
            if "Ald" not in skip.split(): A(f"buffer_load_dwordx4 v[{WQ+4*k}:{WQ+4*k+3}], v{L16}, s[40:43], s{48 + k // 4} offen{off((k&3)*1024)} sc1")
    poll("pollA", a_loads, range(WQ, WQ + 32), T0, asleep)
    stamp("aseen")
    untag(range(WQ, WQ + 32))
    for k in range(4):
        A(f"v_add_f32 v{WQ+k}, v{WQ+k}, v{WQ+4+k}"); A(f"v_add_f32 v{WQ+8+k}, v{WQ+8+k}, v{WQ+12+k}")
        A(f"v_add_f32 v{WQ+16+k}, v{WQ+16+k}, v{WQ+20+k}"); A(f"v_add_f32 v{WQ+24+k}, v{WQ+24+k}, v{WQ+28+k}")
    for k in range(4):
        A(f"v_add_f32 v{WQ+k}, v{WQ+k}, v{WQ+8+k}"); A(f"v_add_f32 v{WQ+16+k}, v{WQ+16+k}, v{WQ+24+k}")
    for k in range(4): A(f"v_add_f32 v{WQ+k}, v{WQ+k}, v{WQ+16+k}")
    A(f"v_cvt_pk_bf16_f32 v{T0+4}, v{WQ}, v{WQ+1}"); A(f"v_cvt_pk_bf16_f32 v{T0+5}, v{WQ+2}, v{WQ+3}")
    A(f"v_mov_b32 v{T0+6}, 0"); A(f"v_mov_b32 v{T0+7}, 1")
    A("s_mov_b32 exec_hi, 0")
    A(f"ds_write_b64 v{T0+3}, v[{T0+4}:{T0+5}] offset:{LQ}")
    A(f"ds_write_b32 v{T0+6}, v{T0+7} offset:{LQF}")
    A("s_mov_b64 exec, -1")
    stamp("qdone")
    A("s_setprio 0")
    A("s_mul_i32 s48, s59, 24")
    A(f"v_mul_u32_u24 v{T0}, 6, v{G}"); A(f"v_add_u32 v{T0}, s48, v{T0}")
    A("s_lshl_b32 s48, s57, 3"); A("s_lshl_b32 s49, s56, 3"); A("s_lshl_b32 s72, s58, 8")
    A(f"v_lshlrev_b32 v{T0+2}, 4, v{J}")
    for n in range(6):
        A(f"v_add_u32 v{T0+3}, {n}, v{T0}")
        A(f"v_cmp_gt_u32 vcc, s48, v{T0+3}")
        A(f"v_add_u32 v{T0+3}, s49, v{T0+3}")
        A(f"v_lshl_add_u32 v{T0+3}, v{T0+3}, 10, v{T0+2}")
        A(f"v_mov_b32 v{WDA}, 0x7ffffff0")
        A(f"v_cndmask_b32 v{WDA}, v{WDA}, v{T0+3}, vcc")
        if "D" not in skip.split(): A(f"buffer_load_dwordx4 v[{WD+4*n}:{WD+4*n+3}], v{WDA}, s[28:31], s72 offen {wflags}")
    for k in range(4): rbf(WQ + k)
    for k in range(4): A(f"v_mov_b32_dpp v{T0+4+k}, v{WQ+k} row_ror:8 row_mask:0xf bank_mask:0xf")
    for k in range(4): A(f"v_mul_f32 v{WQ+k}, 0xbfb8aa3b, v{WQ+k}")
    for k in range(4): A(f"v_exp_f32 v{WQ+k}, v{WQ+k}")
    for k in range(4): A(f"v_add_f32 v{WQ+k}, 1.0, v{WQ+k}")
    for k in range(4): A(f"v_rcp_f32 v{WQ+k}, v{WQ+k}")
    for k in range(4): rbf(WQ + k)
    for k in range(4): A(f"v_mul_f32 v{WQ+k}, v{WQ+k}, v{T0+4+k}")
    A(f"v_cmp_gt_u32 vcc, s57, v{J}")
    for k in range(4): A(f"v_cvt_pk_bf16_f32 v{WQ+k}, v{WQ+k}, v{WQ+k}")
    for k in range(4): A(f"v_cndmask_b32 v{WQ+k}, 0, v{WQ+k}, vcc")
    A("s_mov_b32 exec_lo, 0"); A("s_mov_b32 exec_hi, 0x00ff00ff")
    A(f"ds_write_b128 v{OUTA}, v[{WQ}:{WQ+3}] offset:{LH}")
    A("s_mov_b64 exec, -1")
    A(f"v_add_lshl_u32 v{T0+1}, v{T0}, v{J}, 2")
    A("s_waitcnt lgkmcnt(0)")
    A(f"ds_read_b32 v{PH}, v{T0+1} offset:{LH}")
    A(f"v_lshl_add_u32 v{WOA}, v{G}, 14, v{T0+2}")
    A("s_lshl_b32 s71, s4, 17"); A("s_lshl_b32 s48, s59, 16"); A("s_add_u32 s71, s71, s48"); A("s_add_u32 s71, s71, s72")
    A(f"v_and_b32 v{T0+3}, 3, v0"); A(f"v_lshl_add_u32 v{T0+4}, v{T0+3}, 2, v{G}")
    A("s_lshl_b32 s48, s4, 4"); A(f"v_add_lshl_u32 v{XF}, v{T0+4}, s48, 1")
    A(f"v_lshrrev_b32 v{RA}, 2, v0"); A(f"v_lshlrev_b32 v{RA}, 9, v{RA}"); A(f"v_lshl_add_u32 v{RA}, v{T0+3}, 4, v{RA}")
    A("s_and_b32 s48, s4, 7"); A("s_lshl_b32 s49, s48, 6"); A("s_lshr_b32 s73, s4, 3"); A("s_lshl_b32 s73, s73, 15"); A("s_add_u32 s73, s73, s49")
    if mapx: A("s_sub_u32 s36, s5, s48")
    else: A("s_mov_b32 s36, s5")
    A(f"buffer_load_ushort v{XV}, v{XF}, s[16:19], 0 offen")
    A("s_lshl_b32 s48, s59, 8"); A(f"v_lshl_add_u32 v{OGA}, v0, 2, s48")
    A("s_lshl_b32 s78, s4, 12"); A(f"s_add_u32 s78, s78, {WS_O}")
    A("s_waitcnt lgkmcnt(0)")
    abuild(AB, PH, M0, 0)
    for n in range(6):
        if n < 5: abuild(AB + 4 * ((n + 1) & 1), PH, M0, n + 1)
        A(f"s_waitcnt vmcnt({6-n})")
        mfma(DG, AB + 4 * (n & 1), WD + 4 * n, n == 0)
    tag(range(DG, DG + 4), "Y")
    A("s_mov_b32 exec_hi, 0")
    if "Yst" not in skip.split(): A(f"buffer_store_dwordx4 v[{DG}:{DG+3}], v{OUTA}, s[40:43], s65 offen sc1")
    A("s_mov_b64 exec, -1")
    stamp("ypub")
    A(f"v_and_b32 v{T0}, 3, v0"); A(f"v_lshlrev_b32 v{T0}, 3, v{T0}")
    A(f"s_mov_b32 s70, {SPIN * 8}")
    A("L_pollML:")
    A(f"s_sleep {lsleep}")
    A(f"ds_read_b64 v[{T0+2}:{T0+3}], v{T0} offset:{LML}")
    A("s_sub_u32 s70, s70, 1"); A("s_cbranch_scc1 L_pollML_done")
    A("s_waitcnt lgkmcnt(0)")
    A(f"v_cmp_eq_u32 vcc, -1, v{T0+3}")
    A("s_nop 1")
    A("s_cbranch_vccnz L_pollML")
    A("L_pollML_done:")
    stamp("ml")
    dpp("v_max_f32", T0 + 4, T0 + 2, "quad_perm:[1,0,3,2]"); dpp("v_max_f32", T0 + 4, T0 + 4, "quad_perm:[2,3,0,1]")
    A(f"v_sub_f32 v{T0+5}, v{T0+2}, v{T0+4}"); A(f"v_mul_f32 v{T0+5}, {LOG2E}, v{T0+5}"); A(f"v_exp_f32 v{T0+5}, v{T0+5}")
    A(f"v_mul_f32 v{T0+5}, v{T0+5}, v{T0+3}")
    dpp("v_add_f32", T0 + 5, T0 + 5, "quad_perm:[1,0,3,2]"); dpp("v_add_f32", T0 + 5, T0 + 5, "quad_perm:[2,3,0,1]")
    if steal:
        A(f"v_bfe_u32 v{T0+6}, v0, 2, 2"); A(f"v_lshlrev_b32 v{T0+6}, 3, v{T0+6}")
        A(f"ds_read_b32 v{T0+7}, v{T0+6} offset:{LML}")
        A(f"ds_read_b128 v[{T0+8}:{T0+11}], v{L16} offset:{LP}")
        A("s_lshl_b32 s51, s6, 10"); A(f"s_add_u32 s51, s51, {WS_P}")
        A("s_waitcnt lgkmcnt(0)")
        A(f"v_sub_f32 v{T0+7}, v{T0+7}, v{T0+4}"); A(f"v_mul_f32 v{T0+7}, {LOG2E}, v{T0+7}"); A(f"v_exp_f32 v{T0+7}, v{T0+7}")
        for k in range(4): A(f"v_mul_f32 v{T0+8+k}, v{T0+8+k}, v{T0+7}")
        tag(range(T0 + 8, T0 + 12))
        A(f"buffer_store_dwordx4 v[{T0+8}:{T0+11}], v{L16}, s[40:43], s51 offen sc1")
    tag((T0 + 4, T0 + 5))
    if local:
        A("s_getreg_b32 s37, hwreg(HW_REG_XCC_ID, 0, 4)"); A("s_lshl_b32 s37, s37, 10")
        A(f"v_or_b32 v{T0+4}, s37, v{T0+4}")
    A(f"v_mov_b32 v{T0+1}, 0")
    A("s_mov_b64 exec, 1")
    A(f"v_mov_b32 v{T0+6}, v{EP}"); A(f"v_mov_b32 v{T0+7}, v{EP}")
    if "Mst" not in skip.split(): A(f"buffer_store_dwordx4 v[{T0+4}:{T0+7}], v{T0+1}, s[40:43], s66 offen {'' if 'Mplain' in skip.split() else 'sc1'}")
    A("s_mov_b64 exec, -1")
    A(f"v_and_b32 v{T0+1}, 7, v0"); A(f"v_lshlrev_b32 v{T0+1}, {mlstr}, v{T0+1}")
    A(f"s_lshl_b32 s48, s4, {mlstr + 3}"); A(f"s_add_u32 s48, s48, {WS_ML}")
    if mlat:
        A(f"v_mov_b32 v{T0+8}, 0")
        A(f"s_mov_b32 s70, {SPIN * 8}")
        A("L_pollM:")
        A(f"s_sleep {max(lsleep, 4)}")
        A(f"ds_read_b128 v[{T0+4}:{T0+7}], v{T0+8} offset:{LPROG}")
        A("s_sub_u32 s70, s70, 1"); A("s_cbranch_scc1 L_pollM_done")
        A("s_waitcnt lgkmcnt(0)")
        A(f"v_or3_b32 v{T0+4}, v{T0+4}, v{T0+5}, v{T0+6}"); A(f"v_or_b32 v{T0+4}, v{T0+4}, v{T0+7}")
        A(f"v_cmp_eq_u32 vcc, 0, v{T0+4}")
        A("s_nop 1")
        A("s_cbranch_vccnz L_pollM")
        A("L_pollM_done:")
    def ml_check():
        A(f"v_bitop3_b32 v{T0+8}, v{T0+4}, v{T0+5}, v{TAG} bitop3:0x7e"); A(f"v_bitop3_b32 v{T0+9}, v{T0+6}, v{T0+7}, v{EP} bitop3:0x7e")
        A(f"v_and_or_b32 v{T0+8}, v{T0+8}, s12, v{T0+9}")
        A(f"v_cmp_ne_u32 vcc, 0, v{T0+8}")
    A("s_movk_i32 s12, 0x3ff")
    poll("pollML2", lambda: A(f"buffer_load_dwordx4 v[{T0+4}:{T0+7}], v{T0+1}, s[40:43], s48 offen sc1"), ml_check, None, psleep)
    if local:
        A(f"v_and_b32 v{T0+6}, 0x3c00, v{T0+4}"); A(f"v_cmp_ne_u32 vcc, s37, v{T0+6}")
        A("s_nop 1"); A("s_or_b32 s37, vcc_lo, vcc_hi")
    A(f"v_and_b32 v{T0+4}, 0xffff0000, v{T0+4}"); untag((T0 + 5,))
    A(f"v_lshlrev_b32 v{XV}, 16, v{XV}")
    for c in ("quad_perm:[1,0,3,2]",): dpp("v_max_f32", T0 + 6, T0 + 4, c)
    for c in ("quad_perm:[2,3,0,1]", "row_half_mirror"): dpp("v_max_f32", T0 + 6, T0 + 6, c)
    A(f"v_sub_f32 v{T0+4}, v{T0+4}, v{T0+6}"); A(f"v_sub_f32 v{T0+2}, v{T0+2}, v{T0+6}")
    A(f"v_mul_f32 v{T0+4}, {LOG2E}, v{T0+4}"); A(f"v_mul_f32 v{T0+2}, {LOG2E}, v{T0+2}")
    A(f"v_exp_f32 v{T0+4}, v{T0+4}"); A(f"v_exp_f32 v{T0+2}, v{T0+2}")
    A(f"v_mul_f32 v{T0+5}, v{T0+4}, v{T0+5}")
    for c in ("quad_perm:[1,0,3,2]", "quad_perm:[2,3,0,1]", "row_half_mirror"): dpp("v_add_f32", T0 + 5, T0 + 5, c)
    A(f"v_rcp_f32 v{T0+5}, v{T0+5}")
    A(f"v_mul_f32 v{T0+2}, v{T0+2}, v{T0+5}")
    if not steal:
        for w in range(4): A(f"v_readlane_b32 s{74+w}, v{T0+2}, {w}")
        stamp("mlx")
    else:
        A(f"v_mul_f32 v{T0+4}, v{T0+4}, v{T0+5}")
        A(f"v_lshrrev_b32 v{T0}, 1, v{T0}")
        A(f"ds_write_b32 v{T0}, v{T0+2} offset:{LF}")
        stamp("mlx")
        A("s_lshl_b32 s48, s4, 13"); A(f"s_add_u32 s48, s48, {WS_P}"); A("s_add_u32 s49, s48, 0x1000")
        poll("pollPT", a_loads, range(WQ, WQ + 32), T0 + 6, 0)
        untag(range(WQ, WQ + 32))
        A(f"v_lshrrev_b32 v{T0+6}, 3, v0"); A(f"v_and_b32 v{T0+7}, 7, v0"); A(f"v_lshlrev_b32 v{T0+6}, 10, v{T0+6}")
        A(f"v_lshl_add_u32 v{T0+6}, v{T0+7}, 4, v{T0+6}")
        if np_ < 8:
            A(f"v_subrev_u32 v{T0+6}, {(8 - np_) * 1024}, v{T0+6}")
            m = (~((1 << (8 * (8 - np_))) - 1)) & (2**64 - 1)
            A(f"s_mov_b32 exec_lo, {hex(m & 0xffffffff)}"); A(f"s_mov_b32 exec_hi, {hex(m >> 32)}")
        for k in range(8):
            A(f"v_readlane_b32 s51, v{T0+4}, {k}")
            for r in range(4): A(f"v_mul_f32 v{WQ+4*k+r}, s51, v{WQ+4*k+r}")
            for r in range(4): A(f"v_cvt_pk_bf16_f32 v{WQ+4*k+r}, v{WQ+4*k+r}, v{WQ+4*k+r}")
            A(f"ds_write_b128 v{T0+6}, v[{WQ+4*k}:{WQ+4*k+3}] offset:{LPT + 128*k}")
        A("s_mov_b64 exec, -1")
        A(f"v_mov_b32 v{T0+6}, 0"); A(f"v_mov_b32 v{T0+7}, 1")
        A(f"ds_write_b32 v{T0+6}, v{T0+7} offset:{LPF}")
        stamp("table")
    def reduce(base):
        untag(range(base, base + 16))
        for k in range(4):
            A(f"v_add_f32 v{base+k}, v{base+k}, v{base+4+k}"); A(f"v_add_f32 v{base+8+k}, v{base+8+k}, v{base+12+k}")
        for k in range(4): A(f"v_add_f32 v{T0+4+k}, v{base+k}, v{base+8+k}")
    def reduce2():
        b = T0 + 4
        A(f"v_permlane32_swap_b32 v{b}, v{b+2}"); A(f"v_permlane32_swap_b32 v{b+1}, v{b+3}")
        A(f"v_add_f32 v{b}, v{b}, v{b+2}"); A(f"v_add_f32 v{b+1}, v{b+1}, v{b+3}")
        A(f"v_permlane16_swap_b32 v{b}, v{b+1}")
        A(f"v_add_f32 v{b}, v{b}, v{b+1}")
        dpp("v_add_f32", b, b, "row_ror:4"); dpp("v_add_f32", b, b, "row_ror:8")
        rbf(b)
    def gather(sregs):
        def f(base=PS):
            for k in range(4): A(f"buffer_load_dwordx4 v[{base+4*k}:{base+4*k+3}], v{RA}, s[40:43], s{sregs[k]} offen sc1")
        return f
    A("s_cmp_lg_u32 s36, 0"); A("s_cbranch_scc1 L_noY")
    A(f"s_add_u32 s48, s73, {WS_Y}")
    A(f"s_add_u32 s49, s48, 8192"); A(f"s_add_u32 s56, s48, 16384"); A(f"s_add_u32 s57, s48, 24576")
    poll("pollY", gather((48, 49, 56, 57)), range(PS, PS + 16), T0, psleep)
    reduce(PS); reduce2()
    A(f"v_mul_f32 v{T0}, 0xbfb8aa3b, v{T0+4}"); A(f"v_exp_f32 v{T0}, v{T0}"); A(f"v_add_f32 v{T0}, 1.0, v{T0}")
    A(f"v_rcp_f32 v{T0}, v{T0}"); A(f"v_mul_f32 v{GV}, v{T0+4}, v{T0}")
    rbf(GV)
    A("s_cmp_lg_u32 s2, 0"); A("s_cbranch_scc1 L_noY")
    A("s_mov_b64 exec, 1")
    A(f"v_mov_b32 v{T0}, 0")
    A(f"buffer_store_dword v{EP}, v{T0}, s[40:43], s79 offen sc1")
    A("s_mov_b64 exec, -1")
    A("L_noY:")
    A(f"s_add_u32 s48, s73, {WS_S}")
    A(f"s_add_u32 s49, s48, 8192"); A(f"s_add_u32 s56, s48, 16384"); A(f"s_add_u32 s57, s48, 24576")
    A(f"v_mov_b32 v{T0}, 0")
    A(f"s_mov_b32 s70, {SPIN * 8}")
    A("L_pollP:")
    A(f"s_sleep {lsleep}")
    if steal or bal or mlat: A(f"ds_read_b32 v{T0+4}, v{T0} offset:{LGO}")
    else: A(f"ds_read_b128 v[{T0+4}:{T0+7}], v{T0} offset:{LPROG}")
    A("s_sub_u32 s70, s70, 1"); A("s_cbranch_scc1 L_pollP_done")
    A("s_waitcnt lgkmcnt(0)")
    if not (steal or bal or mlat):
        A(f"v_or3_b32 v{T0+4}, v{T0+4}, v{T0+5}, v{T0+6}"); A(f"v_or_b32 v{T0+4}, v{T0+4}, v{T0+7}")
    A(f"v_cmp_eq_u32 vcc, 0, v{T0+4}")
    A("s_nop 1")
    A("s_cbranch_vccnz L_pollP")
    A("L_pollP_done:")
    A("s_setprio 3")
    for n in range(16):
        A(f"buffer_load_dwordx4 v[{WO+4*n}:{WO+4*n+3}], v{WOA}, s[24:27], s71 offen{off((n&3)*1024)} {wflags}")
        if n & 3 == 3 and n < 15: A("s_addk_i32 s71, 0x1000")
    stamp("wiss")
    A("s_mov_b32 exec_hi, 0")
    A("s_barrier")
    for w in range(4): A(f"ds_read_b128 v[{T0+4*w}:{T0+4*w+3}], v{OUTA} offset:{LO+512*w}")
    stamp("bar2")
    for w in range(4):
        A(f"s_waitcnt lgkmcnt({3-w})" if not (stamps or probe) else "s_waitcnt lgkmcnt(0)")
        if fast and not steal:
            p = 74 + (w & 2); sel = "op_sel:[0,1] op_sel_hi:[1,1]" if w & 1 else "op_sel_hi:[1,0]"
            for k in (0, 2):
                if w == 0: A(f"v_pk_mul_f32 v[{DQ+k}:{DQ+k+1}], v[{T0+k}:{T0+k+1}], s[{p}:{p+1}] {sel}")
                else:
                    sel3 = "op_sel:[0,1,0] op_sel_hi:[1,1,1]" if w & 1 else "op_sel_hi:[1,0,1]"
                    A(f"v_pk_fma_f32 v[{DQ+k}:{DQ+k+1}], v[{T0+4*w+k}:{T0+4*w+k+1}], s[{p}:{p+1}], v[{DQ+k}:{DQ+k+1}] {sel3}")
            continue
        for k in range(4):
            if steal:
                if w == 1: A(f"v_add_f32 v{DQ+k}, v{T0+k}, v{T0+4+k}")
                elif w > 1: A(f"v_add_f32 v{DQ+k}, v{DQ+k}, v{T0+4*w+k}")
            elif w == 0: A(f"v_mul_f32 v{DQ+k}, s74, v{T0+k}")
            else: A(f"v_fmac_f32 v{DQ+k}, s{74+w}, v{T0+4*w+k}")
    tag(range(DQ, DQ + 4), "O")
    if local:
        A("s_cmp_lg_u32 s37, 0"); A("s_cbranch_scc1 L_far")
        A(f"buffer_store_dwordx4 v[{DQ}:{DQ+3}], v{OUTA}, s[40:43], s63 offen")
        A("s_branch L_near")
        A("L_far:")
    A(f"buffer_store_dwordx4 v[{DQ}:{DQ+3}], v{OUTA}, s[40:43], s63 offen sc1")
    if local: A("L_near:")
    A("s_mov_b64 exec, -1")
    stamp("opub")
    def o_loads(base):
        for k in range(8): A(f"buffer_load_dword v{base+k}, v{OGA}, s[40:43], s78 offen{off(k*512)} sc1")
    def o_finish(b):
        if fast:
            pkadd(b, b, b + 2); pkadd(b + 4, b + 4, b + 6); pkadd(b, b, b + 4)
            A(f"v_add_f32 v{T0+3}, v{b}, v{b+1}")
            return
        untag(range(b, b + 8))
        for k in range(4): A(f"v_add_f32 v{b+2*k}, v{b+2*k}, v{b+2*k+1}")
        A(f"v_add_f32 v{b}, v{b}, v{b+2}"); A(f"v_add_f32 v{b+4}, v{b+4}, v{b+6}")
        A(f"v_add_f32 v{T0+3}, v{b}, v{b+4}")
    poll_pipe("pollO", r1, d1, 8, 8, o_loads, o_finish)
    stamp("oseen")
    A(f"v_cvt_pk_bf16_f32 v{PD}, v{T0+3}, v{T0+3}")
    abuild(AB, PD, M0, 0)
    for n in range(16):
        if n < 15: abuild(AB + 4 * ((n + 1) & 1), PD, M0, n + 1)
        mfma(DQ, AB + 4 * (n & 1), WO + 4 * n, n == 0)
    A("s_mov_b32 exec_hi, 0")
    tag(range(DQ, DQ + 4), "S")
    A(f"buffer_store_dwordx4 v[{DQ}:{DQ+3}], v{OUTA}, s[40:43], s64 offen sc1")
    A("s_mov_b64 exec, -1")
    stamp("spub")
    A("s_cmp_lg_u32 s36, 0"); A("s_cbranch_scc1 L_sdone")
    PS = 64
    def s_finish(b):
        for k in (0, 2): pkadd(b + k, b + k, b + 4 + k); pkadd(b + 8 + k, b + 8 + k, b + 12 + k)
        for k in (0, 2): pkadd(T0 + 4 + k, b + k, b + 8 + k)
    poll_pipe("pollS", r2, d2, 16, 4, gather((48, 49, 56, 57)), s_finish if fast else reduce)
    stamp("sseen")
    reduce2()
    A(f"v_mul_f32 v{T0+4}, v{T0+4}, v{GV}")
    rbf(T0 + 4)
    A(f"v_add_f32 v{T0+4}, v{T0+4}, v{XV}")
    A(f"v_cvt_pk_bf16_f32 v{T0+4}, v{T0+4}, v{T0+4}")
    A("s_mov_b32 exec_lo, 0x000f000f"); A("s_mov_b32 exec_hi, 0x000f000f")
    A(f"buffer_store_short v{T0+4}, v{XF}, s[32:35], 0 offen {oflags}")
    A("L_sdone:")
    if stamps or probe: A("s_waitcnt vmcnt(0)")
    stamp("end")
    if probe:
        A("s_cmp_lg_u32 s2, 0"); A("s_cbranch_scc1 L_end")
        A("s_memrealtime s[84:85]"); A("s_waitcnt lgkmcnt(0)")
        A("s_sub_u32 s82, s82, s80"); A(f"s_mul_i32 s82, s82, {probek}"); A("s_min_u32 s82, s82, 100000")
        A("L_probe:")
        A("s_memrealtime s[86:87]"); A("s_waitcnt lgkmcnt(0)")
        A("s_sub_u32 s86, s86, s84"); A("s_cmp_lt_u32 s86, s82"); A("s_cbranch_scc1 L_probe")
    dump_stamps()
    A("L_end:")
    A("s_endpgm")
    A.L += stream_body

    body = A.fix()
    hdr = open("cdna_kernels/" + NAME + ".s.ref").read().split("\n")
    hdr = [l for l in hdr if l.startswith(";") and "@launch" not in l and "Override" not in l and "grid=ceil" not in l]
    out = hdr + [f"; @launch grid=(256,1,1) block=({384 if steal or bal else 320},1,1) lds={12288 if steal else 3072}",
                 '.amdgcn_target "amdgcn-amd-amdhsa--gfx950"', ".text", f".globl {KN}", ".p2align 8", f".type {KN},@function"]
    out += [l if l.endswith(":") else "    " + l for l in body]
    nv = max(48 + 4 * nslot + (4 if bal else 0), 224)
    out += ['.section .rodata,"a"', ".p2align 6", f".amdhsa_kernel {KN}", f"  .amdhsa_next_free_vgpr {nv}",
            "  .amdhsa_next_free_sgpr 102", f"  .amdhsa_accum_offset {nv}", "  .amdhsa_group_segment_fixed_size 0",
            "  .amdhsa_kernarg_size 96", "  .amdhsa_user_sgpr_count 2", "  .amdhsa_user_sgpr_kernarg_segment_ptr 1",
            "  .amdhsa_system_sgpr_workgroup_id_x 1", ".end_amdhsa_kernel"]
    return "\n".join(out) + "\n", stamp_list

if __name__ == "__main__":
    kw = eval("dict(" + (sys.argv[2] if len(sys.argv) > 2 else "") + ")")
    open(sys.argv[1], "w").write(gen(**kw)[0])
```

```python
import sys
from asmlib import Asm
NAME = "recurrent_scan__mha_block_cached__glu_gated_glu__decode"
KN = NAME + "_kernel"

WS_A  = 0x00000
WS_O  = 0x40000
WS_S  = 0x60000
WS_Y  = 0x80000
WS_ML = 0xA0000
WS_E  = 0xB0000
WS_C  = 0xB8000
WS_B  = 0x200000
WS_P  = 0xC0000
WS_ST = 0x100000
WS_BYTES = 268435456
LQ, LML, LPROG, LQF, LH, LO = 0, 256, 288, 304, 320, 1024
LGO, LPF, LLV = 308, 312, 316
LF, LREC, LP, LPT = 576, 640, 3072, 4096
END = 0x7fffffff
LOG2E = "0x3fb8aa3b"
SCALE = "0x3db504f3"
SPIN = 1 << 17

SETS = {"early": "bar0 issued x ln apub aseen qdone ypub ml mlx end qready kdone vdone",
        "prog": "bar0 i16 i32 i48 i64 i80 i96 i112 i127 vdone apub aseen mlx end",
        "clk": "bar0 clk0 i64 clk1 vdone clk2 end",
        "steal2": "mlx table end i96 i102 i111 rec0 rec1 rec2 static tready vdone",
        "steal": "mlx table wiss bar2 opub oseen spub sseen end kdone static tready vdone qdone issued qready",
        "boot": "karg pre far bar0 i8 i12 skarg sx s8 s16 issued x ln",
        "late": "qdone mlx wiss bar2 opub oseen spub sseen end issued qready kdone vdone"}

def gen(nslot=48, npre=4, burst=4, every=6, cap=6, dist=None, plate=1, stamps=False, kvflags="nt", wflags="nt", gflags="",
        asleep=30, lsleep=1, psleep=4, mapx=False, r1=3, r2=3, d1=2, d2=2, local=False, skip="", probe=None, probek=8, touch=False, bar0=16, scap=0, amap=False, gap=0, steal=False, np_=8, ah=5, golate=2, noatom=False, aflags='sc0 sc1', capl=0, capsel=1, capfrom=0, bal=False, tk=4, th=4, lv=(5, 6, 7), bfrom=12, bto=108, bgrp=3, bstr=2, mlstr=4, mlat=None, oflags='', fast=False, pre='', preflags='', rnd='', sched=None, pat=None, ph=(0, 0, 0)):
    A = Asm()
    stamp_list = []
    role = ["S"]
    if bal: cap = lv[2]
    if dist is None: dist = cap
    def stamp(name):
        if probe and role[0] == "S" and name == probe:
            A("s_memrealtime s[82:83]")
        if stamps and name in SETS[stamps].split() and not (stamps in ("late", "steal") and role[0] == "S" and name == "issued"):
            k = len([x for x in stamp_list if x[0] == role[0]])
            stamp_list.append((role[0], name))
            A(f"{'s_memtime' if name.startswith('clk') else 's_memrealtime'} s[{80+2*k}:{81+2*k}]")
    def rbf(r):
        A(f"v_cvt_pk_bf16_f32 v{r}, v{r}, v{r}")
        A(f"v_and_b32 v{r}, 0xffff0000, v{r}")
    def masks(m0, t0, t1):
        A(f"v_and_b32 v{t0}, 1, v0")
        A(f"v_lshlrev_b32 v{t0}, 4, v{t0}")
        A(f"v_lshlrev_b32 v{t0}, v{t0}, s50")
        A(f"v_bfe_u32 v{t1}, v0, 1, 2")
        for r in range(4): A(f"v_cmp_eq_u32 s[{84+2*r if not (stamps or probe) else 62+2*r}:{85+2*r if not (stamps or probe) else 63+2*r}], {r}, v{t1}")
        for r in range(4): A(f"v_cndmask_b32 v{m0+r}, 0, v{t0}, s[{84+2*r if not (stamps or probe) else 62+2*r}:{85+2*r if not (stamps or probe) else 63+2*r}]")
    def abuild(a0, p, m0, n):
        for r in range(4):
            A(f"v_and_b32_dpp v{a0+r}, v{p}, v{m0+r} row_newbcast:{n} row_mask:0xf bank_mask:0xf")
    def dpp(op, d, s, ctl, rm="0xf", bm="0xf"):
        A(f"{op}_dpp v{d}, v{s}, v{s} {ctl} row_mask:{rm} bank_mask:{bm}")
    def wave_red(op, v):
        for c in ("quad_perm:[1,0,3,2]", "quad_perm:[2,3,0,1]", "row_half_mirror", "row_mirror"): dpp(op, v, v, c)
        dpp(op, v, v, "row_bcast:15", "0xa"); dpp(op, v, v, "row_bcast:31", "0xc")
    def mfma(d, a, b, first):
        A(f"v_mfma_f32_16x16x32_bf16 v[{d}:{d+3}], v[{a}:{a+3}], v[{b}:{b+3}], {0 if first else f'v[{d}:{d+3}]'}")
    def srd(d, off, nbytes):
        A(f"s_load_dwordx2 s[{d}:{d+1}], s[0:1], {off}")
        A(f"s_mov_b32 s{d+2}, {nbytes}")
        A(f"s_mov_b32 s{d+3}, 0x20000")
    def off(n): return f" offset:{n}" if n else ""
    def dump_stamps():
        if not stamps: return
        mine = [x for x in stamp_list if x[0] == role[0]]
        A("s_mov_b64 exec, -1")
        A("s_waitcnt lgkmcnt(0)")
        for k in range(len(mine)): A(f"v_writelane_b32 v0, s{80+2*k}, {k}")
        A("s_getreg_b32 s48, hwreg(HW_REG_XCC_ID)"); A("v_writelane_b32 v0, s48, 15")
        A("s_getreg_b32 s48, hwreg(HW_REG_HW_ID)"); A("v_writelane_b32 v0, s48, 14")
        A("s_load_dwordx2 s[40:41], s[0:1], 88"); A(f"s_mov_b32 s42, {WS_BYTES}"); A("s_mov_b32 s43, 0x20000")
        A("s_mul_i32 s48, s2, 5"); A("s_add_u32 s48, s48, s3"); A("s_lshl_b32 s48, s48, 6"); A(f"s_add_u32 s48, s48, {WS_ST}")
        A("v_mbcnt_lo_u32_b32 v1, -1, 0"); A("v_lshlrev_b32 v1, 2, v1")
        A("s_mov_b64 exec, 0xffff")
        A("s_waitcnt lgkmcnt(0)")
        A("buffer_store_dword v0, v1, s[40:43], s48 offen")

    A(f"{KN}:")
    if stamps or probe: A("s_memrealtime s[80:81]")
    if fast:
        A("s_load_dwordx2 s[8:9], s[0:1], 8"); A("s_load_dwordx2 s[12:13], s[0:1], 16")
    A("v_lshrrev_b32 v1, 6, v0")
    A("s_cmp_ge_u32 s2, 256")
    A("s_cbranch_scc1 L_end")
    A("v_readfirstlane_b32 s3, v1")
    if mapx:
        A("s_lshr_b32 s4, s2, 3"); A("s_and_b32 s5, s2, 7")
    else:
        A("s_and_b32 s4, s2, 31"); A("s_lshr_b32 s5, s2, 5")
    A("v_and_b32 v0, 63, v0")
    A("s_mov_b32 s50, 0xffff")
    A("s_cmp_eq_u32 s3, 4")
    A("s_cbranch_scc1 L_service")
    if steal or bal:
        A("s_cmp_eq_u32 s3, 5")
        A("s_cbranch_scc1 L_claim")
    nst = 128 - 2 * np_ if steal else 128

    role[0] = "W"; stamp_list.append(("W", "start"))
    VL16, M0, Q0, S0, AB, D0, P0, T0, RING = 1, 2, 6, 10, 14, 22, 26, 42, 48
    LVR, LVA = RING + 4 * nslot, RING + 4 * nslot + 1
    if fast:
        for d in (8, 12): A(f"s_mov_b32 s{d+2}, {64 << 20}"); A(f"s_mov_b32 s{d+3}, 0x20000")
    else:
        srd(8, 8, 64 << 20); srd(12, 16, 64 << 20)
    A("s_lshl_b32 s48, s4, 21"); A("s_lshl_b32 s49, s5, 18"); A("s_add_u32 s48, s48, s49")
    if not pat:
        A("s_lshl_b32 s49, s3, 12"); A("s_add_u32 s48, s48, s49")
        A("s_mov_b32 s49, s48")
        A(f"v_lshlrev_b32 v{VL16}, 4, v0")
    else:
        assert not steal
        sh = {n: 8 + k for k, n in enumerate(pat.split())}
        assert sh["c0"] < sh["c1"] <= 11 and sh["c1"] < sh["c2"] < sh["c3"] < sh["c4"] < sh["c5"] and all(x % 4 == 0 for x in ph)
        CM = sum(1 << sh[f"c{k}"] for k in range(2, 6))
        for k in range(2):
            A(f"s_bfe_u32 s49, s3, {k | (1 << 16)}"); A(f"s_lshl_b32 s49, s49, {sh[f'w{k}']}"); A("s_add_u32 s48, s48, s49")
        A(f"v_and_b32 v{VL16}, 15, v0"); A(f"v_lshlrev_b32 v{VL16}, 4, v{VL16}")
        for k in range(2):
            A(f"v_bfe_u32 v2, v0, {4 + k}, 1"); A(f"v_lshl_add_u32 v{VL16}, v2, {sh[f'g{k}']}, v{VL16}")
        A(f"s_mul_i32 s59, s5, {ph[1]}")
        if ph[0]: A("s_and_b32 s49, s4, 7"); A(f"s_mul_i32 s49, s49, {ph[0]}"); A("s_add_u32 s59, s59, s49")
        if ph[2]: A("s_lshr_b32 s49, s4, 3"); A(f"s_mul_i32 s49, s49, {ph[2]}"); A("s_add_u32 s59, s59, s49")
        A("s_mov_b32 s56, 0")
        for k in range(2, 6):
            A(f"s_bfe_u32 s49, s59, {k | (1 << 16)}"); A(f"s_lshl_b32 s49, s49, {sh[f'c{k}']}"); A("s_add_u32 s56, s56, s49")
        A("s_add_u32 s49, s48, s56")
        A(f"s_mov_b32 s60, {hex(CM)}")
    A("s_waitcnt lgkmcnt(0)")
    stamp("karg")
    issued = [0]; waited = [-1]
    def slot(i): return RING + 4 * (i % nslot)
    extra = [None]
    def wait_for(i):
        if i > waited[0]:
            n = issued[0] - 1 - i + (1 if extra[0] is not None and i < extra[0] else 0)
            A(f"s_waitcnt vmcnt({n})"); waited[0] = i
    def capof(i):
        if not sched: return cap
        c = cap
        for frm, val in sched:
            if i >= frm: c = val
        return c[i % len(c)] if isinstance(c, tuple) else c
    def tick():
        A(f"ds_write_b32 v{T0+4}, v{T0+5} offset:{LPROG}")
        A(f"v_add_u32 v{T0+5}, 1, v{T0+5}")
    def issue():
        i = issued[0]
        ii = i % 64; s = 8 if i < 64 else 12
        if pat:
            if ii % 4 == 0 and i:
                A("s_orn2_b32 s56, s56, s60"); A(f"s_add_u32 s56, s56, {1 << sh['c2']}"); A("s_and_b32 s56, s56, s60"); A("s_add_u32 s49, s48, s56")
        elif i == 64: A("s_mov_b32 s49, s48")
        elif ii % 4 == 0 and i:
            A("s_addk_i32 s49, 0x4000")
        if bal and i >= npre and ii % tk == 0 and bfrom <= i <= bto + tk:
            if i > bfrom:
                A("s_waitcnt lgkmcnt(0)"); A(f"v_readfirstlane_b32 s58, v{LVR}")
                A("s_and_b32 vcc_lo, s58, 2")
            if i <= bto:
                tick(); A(f"ds_read_b32 v{LVR}, v{LVA} offset:{LLV}")
        if bal and i >= npre and ii % 4 == 0: A("s_cmp_eq_u32 s58, 0")
        c_ = capof(i)
        if c_ and i >= c_: wait_for(i - c_)
        if bal and i >= max(npre, lv[0]):
            A(f"s_cbranch_vccnz L_c{i}")
            if i >= lv[1]: A(f"s_waitcnt vmcnt({lv[1] - 1})")
            A(f"s_cbranch_scc1 L_c{i}"); A(f"s_waitcnt vmcnt({lv[0] - 1})"); A(f"L_c{i}:")
        if capl and i >= max(capl, capfrom, npre) and i - capl > waited[0]:
            A(f"s_cbranch_vccnz L_c{i}"); A(f"s_waitcnt vmcnt({capl - 1})"); A(f"L_c{i}:")
        issued[0] += 1
        r = slot(i)
        imm = ((ii & 1) << sh["c0"]) + ((ii >> 1 & 1) << sh["c1"]) if pat else (ii % 4) * 1024
        A(f"buffer_load_dwordx4 v[{r}:{r+3}], v{VL16}, s[{s}:{s+3}], s49 offen{off(imm)} {kvflags}")
        stamp(f"i{i}")
        if steal and i >= nst - 2 * ah and (nst - i) % 2 == 0: tick()
        if i == 64: stamp("clk1")
    for _ in range(npre): issue()
    if touch:
        A(f"buffer_load_dword v{T0+3}, v{VL16}, s[12:15], s48 offen {kvflags}")
        extra[0] = issued[0]
    stamp("pre")
    A("s_branch L_stream")
    stream_at = len(A.L)
    A("L_stream:")
    stamp("far")
    masks(M0, T0, T0 + 1)
    A("s_mov_b32 s52, 0xcccccccc"); A("s_mov_b32 s53, 0xcccccccc")
    A("s_mov_b32 s54, 0xaaaaaaaa"); A("s_mov_b32 s55, 0xaaaaaaaa")
    A(f"v_and_b32 v{T0+2}, 15, v0"); A(f"v_lshlrev_b32 v{T0+2}, 4, v{T0+2}")
    A(f"v_mov_b32 v{T0+4}, s3"); A(f"v_lshlrev_b32 v{T0+4}, 2, v{T0+4}"); A(f"v_mov_b32 v{T0+5}, 1")
    def setlevel():
        if bal:
            A("s_and_b32 vcc_lo, s58, 2"); A("s_mov_b32 vcc_hi, 0"); A("s_cmp_eq_u32 s58, 0")
        if capl:
            A(f"s_and_b32 vcc_lo, s3, {capsel}"); A("s_mov_b32 vcc_hi, 0")
    if bal:
        A("s_mov_b32 s58, 0"); A(f"v_mov_b32 v{LVA}, 0")
    setlevel()
    A("s_barrier")
    stamp("bar0"); stamp("clk0")
    for _ in range(nslot - npre): issue()
    stamp("issued")
    A(f"v_mov_b32 v{T0+1}, 0")
    A(f"s_mov_b32 s57, {SPIN * 8}")
    A("L_pollQ:")
    A(f"ds_read_b32 v{T0}, v{T0+1} offset:{LQF}")
    A(f"ds_read_b128 v[{Q0}:{Q0+3}], v{T0+2} offset:{LQ}")
    A("s_sub_u32 s57, s57, 1"); A("s_cbranch_scc1 L_pollQ_done")
    A("s_waitcnt lgkmcnt(0)")
    A(f"v_cmp_eq_u32 vcc, 0, v{T0}")
    A("s_nop 1")
    A("s_cbranch_vccnz L_pollQ")
    A("L_pollQ_done:")
    setlevel()
    stamp("qready")
    def maybe_issue(i):
        want = max(nslot + min(i + 1, burst + i // every) if i < nslot else 0, min(i + 1 + (max(capof(i + 1 + k) for k in range(13)) if sched else dist), nslot + i + 1))
        while issued[0] < min(nst, want): issue()
    for i in range(64):
        n = i % 16; r = slot(i)
        A(f"v_mov_b32 v{P0+n}, 0")
        wait_for(i)
        for k in range(4): A(f"v_dot2c_f32_bf16 v{P0+n}, v{r+k}, v{Q0+k}")
        maybe_issue(i)
        if n == 15:
            a = i // 16
            for k in range(8):
                dpp("v_add_f32", P0 + k, P0 + k, "row_ror:8", bm="0x3"); dpp("v_add_f32", P0 + k, P0 + k + 8, "row_ror:8", bm="0xc")
            if gap and i >= nslot - 1 and gap > 1: issue()
            for k in range(4):
                dpp("v_add_f32", P0 + k, P0 + k, "row_half_mirror", bm="0x5"); dpp("v_add_f32", P0 + k, P0 + k + 4, "row_half_mirror", bm="0xa")
            for k in range(4): dpp("v_add_f32", P0 + k, P0 + k, "quad_perm:[2,3,0,1]")
            A(f"v_cndmask_b32 v{P0}, v{P0}, v{P0+2}, s[52:53]")
            A(f"v_cndmask_b32 v{P0+1}, v{P0+1}, v{P0+3}, s[52:53]")
            for k in range(2): dpp("v_add_f32", P0 + k, P0 + k, "quad_perm:[1,0,3,2]")
            A(f"v_cndmask_b32 v{S0+a}, v{P0}, v{P0+1}, s[54:55]")
            rbf(S0 + a)
            A(f"v_mul_f32 v{S0+a}, {SCALE}, v{S0+a}")
            rbf(S0 + a)
    stamp("kdone")
    A(f"v_max3_f32 v{T0}, v{S0}, v{S0+1}, v{S0+2}")
    A(f"v_max_f32 v{T0}, v{T0}, v{S0+3}")
    wave_red("v_max_f32", T0)
    if gap: issue()
    A(f"v_readlane_b32 s51, v{T0}, 63")
    for a in range(4): A(f"v_subrev_f32 v{S0+a}, s51, v{S0+a}")
    for a in range(4): A(f"v_mul_f32 v{S0+a}, {LOG2E}, v{S0+a}")
    for a in range(4): A(f"v_exp_f32 v{S0+a}, v{S0+a}")
    A(f"v_add_f32 v{T0+1}, v{S0}, v{S0+1}")
    A(f"v_add_f32 v{T0+3}, v{S0+2}, v{S0+3}")
    A(f"v_add_f32 v{T0+1}, v{T0+1}, v{T0+3}")
    if steal:
        A(f"v_bfe_u32 v{P0}, v0, 2, 2"); A(f"v_and_b32 v{P0+1}, 3, v0"); A(f"v_lshrrev_b32 v{P0+2}, 4, v0")
        A(f"v_lshlrev_b32 v{P0}, 8, v{P0}"); A(f"v_lshl_add_u32 v{P0}, v{P0+1}, 4, v{P0}"); A(f"v_lshl_add_u32 v{P0}, v{P0+2}, 2, v{P0}")
        A(f"v_lshl_add_u32 v{P0}, v{T0+4}, 4, v{P0}")
        A(f"ds_write_b32 v{P0}, v{S0+3} offset:{LP}")
    for a in range(4): A(f"v_cvt_pk_bf16_f32 v{S0+a}, v{S0+a}, v{S0+a}")
    abuild(AB, S0, M0, 0)
    if gap: issue()
    wave_red("v_add_f32", T0 + 1)
    A(f"v_lshlrev_b32 v{T0+3}, 1, v{T0+4}")
    A("s_mov_b32 exec_lo, 0"); A("s_mov_b32 exec_hi, 0x80000000")
    A(f"ds_write_b64 v{T0+3}, v[{T0}:{T0+1}] offset:{LML}")
    A("s_mov_b64 exec, -1")
    A(f"v_and_b32 v{T0}, 15, v0"); A(f"v_lshlrev_b32 v{T0}, 5, v{T0}")
    A(f"v_and_b32 v{T0+2}, 16, v0"); A(f"v_add_u32 v{T0}, v{T0}, v{T0+2}")
    A(f"v_lshl_add_u32 v{T0}, v{T0+4}, 7, v{T0}")
    if mlat: A(f"v_mov_b32 v{T0+1}, 0")
    def procv(i):
        wait_for(i)
        mfma(D0, AB + 4 * (i & 1), slot(i), i == 64)
        if i < nst - 1: abuild(AB + 4 * ((i + 1) & 1), S0 + (i + 1 - 64) // 16, M0, (i + 1) % 16)
    if not steal:
        for i in range(64, 128):
            procv(i); maybe_issue(i)
            if i == mlat: A(f"ds_write_b32 v{T0+4}, v{T0+5} offset:{LPROG}")
            if i == 127 - plate:
                if mlat: A(f"ds_write_b32 v{T0+1}, v{T0+5} offset:{LGO}")
                elif bal: A(f"ds_write_b32 v{LVA}, v{T0+5} offset:{LGO}")
                else: A(f"ds_write_b32 v{T0+4}, v{T0+5} offset:{LPROG}")
    else:
        assert dist == 6 and cap == 6
        PR, RECA, PTA = P0, P0 + 4, P0 + 5
        UB = [slot(nst + 2 * k) for k in range(4)]
        assert UB[3] + 8 <= RING + 4 * nslot and UB == [UB[0] + 8 * k for k in range(4)]
        A(f"v_mov_b32 v{RECA}, {LREC}")
        A(f"v_and_b32 v{PTA}, 1, v0"); A(f"v_lshrrev_b32 v{P0+6}, 4, v0"); A(f"v_lshl_add_u32 v{PTA}, v{PTA}, 2, v{P0+6}")
        A(f"v_lshlrev_b32 v{PTA}, 2, v{PTA}"); A(f"v_lshl_add_u32 v{PTA}, v{T0+4}, 3, v{PTA}")
        A("s_lshl_b32 s58, s4, 21"); A("s_lshl_b32 s59, s3, 11"); A("s_add_u32 s58, s58, s59"); A(f"s_add_u32 s58, s58, {(1024 - 32 * np_) * 256}")
        A("s_mov_b32 s59, 0x10000")
        A("s_mov_b32 s68, 0x7fff0000")
        for i in range(64, nst - 6):
            procv(i); maybe_issue(i)
        assert issued[0] == nst
        lab = [0]
        def fetch(k):
            n = lab[0]; lab[0] += 1
            tick()
            A("s_mov_b32 s64, s68")
            A("s_cmp_lt_u32 s59, 4"); A(f"s_cbranch_scc1 L_go{n}")
            A(f"s_mov_b32 s57, {SPIN * 8}")
            A(f"L_rec{n}:")
            A(f"ds_read_b32 v{P0+6}, v{RECA}")
            A("s_sub_u32 s57, s57, 1"); A(f"s_cbranch_scc1 L_stop{n}")
            A("s_waitcnt lgkmcnt(0)")
            A(f"v_readfirstlane_b32 s65, v{P0+6}")
            A("s_cmp_eq_u32 s65, -1"); A(f"s_cbranch_scc1 L_rec{n}")
            A(f"s_cmp_lt_u32 s65, {8 * np_}"); A(f"s_cbranch_scc1 L_unit{n}")
            A(f"L_stop{n}:")
            A("s_mov_b32 s59, 3")
            A(f"s_branch L_go{n}")
            A(f"L_unit{n}:")
            A("s_and_b32 s66, s65, 7"); A("s_lshl_b32 s66, s66, 18"); A("s_lshr_b32 s67, s65, 3"); A("s_lshl_b32 s67, s67, 13")
            A("s_add_u32 s64, s58, s66"); A("s_add_u32 s64, s64, s67")
            A(f"s_lshl_b32 s{60+k}, s65, 7")
            A(f"v_add_u32 v{RECA}, 4, v{RECA}")
            A(f"L_go{n}:")
            if n < 3: stamp(f"rec{n}")
            for b in range(2): A(f"buffer_load_dwordx4 v[{UB[k]+4*b}:{UB[k]+4*b+3}], v{VL16}, s[12:15], s64 offen{off(1024*b)} {kvflags}")
        def pread(k):
            A(f"v_add_u32 v{P0+7}, s{60+k}, v{PTA}")
            A(f"ds_read_b32 v{PR+k}, v{P0+7} offset:{LPT}")
        for k in range(4): A(f"s_mov_b32 s{60+k}, 0")
        for k in range(3):
            fetch(k)
            for i in (nst - 6 + 2 * k, nst - 5 + 2 * k):
                A(f"s_waitcnt vmcnt({nst - 1 - i + 2 * (k + 1)})"); waited[0] = i
                procv(i)
            A("s_sub_u32 s59, s59, 1")
        stamp("static")
        A(f"v_mov_b32 v{P0+6}, 0")
        A(f"s_mov_b32 s57, {SPIN * 8}")
        A("L_pollT:")
        A(f"ds_read_b32 v{P0+7}, v{P0+6} offset:{LPF}")
        A(f"ds_read_b32 v{P0+8}, v{T0+4} offset:{LF}")
        A("s_sub_u32 s57, s57, 1"); A("s_cbranch_scc1 L_pollT_done")
        A("s_waitcnt lgkmcnt(0)")
        A(f"v_cmp_eq_u32 vcc, 0, v{P0+7}")
        A("s_nop 1")
        A("s_cbranch_vccnz L_pollT")
        A("L_pollT_done:")
        stamp("tready")
        pread(0)
        A("s_nop 7")
        for k in range(4): A(f"v_mul_f32 v{D0+k}, v{D0+k}, v{P0+8}")
        A("s_cmp_eq_u32 s59, 0"); A("s_cbranch_scc1 L_pool_done")
        A("L_pool:")
        for k in range(4):
            fetch((k + 3) % 4)
            A("s_waitcnt lgkmcnt(0)")
            abuild(AB, PR + k, M0, 0); abuild(AB + 4, PR + k, M0, 1)
            pread((k + 1) % 4)
            A("s_waitcnt vmcnt(7)")
            mfma(D0, AB, UB[k], False)
            A("s_waitcnt vmcnt(6)")
            mfma(D0, AB + 4, UB[k] + 4, False)
            A("s_sub_u32 s59, s59, 1"); A("s_cmp_eq_u32 s59, 0")
            A("s_cbranch_scc1 L_pool_done" if k < 3 else "s_cbranch_scc0 L_pool")
        A("L_pool_done:")
        A("s_nop 5")
    stamp("vdone"); stamp("clk2")
    A("s_mov_b32 exec_hi, 0")
    A(f"ds_write_b128 v{T0}, v[{D0}:{D0+3}] offset:{LO}")
    A("s_waitcnt lgkmcnt(0)")
    A("s_barrier")
    dump_stamps()
    A("s_endpgm")
    if steal:
        A("L_claim:")
        srd(40, 88, WS_BYTES)
        A("s_lshl_b32 s48, s4, 7"); A(f"s_add_u32 s48, s48, {WS_C}")
        A("v_mov_b32 v1, 0"); A(f"v_mov_b32 v3, {LREC}"); A(f"v_mov_b32 v12, {END}")
        A("s_mov_b32 s49, 0")
        A("s_barrier")
        A("s_waitcnt lgkmcnt(0)")
        A("s_mov_b64 exec, 1")
        cl = [0]
        def wait_prog(lim):
            n = cl[0]; cl[0] += 1
            A(f"s_mov_b32 s57, {SPIN * 8}")
            A(f"L_cw{n}:")
            A(f"s_sleep {lsleep}")
            A(f"ds_read_b128 v[4:7], v1 offset:{LPROG}")
            A("s_sub_u32 s57, s57, 1"); A("s_cbranch_scc1 L_claim_end")
            A("s_waitcnt lgkmcnt(0)")
            A("v_max3_u32 v4, v4, v5, v6"); A("v_max_u32 v4, v4, v7")
            A(f"v_cmp_ge_u32 vcc, s{lim}, v4")
            A("s_nop 1")
            A(f"s_cbranch_vccnz L_cw{n}")
        def claim(k):
            wait_prog(49)
            if noatom:
                A("s_lshl_b32 s51, s49, 3"); A("s_add_u32 s51, s51, s5"); A(f"v_mov_b32 v{8+k}, s51")
            else:
                A(f"v_mov_b32 v{8+k}, 1")
                A(f"buffer_atomic_add v{8+k}, v1, s[40:43], s48 offen {aflags}")
            A("s_add_u32 s49, s49, 1")
        for k in range(3): claim(k)
        A("L_claim_loop:")
        for k in range(4):
            claim((k + 3) % 4)
            A("s_waitcnt vmcnt(3)")
            A(f"ds_write_b32 v3, v{8+k}")
            A(f"v_cmp_le_u32 vcc, {8 * np_}, v{8+k}")
            A("v_add_u32 v3, 4, v3")
            A("s_nop 0")
            A("s_cbranch_vccnz L_claim_done" if k < 3 else "s_cbranch_vccz L_claim_loop")
        A("L_claim_done:")
        A(f"s_add_u32 s49, s49, {ah - 4 + golate}")
        wait_prog(49)
        A("L_claim_end:")
        A("ds_write_b32 v3, v12")
        A("v_mov_b32 v2, 1")
        A(f"ds_write_b32 v1, v2 offset:{LGO}")
        A("s_waitcnt lgkmcnt(0)")
        A("s_endpgm")
    if bal:
        nt = (bto - bfrom) // tk + 1
        A("L_claim:")
        srd(40, 88, WS_BYTES)
        A(f"s_lshr_b32 s48, s2, {bgrp}"); A(f"s_lshl_b32 s48, s48, {max(7, bgrp + bstr)}"); A(f"s_add_u32 s48, s48, {WS_B}")
        A(f"s_and_b32 s51, s2, {(1 << bgrp) - 1}")
        A("v_mov_b32 v1, 0"); A(f"v_and_b32 v2, {(1 << bgrp) - 1}, v0"); A(f"v_lshlrev_b32 v2, {bstr}, v2")
        A(f"s_lshl_b32 s52, s51, {bstr}"); A("v_mov_b32 v3, s52")
        A(f"s_mov_b32 s79, {WS_E}")
        A("s_mov_b32 s49, 0")
        A("s_barrier")
        A("s_waitcnt lgkmcnt(0)")
        A("buffer_load_dword v8, v1, s[40:43], s79 offen sc1")
        A("s_waitcnt vmcnt(0)")
        A("v_add_u32 v8, 1, v8"); A("v_and_b32 v8, 0x3ff, v8")
        A("L_bal:")
        A(f"s_mov_b32 s57, {SPIN * 8}")
        A("L_balw:")
        A(f"s_sleep {lsleep}")
        A(f"ds_read_b128 v[4:7], v1 offset:{LPROG}")
        A("s_sub_u32 s57, s57, 1"); A("s_cbranch_scc1 L_bal_end")
        A("s_waitcnt lgkmcnt(0)")
        A("v_min3_u32 v4, v4, v5, v6"); A("v_min_u32 v4, v4, v7")
        A("v_readfirstlane_b32 s53, v4")
        A("s_cmp_le_u32 s53, s49"); A("s_cbranch_scc1 L_balw")
        A("s_mov_b32 s49, s53")
        A("v_lshl_or_b32 v4, v4, 10, v8")
        A("s_mov_b64 exec, 1")
        A("buffer_store_dword v4, v3, s[40:43], s48 offen sc1")
        A("s_mov_b64 exec, -1")
        A("buffer_load_dword v5, v2, s[40:43], s48 offen sc1")
        A("s_waitcnt vmcnt(0)")
        A("v_and_b32 v6, 0x3ff, v5"); A("v_cmp_eq_u32 vcc, v6, v8"); A("v_lshrrev_b32 v5, 10, v5")
        A("v_cndmask_b32 v5, 0, v5, vcc")
        A("v_readlane_b32 s54, v5, s51")
        for c in ("quad_perm:[1,0,3,2]", "quad_perm:[2,3,0,1]", "row_half_mirror") + (("row_mirror",) if bgrp > 3 else ()):
            A(f"v_add_u32_dpp v5, v5, v5 {c} row_mask:0xf bank_mask:0xf")
        A("v_readfirstlane_b32 s55, v5")
        A(f"s_lshl_b32 s54, s54, {bgrp}"); A("s_sub_i32 s55, s55, s54")
        A("s_mov_b32 s56, 0")
        A(f"s_cmp_gt_i32 s55, {th}"); A("s_cselect_b32 s56, 2, s56")
        A(f"s_cmp_lt_i32 s55, {-th}"); A("s_cselect_b32 s56, 1, s56")
        A("v_mov_b32 v6, s56")
        A(f"ds_write_b32 v1, v6 offset:{LLV}")
        A(f"s_cmp_lt_u32 s49, {nt}"); A("s_cbranch_scc1 L_bal")
        A("L_bal_end:")
        A("s_waitcnt lgkmcnt(0)")
        A("s_endpgm")
    stream_body = A.L[stream_at:]; del A.L[stream_at:]

    role[0] = "S"; stamp_list.append(("S", "start"))
    G, J, PD, M0, AB, DQ, DG, T0 = 1, 2, 3, 4, 8, 16, 20, 24
    XA, XR, EP, GA, OUTA, XF, PH, XV, WDA, WOA, RA, OGA, TAG, GV, L16 = 40, 44, 45, 46, 48, 49, 50, 51, 52, 58, 59, 60, 61, 62, 63
    WQ, GU = 64, 128
    WO, WD, PS = 64, 128, 160
    def tag(regs, kind=""):
        if kind and kind in rnd:
            for r in regs: A(f"v_add_u32 v{r}, 0x200, v{r}")
        for r in regs: A(f"v_and_or_b32 v{r}, v{r}, s7, v{TAG}")
    def untag(regs):
        for r in regs: A(f"v_and_b32 v{r}, s7, v{r}")
    def check(regs, t):
        regs = list(regs)
        pairs = [regs[k:k+2] for k in range(0, len(regs), 2)]
        A(f"v_bitop3_b32 v{t}, v{pairs[0][0]}, v{pairs[0][1]}, v{TAG} bitop3:0x7e")
        rest = pairs[1:]
        while rest:
            take = rest[:2]; rest = rest[2:]
            for k, p in enumerate(take): A(f"v_bitop3_b32 v{t+1+k}, v{p[0]}, v{p[1]}, v{TAG} bitop3:0x7e")
            if len(take) == 2: A(f"v_or3_b32 v{t}, v{t}, v{t+1}, v{t+2}")
            else: A(f"v_or_b32 v{t}, v{t}, v{t+1}")
        A(f"v_and_b32 v{t}, 0x3ff, v{t}")
        A(f"v_cmp_ne_u32 vcc, 0, v{t}")
    def strip(regs, t):
        regs = list(regs)
        for r in regs[::2]: A(f"v_lshl_add_u64 v[{r}:{r+1}], v[{r}:{r+1}], 0, s[14:15]")
        acc = [t, t + 1]; rest = regs[:]
        for a in acc: A(f"v_or3_b32 v{a}, v{rest[0]}, v{rest[1]}, v{rest[2]}"); rest = rest[3:]
        k = 0
        while len(rest) > 2 or (len(rest) == 2 and k & 1):
            A(f"v_or3_b32 v{acc[k&1]}, v{acc[k&1]}, v{rest[0]}, v{rest[1]}"); rest = rest[2:]; k += 1
        if len(rest) == 2:
            A(f"v_or3_b32 v{t}, v{t}, v{rest[0]}, v{rest[1]}"); rest = []
        assert not rest
        A(f"v_bitop3_b32 v{t}, v{t}, v{t+1}, s7 bitop3:0x54")
        A(f"v_cmp_ne_u32 vcc, 0, v{t}")
    def pkadd(d, a, b): A(f"v_pk_add_f32 v[{d}:{d+1}], v[{a}:{a+1}], v[{b}:{b+1}]")
    def poll(name, loads, regs, t, sleep):
        A(f"s_mov_b32 s70, {SPIN}")
        A(f"L_{name}:")
        if sleep: A(f"s_sleep {sleep}")
        loads()
        A("s_sub_u32 s70, s70, 1"); A(f"s_cbranch_scc1 L_{name}_done")
        A("s_waitcnt vmcnt(0)")
        if callable(regs): regs()
        else: check(regs, t)
        A("s_nop 1")
        if name not in skip.split(): A(f"s_cbranch_vccnz L_{name}")
        A(f"L_{name}_done:")
    def poll_pipe(name, R, delay, nreg, nld, loads, finish):
        A(f"s_mov_b32 s70, {SPIN}")
        for k in range(R - 1):
            loads(PS + nreg * k)
            if delay: A(f"s_sleep {delay}")
        A(f"L_{name}:")
        for k in range(R):
            loads(PS + nreg * ((k + R - 1) % R))
            if k == 0:
                A("s_sub_u32 s70, s70, 1"); A(f"s_cbranch_scc1 L_{name}_ok0")
            A(f"s_waitcnt vmcnt({nld * (R - 1)})")
            b = PS + nreg * k
            (strip if fast else check)(range(b, b + nreg), T0)
            A("s_nop 1")
            A(f"s_cbranch_vccz L_{name}_ok{k}" if k < R - 1 else f"s_cbranch_vccnz L_{name}")
        for k in reversed(range(R)):
            A(f"L_{name}_ok{k}:")
            finish(PS + nreg * k)
            if k: A(f"s_branch L_{name}_done")
        A(f"L_{name}_done:")

    A("L_service:")
    A("s_setprio 3")
    srd(16, 0, 1024); srd(20, 24, 4 << 20); srd(40, 88, WS_BYTES)
    A("s_load_dwordx4 s[44:47], s[0:1], 48")
    srd(24, 32, 4 << 20); srd(28, 64, 1376 * 1024); srd(32, 72, 1024)
    A(f"v_lshrrev_b32 v{G}, 4, v0"); A(f"v_and_b32 v{J}, 15, v0")
    if amap:
        HP, SP = 38, 39
        A("s_lshr_b32 s38, s2, 3"); A("s_and_b32 s39, s2, 7")
    else: HP, SP = 4, 5
    def chunks(hreg):
        if mapx or amap: A(f"s_mul_i32 s56, s{hreg}, 43")
        else:
            A(f"s_and_b32 s7, s{hreg}, 7"); A("s_lshl_b32 s7, s7, 2"); A(f"s_lshr_b32 s48, s{hreg}, 3"); A("s_add_u32 s7, s7, s48")
            A("s_mul_i32 s56, s7, 43")
        A("s_add_u32 s57, s56, 43"); A("s_lshr_b32 s56, s56, 3"); A("s_lshr_b32 s57, s57, 3")
        A("s_sub_u32 s57, s57, s56")
    chunks(HP)
    A(f"v_lshlrev_b32 v{L16}, 4, v0")
    A(f"s_lshl_b32 s48, s{SP}, 7")
    A(f"v_lshlrev_b32 v{T0+1}, 1, v0")
    A(f"v_lshlrev_b32 v{T0+3}, 4, v{J}")
    A(f"v_lshl_add_u32 v{T0+2}, v{G}, 17, v{T0+3}")
    A(f"s_lshl_b32 s49, s{SP}, 19"); A(f"s_lshl_b32 s51, s{HP}, 8"); A("s_add_u32 s49, s49, s51")
    A(f"v_and_b32 v{T0+4}, 7, v0")
    A(f"v_cmp_gt_u32 vcc, s57, v{T0+4}")
    A("s_mov_b32 s51, 44032"); A(f"s_mul_i32 s58, s{SP}, 176128")
    A(f"v_cndmask_b32 v{T0+4}, 0, v{T0+4}, vcc")
    A(f"v_add_lshl_u32 v{T0+4}, v{T0+4}, s56, 4")
    A(f"v_mad_u32_u24 v{T0+4}, v{G}, s51, v{T0+4}")
    A(f"v_add_u32 v{T0+4}, s58, v{T0+4}")
    A(f"v_mov_b32 v{T0+5}, 0")
    A(f"v_cmp_lt_u32 vcc, 7, v{J}")
    A(f"s_mov_b32 s79, {WS_E}")
    A("s_mov_b32 s60, 5504"); A("s_mov_b32 s61, 0")
    A("s_waitcnt lgkmcnt(0)")
    stamp("skarg")
    if steal:
        A(f"s_cmp_lg_u32 s{SP}, 0"); A("s_cbranch_scc1 L_noreset")
        A(f"s_lshl_b32 s51, s{HP}, 7"); A(f"s_add_u32 s51, s51, {WS_C}")
        A("s_mov_b64 exec, 1")
        A(f"buffer_store_dword v{T0+5}, v{T0+5}, s[40:43], s51 offen sc1")
        A("s_mov_b64 exec, -1")
        A("L_noreset:")
    if pre:
        A("s_lshl_b32 s6, s4, 3"); A("s_add_u32 s6, s6, s5")
        if "A" in pre:
            A(f"s_lshl_b32 s51, s{2 if amap else 6}, 10")
            A(f"buffer_load_dword v{T0+10}, v{L16}, s[40:43], s51 offen {preflags}")
        if "Y" in pre:
            A("s_lshl_b32 s51, s2, 9"); A(f"s_add_u32 s51, s51, {WS_Y}"); A(f"v_lshrrev_b32 v{T0+11}, 1, v{L16}")
            A(f"buffer_load_dword v{T0+10}, v{T0+11}, s[40:43], s51 offen {preflags}")
        if "S" in pre:
            A("s_lshl_b32 s51, s2, 9"); A(f"s_add_u32 s51, s51, {WS_S}"); A(f"v_lshrrev_b32 v{T0+11}, 1, v{L16}")
            A(f"buffer_load_dword v{T0+10}, v{T0+11}, s[40:43], s51 offen {preflags}")
    A(f"buffer_load_dwordx4 v[{XA}:{XA+3}], v{L16}, s[16:19], 0 offen")
    A(f"buffer_load_ushort v{XR}, v{T0+1}, s[16:19], s48 offen")
    A(f"buffer_load_dword v{EP}, v{T0+5}, s[40:43], s79 offen sc1")
    stamp("sx")
    A(f"v_mov_b32 v{T0+6}, s44"); A(f"v_mov_b32 v{T0+7}, s45"); A(f"v_mov_b32 v{T0+8}, s46"); A(f"v_mov_b32 v{T0+9}, s47")
    A(f"v_cndmask_b32 v{GA}, v{T0+6}, v{T0+8}, vcc"); A(f"v_cndmask_b32 v{GA+1}, v{T0+7}, v{T0+9}, vcc")
    A(f"v_lshl_add_u64 v[{GA}:{GA+1}], v[{T0+4}:{T0+5}], 0, v[{GA}:{GA+1}]")
    def lds_init():
        A(f"v_cmp_gt_u32 vcc, 8, v0"); A(f"v_lshlrev_b32 v{T0+7}, 2, v0"); A("s_mov_b32 s7, 0xfffffc00")
        A(f"v_cndmask_b32 v{T0+6}, 0, -1, vcc")
        A("s_mov_b64 exec, 0xffff")
        A(f"ds_write_b32 v{T0+7}, v{T0+6} offset:{LML}")
        A("s_mov_b64 exec, -1")
        if steal:
            A(f"v_mov_b32 v{T0+6}, -1")
            A(f"ds_write_b32 v{T0+7}, v{T0+6} offset:{LREC}"); A(f"ds_write_b32 v{T0+7}, v{T0+6} offset:{LREC+64}")
        A("s_waitcnt lgkmcnt(0)")
        A("s_barrier")
    for n in range(16):
        if n in (4, 8): stamp(f"s{2*n}")
        if n == bar0: lds_init()
        if scap and 2 * n + 3 >= scap: A(f"s_waitcnt vmcnt({scap - 2})")
        if "W" in skip.split(): A(f"buffer_load_dword v{WQ+4*n}, v{T0+5}, s[16:19], 0 offen")
        else: A(f"buffer_load_dwordx4 v[{WQ+4*n}:{WQ+4*n+3}], v{T0+2}, s[20:23], s49 offen {wflags}")
        if "G" in skip.split(): A(f"buffer_load_dword v{GU+4*n}, v{T0+5}, s[16:19], 0 offen")
        else: A(f"global_load_dwordx4 v[{GU+4*n}:{GU+4*n+3}], v[{GA}:{GA+1}], off{off(2752 * (n & 1))} {gflags}")
        if n < 15: A("s_addk_i32 s49, 0x2000")
        if n & 1 and n < 15: A(f"v_lshl_add_u64 v[{GA}:{GA+1}], v[{GA}:{GA+1}], 0, s[60:61]")
    if bar0 == 16: lds_init()
    stamp("issued")
    masks(M0, T0 + 6, T0 + 7)
    A("s_and_b32 s58, s5, 3"); A("s_lshr_b32 s59, s5, 2")
    A("s_lshl_b32 s6, s4, 3"); A("s_add_u32 s6, s6, s5")
    A(f"v_lshlrev_b32 v{OUTA}, 5, v{J}"); A(f"v_and_b32 v{T0}, 16, v0"); A(f"v_add_u32 v{OUTA}, v{OUTA}, v{T0}")
    A("s_lshl_b32 s63, s6, 9"); A(f"s_add_u32 s63, s63, {WS_O}")
    A("s_lshl_b32 s64, s58, 6"); A("s_lshl_b32 s48, s4, 1"); A("s_add_u32 s64, s64, s48"); A("s_add_u32 s64, s64, s59")
    A("s_lshl_b32 s64, s64, 9"); A(f"s_add_u32 s65, s64, {WS_Y}"); A(f"s_add_u32 s64, s64, {WS_S}")
    A(f"s_lshl_b32 s66, s6, {mlstr}"); A(f"s_add_u32 s66, s66, {WS_ML}")
    A(f"s_lshl_b32 s67, s{2 if amap else 6}, 10")
    if amap: chunks(4)
    A("s_mov_b32 s68, 0"); A("s_mov_b32 s69, -1")
    A("s_waitcnt vmcnt(32)")
    stamp("x")
    for k in range(4):
        A(f"v_lshlrev_b32 v{T0+2*k}, 16, v{XA+k}"); A(f"v_and_b32 v{T0+2*k+1}, 0xffff0000, v{XA+k}")
    A(f"v_add_f32 v{T0+8}, v{T0}, v{T0+1}"); A(f"v_add_f32 v{T0+9}, v{T0+2}, v{T0+3}")
    A(f"v_add_f32 v{T0+10}, v{T0+4}, v{T0+5}"); A(f"v_add_f32 v{T0+11}, v{T0+6}, v{T0+7}")
    A(f"v_add_f32 v{T0+8}, v{T0+8}, v{T0+9}"); A(f"v_add_f32 v{T0+10}, v{T0+10}, v{T0+11}")
    A(f"v_add_f32 v{T0+8}, v{T0+8}, v{T0+10}")
    A(f"v_add_u32 v{EP}, 1, v{EP}"); A(f"v_and_b32 v{TAG}, 0x3ff, v{EP}")
    if fast:
        A(f"v_readfirstlane_b32 s13, v{TAG}"); A("s_sub_u32 s14, 0, s13"); A("s_subb_u32 s15, 0, s13")
    wave_red("v_add_f32", T0 + 8)
    A(f"v_mul_f32 v{T0+8}, 0x3b000000, v{T0+8}")
    A(f"v_readlane_b32 s51, v{T0+8}, 63")
    for k in range(8): A(f"v_subrev_f32 v{T0+k}, s51, v{T0+k}")
    A(f"v_mul_f32 v{T0+9}, v{T0}, v{T0}"); A(f"v_mul_f32 v{T0+10}, v{T0+1}, v{T0+1}")
    for k in range(2, 8, 2):
        A(f"v_fmac_f32 v{T0+9}, v{T0+k}, v{T0+k}"); A(f"v_fmac_f32 v{T0+10}, v{T0+k+1}, v{T0+k+1}")
    A(f"v_add_f32 v{T0+9}, v{T0+9}, v{T0+10}")
    rbf(T0 + 8)
    wave_red("v_add_f32", T0 + 9)
    A(f"v_mul_f32 v{T0+9}, 0x3b000000, v{T0+9}")
    rbf(T0 + 9)
    A(f"v_add_f32 v{T0+9}, 0x3727c5ac, v{T0+9}")
    rbf(T0 + 9)
    A(f"v_sqrt_f32 v{T0+9}, v{T0+9}")
    A(f"v_readlane_b32 s51, v{T0+8}, 63")
    rbf(T0 + 9)
    A(f"v_lshlrev_b32 v{XR}, 16, v{XR}")
    A(f"v_readlane_b32 s62, v{T0+9}, 63")
    A(f"v_subrev_f32 v{XR}, s51, v{XR}")
    rbf(XR)
    A(f"v_rcp_f32 v{T0+10}, s62")
    A(f"v_mul_f32 v{T0+11}, v{XR}, v{T0+10}")
    A(f"v_fma_f32 v{T0+12}, -v{T0+11}, s62, v{XR}")
    A(f"v_fmac_f32 v{T0+11}, v{T0+12}, v{T0+10}")
    A(f"v_cvt_pk_bf16_f32 v{PD}, v{T0+11}, v{T0+11}")
    stamp("ln")
    abuild(AB, PD, M0, 0)
    for n in range(16):
        ab = AB + 4 * (n & 1)
        if n < 15: abuild(AB + 4 * ((n + 1) & 1), PD, M0, n + 1)
        A(f"s_waitcnt vmcnt({30-2*n})")
        mfma(DQ, ab, WQ + 4 * n, n == 0); mfma(DG, ab, GU + 4 * n, n == 0)
    A("s_lshl_b32 s48, s4, 13"); A("s_add_u32 s49, s48, 0x1000")
    A(f"v_lshrrev_b32 v{T0+3}, 1, v{OUTA}")
    for k in range(4): A(f"v_cndmask_b32 v{DQ+k}, v{DQ+k}, v{DG+k}, s[68:69]")
    tag(range(DQ, DQ + 4), "A")
    if "Ast" not in skip.split(): A(f"buffer_store_dwordx4 v[{DQ}:{DQ+3}], v{L16}, s[40:43], s67 offen {'' if 'Aplain' in skip.split() else 'sc1'}")
    stamp("apub")
    def a_loads():
        for k in range(8):
            if "Ald" not in skip.split(): A(f"buffer_load_dwordx4 v[{WQ+4*k}:{WQ+4*k+3}], v{L16}, s[40:43], s{48 + k // 4} offen{off((k&3)*1024)} sc1")
    poll("pollA", a_loads, range(WQ, WQ + 32), T0, asleep)
    stamp("aseen")
    untag(range(WQ, WQ + 32))
    for k in range(4):
        A(f"v_add_f32 v{WQ+k}, v{WQ+k}, v{WQ+4+k}"); A(f"v_add_f32 v{WQ+8+k}, v{WQ+8+k}, v{WQ+12+k}")
        A(f"v_add_f32 v{WQ+16+k}, v{WQ+16+k}, v{WQ+20+k}"); A(f"v_add_f32 v{WQ+24+k}, v{WQ+24+k}, v{WQ+28+k}")
    for k in range(4):
        A(f"v_add_f32 v{WQ+k}, v{WQ+k}, v{WQ+8+k}"); A(f"v_add_f32 v{WQ+16+k}, v{WQ+16+k}, v{WQ+24+k}")
    for k in range(4): A(f"v_add_f32 v{WQ+k}, v{WQ+k}, v{WQ+16+k}")
    A(f"v_cvt_pk_bf16_f32 v{T0+4}, v{WQ}, v{WQ+1}"); A(f"v_cvt_pk_bf16_f32 v{T0+5}, v{WQ+2}, v{WQ+3}")
    A(f"v_mov_b32 v{T0+6}, 0"); A(f"v_mov_b32 v{T0+7}, 1")
    A("s_mov_b32 exec_hi, 0")
    A(f"ds_write_b64 v{T0+3}, v[{T0+4}:{T0+5}] offset:{LQ}")
    A(f"ds_write_b32 v{T0+6}, v{T0+7} offset:{LQF}")
    A("s_mov_b64 exec, -1")
    stamp("qdone")
    A("s_setprio 0")
    A("s_mul_i32 s48, s59, 24")
    A(f"v_mul_u32_u24 v{T0}, 6, v{G}"); A(f"v_add_u32 v{T0}, s48, v{T0}")
    A("s_lshl_b32 s48, s57, 3"); A("s_lshl_b32 s49, s56, 3"); A("s_lshl_b32 s72, s58, 8")
    A(f"v_lshlrev_b32 v{T0+2}, 4, v{J}")
    for n in range(6):
        A(f"v_add_u32 v{T0+3}, {n}, v{T0}")
        A(f"v_cmp_gt_u32 vcc, s48, v{T0+3}")
        A(f"v_add_u32 v{T0+3}, s49, v{T0+3}")
        A(f"v_lshl_add_u32 v{T0+3}, v{T0+3}, 10, v{T0+2}")
        A(f"v_mov_b32 v{WDA}, 0x7ffffff0")
        A(f"v_cndmask_b32 v{WDA}, v{WDA}, v{T0+3}, vcc")
        if "D" not in skip.split(): A(f"buffer_load_dwordx4 v[{WD+4*n}:{WD+4*n+3}], v{WDA}, s[28:31], s72 offen {wflags}")
    for k in range(4): rbf(WQ + k)
    for k in range(4): A(f"v_mov_b32_dpp v{T0+4+k}, v{WQ+k} row_ror:8 row_mask:0xf bank_mask:0xf")
    for k in range(4): A(f"v_mul_f32 v{WQ+k}, 0xbfb8aa3b, v{WQ+k}")
    for k in range(4): A(f"v_exp_f32 v{WQ+k}, v{WQ+k}")
    for k in range(4): A(f"v_add_f32 v{WQ+k}, 1.0, v{WQ+k}")
    for k in range(4): A(f"v_rcp_f32 v{WQ+k}, v{WQ+k}")
    for k in range(4): rbf(WQ + k)
    for k in range(4): A(f"v_mul_f32 v{WQ+k}, v{WQ+k}, v{T0+4+k}")
    A(f"v_cmp_gt_u32 vcc, s57, v{J}")
    for k in range(4): A(f"v_cvt_pk_bf16_f32 v{WQ+k}, v{WQ+k}, v{WQ+k}")
    for k in range(4): A(f"v_cndmask_b32 v{WQ+k}, 0, v{WQ+k}, vcc")
    A("s_mov_b32 exec_lo, 0"); A("s_mov_b32 exec_hi, 0x00ff00ff")
    A(f"ds_write_b128 v{OUTA}, v[{WQ}:{WQ+3}] offset:{LH}")
    A("s_mov_b64 exec, -1")
    A(f"v_add_lshl_u32 v{T0+1}, v{T0}, v{J}, 2")
    A("s_waitcnt lgkmcnt(0)")
    A(f"ds_read_b32 v{PH}, v{T0+1} offset:{LH}")
    A(f"v_lshl_add_u32 v{WOA}, v{G}, 14, v{T0+2}")
    A("s_lshl_b32 s71, s4, 17"); A("s_lshl_b32 s48, s59, 16"); A("s_add_u32 s71, s71, s48"); A("s_add_u32 s71, s71, s72")
    A(f"v_and_b32 v{T0+3}, 3, v0"); A(f"v_lshl_add_u32 v{T0+4}, v{T0+3}, 2, v{G}")
    A("s_lshl_b32 s48, s4, 4"); A(f"v_add_lshl_u32 v{XF}, v{T0+4}, s48, 1")
    A(f"v_lshrrev_b32 v{RA}, 2, v0"); A(f"v_lshlrev_b32 v{RA}, 9, v{RA}"); A(f"v_lshl_add_u32 v{RA}, v{T0+3}, 4, v{RA}")
    A("s_and_b32 s48, s4, 7"); A("s_lshl_b32 s49, s48, 6"); A("s_lshr_b32 s73, s4, 3"); A("s_lshl_b32 s73, s73, 15"); A("s_add_u32 s73, s73, s49")
    if mapx: A("s_sub_u32 s36, s5, s48")
    else: A("s_mov_b32 s36, s5")
    A(f"buffer_load_ushort v{XV}, v{XF}, s[16:19], 0 offen")
    A("s_lshl_b32 s48, s59, 8"); A(f"v_lshl_add_u32 v{OGA}, v0, 2, s48")
    A("s_lshl_b32 s78, s4, 12"); A(f"s_add_u32 s78, s78, {WS_O}")
    A("s_waitcnt lgkmcnt(0)")
    abuild(AB, PH, M0, 0)
    for n in range(6):
        if n < 5: abuild(AB + 4 * ((n + 1) & 1), PH, M0, n + 1)
        A(f"s_waitcnt vmcnt({6-n})")
        mfma(DG, AB + 4 * (n & 1), WD + 4 * n, n == 0)
    tag(range(DG, DG + 4), "Y")
    A("s_mov_b32 exec_hi, 0")
    if "Yst" not in skip.split(): A(f"buffer_store_dwordx4 v[{DG}:{DG+3}], v{OUTA}, s[40:43], s65 offen sc1")
    A("s_mov_b64 exec, -1")
    stamp("ypub")
    A(f"v_and_b32 v{T0}, 3, v0"); A(f"v_lshlrev_b32 v{T0}, 3, v{T0}")
    A(f"s_mov_b32 s70, {SPIN * 8}")
    A("L_pollML:")
    A(f"s_sleep {lsleep}")
    A(f"ds_read_b64 v[{T0+2}:{T0+3}], v{T0} offset:{LML}")
    A("s_sub_u32 s70, s70, 1"); A("s_cbranch_scc1 L_pollML_done")
    A("s_waitcnt lgkmcnt(0)")
    A(f"v_cmp_eq_u32 vcc, -1, v{T0+3}")
    A("s_nop 1")
    A("s_cbranch_vccnz L_pollML")
    A("L_pollML_done:")
    stamp("ml")
    dpp("v_max_f32", T0 + 4, T0 + 2, "quad_perm:[1,0,3,2]"); dpp("v_max_f32", T0 + 4, T0 + 4, "quad_perm:[2,3,0,1]")
    A(f"v_sub_f32 v{T0+5}, v{T0+2}, v{T0+4}"); A(f"v_mul_f32 v{T0+5}, {LOG2E}, v{T0+5}"); A(f"v_exp_f32 v{T0+5}, v{T0+5}")
    A(f"v_mul_f32 v{T0+5}, v{T0+5}, v{T0+3}")
    dpp("v_add_f32", T0 + 5, T0 + 5, "quad_perm:[1,0,3,2]"); dpp("v_add_f32", T0 + 5, T0 + 5, "quad_perm:[2,3,0,1]")
    if steal:
        A(f"v_bfe_u32 v{T0+6}, v0, 2, 2"); A(f"v_lshlrev_b32 v{T0+6}, 3, v{T0+6}")
        A(f"ds_read_b32 v{T0+7}, v{T0+6} offset:{LML}")
        A(f"ds_read_b128 v[{T0+8}:{T0+11}], v{L16} offset:{LP}")
        A("s_lshl_b32 s51, s6, 10"); A(f"s_add_u32 s51, s51, {WS_P}")
        A("s_waitcnt lgkmcnt(0)")
        A(f"v_sub_f32 v{T0+7}, v{T0+7}, v{T0+4}"); A(f"v_mul_f32 v{T0+7}, {LOG2E}, v{T0+7}"); A(f"v_exp_f32 v{T0+7}, v{T0+7}")
        for k in range(4): A(f"v_mul_f32 v{T0+8+k}, v{T0+8+k}, v{T0+7}")
        tag(range(T0 + 8, T0 + 12))
        A(f"buffer_store_dwordx4 v[{T0+8}:{T0+11}], v{L16}, s[40:43], s51 offen sc1")
    tag((T0 + 4, T0 + 5))
    if local:
        A("s_getreg_b32 s37, hwreg(HW_REG_XCC_ID, 0, 4)"); A("s_lshl_b32 s37, s37, 10")
        A(f"v_or_b32 v{T0+4}, s37, v{T0+4}")
    A(f"v_mov_b32 v{T0+1}, 0")
    A("s_mov_b64 exec, 1")
    A(f"v_mov_b32 v{T0+6}, v{EP}"); A(f"v_mov_b32 v{T0+7}, v{EP}")
    if "Mst" not in skip.split(): A(f"buffer_store_dwordx4 v[{T0+4}:{T0+7}], v{T0+1}, s[40:43], s66 offen {'' if 'Mplain' in skip.split() else 'sc1'}")
    A("s_mov_b64 exec, -1")
    A(f"v_and_b32 v{T0+1}, 7, v0"); A(f"v_lshlrev_b32 v{T0+1}, {mlstr}, v{T0+1}")
    A(f"s_lshl_b32 s48, s4, {mlstr + 3}"); A(f"s_add_u32 s48, s48, {WS_ML}")
    if mlat:
        A(f"v_mov_b32 v{T0+8}, 0")
        A(f"s_mov_b32 s70, {SPIN * 8}")
        A("L_pollM:")
        A(f"s_sleep {max(lsleep, 4)}")
        A(f"ds_read_b128 v[{T0+4}:{T0+7}], v{T0+8} offset:{LPROG}")
        A("s_sub_u32 s70, s70, 1"); A("s_cbranch_scc1 L_pollM_done")
        A("s_waitcnt lgkmcnt(0)")
        A(f"v_or3_b32 v{T0+4}, v{T0+4}, v{T0+5}, v{T0+6}"); A(f"v_or_b32 v{T0+4}, v{T0+4}, v{T0+7}")
        A(f"v_cmp_eq_u32 vcc, 0, v{T0+4}")
        A("s_nop 1")
        A("s_cbranch_vccnz L_pollM")
        A("L_pollM_done:")
    def ml_check():
        A(f"v_bitop3_b32 v{T0+8}, v{T0+4}, v{T0+5}, v{TAG} bitop3:0x7e"); A(f"v_bitop3_b32 v{T0+9}, v{T0+6}, v{T0+7}, v{EP} bitop3:0x7e")
        A(f"v_and_or_b32 v{T0+8}, v{T0+8}, s12, v{T0+9}")
        A(f"v_cmp_ne_u32 vcc, 0, v{T0+8}")
    A("s_movk_i32 s12, 0x3ff")
    poll("pollML2", lambda: A(f"buffer_load_dwordx4 v[{T0+4}:{T0+7}], v{T0+1}, s[40:43], s48 offen sc1"), ml_check, None, psleep)
    if local:
        A(f"v_and_b32 v{T0+6}, 0x3c00, v{T0+4}"); A(f"v_cmp_ne_u32 vcc, s37, v{T0+6}")
        A("s_nop 1"); A("s_or_b32 s37, vcc_lo, vcc_hi")
    A(f"v_and_b32 v{T0+4}, 0xffff0000, v{T0+4}"); untag((T0 + 5,))
    A(f"v_lshlrev_b32 v{XV}, 16, v{XV}")
    for c in ("quad_perm:[1,0,3,2]",): dpp("v_max_f32", T0 + 6, T0 + 4, c)
    for c in ("quad_perm:[2,3,0,1]", "row_half_mirror"): dpp("v_max_f32", T0 + 6, T0 + 6, c)
    A(f"v_sub_f32 v{T0+4}, v{T0+4}, v{T0+6}"); A(f"v_sub_f32 v{T0+2}, v{T0+2}, v{T0+6}")
    A(f"v_mul_f32 v{T0+4}, {LOG2E}, v{T0+4}"); A(f"v_mul_f32 v{T0+2}, {LOG2E}, v{T0+2}")
    A(f"v_exp_f32 v{T0+4}, v{T0+4}"); A(f"v_exp_f32 v{T0+2}, v{T0+2}")
    A(f"v_mul_f32 v{T0+5}, v{T0+4}, v{T0+5}")
    for c in ("quad_perm:[1,0,3,2]", "quad_perm:[2,3,0,1]", "row_half_mirror"): dpp("v_add_f32", T0 + 5, T0 + 5, c)
    A(f"v_rcp_f32 v{T0+5}, v{T0+5}")
    A(f"v_mul_f32 v{T0+2}, v{T0+2}, v{T0+5}")
    if not steal:
        for w in range(4): A(f"v_readlane_b32 s{74+w}, v{T0+2}, {w}")
        stamp("mlx")
    else:
        A(f"v_mul_f32 v{T0+4}, v{T0+4}, v{T0+5}")
        A(f"v_lshrrev_b32 v{T0}, 1, v{T0}")
        A(f"ds_write_b32 v{T0}, v{T0+2} offset:{LF}")
        stamp("mlx")
        A("s_lshl_b32 s48, s4, 13"); A(f"s_add_u32 s48, s48, {WS_P}"); A("s_add_u32 s49, s48, 0x1000")
        poll("pollPT", a_loads, range(WQ, WQ + 32), T0 + 6, 0)
        untag(range(WQ, WQ + 32))
        A(f"v_lshrrev_b32 v{T0+6}, 3, v0"); A(f"v_and_b32 v{T0+7}, 7, v0"); A(f"v_lshlrev_b32 v{T0+6}, 10, v{T0+6}")
        A(f"v_lshl_add_u32 v{T0+6}, v{T0+7}, 4, v{T0+6}")
        if np_ < 8:
            A(f"v_subrev_u32 v{T0+6}, {(8 - np_) * 1024}, v{T0+6}")
            m = (~((1 << (8 * (8 - np_))) - 1)) & (2**64 - 1)
            A(f"s_mov_b32 exec_lo, {hex(m & 0xffffffff)}"); A(f"s_mov_b32 exec_hi, {hex(m >> 32)}")
        for k in range(8):
            A(f"v_readlane_b32 s51, v{T0+4}, {k}")
            for r in range(4): A(f"v_mul_f32 v{WQ+4*k+r}, s51, v{WQ+4*k+r}")
            for r in range(4): A(f"v_cvt_pk_bf16_f32 v{WQ+4*k+r}, v{WQ+4*k+r}, v{WQ+4*k+r}")
            A(f"ds_write_b128 v{T0+6}, v[{WQ+4*k}:{WQ+4*k+3}] offset:{LPT + 128*k}")
        A("s_mov_b64 exec, -1")
        A(f"v_mov_b32 v{T0+6}, 0"); A(f"v_mov_b32 v{T0+7}, 1")
        A(f"ds_write_b32 v{T0+6}, v{T0+7} offset:{LPF}")
        stamp("table")
    def reduce(base):
        untag(range(base, base + 16))
        for k in range(4):
            A(f"v_add_f32 v{base+k}, v{base+k}, v{base+4+k}"); A(f"v_add_f32 v{base+8+k}, v{base+8+k}, v{base+12+k}")
        for k in range(4): A(f"v_add_f32 v{T0+4+k}, v{base+k}, v{base+8+k}")
    def reduce2():
        b = T0 + 4
        A(f"v_permlane32_swap_b32 v{b}, v{b+2}"); A(f"v_permlane32_swap_b32 v{b+1}, v{b+3}")
        A(f"v_add_f32 v{b}, v{b}, v{b+2}"); A(f"v_add_f32 v{b+1}, v{b+1}, v{b+3}")
        A(f"v_permlane16_swap_b32 v{b}, v{b+1}")
        A(f"v_add_f32 v{b}, v{b}, v{b+1}")
        dpp("v_add_f32", b, b, "row_ror:4"); dpp("v_add_f32", b, b, "row_ror:8")
        rbf(b)
    def gather(sregs):
        def f(base=PS):
            for k in range(4): A(f"buffer_load_dwordx4 v[{base+4*k}:{base+4*k+3}], v{RA}, s[40:43], s{sregs[k]} offen sc1")
        return f
    A("s_cmp_lg_u32 s36, 0"); A("s_cbranch_scc1 L_noY")
    A(f"s_add_u32 s48, s73, {WS_Y}")
    A(f"s_add_u32 s49, s48, 8192"); A(f"s_add_u32 s56, s48, 16384"); A(f"s_add_u32 s57, s48, 24576")
    poll("pollY", gather((48, 49, 56, 57)), range(PS, PS + 16), T0, psleep)
    reduce(PS); reduce2()
    A(f"v_mul_f32 v{T0}, 0xbfb8aa3b, v{T0+4}"); A(f"v_exp_f32 v{T0}, v{T0}"); A(f"v_add_f32 v{T0}, 1.0, v{T0}")
    A(f"v_rcp_f32 v{T0}, v{T0}"); A(f"v_mul_f32 v{GV}, v{T0+4}, v{T0}")
    rbf(GV)
    A("s_cmp_lg_u32 s2, 0"); A("s_cbranch_scc1 L_noY")
    A("s_mov_b64 exec, 1")
    A(f"v_mov_b32 v{T0}, 0")
    A(f"buffer_store_dword v{EP}, v{T0}, s[40:43], s79 offen sc1")
    A("s_mov_b64 exec, -1")
    A("L_noY:")
    A(f"s_add_u32 s48, s73, {WS_S}")
    A(f"s_add_u32 s49, s48, 8192"); A(f"s_add_u32 s56, s48, 16384"); A(f"s_add_u32 s57, s48, 24576")
    A(f"v_mov_b32 v{T0}, 0")
    A(f"s_mov_b32 s70, {SPIN * 8}")
    A("L_pollP:")
    A(f"s_sleep {lsleep}")
    if steal or bal or mlat: A(f"ds_read_b32 v{T0+4}, v{T0} offset:{LGO}")
    else: A(f"ds_read_b128 v[{T0+4}:{T0+7}], v{T0} offset:{LPROG}")
    A("s_sub_u32 s70, s70, 1"); A("s_cbranch_scc1 L_pollP_done")
    A("s_waitcnt lgkmcnt(0)")
    if not (steal or bal or mlat):
        A(f"v_or3_b32 v{T0+4}, v{T0+4}, v{T0+5}, v{T0+6}"); A(f"v_or_b32 v{T0+4}, v{T0+4}, v{T0+7}")
    A(f"v_cmp_eq_u32 vcc, 0, v{T0+4}")
    A("s_nop 1")
    A("s_cbranch_vccnz L_pollP")
    A("L_pollP_done:")
    A("s_setprio 3")
    for n in range(16):
        A(f"buffer_load_dwordx4 v[{WO+4*n}:{WO+4*n+3}], v{WOA}, s[24:27], s71 offen{off((n&3)*1024)} {wflags}")
        if n & 3 == 3 and n < 15: A("s_addk_i32 s71, 0x1000")
    stamp("wiss")
    A("s_mov_b32 exec_hi, 0")
    if local: A("s_cmp_lg_u32 s37, 0")
    A("s_barrier")
    for w in range(4): A(f"ds_read_b128 v[{T0+4*w}:{T0+4*w+3}], v{OUTA} offset:{LO+512*w}")
    stamp("bar2")
    for w in range(4):
        A(f"s_waitcnt lgkmcnt({3-w})" if not (stamps or probe) else "s_waitcnt lgkmcnt(0)")
        if fast and not steal:
            p = 74 + (w & 2); sel = "op_sel:[0,1] op_sel_hi:[1,1]" if w & 1 else "op_sel_hi:[1,0]"
            for k in (0, 2):
                if w == 0: A(f"v_pk_mul_f32 v[{DQ+k}:{DQ+k+1}], v[{T0+k}:{T0+k+1}], s[{p}:{p+1}] {sel}")
                else:
                    sel3 = "op_sel:[0,1,0] op_sel_hi:[1,1,1]" if w & 1 else "op_sel_hi:[1,0,1]"
                    A(f"v_pk_fma_f32 v[{DQ+k}:{DQ+k+1}], v[{T0+4*w+k}:{T0+4*w+k+1}], s[{p}:{p+1}], v[{DQ+k}:{DQ+k+1}] {sel3}")
            continue
        for k in range(4):
            if steal:
                if w == 1: A(f"v_add_f32 v{DQ+k}, v{T0+k}, v{T0+4+k}")
                elif w > 1: A(f"v_add_f32 v{DQ+k}, v{DQ+k}, v{T0+4*w+k}")
            elif w == 0: A(f"v_mul_f32 v{DQ+k}, s74, v{T0+k}")
            else: A(f"v_fmac_f32 v{DQ+k}, s{74+w}, v{T0+4*w+k}")
    tag(range(DQ, DQ + 4), "O")
    if local:
        A("s_cbranch_scc1 L_far")
        A(f"buffer_store_dwordx4 v[{DQ}:{DQ+3}], v{OUTA}, s[40:43], s63 offen")
        A("s_branch L_near")
        A("L_far:")
    A(f"buffer_store_dwordx4 v[{DQ}:{DQ+3}], v{OUTA}, s[40:43], s63 offen sc1")
    if local: A("L_near:")
    A("s_mov_b64 exec, -1")
    stamp("opub")
    def o_loads(base):
        for k in range(8): A(f"buffer_load_dword v{base+k}, v{OGA}, s[40:43], s78 offen{off(k*512)} sc1")
    def o_finish(b):
        if fast:
            pkadd(b, b, b + 2); pkadd(b + 4, b + 4, b + 6); pkadd(b, b, b + 4)
            A(f"v_add_f32 v{T0+3}, v{b}, v{b+1}")
            return
        untag(range(b, b + 8))
        for k in range(4): A(f"v_add_f32 v{b+2*k}, v{b+2*k}, v{b+2*k+1}")
        A(f"v_add_f32 v{b}, v{b}, v{b+2}"); A(f"v_add_f32 v{b+4}, v{b+4}, v{b+6}")
        A(f"v_add_f32 v{T0+3}, v{b}, v{b+4}")
    poll_pipe("pollO", r1, d1, 8, 8, o_loads, o_finish)
    stamp("oseen")
    A(f"v_cvt_pk_bf16_f32 v{PD}, v{T0+3}, v{T0+3}")
    abuild(AB, PD, M0, 0)
    for n in range(16):
        if n < 15: abuild(AB + 4 * ((n + 1) & 1), PD, M0, n + 1)
        mfma(DQ, AB + 4 * (n & 1), WO + 4 * n, n == 0)
    A("s_mov_b32 exec_hi, 0")
    tag(range(DQ, DQ + 4), "S")
    A(f"buffer_store_dwordx4 v[{DQ}:{DQ+3}], v{OUTA}, s[40:43], s64 offen sc1")
    A("s_mov_b64 exec, -1")
    stamp("spub")
    A("s_cmp_lg_u32 s36, 0"); A("s_cbranch_scc1 L_sdone")
    PS = 64
    def s_finish(b):
        for k in (0, 2): pkadd(b + k, b + k, b + 4 + k); pkadd(b + 8 + k, b + 8 + k, b + 12 + k)
        for k in (0, 2): pkadd(T0 + 4 + k, b + k, b + 8 + k)
    poll_pipe("pollS", r2, d2, 16, 4, gather((48, 49, 56, 57)), s_finish if fast else reduce)
    stamp("sseen")
    reduce2()
    A(f"v_mul_f32 v{T0+4}, v{T0+4}, v{GV}")
    rbf(T0 + 4)
    A(f"v_add_f32 v{T0+4}, v{T0+4}, v{XV}")
    A(f"v_cvt_pk_bf16_f32 v{T0+4}, v{T0+4}, v{T0+4}")
    A("s_mov_b32 exec_lo, 0x000f000f"); A("s_mov_b32 exec_hi, 0x000f000f")
    A(f"buffer_store_short v{T0+4}, v{XF}, s[32:35], 0 offen {oflags}")
    A("L_sdone:")
    if stamps or probe: A("s_waitcnt vmcnt(0)")
    stamp("end")
    if probe:
        A("s_cmp_lg_u32 s2, 0"); A("s_cbranch_scc1 L_end")
        A("s_memrealtime s[84:85]"); A("s_waitcnt lgkmcnt(0)")
        A("s_sub_u32 s82, s82, s80"); A(f"s_mul_i32 s82, s82, {probek}"); A("s_min_u32 s82, s82, 100000")
        A("L_probe:")
        A("s_memrealtime s[86:87]"); A("s_waitcnt lgkmcnt(0)")
        A("s_sub_u32 s86, s86, s84"); A("s_cmp_lt_u32 s86, s82"); A("s_cbranch_scc1 L_probe")
    dump_stamps()
    A("L_end:")
    A("s_endpgm")
    A.L += stream_body

    body = A.fix()
    hdr = open("cdna_kernels/" + NAME + ".s.ref").read().split("\n")
    hdr = [l for l in hdr if l.startswith(";") and "@launch" not in l and "Override" not in l and "grid=ceil" not in l]
    doc = """;
; layernorm -> q projection -> single-query attention over the cache -> out projection, times silu(GLU(xn)), plus x; one kernel.
; 256 workgroups = 32 heads x 8 key splits, one per CU; 4 streaming waves + 1 service wave each.
;   streaming waves: read the split's 1024 keys, then its 1024 values, once (1 KiB per load, nt); true-max softmax per wave,
;     merged exactly across waves and splits through (max, sum) pairs.
;   service wave: layernorm, a 64-row slice of the q / gate / up projections, a slice of the down and out projections,
;     and the hand-offs between workgroups.
; Hand-offs go through d_ws. Every handed-over word carries a 10-bit tag in its low bits, taken from an epoch word in d_ws that
; each run reads at entry and advances once all workgroups have read it; a reader waits until all words carry the tag and
; clears the tag before use, so neither results nor control flow depend on what d_ws held before. All waits are bounded.""".split("\n")
    out = hdr + doc + [f"; @launch grid=(256,1,1) block=({384 if steal or bal else 320},1,1) lds={12288 if steal else 3072}",
                 '.amdgcn_target "amdgcn-amd-amdhsa--gfx950"', ".text", f".globl {KN}", ".p2align 8", f".type {KN},@function"]
    out += [l if l.endswith(":") and not l.startswith(";") else "    " + l for l in body]
    nv = max(48 + 4 * nslot + (4 if bal else 0), 224)
    out += ['.section .rodata,"a"', ".p2align 6", f".amdhsa_kernel {KN}", f"  .amdhsa_next_free_vgpr {nv}",
            "  .amdhsa_next_free_sgpr 102", f"  .amdhsa_accum_offset {nv}", "  .amdhsa_group_segment_fixed_size 0",
            "  .amdhsa_kernarg_size 96", "  .amdhsa_user_sgpr_count 2", "  .amdhsa_user_sgpr_kernarg_segment_ptr 1",
            "  .amdhsa_system_sgpr_workgroup_id_x 1", ".end_amdhsa_kernel"]
    return "\n".join(out) + "\n", stamp_list

if __name__ == "__main__":
    kw = eval("dict(" + (sys.argv[2] if len(sys.argv) > 2 else "") + ")")
    open(sys.argv[1], "w").write(gen(**kw)[0])
```

```python
import sys
from asmlib import Asm
NAME = "recurrent_scan__mha_block_cached__glu_gated_glu__decode"
KN = NAME + "_kernel"

WS_A  = 0x00000
WS_O  = 0x40000
WS_S  = 0x60000
WS_Y  = 0x80000
WS_ML = 0xA0000
WS_E  = 0xB0000
WS_D  = 0xB4000
WS_X  = 0x180000
WS_C  = 0xB8000
WS_B  = 0x200000
WS_P  = 0xC0000
WS_ST = 0x100000
WS_BYTES = 268435456
LQ, LML, LPROG, LQF, LH, LO = 0, 256, 288, 304, 320, 1024
LGO, LPF, LLV = 308, 312, 316
LF, LREC, LP, LPT = 576, 640, 3072, 4096
END = 0x7fffffff
LOG2E = "0x3fb8aa3b"
SCALE = "0x3db504f3"
SPIN = 1 << 17

SETS = {"early": "bar0 issued x ln apub aseen qdone ypub ml mlx end qready kdone vdone",
        "prog": "bar0 i16 i32 i48 i64 i80 i96 i112 i127 vdone apub aseen mlx end",
        "prog2": "i56 i64 i72 i80 i88 i96 i104 i112 i120 vdone end",
        "clk": "bar0 clk0 i64 clk1 vdone clk2 end",
        "steal2": "mlx table end i96 i102 i111 rec0 rec1 rec2 static tready vdone",
        "steal": "mlx table wiss bar2 opub oseen spub sseen end kdone static tready vdone qdone issued qready",
        "boot": "karg pre far bar0 i8 i12 skarg sx s8 s16 issued x ln",
        "late": "qdone mlx wiss bar2 opub oseen spub sseen end issued qready kdone vdone"}

def gen(nslot=48, npre=4, burst=4, every=6, cap=6, dist=None, plate=1, stamps=False, kvflags="nt", wflags="nt", gflags="",
        asleep=30, lsleep=1, psleep=4, mapx=False, r1=3, r2=3, d1=2, d2=2, local=False, skip="", probe=None, probek=8, touch=False, bar0=16, scap=0, amap=False, gap=0, steal=False, np_=8, ah=5, golate=2, noatom=False, aflags='sc0 sc1', capl=0, capsel=1, capfrom=0, bal=False, tk=4, th=4, lv=(5, 6, 7), bfrom=12, bto=108, bgrp=3, bstr=2, mlstr=4, mlat=None, oflags='', fast=False, pre='', preflags='', rnd='', sched=None, pat=None, ph=(0, 0, 0), osleep=0, sflags='sc1', lin=False, mlfull=False, t64=False, x2=False, woflags=None, ys=False, sofs=0, numa=False, par=0, parv=None, wpar=None, prb=0):
    A = Asm()
    stamp_list = []
    role = ["S"]
    if bal: cap = lv[2]
    if dist is None: dist = cap
    if woflags is None: woflags = wflags
    def stamp(name):
        if probe and role[0] == "S" and name == probe:
            A("s_memrealtime s[82:83]")
        if stamps and name in SETS[stamps].split() and not (stamps in ("late", "steal") and role[0] == "S" and name == "issued"):
            k = len([x for x in stamp_list if x[0] == role[0]])
            stamp_list.append((role[0], name))
            A(f"{'s_memtime' if name.startswith('clk') else 's_memrealtime'} s[{80+2*k}:{81+2*k}]")
    def rbf(r):
        A(f"v_cvt_pk_bf16_f32 v{r}, v{r}, v{r}")
        A(f"v_and_b32 v{r}, 0xffff0000, v{r}")
    def masks(m0, t0, t1):
        A(f"v_and_b32 v{t0}, 1, v0")
        A(f"v_lshlrev_b32 v{t0}, 4, v{t0}")
        A(f"v_lshlrev_b32 v{t0}, v{t0}, s50")
        A(f"v_bfe_u32 v{t1}, v0, 1, 2")
        for r in range(4): A(f"v_cmp_eq_u32 s[{84+2*r if not (stamps or probe) else 62+2*r}:{85+2*r if not (stamps or probe) else 63+2*r}], {r}, v{t1}")
        for r in range(4): A(f"v_cndmask_b32 v{m0+r}, 0, v{t0}, s[{84+2*r if not (stamps or probe) else 62+2*r}:{85+2*r if not (stamps or probe) else 63+2*r}]")
    def abuild(a0, p, m0, n):
        for r in range(4):
            A(f"v_and_b32_dpp v{a0+r}, v{p}, v{m0+r} row_newbcast:{n} row_mask:0xf bank_mask:0xf")
    def dpp(op, d, s, ctl, rm="0xf", bm="0xf"):
        A(f"{op}_dpp v{d}, v{s}, v{s} {ctl} row_mask:{rm} bank_mask:{bm}")
    def wave_red(op, v):
        for c in ("quad_perm:[1,0,3,2]", "quad_perm:[2,3,0,1]", "row_half_mirror", "row_mirror"): dpp(op, v, v, c)
        dpp(op, v, v, "row_bcast:15", "0xa"); dpp(op, v, v, "row_bcast:31", "0xc")
    def mfma(d, a, b, first):
        A(f"v_mfma_f32_16x16x32_bf16 v[{d}:{d+3}], v[{a}:{a+3}], v[{b}:{b+3}], {0 if first else f'v[{d}:{d+3}]'}")
    def srd(d, off, nbytes):
        A(f"s_load_dwordx2 s[{d}:{d+1}], s[0:1], {off}")
        A(f"s_mov_b32 s{d+2}, {nbytes}")
        A(f"s_mov_b32 s{d+3}, 0x20000")
    def off(n): return f" offset:{n}" if n else ""
    def dump_stamps():
        if not stamps: return
        mine = [x for x in stamp_list if x[0] == role[0]]
        A("s_mov_b64 exec, -1")
        A("s_waitcnt lgkmcnt(0)")
        for k in range(len(mine)): A(f"v_writelane_b32 v0, s{80+2*k}, {k}")
        A("s_getreg_b32 s48, hwreg(HW_REG_XCC_ID)"); A("v_writelane_b32 v0, s48, 15")
        A("s_getreg_b32 s48, hwreg(HW_REG_HW_ID)"); A("v_writelane_b32 v0, s48, 14")
        A("s_load_dwordx2 s[40:41], s[0:1], 88"); A(f"s_mov_b32 s42, {WS_BYTES}"); A("s_mov_b32 s43, 0x20000")
        A("s_mul_i32 s48, s2, 5"); A("s_add_u32 s48, s48, s3"); A("s_lshl_b32 s48, s48, 6"); A(f"s_add_u32 s48, s48, {WS_ST}")
        A("v_mbcnt_lo_u32_b32 v1, -1, 0"); A("v_lshlrev_b32 v1, 2, v1")
        A("s_mov_b64 exec, 0xffff")
        A("s_waitcnt lgkmcnt(0)")
        A("buffer_store_dword v0, v1, s[40:43], s48 offen")

    A(f"{KN}:")
    if stamps or probe: A("s_memrealtime s[80:81]")
    if fast:
        A("s_load_dwordx2 s[8:9], s[0:1], 8"); A("s_load_dwordx2 s[12:13], s[0:1], 16")
    A("v_lshrrev_b32 v1, 6, v0")
    A("s_cmp_ge_u32 s2, 256")
    A("s_cbranch_scc1 L_end")
    A("v_readfirstlane_b32 s3, v1")
    if numa:
        A("s_lshr_b32 s4, s2, 1"); A("s_and_b32 s4, s4, 28"); A("s_and_b32 s5, s2, 3"); A("s_or_b32 s4, s4, s5")
        A("s_lshr_b32 s5, s2, 5"); A("s_and_b32 s5, s5, 6"); A("s_bfe_u32 s6, s2, 0x10002"); A("s_or_b32 s5, s5, s6")
    elif mapx:
        A("s_lshr_b32 s4, s2, 3"); A("s_and_b32 s5, s2, 7")
    else:
        A("s_and_b32 s4, s2, 31"); A("s_lshr_b32 s5, s2, 5")
    A("v_and_b32 v0, 63, v0")
    A("s_mov_b32 s50, 0xffff")
    A("s_cmp_eq_u32 s3, 4")
    A("s_cbranch_scc1 L_service")
    if steal or bal:
        A("s_cmp_eq_u32 s3, 5")
        A("s_cbranch_scc1 L_claim")
    nst = 128 - 2 * np_ if steal else 128

    role[0] = "W"; stamp_list.append(("W", "start"))
    VL16, M0, Q0, S0, AB, D0, P0, T0, RING = 1, 2, 6, 10, 14, 22, 26, 42, 48
    LVR, LVA = RING + 4 * nslot, RING + 4 * nslot + 1
    if fast:
        for d in (8, 12): A(f"s_mov_b32 s{d+2}, {64 << 20}"); A(f"s_mov_b32 s{d+3}, 0x20000")
    else:
        srd(8, 8, 64 << 20); srd(12, 16, 64 << 20)
    if numa:
        A("s_lshl_b32 s48, s4, 21"); A("s_lshr_b32 s49, s5, 1"); A("s_lshl_b32 s49, s49, 19"); A("s_add_u32 s48, s48, s49")
        A("s_xor_b32 s49, s4, s5"); A(f"s_xor_b32 s49, s49, {par}"); A("s_and_b32 s49, s49, 1"); A("s_lshl_b32 s49, s49, 13"); A("s_add_u32 s48, s48, s49")
        A("s_lshl_b32 s49, s3, 11"); A("s_add_u32 s48, s48, s49")
        A("s_mov_b32 s49, s48")
        A(f"v_lshlrev_b32 v{VL16}, 4, v0")
    else:
        A("s_lshl_b32 s48, s4, 21"); A("s_lshl_b32 s49, s5, 18"); A("s_add_u32 s48, s48, s49")
    if numa: pass
    elif not pat:
        A("s_lshl_b32 s49, s3, 12"); A("s_add_u32 s48, s48, s49")
        A("s_mov_b32 s49, s48")
        A(f"v_lshlrev_b32 v{VL16}, 4, v0")
    else:
        assert not steal
        sh = {n: 8 + k for k, n in enumerate(pat.split())}
        assert sh["c0"] < sh["c1"] <= 11 and sh["c1"] < sh["c2"] < sh["c3"] < sh["c4"] < sh["c5"] and all(x % 4 == 0 for x in ph)
        CM = sum(1 << sh[f"c{k}"] for k in range(2, 6))
        for k in range(2):
            A(f"s_bfe_u32 s49, s3, {k | (1 << 16)}"); A(f"s_lshl_b32 s49, s49, {sh[f'w{k}']}"); A("s_add_u32 s48, s48, s49")
        A(f"v_and_b32 v{VL16}, 15, v0"); A(f"v_lshlrev_b32 v{VL16}, 4, v{VL16}")
        for k in range(2):
            A(f"v_bfe_u32 v2, v0, {4 + k}, 1"); A(f"v_lshl_add_u32 v{VL16}, v2, {sh[f'g{k}']}, v{VL16}")
        A(f"s_mul_i32 s59, s5, {ph[1]}")
        if ph[0]: A("s_and_b32 s49, s4, 7"); A(f"s_mul_i32 s49, s49, {ph[0]}"); A("s_add_u32 s59, s59, s49")
        if ph[2]: A("s_lshr_b32 s49, s4, 3"); A(f"s_mul_i32 s49, s49, {ph[2]}"); A("s_add_u32 s59, s59, s49")
        A("s_mov_b32 s56, 0")
        for k in range(2, 6):
            A(f"s_bfe_u32 s49, s59, {k | (1 << 16)}"); A(f"s_lshl_b32 s49, s49, {sh[f'c{k}']}"); A("s_add_u32 s56, s56, s49")
        A("s_add_u32 s49, s48, s56")
        A(f"s_mov_b32 s60, {hex(CM)}")
    A("s_waitcnt lgkmcnt(0)")
    stamp("karg")
    issued = [0]; waited = [-1]
    def slot(i): return RING + 4 * (i % nslot)
    extra = [None]
    def wait_for(i):
        if i > waited[0]:
            n = issued[0] - 1 - i + (1 if extra[0] is not None and i < extra[0] else 0)
            A(f"s_waitcnt vmcnt({n})"); waited[0] = i
    def capof(i):
        if not sched: return cap
        c = cap
        for frm, val in sched:
            if i >= frm: c = val
        return c[i % len(c)] if isinstance(c, tuple) else c
    def tick():
        A(f"ds_write_b32 v{T0+4}, v{T0+5} offset:{LPROG}")
        A(f"v_add_u32 v{T0+5}, 1, v{T0+5}")
    def issue():
        i = issued[0]
        ii = i % 64; s = 8 if i < 64 or "VK" in skip.split() else 12
        if pat:
            if ii % 4 == 0 and i:
                A("s_orn2_b32 s56, s56, s60"); A(f"s_add_u32 s56, s56, {1 << sh['c2']}"); A("s_and_b32 s56, s56, s60"); A("s_add_u32 s49, s48, s56")
        elif i == 64: A("s_mov_b32 s49, s48" if parv is None or parv == par else "s_xor_b32 s49, s48, 0x2000")
        elif ii % (2 if numa else 4) == 0 and i:
            A("s_addk_i32 s49, 0x4000")
        if bal and i >= npre and ii % tk == 0 and bfrom <= i <= bto + tk:
            if i > bfrom:
                A("s_waitcnt lgkmcnt(0)"); A(f"v_readfirstlane_b32 s58, v{LVR}")
                A("s_and_b32 vcc_lo, s58, 2")
            if i <= bto:
                tick(); A(f"ds_read_b32 v{LVR}, v{LVA} offset:{LLV}")
        if bal and i >= npre and ii % 4 == 0: A("s_cmp_eq_u32 s58, 0")
        c_ = capof(i)
        if c_ and i >= c_: wait_for(i - c_)
        if bal and i >= max(npre, lv[0]):
            A(f"s_cbranch_vccnz L_c{i}")
            if i >= lv[1]: A(f"s_waitcnt vmcnt({lv[1] - 1})")
            A(f"s_cbranch_scc1 L_c{i}"); A(f"s_waitcnt vmcnt({lv[0] - 1})"); A(f"L_c{i}:")
        if capl and i >= max(capl, capfrom, npre) and i - capl > waited[0]:
            A(f"s_cbranch_vccnz L_c{i}"); A(f"s_waitcnt vmcnt({capl - 1})"); A(f"L_c{i}:")
        issued[0] += 1
        r = slot(i)
        imm = ((ii & 1) << sh["c0"]) + ((ii >> 1 & 1) << sh["c1"]) if pat else (ii % (2 if numa else 4)) * 1024
        A(f"buffer_load_dwordx4 v[{r}:{r+3}], v{VL16}, s[{s}:{s+3}], s49 offen{off(imm)} {kvflags}")
        stamp(f"i{i}")
        if steal and i >= nst - 2 * ah and (nst - i) % 2 == 0: tick()
        if i == 64: stamp("clk1")
    for _ in range(npre): issue()
    if touch:
        A(f"buffer_load_dword v{T0+3}, v{VL16}, s[12:15], s48 offen {kvflags}")
        extra[0] = issued[0]
    stamp("pre")
    A("s_branch L_stream")
    stream_at = len(A.L)
    A("L_stream:")
    stamp("far")
    masks(M0, T0, T0 + 1)
    A("s_mov_b32 s52, 0xcccccccc"); A("s_mov_b32 s53, 0xcccccccc")
    A("s_mov_b32 s54, 0xaaaaaaaa"); A("s_mov_b32 s55, 0xaaaaaaaa")
    A(f"v_and_b32 v{T0+2}, 15, v0"); A(f"v_lshlrev_b32 v{T0+2}, 4, v{T0+2}")
    A(f"v_mov_b32 v{T0+4}, s3"); A(f"v_lshlrev_b32 v{T0+4}, 2, v{T0+4}"); A(f"v_mov_b32 v{T0+5}, 1")
    def setlevel():
        if bal:
            A("s_and_b32 vcc_lo, s58, 2"); A("s_mov_b32 vcc_hi, 0"); A("s_cmp_eq_u32 s58, 0")
        if capl:
            A(f"s_and_b32 vcc_lo, s3, {capsel}"); A("s_mov_b32 vcc_hi, 0")
    if bal:
        A("s_mov_b32 s58, 0"); A(f"v_mov_b32 v{LVA}, 0")
    setlevel()
    A("s_barrier")
    stamp("bar0"); stamp("clk0")
    for _ in range(nslot - npre): issue()
    stamp("issued")
    A(f"v_mov_b32 v{T0+1}, 0")
    A(f"s_mov_b32 s57, {SPIN * 8}")
    A("L_pollQ:")
    A(f"ds_read_b32 v{T0}, v{T0+1} offset:{LQF}")
    A(f"ds_read_b128 v[{Q0}:{Q0+3}], v{T0+2} offset:{LQ}")
    A("s_sub_u32 s57, s57, 1"); A("s_cbranch_scc1 L_pollQ_done")
    A("s_waitcnt lgkmcnt(0)")
    A(f"v_cmp_eq_u32 vcc, 0, v{T0}")
    A("s_nop 1")
    A("s_cbranch_vccnz L_pollQ")
    A("L_pollQ_done:")
    setlevel()
    stamp("qready")
    def maybe_issue(i):
        want = max(nslot + min(i + 1, burst + i // every) if i < nslot else 0, min(i + 1 + (max(capof(i + 1 + k) for k in range(13)) if sched else dist), nslot + i + 1))
        while issued[0] < min(nst, want): issue()
    for i in range(64):
        n = i % 16; r = slot(i)
        A(f"v_mov_b32 v{P0+n}, 0")
        wait_for(i)
        for k in range(4): A(f"v_dot2c_f32_bf16 v{P0+n}, v{r+k}, v{Q0+k}")
        maybe_issue(i)
        if n == 15:
            a = i // 16
            for k in range(8):
                dpp("v_add_f32", P0 + k, P0 + k, "row_ror:8", bm="0x3"); dpp("v_add_f32", P0 + k, P0 + k + 8, "row_ror:8", bm="0xc")
            if gap and i >= nslot - 1 and gap > 1: issue()
            for k in range(4):
                dpp("v_add_f32", P0 + k, P0 + k, "row_half_mirror", bm="0x5"); dpp("v_add_f32", P0 + k, P0 + k + 4, "row_half_mirror", bm="0xa")
            for k in range(4): dpp("v_add_f32", P0 + k, P0 + k, "quad_perm:[2,3,0,1]")
            A(f"v_cndmask_b32 v{P0}, v{P0}, v{P0+2}, s[52:53]")
            A(f"v_cndmask_b32 v{P0+1}, v{P0+1}, v{P0+3}, s[52:53]")
            for k in range(2): dpp("v_add_f32", P0 + k, P0 + k, "quad_perm:[1,0,3,2]")
            A(f"v_cndmask_b32 v{S0+a}, v{P0}, v{P0+1}, s[54:55]")
            rbf(S0 + a)
            A(f"v_mul_f32 v{S0+a}, {SCALE}, v{S0+a}")
            rbf(S0 + a)
    stamp("kdone")
    A(f"v_max3_f32 v{T0}, v{S0}, v{S0+1}, v{S0+2}")
    A(f"v_max_f32 v{T0}, v{T0}, v{S0+3}")
    wave_red("v_max_f32", T0)
    if gap: issue()
    A(f"v_readlane_b32 s51, v{T0}, 63")
    for a in range(4): A(f"v_subrev_f32 v{S0+a}, s51, v{S0+a}")
    for a in range(4): A(f"v_mul_f32 v{S0+a}, {LOG2E}, v{S0+a}")
    for a in range(4): A(f"v_exp_f32 v{S0+a}, v{S0+a}")
    A(f"v_add_f32 v{T0+1}, v{S0}, v{S0+1}")
    A(f"v_add_f32 v{T0+3}, v{S0+2}, v{S0+3}")
    A(f"v_add_f32 v{T0+1}, v{T0+1}, v{T0+3}")
    if steal:
        A(f"v_bfe_u32 v{P0}, v0, 2, 2"); A(f"v_and_b32 v{P0+1}, 3, v0"); A(f"v_lshrrev_b32 v{P0+2}, 4, v0")
        A(f"v_lshlrev_b32 v{P0}, 8, v{P0}"); A(f"v_lshl_add_u32 v{P0}, v{P0+1}, 4, v{P0}"); A(f"v_lshl_add_u32 v{P0}, v{P0+2}, 2, v{P0}")
        A(f"v_lshl_add_u32 v{P0}, v{T0+4}, 4, v{P0}")
        A(f"ds_write_b32 v{P0}, v{S0+3} offset:{LP}")
    for a in range(4): A(f"v_cvt_pk_bf16_f32 v{S0+a}, v{S0+a}, v{S0+a}")
    abuild(AB, S0, M0, 0)
    if gap: issue()
    wave_red("v_add_f32", T0 + 1)
    A(f"v_lshlrev_b32 v{T0+3}, 1, v{T0+4}")
    A("s_mov_b32 exec_lo, 0"); A("s_mov_b32 exec_hi, 0x80000000")
    A(f"ds_write_b64 v{T0+3}, v[{T0}:{T0+1}] offset:{LML}")
    A("s_mov_b64 exec, -1")
    A(f"v_and_b32 v{T0}, 15, v0"); A(f"v_lshlrev_b32 v{T0}, 5, v{T0}")
    A(f"v_and_b32 v{T0+2}, 16, v0"); A(f"v_add_u32 v{T0}, v{T0}, v{T0+2}")
    A(f"v_lshl_add_u32 v{T0}, v{T0+4}, 7, v{T0}")
    if mlat: A(f"v_mov_b32 v{T0+1}, 0")
    def procv(i):
        wait_for(i)
        mfma(D0, AB + 4 * (i & 1), slot(i), i == 64)
        if i < nst - 1: abuild(AB + 4 * ((i + 1) & 1), S0 + (i + 1 - 64) // 16, M0, (i + 1) % 16)
    if not steal:
        for i in range(64, 128):
            procv(i); maybe_issue(i)
            if i == mlat: A(f"ds_write_b32 v{T0+4}, v{T0+5} offset:{LPROG}")
            if i == 127 - plate:
                if mlat: A(f"ds_write_b32 v{T0+1}, v{T0+5} offset:{LGO}")
                elif bal: A(f"ds_write_b32 v{LVA}, v{T0+5} offset:{LGO}")
                else: A(f"ds_write_b32 v{T0+4}, v{T0+5} offset:{LPROG}")
    else:
        assert dist == 6 and cap == 6
        PR, RECA, PTA = P0, P0 + 4, P0 + 5
        UB = [slot(nst + 2 * k) for k in range(4)]
        assert UB[3] + 8 <= RING + 4 * nslot and UB == [UB[0] + 8 * k for k in range(4)]
        A(f"v_mov_b32 v{RECA}, {LREC}")
        A(f"v_and_b32 v{PTA}, 1, v0"); A(f"v_lshrrev_b32 v{P0+6}, 4, v0"); A(f"v_lshl_add_u32 v{PTA}, v{PTA}, 2, v{P0+6}")
        A(f"v_lshlrev_b32 v{PTA}, 2, v{PTA}"); A(f"v_lshl_add_u32 v{PTA}, v{T0+4}, 3, v{PTA}")
        A("s_lshl_b32 s58, s4, 21"); A("s_lshl_b32 s59, s3, 11"); A("s_add_u32 s58, s58, s59"); A(f"s_add_u32 s58, s58, {(1024 - 32 * np_) * 256}")
        A("s_mov_b32 s59, 0x10000")
        A("s_mov_b32 s68, 0x7fff0000")
        for i in range(64, nst - 6):
            procv(i); maybe_issue(i)
        assert issued[0] == nst
        lab = [0]
        def fetch(k):
            n = lab[0]; lab[0] += 1
            tick()
            A("s_mov_b32 s64, s68")
            A("s_cmp_lt_u32 s59, 4"); A(f"s_cbranch_scc1 L_go{n}")
            A(f"s_mov_b32 s57, {SPIN * 8}")
            A(f"L_rec{n}:")
            A(f"ds_read_b32 v{P0+6}, v{RECA}")
            A("s_sub_u32 s57, s57, 1"); A(f"s_cbranch_scc1 L_stop{n}")
            A("s_waitcnt lgkmcnt(0)")
            A(f"v_readfirstlane_b32 s65, v{P0+6}")
            A("s_cmp_eq_u32 s65, -1"); A(f"s_cbranch_scc1 L_rec{n}")
            A(f"s_cmp_lt_u32 s65, {8 * np_}"); A(f"s_cbranch_scc1 L_unit{n}")
            A(f"L_stop{n}:")
            A("s_mov_b32 s59, 3")
            A(f"s_branch L_go{n}")
            A(f"L_unit{n}:")
            A("s_and_b32 s66, s65, 7"); A("s_lshl_b32 s66, s66, 18"); A("s_lshr_b32 s67, s65, 3"); A("s_lshl_b32 s67, s67, 13")
            A("s_add_u32 s64, s58, s66"); A("s_add_u32 s64, s64, s67")
            A(f"s_lshl_b32 s{60+k}, s65, 7")
            A(f"v_add_u32 v{RECA}, 4, v{RECA}")
            A(f"L_go{n}:")
            if n < 3: stamp(f"rec{n}")
            for b in range(2): A(f"buffer_load_dwordx4 v[{UB[k]+4*b}:{UB[k]+4*b+3}], v{VL16}, s[12:15], s64 offen{off(1024*b)} {kvflags}")
        def pread(k):
            A(f"v_add_u32 v{P0+7}, s{60+k}, v{PTA}")
            A(f"ds_read_b32 v{PR+k}, v{P0+7} offset:{LPT}")
        for k in range(4): A(f"s_mov_b32 s{60+k}, 0")
        for k in range(3):
            fetch(k)
            for i in (nst - 6 + 2 * k, nst - 5 + 2 * k):
                A(f"s_waitcnt vmcnt({nst - 1 - i + 2 * (k + 1)})"); waited[0] = i
                procv(i)
            A("s_sub_u32 s59, s59, 1")
        stamp("static")
        A(f"v_mov_b32 v{P0+6}, 0")
        A(f"s_mov_b32 s57, {SPIN * 8}")
        A("L_pollT:")
        A(f"ds_read_b32 v{P0+7}, v{P0+6} offset:{LPF}")
        A(f"ds_read_b32 v{P0+8}, v{T0+4} offset:{LF}")
        A("s_sub_u32 s57, s57, 1"); A("s_cbranch_scc1 L_pollT_done")
        A("s_waitcnt lgkmcnt(0)")
        A(f"v_cmp_eq_u32 vcc, 0, v{P0+7}")
        A("s_nop 1")
        A("s_cbranch_vccnz L_pollT")
        A("L_pollT_done:")
        stamp("tready")
        pread(0)
        A("s_nop 7")
        for k in range(4): A(f"v_mul_f32 v{D0+k}, v{D0+k}, v{P0+8}")
        A("s_cmp_eq_u32 s59, 0"); A("s_cbranch_scc1 L_pool_done")
        A("L_pool:")
        for k in range(4):
            fetch((k + 3) % 4)
            A("s_waitcnt lgkmcnt(0)")
            abuild(AB, PR + k, M0, 0); abuild(AB + 4, PR + k, M0, 1)
            pread((k + 1) % 4)
            A("s_waitcnt vmcnt(7)")
            mfma(D0, AB, UB[k], False)
            A("s_waitcnt vmcnt(6)")
            mfma(D0, AB + 4, UB[k] + 4, False)
            A("s_sub_u32 s59, s59, 1"); A("s_cmp_eq_u32 s59, 0")
            A("s_cbranch_scc1 L_pool_done" if k < 3 else "s_cbranch_scc0 L_pool")
        A("L_pool_done:")
        A("s_nop 5")
    stamp("vdone"); stamp("clk2")
    A("s_mov_b32 exec_hi, 0")
    A(f"ds_write_b128 v{T0}, v[{D0}:{D0+3}] offset:{LO}")
    A("s_waitcnt lgkmcnt(0)")
    A("s_barrier")
    dump_stamps()
    A("s_endpgm")
    if steal:
        A("L_claim:")
        srd(40, 88, WS_BYTES)
        A("s_lshl_b32 s48, s4, 7"); A(f"s_add_u32 s48, s48, {WS_C}")
        A("v_mov_b32 v1, 0"); A(f"v_mov_b32 v3, {LREC}"); A(f"v_mov_b32 v12, {END}")
        A("s_mov_b32 s49, 0")
        A("s_barrier")
        A("s_waitcnt lgkmcnt(0)")
        A("s_mov_b64 exec, 1")
        cl = [0]
        def wait_prog(lim):
            n = cl[0]; cl[0] += 1
            A(f"s_mov_b32 s57, {SPIN * 8}")
            A(f"L_cw{n}:")
            A(f"s_sleep {lsleep}")
            A(f"ds_read_b128 v[4:7], v1 offset:{LPROG}")
            A("s_sub_u32 s57, s57, 1"); A("s_cbranch_scc1 L_claim_end")
            A("s_waitcnt lgkmcnt(0)")
            A("v_max3_u32 v4, v4, v5, v6"); A("v_max_u32 v4, v4, v7")
            A(f"v_cmp_ge_u32 vcc, s{lim}, v4")
            A("s_nop 1")
            A(f"s_cbranch_vccnz L_cw{n}")
        def claim(k):
            wait_prog(49)
            if noatom:
                A("s_lshl_b32 s51, s49, 3"); A("s_add_u32 s51, s51, s5"); A(f"v_mov_b32 v{8+k}, s51")
            else:
                A(f"v_mov_b32 v{8+k}, 1")
                A(f"buffer_atomic_add v{8+k}, v1, s[40:43], s48 offen {aflags}")
            A("s_add_u32 s49, s49, 1")
        for k in range(3): claim(k)
        A("L_claim_loop:")
        for k in range(4):
            claim((k + 3) % 4)
            A("s_waitcnt vmcnt(3)")
            A(f"ds_write_b32 v3, v{8+k}")
            A(f"v_cmp_le_u32 vcc, {8 * np_}, v{8+k}")
            A("v_add_u32 v3, 4, v3")
            A("s_nop 0")
            A("s_cbranch_vccnz L_claim_done" if k < 3 else "s_cbranch_vccz L_claim_loop")
        A("L_claim_done:")
        A(f"s_add_u32 s49, s49, {ah - 4 + golate}")
        wait_prog(49)
        A("L_claim_end:")
        A("ds_write_b32 v3, v12")
        A("v_mov_b32 v2, 1")
        A(f"ds_write_b32 v1, v2 offset:{LGO}")
        A("s_waitcnt lgkmcnt(0)")
        A("s_endpgm")
    if bal:
        nt = (bto - bfrom) // tk + 1
        A("L_claim:")
        srd(40, 88, WS_BYTES)
        A(f"s_lshr_b32 s48, s2, {bgrp}"); A(f"s_lshl_b32 s48, s48, {max(7, bgrp + bstr)}"); A(f"s_add_u32 s48, s48, {WS_B}")
        A(f"s_and_b32 s51, s2, {(1 << bgrp) - 1}")
        A("v_mov_b32 v1, 0"); A(f"v_and_b32 v2, {(1 << bgrp) - 1}, v0"); A(f"v_lshlrev_b32 v2, {bstr}, v2")
        A(f"s_lshl_b32 s52, s51, {bstr}"); A("v_mov_b32 v3, s52")
        A(f"s_mov_b32 s79, {WS_E}")
        A("s_mov_b32 s49, 0")
        A("s_barrier")
        A("s_waitcnt lgkmcnt(0)")
        A("buffer_load_dword v8, v1, s[40:43], s79 offen sc1")
        A("s_waitcnt vmcnt(0)")
        A("v_add_u32 v8, 1, v8"); A("v_and_b32 v8, 0x3ff, v8")
        A("L_bal:")
        A(f"s_mov_b32 s57, {SPIN * 8}")
        A("L_balw:")
        A(f"s_sleep {lsleep}")
        A(f"ds_read_b128 v[4:7], v1 offset:{LPROG}")
        A("s_sub_u32 s57, s57, 1"); A("s_cbranch_scc1 L_bal_end")
        A("s_waitcnt lgkmcnt(0)")
        A("v_min3_u32 v4, v4, v5, v6"); A("v_min_u32 v4, v4, v7")
        A("v_readfirstlane_b32 s53, v4")
        A("s_cmp_le_u32 s53, s49"); A("s_cbranch_scc1 L_balw")
        A("s_mov_b32 s49, s53")
        A("v_lshl_or_b32 v4, v4, 10, v8")
        A("s_mov_b64 exec, 1")
        A("buffer_store_dword v4, v3, s[40:43], s48 offen sc1")
        A("s_mov_b64 exec, -1")
        A("buffer_load_dword v5, v2, s[40:43], s48 offen sc1")
        A("s_waitcnt vmcnt(0)")
        A("v_and_b32 v6, 0x3ff, v5"); A("v_cmp_eq_u32 vcc, v6, v8"); A("v_lshrrev_b32 v5, 10, v5")
        A("v_cndmask_b32 v5, 0, v5, vcc")
        A("v_readlane_b32 s54, v5, s51")
        for c in ("quad_perm:[1,0,3,2]", "quad_perm:[2,3,0,1]", "row_half_mirror") + (("row_mirror",) if bgrp > 3 else ()):
            A(f"v_add_u32_dpp v5, v5, v5 {c} row_mask:0xf bank_mask:0xf")
        A("v_readfirstlane_b32 s55, v5")
        A(f"s_lshl_b32 s54, s54, {bgrp}"); A("s_sub_i32 s55, s55, s54")
        A("s_mov_b32 s56, 0")
        A(f"s_cmp_gt_i32 s55, {th}"); A("s_cselect_b32 s56, 2, s56")
        A(f"s_cmp_lt_i32 s55, {-th}"); A("s_cselect_b32 s56, 1, s56")
        A("v_mov_b32 v6, s56")
        A(f"ds_write_b32 v1, v6 offset:{LLV}")
        A(f"s_cmp_lt_u32 s49, {nt}"); A("s_cbranch_scc1 L_bal")
        A("L_bal_end:")
        A("s_waitcnt lgkmcnt(0)")
        A("s_endpgm")
    stream_body = A.L[stream_at:]; del A.L[stream_at:]

    role[0] = "S"; stamp_list.append(("S", "start"))
    G, J, PD, M0, AB, DQ, DG, T0 = 1, 2, 3, 4, 8, 16, 20, 24
    XA, XR, EP, GA, OUTA, XF, PH, XV, WDA, WOA, RA, OGA, TAG, GV, L16 = 40, 44, 45, 46, 48, 49, 50, 51, 52, 58, 59, 60, 61, 62, 63
    WQ, GU = 64, 128
    WO, WD, PS = 64, 128, 160
    def tag(regs, kind=""):
        if kind and kind in rnd:
            for r in regs: A(f"v_add_u32 v{r}, 0x200, v{r}")
        for r in regs: A(f"v_and_or_b32 v{r}, v{r}, s7, v{TAG}")
    def untag(regs):
        for r in regs: A(f"v_and_b32 v{r}, s7, v{r}")
    def check(regs, t):
        regs = list(regs)
        pairs = [regs[k:k+2] for k in range(0, len(regs), 2)]
        A(f"v_bitop3_b32 v{t}, v{pairs[0][0]}, v{pairs[0][1]}, v{TAG} bitop3:0x7e")
        rest = pairs[1:]
        while rest:
            take = rest[:2]; rest = rest[2:]
            for k, p in enumerate(take): A(f"v_bitop3_b32 v{t+1+k}, v{p[0]}, v{p[1]}, v{TAG} bitop3:0x7e")
            if len(take) == 2: A(f"v_or3_b32 v{t}, v{t}, v{t+1}, v{t+2}")
            else: A(f"v_or_b32 v{t}, v{t}, v{t+1}")
        A(f"v_and_b32 v{t}, 0x3ff, v{t}")
        A(f"v_cmp_ne_u32 vcc, 0, v{t}")
    def strip(regs, t):
        regs = list(regs)
        for r in regs[::2]: A(f"v_lshl_add_u64 v[{r}:{r+1}], v[{r}:{r+1}], 0, s[14:15]")
        acc = [t, t + 1]; rest = regs[:]
        for a in acc: A(f"v_or3_b32 v{a}, v{rest[0]}, v{rest[1]}, v{rest[2]}"); rest = rest[3:]
        k = 0
        while len(rest) > 2 or (len(rest) == 2 and k & 1):
            A(f"v_or3_b32 v{acc[k&1]}, v{acc[k&1]}, v{rest[0]}, v{rest[1]}"); rest = rest[2:]; k += 1
        if len(rest) == 2:
            A(f"v_or3_b32 v{t}, v{t}, v{rest[0]}, v{rest[1]}"); rest = []
        assert not rest
        A(f"v_bitop3_b32 v{t}, v{t}, v{t+1}, s7 bitop3:0x54")
        A(f"v_cmp_ne_u32 vcc, 0, v{t}")
    def pkadd(d, a, b): A(f"v_pk_add_f32 v[{d}:{d+1}], v[{a}:{a+1}], v[{b}:{b+1}]")
    def poll(name, loads, regs, t, sleep):
        A(f"s_mov_b32 s70, {SPIN}")
        A(f"L_{name}:")
        if sleep: A(f"s_sleep {sleep}")
        loads()
        A("s_sub_u32 s70, s70, 1"); A(f"s_cbranch_scc1 L_{name}_done")
        A("s_waitcnt vmcnt(0)")
        if callable(regs): regs()
        else: check(regs, t)
        A("s_nop 1")
        if name not in skip.split(): A(f"s_cbranch_vccnz L_{name}")
        A(f"L_{name}_done:")
    def poll_pipe(name, R, delay, nreg, nld, loads, finish):
        A(f"s_mov_b32 s70, {SPIN}")
        for k in range(R - 1):
            loads(PS + nreg * k)
            if delay: A(f"s_sleep {delay}")
        A(f"L_{name}:")
        for k in range(R):
            if name == "pollO" and osleep: A(f"s_sleep {osleep}")
            loads(PS + nreg * ((k + R - 1) % R))
            if k == 0:
                A("s_sub_u32 s70, s70, 1"); A(f"s_cbranch_scc1 L_{name}_ok0")
            A(f"s_waitcnt vmcnt({nld * (R - 1)})")
            b = PS + nreg * k
            (strip if fast else check)(range(b, b + nreg), T0)
            A("s_nop 1")
            if name in skip.split(): A(f"s_branch L_{name}_ok{k}")
            A(f"s_cbranch_vccz L_{name}_ok{k}" if k < R - 1 else f"s_cbranch_vccnz L_{name}")
        for k in reversed(range(R)):
            A(f"L_{name}_ok{k}:")
            finish(PS + nreg * k)
            if k: A(f"s_branch L_{name}_done")
        A(f"L_{name}_done:")

    A("L_service:")
    A("s_setprio 3")
    srd(16, 0, 1024); srd(20, 24, 4 << 20); srd(40, 88, WS_BYTES)
    A("s_load_dwordx4 s[44:47], s[0:1], 48")
    srd(24, 32, 4 << 20); srd(28, 64, 1376 * 1024); srd(32, 72, 1024)
    A(f"v_lshrrev_b32 v{G}, 4, v0"); A(f"v_and_b32 v{J}, 15, v0")
    if amap:
        HP, SP = 38, 39
        A("s_lshr_b32 s38, s2, 3"); A("s_and_b32 s39, s2, 7")
    else: HP, SP = 4, 5
    def chunks(hreg):
        if numa:
            A(f"s_and_b32 s7, s{hreg}, 3"); A("s_lshl_b32 s7, s7, 3"); A(f"s_lshr_b32 s48, s{hreg}, 2"); A("s_add_u32 s7, s7, s48")
            A("s_mul_i32 s56, s7, 43")
        elif mapx or amap: A(f"s_mul_i32 s56, s{hreg}, 43")
        else:
            A(f"s_and_b32 s7, s{hreg}, 7"); A("s_lshl_b32 s7, s7, 2"); A(f"s_lshr_b32 s48, s{hreg}, 3"); A("s_add_u32 s7, s7, s48")
            A("s_mul_i32 s56, s7, 43")
        A("s_add_u32 s57, s56, 43"); A("s_lshr_b32 s56, s56, 3"); A("s_lshr_b32 s57, s57, 3")
        A("s_sub_u32 s57, s57, s56")
    chunks(HP)
    A(f"v_lshlrev_b32 v{L16}, 4, v0")
    A(f"s_lshl_b32 s48, s{SP}, 7")
    A(f"v_lshlrev_b32 v{T0+1}, 1, v0")
    A(f"v_lshlrev_b32 v{T0+3}, 4, v{J}")
    A(f"v_lshl_add_u32 v{T0+2}, v{G}, 17, v{T0+3}")
    A(f"s_lshl_b32 s49, s{SP}, 19"); A(f"s_lshl_b32 s51, s{HP}, 8"); A("s_add_u32 s49, s49, s51")
    A(f"v_and_b32 v{T0+4}, 7, v0")
    A(f"v_cmp_gt_u32 vcc, s57, v{T0+4}")
    A("s_mov_b32 s51, 44032"); A(f"s_mul_i32 s58, s{SP}, 176128")
    A(f"v_cndmask_b32 v{T0+4}, 0, v{T0+4}, vcc")
    A(f"v_add_lshl_u32 v{T0+4}, v{T0+4}, s56, 4")
    A(f"v_mad_u32_u24 v{T0+4}, v{G}, s51, v{T0+4}")
    A(f"v_add_u32 v{T0+4}, s58, v{T0+4}")
    A(f"v_mov_b32 v{T0+5}, 0")
    A(f"v_cmp_lt_u32 vcc, 7, v{J}")
    A(f"s_mov_b32 s79, {WS_E}")
    A("s_mov_b32 s60, 5504"); A("s_mov_b32 s61, 0")
    A("s_waitcnt lgkmcnt(0)")
    stamp("skarg")
    if steal:
        A(f"s_cmp_lg_u32 s{SP}, 0"); A("s_cbranch_scc1 L_noreset")
        A(f"s_lshl_b32 s51, s{HP}, 7"); A(f"s_add_u32 s51, s51, {WS_C}")
        A("s_mov_b64 exec, 1")
        A(f"buffer_store_dword v{T0+5}, v{T0+5}, s[40:43], s51 offen sc1")
        A("s_mov_b64 exec, -1")
        A("L_noreset:")
    if pre:
        A("s_lshl_b32 s6, s4, 3"); A("s_add_u32 s6, s6, s5")
        if "A" in pre:
            A(f"s_lshl_b32 s51, s{2 if amap else 6}, 10")
            A(f"buffer_load_dword v{T0+10}, v{L16}, s[40:43], s51 offen {preflags}")
        if "Y" in pre:
            A("s_lshl_b32 s51, s2, 9"); A(f"s_add_u32 s51, s51, {WS_Y}"); A(f"v_lshrrev_b32 v{T0+11}, 1, v{L16}")
            A(f"buffer_load_dword v{T0+10}, v{T0+11}, s[40:43], s51 offen {preflags}")
        if "S" in pre:
            A("s_lshl_b32 s51, s2, 9"); A(f"s_add_u32 s51, s51, {WS_S}"); A(f"v_lshrrev_b32 v{T0+11}, 1, v{L16}")
            A(f"buffer_load_dword v{T0+10}, v{T0+11}, s[40:43], s51 offen {preflags}")
    A(f"buffer_load_dwordx4 v[{XA}:{XA+3}], v{L16}, s[16:19], 0 offen")
    A(f"buffer_load_ushort v{XR}, v{T0+1}, s[16:19], s48 offen")
    A(f"buffer_load_dword v{EP}, v{T0+5}, s[40:43], s79 offen sc1")
    stamp("sx")
    A(f"v_mov_b32 v{T0+6}, s44"); A(f"v_mov_b32 v{T0+7}, s45"); A(f"v_mov_b32 v{T0+8}, s46"); A(f"v_mov_b32 v{T0+9}, s47")
    A(f"v_cndmask_b32 v{GA}, v{T0+6}, v{T0+8}, vcc"); A(f"v_cndmask_b32 v{GA+1}, v{T0+7}, v{T0+9}, vcc")
    A(f"v_lshl_add_u64 v[{GA}:{GA+1}], v[{T0+4}:{T0+5}], 0, v[{GA}:{GA+1}]")
    def lds_init():
        A(f"v_cmp_gt_u32 vcc, 8, v0"); A(f"v_lshlrev_b32 v{T0+7}, 2, v0"); A("s_mov_b32 s7, 0xfffffc00")
        A(f"v_cndmask_b32 v{T0+6}, 0, -1, vcc")
        A("s_mov_b64 exec, 0xffff")
        A(f"ds_write_b32 v{T0+7}, v{T0+6} offset:{LML}")
        A("s_mov_b64 exec, -1")
        if steal:
            A(f"v_mov_b32 v{T0+6}, -1")
            A(f"ds_write_b32 v{T0+7}, v{T0+6} offset:{LREC}"); A(f"ds_write_b32 v{T0+7}, v{T0+6} offset:{LREC+64}")
        A("s_waitcnt lgkmcnt(0)")
        A("s_barrier")
    for n in range(16):
        if n in (4, 8): stamp(f"s{2*n}")
        if n == bar0: lds_init()
        if scap and 2 * n + 3 >= scap: A(f"s_waitcnt vmcnt({scap - 2})")
        if "W" in skip.split(): A(f"buffer_load_dword v{WQ+4*n}, v{T0+5}, s[16:19], 0 offen")
        else: A(f"buffer_load_dwordx4 v[{WQ+4*n}:{WQ+4*n+3}], v{T0+2}, s[20:23], s49 offen {wflags}")
        if "G" in skip.split(): A(f"buffer_load_dword v{GU+4*n}, v{T0+5}, s[16:19], 0 offen")
        else: A(f"global_load_dwordx4 v[{GU+4*n}:{GU+4*n+3}], v[{GA}:{GA+1}], off{off(2752 * (n & 1))} {gflags}")
        if n < 15: A("s_addk_i32 s49, 0x2000")
        if n & 1 and n < 15: A(f"v_lshl_add_u64 v[{GA}:{GA+1}], v[{GA}:{GA+1}], 0, s[60:61]")
    if bar0 == 16: lds_init()
    stamp("issued")
    masks(M0, T0 + 6, T0 + 7)
    A("s_and_b32 s58, s5, 3"); A("s_lshr_b32 s59, s5, 2")
    A("s_lshl_b32 s6, s4, 3"); A("s_add_u32 s6, s6, s5")
    A(f"v_lshlrev_b32 v{OUTA}, 5, v{J}"); A(f"v_and_b32 v{T0}, 16, v0"); A(f"v_add_u32 v{OUTA}, v{OUTA}, v{T0}")
    A("s_lshl_b32 s63, s6, 9"); A(f"s_add_u32 s63, s63, {WS_O}")
    if t64:
        assert fast and not (lin or steal or mapx)
        A("s_lshl_b32 s64, s5, 5"); A("s_add_u32 s64, s64, s4"); A(f"s_lshl_b32 s64, s64, {9 if ys else 8}")
    else:
        A("s_lshl_b32 s64, s58, 6"); A("s_lshl_b32 s48, s4, 1"); A("s_add_u32 s64, s64, s48"); A("s_add_u32 s64, s64, s59")
        A("s_lshl_b32 s64, s64, 9")
    SBASE = WS_Y + 64 if ys else (sofs or WS_S)
    A(f"s_add_u32 s65, s64, {WS_Y}")
    if wpar is not None:
        assert t64 and not ys
        SBASE = WS_S + (wpar << 13) - 0
        A("s_lshl_b32 s48, s5, 13"); A("s_add_u32 s64, s64, s48")
    A(f"s_add_u32 s64, s64, {SBASE}")
    A(f"s_lshl_b32 s66, s6, {mlstr}"); A(f"s_add_u32 s66, s66, {WS_ML}")
    A(f"s_lshl_b32 s67, s{2 if amap else 6}, 10")
    if amap: chunks(4)
    A("s_mov_b32 s68, 0"); A("s_mov_b32 s69, -1")
    A("s_waitcnt vmcnt(32)")
    stamp("x")
    for k in range(4):
        A(f"v_lshlrev_b32 v{T0+2*k}, 16, v{XA+k}"); A(f"v_and_b32 v{T0+2*k+1}, 0xffff0000, v{XA+k}")
    A(f"v_add_f32 v{T0+8}, v{T0}, v{T0+1}"); A(f"v_add_f32 v{T0+9}, v{T0+2}, v{T0+3}")
    A(f"v_add_f32 v{T0+10}, v{T0+4}, v{T0+5}"); A(f"v_add_f32 v{T0+11}, v{T0+6}, v{T0+7}")
    A(f"v_add_f32 v{T0+8}, v{T0+8}, v{T0+9}"); A(f"v_add_f32 v{T0+10}, v{T0+10}, v{T0+11}")
    A(f"v_add_f32 v{T0+8}, v{T0+8}, v{T0+10}")
    A(f"v_add_u32 v{EP}, 1, v{EP}"); A(f"v_and_b32 v{TAG}, 0x3ff, v{EP}")
    if fast:
        A(f"v_readfirstlane_b32 s13, v{TAG}"); A("s_sub_u32 s14, 0, s13"); A("s_subb_u32 s15, 0, s13")
    wave_red("v_add_f32", T0 + 8)
    A(f"v_mul_f32 v{T0+8}, 0x3b000000, v{T0+8}")
    A(f"v_readlane_b32 s51, v{T0+8}, 63")
    for k in range(8): A(f"v_subrev_f32 v{T0+k}, s51, v{T0+k}")
    A(f"v_mul_f32 v{T0+9}, v{T0}, v{T0}"); A(f"v_mul_f32 v{T0+10}, v{T0+1}, v{T0+1}")
    for k in range(2, 8, 2):
        A(f"v_fmac_f32 v{T0+9}, v{T0+k}, v{T0+k}"); A(f"v_fmac_f32 v{T0+10}, v{T0+k+1}, v{T0+k+1}")
    A(f"v_add_f32 v{T0+9}, v{T0+9}, v{T0+10}")
    rbf(T0 + 8)
    wave_red("v_add_f32", T0 + 9)
    A(f"v_mul_f32 v{T0+9}, 0x3b000000, v{T0+9}")
    rbf(T0 + 9)
    A(f"v_add_f32 v{T0+9}, 0x3727c5ac, v{T0+9}")
    rbf(T0 + 9)
    A(f"v_sqrt_f32 v{T0+9}, v{T0+9}")
    A(f"v_readlane_b32 s51, v{T0+8}, 63")
    rbf(T0 + 9)
    A(f"v_lshlrev_b32 v{XR}, 16, v{XR}")
    A(f"v_readlane_b32 s62, v{T0+9}, 63")
    A(f"v_subrev_f32 v{XR}, s51, v{XR}")
    rbf(XR)
    A(f"v_rcp_f32 v{T0+10}, s62")
    A(f"v_mul_f32 v{T0+11}, v{XR}, v{T0+10}")
    A(f"v_fma_f32 v{T0+12}, -v{T0+11}, s62, v{XR}")
    A(f"v_fmac_f32 v{T0+11}, v{T0+12}, v{T0+10}")
    A(f"v_cvt_pk_bf16_f32 v{PD}, v{T0+11}, v{T0+11}")
    stamp("ln")
    abuild(AB, PD, M0, 0)
    for n in range(16):
        ab = AB + 4 * (n & 1)
        if n < 15: abuild(AB + 4 * ((n + 1) & 1), PD, M0, n + 1)
        A(f"s_waitcnt vmcnt({30-2*n})")
        mfma(DQ, ab, WQ + 4 * n, n == 0); mfma(DG, ab, GU + 4 * n, n == 0)
    A("s_lshl_b32 s48, s4, 13"); A("s_add_u32 s49, s48, 0x1000")
    A(f"v_lshrrev_b32 v{T0+3}, 1, v{OUTA}")
    for k in range(4): A(f"v_cndmask_b32 v{DQ+k}, v{DQ+k}, v{DG+k}, s[68:69]")
    tag(range(DQ, DQ + 4), "A")
    if "Ast" not in skip.split(): A(f"buffer_store_dwordx4 v[{DQ}:{DQ+3}], v{L16}, s[40:43], s67 offen {'' if 'Aplain' in skip.split() else 'sc1'}")
    stamp("apub")
    def a_loads():
        for k in range(8):
            if "Ald" not in skip.split(): A(f"buffer_load_dwordx4 v[{WQ+4*k}:{WQ+4*k+3}], v{L16}, s[40:43], s{48 + k // 4} offen{off((k&3)*1024)} sc1")
    poll("pollA", a_loads, range(WQ, WQ + 32), T0, asleep)
    stamp("aseen")
    untag(range(WQ, WQ + 32))
    for k in range(4):
        A(f"v_add_f32 v{WQ+k}, v{WQ+k}, v{WQ+4+k}"); A(f"v_add_f32 v{WQ+8+k}, v{WQ+8+k}, v{WQ+12+k}")
        A(f"v_add_f32 v{WQ+16+k}, v{WQ+16+k}, v{WQ+20+k}"); A(f"v_add_f32 v{WQ+24+k}, v{WQ+24+k}, v{WQ+28+k}")
    for k in range(4):
        A(f"v_add_f32 v{WQ+k}, v{WQ+k}, v{WQ+8+k}"); A(f"v_add_f32 v{WQ+16+k}, v{WQ+16+k}, v{WQ+24+k}")
    for k in range(4): A(f"v_add_f32 v{WQ+k}, v{WQ+k}, v{WQ+16+k}")
    A(f"v_cvt_pk_bf16_f32 v{T0+4}, v{WQ}, v{WQ+1}"); A(f"v_cvt_pk_bf16_f32 v{T0+5}, v{WQ+2}, v{WQ+3}")
    A(f"v_mov_b32 v{T0+6}, 0"); A(f"v_mov_b32 v{T0+7}, 1")
    A("s_mov_b32 exec_hi, 0")
    A(f"ds_write_b64 v{T0+3}, v[{T0+4}:{T0+5}] offset:{LQ}")
    A(f"ds_write_b32 v{T0+6}, v{T0+7} offset:{LQF}")
    A("s_mov_b64 exec, -1")
    stamp("qdone")
    A("s_setprio 0")
    MH, PD1 = 53, 54
    def tbuild(a0, src, qs=range(4)):
        for q in qs:
            p, n = src(q)
            A(f"v_and_b32_dpp v{a0+q}, v{p}, v{MH} row_newbcast:{n} row_mask:0xf bank_mask:0xf")
    def tgemv(base, nrho, src, wait):
        tbuild(AB, lambda q: src(0, q))
        for rho in range(nrho):
            a = AB + 4 * (rho & 1); nxt = AB + 4 * ((rho + 1) & 1)
            if rho + 1 < nrho: tbuild(nxt, lambda q: src(rho + 1, q), (0, 1))
            if wait: wait(rho)
            mfma(DQ, a, base + 8 * rho, rho == 0)
            if rho + 1 < nrho: tbuild(nxt, lambda q: src(rho + 1, q), (2, 3))
            mfma(DG, a, base + 8 * rho + 4, rho == 0)
    MH1, YSA = 55, 56
    def xgemv(base, npair, src, wait):
        def build(a0, k):
            for r in range(4):
                p, n = src(2 * k + (r >> 1))
                A(f"v_and_b32_dpp v{a0+r}, v{p}, v{(MH, MH1)[r & 1]} row_newbcast:{n} row_mask:0xf bank_mask:0xf")
        build(AB, 0)
        for k in range(npair):
            if k + 1 < npair: build(AB + 4 * ((k + 1) & 1), k + 1)
            if wait: wait(k)
            mfma(DQ, AB + 4 * (k & 1), base + 4 * k, k == 0)
    def tpublish(kind, sreg, flags):
        A("s_mov_b64 exec, 0xffff")
        src = [DQ, DQ + 1, DQ + 2, DQ + 3] if x2 else [DQ, DQ + 1, DG, DG + 1]
        if kind in rnd:
            for r in src: A(f"v_add_u32 v{r}, 0x200, v{r}")
        for k, r in enumerate(src): A(f"v_and_or_b32 v{T0+8+k}, v{r}, s7, v{TAG}")
        A(f"buffer_store_dwordx4 v[{T0+8}:{T0+11}], v{YSA if ys else L16}, s[40:43], s{sreg} offen {flags}")
        A("s_mov_b64 exec, -1")
    if t64:
        if x2:
            A(f"v_or_b32 v{MH}, v{M0}, v{M0+2}"); A(f"v_or_b32 v{MH1}, v{M0+1}, v{M0+3}")
        else:
            A(f"v_or3_b32 v{MH}, v{M0}, v{M0+1}, v{M0+2}"); A(f"v_or_b32 v{MH}, v{MH}, v{M0+3}")
        if ys:
            A(f"v_lshrrev_b32 v{YSA}, 2, v0"); A(f"v_and_b32 v{T0}, 3, v0"); A(f"v_lshlrev_b32 v{YSA}, 7, v{YSA}"); A(f"v_lshl_add_u32 v{YSA}, v{T0}, 4, v{YSA}")
        A(f"v_mul_u32_u24 v{T0}, 12, v{G}")
        A("s_lshl_b32 s48, s57, 3"); A("s_lshl_b32 s49, s56, 3"); A("s_lshl_b32 s72, s5, 7")
        A(f"v_lshlrev_b32 v{T0+2}, {3 if x2 else 2}, v{J}")
        A(f"v_add_u32 v{T0+3}, 4, v{T0}"); A(f"v_cmp_gt_u32 vcc, s48, v{T0+3}")
        A(f"v_add_u32 v{T0+3}, s49, v{T0}"); A(f"v_lshl_add_u32 v{T0+3}, v{T0+3}, 10, v{T0+2}")
        A(f"v_mov_b32 v{WDA}, 0x7ffffff0"); A(f"v_cndmask_b32 v{WDA}, v{WDA}, v{T0+3}, vcc")
        A("s_add_u32 s48, s72, 0x1000"); A("s_add_u32 s49, s72, 0x2000")
        for rho in range(3):
            for q in range(4):
                if x2:
                    A(f"buffer_load_dwordx2 v[{WD+8*rho+2*q}:{WD+8*rho+2*q+1}], v{WDA if rho else T0+3}, s[28:31], s{(72, 48, 49)[rho]} offen{off(1024*q)} {wflags}")
                    continue
                for t in range(2):
                    A(f"buffer_load_dword v{WD+8*rho+4*t+q}, v{WDA if rho else T0+3}, s[28:31], s{(72, 48, 49)[rho]} offen{off(1024*q + 64*t)} {woflags}")
    else:
        A("s_mul_i32 s48, s59, 24")
        A(f"v_mul_u32_u24 v{T0}, 6, v{G}"); A(f"v_add_u32 v{T0}, s48, v{T0}")
        A("s_lshl_b32 s48, s57, 3"); A("s_lshl_b32 s49, s56, 3"); A("s_lshl_b32 s72, s58, 8")
        A(f"v_lshlrev_b32 v{T0+2}, 4, v{J}")
        for n in range(6):
            A(f"v_add_u32 v{T0+3}, {n}, v{T0}")
            A(f"v_cmp_gt_u32 vcc, s48, v{T0+3}")
            A(f"v_add_u32 v{T0+3}, s49, v{T0+3}")
            A(f"v_lshl_add_u32 v{T0+3}, v{T0+3}, 10, v{T0+2}")
            A(f"v_mov_b32 v{WDA}, 0x7ffffff0")
            A(f"v_cndmask_b32 v{WDA}, v{WDA}, v{T0+3}, vcc")
            if "D" not in skip.split(): A(f"buffer_load_dwordx4 v[{WD+4*n}:{WD+4*n+3}], v{WDA}, s[28:31], s72 offen {wflags}")
    for k in range(4): rbf(WQ + k)
    for k in range(4): A(f"v_mov_b32_dpp v{T0+4+k}, v{WQ+k} row_ror:8 row_mask:0xf bank_mask:0xf")
    for k in range(4): A(f"v_mul_f32 v{WQ+k}, 0xbfb8aa3b, v{WQ+k}")
    for k in range(4): A(f"v_exp_f32 v{WQ+k}, v{WQ+k}")
    for k in range(4): A(f"v_add_f32 v{WQ+k}, 1.0, v{WQ+k}")
    for k in range(4): A(f"v_rcp_f32 v{WQ+k}, v{WQ+k}")
    for k in range(4): rbf(WQ + k)
    for k in range(4): A(f"v_mul_f32 v{WQ+k}, v{WQ+k}, v{T0+4+k}")
    A(f"v_cmp_gt_u32 vcc, s57, v{J}")
    for k in range(4): A(f"v_cvt_pk_bf16_f32 v{WQ+k}, v{WQ+k}, v{WQ+k}")
    for k in range(4): A(f"v_cndmask_b32 v{WQ+k}, 0, v{WQ+k}, vcc")
    A("s_mov_b32 exec_lo, 0"); A("s_mov_b32 exec_hi, 0x00ff00ff")
    A(f"ds_write_b128 v{OUTA}, v[{WQ}:{WQ+3}] offset:{LH}")
    A("s_mov_b64 exec, -1")
    A(f"v_add_lshl_u32 v{T0+1}, v{T0}, v{J}, 2")
    A("s_waitcnt lgkmcnt(0)")
    A(f"ds_read_b32 v{PH}, v{T0+1} offset:{LH}")
    if t64:
        A(f"v_lshl_add_u32 v{WOA}, v{G}, 15, v{T0+2}")
        A("s_lshl_b32 s71, s4, 17"); A("s_add_u32 s71, s71, s72")
        A(f"v_and_b32 v{T0+3}, 3, v0"); A("s_lshr_b32 s48, s4, 2"); A("s_and_b32 s49, s4, 3")
        if x2:
            A(f"v_lshl_add_u32 v{T0+4}, v{T0+3}, 2, v{G}"); A("s_lshl_b32 s51, s4, 4")
        else:
            A(f"v_and_b32 v{T0+4}, 1, v{G}"); A(f"v_lshl_add_u32 v{T0+4}, v{T0+3}, 1, v{T0+4}")
            A(f"v_lshrrev_b32 v{T0+5}, 1, v{G}"); A(f"v_lshl_add_u32 v{T0+4}, v{T0+5}, 5, v{T0+4}")
            A("s_lshl_b32 s51, s48, 6"); A("s_lshl_b32 s73, s49, 3"); A("s_add_u32 s51, s51, s73")
        A(f"v_add_lshl_u32 v{XF}, v{T0+4}, s51, 1")
        A(f"v_lshrrev_b32 v{RA}, 2, v0"); A(f"v_lshlrev_b32 v{RA}, {9 if ys else 8}, v{RA}"); A(f"v_lshl_add_u32 v{RA}, v{T0+3}, 4, v{RA}")
        A(f"s_lshl_b32 s73, s48, {14 if ys else 13}"); A(f"s_lshl_b32 s49, s49, {7 if ys else 6}"); A("s_add_u32 s73, s73, s49")
        A("s_mov_b32 s36, s5")
        A(f"buffer_load_ushort v{XV}, v{XF}, s[16:19], 0 offen")
        A(f"v_lshlrev_b32 v{OGA}, 3, v0")
    else:
        A(f"v_lshl_add_u32 v{WOA}, v{G}, 14, v{T0+2}")
        A("s_lshl_b32 s71, s4, 17"); A("s_lshl_b32 s48, s59, 16"); A("s_add_u32 s71, s71, s48"); A("s_add_u32 s71, s71, s72")
        A(f"v_and_b32 v{T0+3}, 3, v0")
        if lin:
            A(f"v_lshl_add_u32 v{T0+4}, v{T0+3}, 3, v{G}")
            A("s_lshr_b32 s48, s4, 3"); A("s_lshl_b32 s48, s48, 7"); A("s_and_b32 s49, s4, 3"); A("s_lshl_b32 s49, s49, 5"); A("s_add_u32 s48, s48, s49")
            A("s_and_b32 s49, s4, 4"); A("s_add_u32 s48, s48, s49")
        else:
            A(f"v_lshl_add_u32 v{T0+4}, v{T0+3}, 2, v{G}"); A("s_lshl_b32 s48, s4, 4")
        A(f"v_add_lshl_u32 v{XF}, v{T0+4}, s48, 1")
        A(f"v_lshrrev_b32 v{RA}, 2, v0"); A(f"v_lshlrev_b32 v{RA}, 9, v{RA}"); A(f"v_lshl_add_u32 v{RA}, v{T0+3}, 4, v{RA}")
        A("s_and_b32 s48, s4, 7"); A("s_lshl_b32 s49, s48, 6"); A("s_lshr_b32 s73, s4, 3"); A("s_lshl_b32 s73, s73, 15"); A("s_add_u32 s73, s73, s49")
        if mapx: A("s_sub_u32 s36, s5, s48")
        else: A("s_mov_b32 s36, s5")
        A(f"buffer_load_ushort v{XV}, v{XF}, s[16:19], 0 offen")
        if lin:
            A(f"v_bfe_u32 v{T0+4}, v0, 2, 1"); A(f"v_lshrrev_b32 v{T0+5}, 3, v0"); A(f"v_lshl_add_u32 v{T0+4}, v{T0+4}, 4, v{T0+5}")
            A(f"v_lshl_add_u32 v{T0+4}, v{T0+4}, 2, v{T0+3}"); A("s_lshl_b32 s48, s59, 7"); A(f"v_lshl_add_u32 v{OGA}, v{T0+4}, 2, s48")
        else:
            A("s_lshl_b32 s48, s59, 8"); A(f"v_lshl_add_u32 v{OGA}, v0, 2, s48")
    A("s_lshl_b32 s78, s4, 12"); A(f"s_add_u32 s78, s78, {WS_O}")
    A("s_waitcnt lgkmcnt(0)")
    if t64:
        if x2: xgemv(WD, 6, lambda e: (PH, e), lambda k: A(f"s_waitcnt vmcnt({11 - 2 * k})"))
        else: tgemv(WD, 3, lambda rho, q: (PH, 4 * rho + q), lambda rho: A(f"s_waitcnt vmcnt({17 - 8 * rho})"))
        tpublish("Y", 65, "sc1")
    else:
        abuild(AB, PH, M0, 0)
        for n in range(6):
            if n < 5: abuild(AB + 4 * ((n + 1) & 1), PH, M0, n + 1)
            A(f"s_waitcnt vmcnt({6-n})")
            mfma(DG, AB + 4 * (n & 1), WD + 4 * n, n == 0)
        tag(range(DG, DG + 4), "Y")
        A("s_mov_b32 exec_hi, 0")
        if "Yst" not in skip.split(): A(f"buffer_store_dwordx4 v[{DG}:{DG+3}], v{L16 if lin else OUTA}, s[40:43], s65 offen sc1")
        A("s_mov_b64 exec, -1")
    stamp("ypub")
    if prb:
        assert t64 and not ys and wpar is None and mlstr == 4 and not mlfull
        A("s_cmp_lg_u32 s2, 0"); A("s_cbranch_scc1 L_noprobe")
        A(f"s_mov_b32 s48, {WS_X}"); A("s_mov_b32 s10, -1"); A("s_mov_b32 s11, -1"); A(f"s_mov_b32 s49, {prb}")
        A("s_load_dword s8, s[40:41], s48"); A("s_waitcnt lgkmcnt(0)")
        A("L_probe_d:")
        for c in range(2):
            A("s_addk_i32 s48, 0x2000" if c == 0 else "s_addk_i32 s48, 0x2100")
            A("s_memtime s[56:57]"); A("s_waitcnt lgkmcnt(0)")
            A("s_load_dword s8, s[40:41], s48"); A("s_waitcnt lgkmcnt(0)")
            A("s_memtime s[58:59]"); A("s_waitcnt lgkmcnt(0)")
            A("s_sub_u32 s56, s58, s56"); A(f"s_min_u32 s{11 - c}, s{11 - c}, s56")
        A("s_sub_u32 s49, s49, 1"); A("s_cmp_lg_u32 s49, 0"); A("s_cbranch_scc1 L_probe_d")
        A("s_cmp_gt_u32 s10, s11"); A("s_cselect_b32 s48, 0x400, 0")
        A(f"v_or_b32 v{T0+4}, s48, v{TAG}"); A(f"v_mov_b32 v{T0+5}, v{TAG}"); A(f"v_mov_b32 v{T0+6}, v{EP}"); A(f"v_mov_b32 v{T0+7}, v{EP}")
        A(f"v_mov_b32 v{T0+1}, 0"); A(f"s_mov_b32 s48, {WS_D}")
        A("s_mov_b64 exec, 1")
        A(f"buffer_store_dwordx4 v[{T0+4}:{T0+7}], v{T0+1}, s[40:43], s48 offen sc1")
        A("s_mov_b64 exec, -1")
        if stamps == "prb":
            A("s_mov_b32 s98, s10"); A("s_mov_b32 s100, s11")
        A("L_noprobe:")
    A(f"v_and_b32 v{T0}, 3, v0"); A(f"v_lshlrev_b32 v{T0}, 3, v{T0}")
    A(f"s_mov_b32 s70, {SPIN * 8}")
    A("L_pollML:")
    A(f"s_sleep {lsleep}")
    A(f"ds_read_b64 v[{T0+2}:{T0+3}], v{T0} offset:{LML}")
    A("s_sub_u32 s70, s70, 1"); A("s_cbranch_scc1 L_pollML_done")
    A("s_waitcnt lgkmcnt(0)")
    A(f"v_cmp_eq_u32 vcc, -1, v{T0+3}")
    A("s_nop 1")
    A("s_cbranch_vccnz L_pollML")
    A("L_pollML_done:")
    stamp("ml")
    dpp("v_max_f32", T0 + 4, T0 + 2, "quad_perm:[1,0,3,2]"); dpp("v_max_f32", T0 + 4, T0 + 4, "quad_perm:[2,3,0,1]")
    A(f"v_sub_f32 v{T0+5}, v{T0+2}, v{T0+4}"); A(f"v_mul_f32 v{T0+5}, {LOG2E}, v{T0+5}"); A(f"v_exp_f32 v{T0+5}, v{T0+5}")
    A(f"v_mul_f32 v{T0+5}, v{T0+5}, v{T0+3}")
    dpp("v_add_f32", T0 + 5, T0 + 5, "quad_perm:[1,0,3,2]"); dpp("v_add_f32", T0 + 5, T0 + 5, "quad_perm:[2,3,0,1]")
    if steal:
        A(f"v_bfe_u32 v{T0+6}, v0, 2, 2"); A(f"v_lshlrev_b32 v{T0+6}, 3, v{T0+6}")
        A(f"ds_read_b32 v{T0+7}, v{T0+6} offset:{LML}")
        A(f"ds_read_b128 v[{T0+8}:{T0+11}], v{L16} offset:{LP}")
        A("s_lshl_b32 s51, s6, 10"); A(f"s_add_u32 s51, s51, {WS_P}")
        A("s_waitcnt lgkmcnt(0)")
        A(f"v_sub_f32 v{T0+7}, v{T0+7}, v{T0+4}"); A(f"v_mul_f32 v{T0+7}, {LOG2E}, v{T0+7}"); A(f"v_exp_f32 v{T0+7}, v{T0+7}")
        for k in range(4): A(f"v_mul_f32 v{T0+8+k}, v{T0+8+k}, v{T0+7}")
        tag(range(T0 + 8, T0 + 12))
        A(f"buffer_store_dwordx4 v[{T0+8}:{T0+11}], v{L16}, s[40:43], s51 offen sc1")
    tag((T0 + 4, T0 + 5))
    if local:
        A("s_getreg_b32 s37, hwreg(HW_REG_XCC_ID, 0, 4)"); A("s_lshl_b32 s37, s37, 10")
        A(f"v_or_b32 v{T0+4}, s37, v{T0+4}")
    if mlfull:
        assert mlstr == 7
        A(f"v_mov_b32 v{T0+1}, v{L16}"); A("s_mov_b64 exec, 0xff")
    else:
        A(f"v_mov_b32 v{T0+1}, 0"); A("s_mov_b64 exec, 1")
    A(f"v_mov_b32 v{T0+6}, v{EP}"); A(f"v_mov_b32 v{T0+7}, v{EP}")
    if "Mst" not in skip.split(): A(f"buffer_store_dwordx4 v[{T0+4}:{T0+7}], v{T0+1}, s[40:43], s66 offen {'' if 'Mplain' in skip.split() else 'sc1'}")
    A("s_mov_b64 exec, -1")
    A(f"v_and_b32 v{T0+1}, 7, v0"); A(f"v_lshlrev_b32 v{T0+1}, {mlstr}, v{T0+1}")
    A(f"s_lshl_b32 s48, s4, {mlstr + 3}"); A(f"s_add_u32 s48, s48, {WS_ML}")
    if prb:
        A(f"s_sub_u32 s49, {WS_D}, s48"); A(f"v_mov_b32 v{T0+8}, s49"); A("s_mov_b32 s56, 0xff00ff00"); A("s_mov_b32 s57, 0xff00ff00")
        A(f"v_cndmask_b32 v{T0+1}, v{T0+1}, v{T0+8}, s[56:57]")
    if mlat:
        A(f"v_mov_b32 v{T0+8}, 0")
        A(f"s_mov_b32 s70, {SPIN * 8}")
        A("L_pollM:")
        A(f"s_sleep {max(lsleep, 4)}")
        A(f"ds_read_b128 v[{T0+4}:{T0+7}], v{T0+8} offset:{LPROG}")
        A("s_sub_u32 s70, s70, 1"); A("s_cbranch_scc1 L_pollM_done")
        A("s_waitcnt lgkmcnt(0)")
        A(f"v_or3_b32 v{T0+4}, v{T0+4}, v{T0+5}, v{T0+6}"); A(f"v_or_b32 v{T0+4}, v{T0+4}, v{T0+7}")
        A(f"v_cmp_eq_u32 vcc, 0, v{T0+4}")
        A("s_nop 1")
        A("s_cbranch_vccnz L_pollM")
        A("L_pollM_done:")
    def ml_check():
        A(f"v_bitop3_b32 v{T0+8}, v{T0+4}, v{T0+5}, v{TAG} bitop3:0x7e"); A(f"v_bitop3_b32 v{T0+9}, v{T0+6}, v{T0+7}, v{EP} bitop3:0x7e")
        A(f"v_and_or_b32 v{T0+8}, v{T0+8}, s12, v{T0+9}")
        A(f"v_cmp_ne_u32 vcc, 0, v{T0+8}")
    A("s_movk_i32 s12, 0x3ff")
    poll("pollML2", lambda: A(f"buffer_load_dwordx4 v[{T0+4}:{T0+7}], v{T0+1}, s[40:43], s48 offen sc1"), ml_check, None, psleep)
    if local:
        A(f"v_and_b32 v{T0+6}, 0x3c00, v{T0+4}"); A(f"v_cmp_ne_u32 vcc, s37, v{T0+6}")
        A("s_nop 1")
        if prb: A("s_and_b32 s37, vcc_lo, 0xff")
        else: A("s_or_b32 s37, vcc_lo, vcc_hi")
    if prb:
        A(f"v_readlane_b32 s38, v{T0+4}, 8"); A("s_and_b32 s38, s38, 0x400"); A("s_lshl_b32 s38, s38, 3"); A("s_xor_b32 s64, s64, s38")
    A(f"v_and_b32 v{T0+4}, 0xffff0000, v{T0+4}"); untag((T0 + 5,))
    A(f"v_lshlrev_b32 v{XV}, 16, v{XV}")
    for c in ("quad_perm:[1,0,3,2]",): dpp("v_max_f32", T0 + 6, T0 + 4, c)
    for c in ("quad_perm:[2,3,0,1]", "row_half_mirror"): dpp("v_max_f32", T0 + 6, T0 + 6, c)
    A(f"v_sub_f32 v{T0+4}, v{T0+4}, v{T0+6}"); A(f"v_sub_f32 v{T0+2}, v{T0+2}, v{T0+6}")
    A(f"v_mul_f32 v{T0+4}, {LOG2E}, v{T0+4}"); A(f"v_mul_f32 v{T0+2}, {LOG2E}, v{T0+2}")
    A(f"v_exp_f32 v{T0+4}, v{T0+4}"); A(f"v_exp_f32 v{T0+2}, v{T0+2}")
    A(f"v_mul_f32 v{T0+5}, v{T0+4}, v{T0+5}")
    for c in ("quad_perm:[1,0,3,2]", "quad_perm:[2,3,0,1]", "row_half_mirror"): dpp("v_add_f32", T0 + 5, T0 + 5, c)
    A(f"v_rcp_f32 v{T0+5}, v{T0+5}")
    A(f"v_mul_f32 v{T0+2}, v{T0+2}, v{T0+5}")
    if not steal:
        for w in range(4): A(f"v_readlane_b32 s{74+w}, v{T0+2}, {w}")
        stamp("mlx")
    else:
        A(f"v_mul_f32 v{T0+4}, v{T0+4}, v{T0+5}")
        A(f"v_lshrrev_b32 v{T0}, 1, v{T0}")
        A(f"ds_write_b32 v{T0}, v{T0+2} offset:{LF}")
        stamp("mlx")
        A("s_lshl_b32 s48, s4, 13"); A(f"s_add_u32 s48, s48, {WS_P}"); A("s_add_u32 s49, s48, 0x1000")
        poll("pollPT", a_loads, range(WQ, WQ + 32), T0 + 6, 0)
        untag(range(WQ, WQ + 32))
        A(f"v_lshrrev_b32 v{T0+6}, 3, v0"); A(f"v_and_b32 v{T0+7}, 7, v0"); A(f"v_lshlrev_b32 v{T0+6}, 10, v{T0+6}")
        A(f"v_lshl_add_u32 v{T0+6}, v{T0+7}, 4, v{T0+6}")
        if np_ < 8:
            A(f"v_subrev_u32 v{T0+6}, {(8 - np_) * 1024}, v{T0+6}")
            m = (~((1 << (8 * (8 - np_))) - 1)) & (2**64 - 1)
            A(f"s_mov_b32 exec_lo, {hex(m & 0xffffffff)}"); A(f"s_mov_b32 exec_hi, {hex(m >> 32)}")
        for k in range(8):
            A(f"v_readlane_b32 s51, v{T0+4}, {k}")
            for r in range(4): A(f"v_mul_f32 v{WQ+4*k+r}, s51, v{WQ+4*k+r}")
            for r in range(4): A(f"v_cvt_pk_bf16_f32 v{WQ+4*k+r}, v{WQ+4*k+r}, v{WQ+4*k+r}")
            A(f"ds_write_b128 v{T0+6}, v[{WQ+4*k}:{WQ+4*k+3}] offset:{LPT + 128*k}")
        A("s_mov_b64 exec, -1")
        A(f"v_mov_b32 v{T0+6}, 0"); A(f"v_mov_b32 v{T0+7}, 1")
        A(f"ds_write_b32 v{T0+6}, v{T0+7} offset:{LPF}")
        stamp("table")
    NG = 2 if t64 else 4
    def reduce(base):
        if t64:
            untag(range(base, base + 8))
            for k in range(4): A(f"v_add_f32 v{T0+4+k}, v{base+k}, v{base+4+k}")
            return
        untag(range(base, base + 16))
        for k in range(4):
            A(f"v_add_f32 v{base+k}, v{base+k}, v{base+4+k}"); A(f"v_add_f32 v{base+8+k}, v{base+8+k}, v{base+12+k}")
        for k in range(4): A(f"v_add_f32 v{T0+4+k}, v{base+k}, v{base+8+k}")
    def reduce2():
        b = T0 + 4
        A(f"v_permlane32_swap_b32 v{b}, v{b+2}"); A(f"v_permlane32_swap_b32 v{b+1}, v{b+3}")
        A(f"v_add_f32 v{b}, v{b}, v{b+2}"); A(f"v_add_f32 v{b+1}, v{b+1}, v{b+3}")
        A(f"v_permlane16_swap_b32 v{b}, v{b+1}")
        A(f"v_add_f32 v{b}, v{b}, v{b+1}")
        dpp("v_add_f32", b, b, "row_ror:4"); dpp("v_add_f32", b, b, "row_ror:8")
        rbf(b)
    def gather(sregs):
        def f(base=PS):
            for k in range(NG): A(f"buffer_load_dwordx4 v[{base+4*k}:{base+4*k+3}], v{RA}, s[40:43], s{sregs[k]} offen sc1")
        return f
    A("s_cmp_lg_u32 s36, 0"); A("s_cbranch_scc1 L_noY")
    A(f"s_add_u32 s48, s73, {WS_Y}")
    A(f"s_add_u32 s49, s48, {4096 if t64 and not ys else 8192}"); A(f"s_add_u32 s56, s48, 16384"); A(f"s_add_u32 s57, s48, 24576")
    poll("pollY", gather((48, 49, 56, 57)), range(PS, PS + 4 * NG), T0, psleep)
    reduce(PS); reduce2()
    A(f"v_mul_f32 v{T0}, 0xbfb8aa3b, v{T0+4}"); A(f"v_exp_f32 v{T0}, v{T0}"); A(f"v_add_f32 v{T0}, 1.0, v{T0}")
    A(f"v_rcp_f32 v{T0}, v{T0}"); A(f"v_mul_f32 v{GV}, v{T0+4}, v{T0}")
    rbf(GV)
    A("s_cmp_lg_u32 s2, 0"); A("s_cbranch_scc1 L_noY")
    A("s_mov_b64 exec, 1")
    A(f"v_mov_b32 v{T0}, 0")
    A(f"buffer_store_dword v{EP}, v{T0}, s[40:43], s79 offen sc1")
    A("s_mov_b64 exec, -1")
    A("L_noY:")
    A(f"s_add_u32 s48, s73, {SBASE}")
    if prb: A("s_xor_b32 s48, s48, s38")
    if wpar is not None:
        A("s_lshr_b32 s49, s4, 2"); A("s_lshl_b32 s49, s49, 13"); A("s_add_u32 s48, s48, s49")
    A(f"s_add_u32 s49, s48, {4096 if t64 and not ys else 8192}"); A(f"s_add_u32 s56, s48, 16384"); A(f"s_add_u32 s57, s48, 24576")
    A(f"v_mov_b32 v{T0}, 0")
    A(f"s_mov_b32 s70, {SPIN * 8}")
    A("L_pollP:")
    A(f"s_sleep {lsleep}")
    if steal or bal or mlat: A(f"ds_read_b32 v{T0+4}, v{T0} offset:{LGO}")
    else: A(f"ds_read_b128 v[{T0+4}:{T0+7}], v{T0} offset:{LPROG}")
    A("s_sub_u32 s70, s70, 1"); A("s_cbranch_scc1 L_pollP_done")
    A("s_waitcnt lgkmcnt(0)")
    if not (steal or bal or mlat):
        A(f"v_or3_b32 v{T0+4}, v{T0+4}, v{T0+5}, v{T0+6}"); A(f"v_or_b32 v{T0+4}, v{T0+4}, v{T0+7}")
    A(f"v_cmp_eq_u32 vcc, 0, v{T0+4}")
    A("s_nop 1")
    A("s_cbranch_vccnz L_pollP")
    A("L_pollP_done:")
    A("s_setprio 3")
    for n in range(16):
        if t64:
            if n < 8:
                for q in range(4):
                    if x2:
                        A(f"buffer_load_dwordx2 v[{WO+8*n+2*q}:{WO+8*n+2*q+1}], v{WOA}, s[24:27], s71 offen{off(1024*q)} {woflags}")
                        continue
                    for t in range(2): A(f"buffer_load_dword v{WO+8*n+4*t+q}, v{WOA}, s[24:27], s71 offen{off(1024*q + 64*t)} {woflags}")
                if n < 7: A("s_addk_i32 s71, 0x1000")
            continue
        A(f"buffer_load_dwordx4 v[{WO+4*n}:{WO+4*n+3}], v{WOA}, s[24:27], s71 offen{off((n&3)*1024)} {woflags}")
        if n & 3 == 3 and n < 15: A("s_addk_i32 s71, 0x1000")
    stamp("wiss")
    A("s_mov_b32 exec_hi, 0")
    if local: A("s_cmp_lg_u32 s37, 0")
    A("s_barrier")
    for w in range(4): A(f"ds_read_b128 v[{T0+4*w}:{T0+4*w+3}], v{OUTA} offset:{LO+512*w}")
    stamp("bar2")
    for w in range(4):
        A(f"s_waitcnt lgkmcnt({3-w})" if not (stamps or probe) else "s_waitcnt lgkmcnt(0)")
        if fast and not steal:
            p = 74 + (w & 2); sel = "op_sel:[0,1] op_sel_hi:[1,1]" if w & 1 else "op_sel_hi:[1,0]"
            for k in (0, 2):
                if w == 0: A(f"v_pk_mul_f32 v[{DQ+k}:{DQ+k+1}], v[{T0+k}:{T0+k+1}], s[{p}:{p+1}] {sel}")
                else:
                    sel3 = "op_sel:[0,1,0] op_sel_hi:[1,1,1]" if w & 1 else "op_sel_hi:[1,0,1]"
                    A(f"v_pk_fma_f32 v[{DQ+k}:{DQ+k+1}], v[{T0+4*w+k}:{T0+4*w+k+1}], s[{p}:{p+1}], v[{DQ+k}:{DQ+k+1}] {sel3}")
            continue
        for k in range(4):
            if steal:
                if w == 1: A(f"v_add_f32 v{DQ+k}, v{T0+k}, v{T0+4+k}")
                elif w > 1: A(f"v_add_f32 v{DQ+k}, v{DQ+k}, v{T0+4*w+k}")
            elif w == 0: A(f"v_mul_f32 v{DQ+k}, s74, v{T0+k}")
            else: A(f"v_fmac_f32 v{DQ+k}, s{74+w}, v{T0+4*w+k}")
    tag(range(DQ, DQ + 4), "O")
    if local:
        A("s_cbranch_scc1 L_far")
        A(f"buffer_store_dwordx4 v[{DQ}:{DQ+3}], v{L16 if lin else OUTA}, s[40:43], s63 offen")
        A("s_branch L_near")
        A("L_far:")
    A(f"buffer_store_dwordx4 v[{DQ}:{DQ+3}], v{L16 if lin else OUTA}, s[40:43], s63 offen sc1")
    if local: A("L_near:")
    A("s_mov_b64 exec, -1")
    stamp("opub")
    def o_loads(base):
        for k in range(8): A(f"buffer_load_dword v{base+k}, v{OGA}, s[40:43], s78 offen{off(k*512)} sc1")
    def o_finish(b):
        if fast:
            pkadd(b, b, b + 2); pkadd(b + 4, b + 4, b + 6); pkadd(b, b, b + 4)
            A(f"v_add_f32 v{T0+3}, v{b}, v{b+1}")
            return
        untag(range(b, b + 8))
        for k in range(4): A(f"v_add_f32 v{b+2*k}, v{b+2*k}, v{b+2*k+1}")
        A(f"v_add_f32 v{b}, v{b}, v{b+2}"); A(f"v_add_f32 v{b+4}, v{b+4}, v{b+6}")
        A(f"v_add_f32 v{T0+3}, v{b}, v{b+4}")
    A("; o = bf16(sum of the eight partial outputs); partial out projection: " + ("the head's 128 rows, 64 columns" if t64 else "64 of the head's rows, 128 columns"))
    if t64:
        def o_loads2(base):
            for k in range(8): A(f"buffer_load_dwordx2 v[{base+2*k}:{base+2*k+1}], v{OGA}, s[40:43], s78 offen{off(k*512)} sc1")
        def o_finish2(b):
            for k in (0, 4, 8, 12): pkadd(b + k, b + k, b + k + 2)
            pkadd(b, b, b + 4); pkadd(b + 8, b + 8, b + 12); pkadd(T0 + 2, b, b + 8)
        poll_pipe("pollO", r1, d1, 16, 8, o_loads2, o_finish2)
        stamp("oseen")
        A(f"v_cvt_pk_bf16_f32 v{PD}, v{T0+2}, v{T0+2}"); A(f"v_cvt_pk_bf16_f32 v{PD1}, v{T0+3}, v{T0+3}")
        if x2: xgemv(WO, 16, lambda e: ((PD, PD1)[e & 1], e >> 1), None)
        else: tgemv(WO, 8, lambda rho, q: ((PD, PD1)[q & 1], 2 * rho + (q >> 1)), None)
        tpublish("S", 64, sflags)
    else:
        poll_pipe("pollO", r1, d1, 8, 8, o_loads, o_finish)
        stamp("oseen")
        A(f"v_cvt_pk_bf16_f32 v{PD}, v{T0+3}, v{T0+3}")
        abuild(AB, PD, M0, 0)
        for n in range(16):
            if n < 15: abuild(AB + 4 * ((n + 1) & 1), PD, M0, n + 1)
            mfma(DQ, AB + 4 * (n & 1), WO + 4 * n, n == 0)
        A("s_mov_b32 exec_hi, 0")
        tag(range(DQ, DQ + 4), "S")
        if "Sst" not in skip.split(): A(f"buffer_store_dwordx4 v[{DQ}:{DQ+3}], v{L16 if lin else OUTA}, s[40:43], s64 offen {sflags}")
        A("s_mov_b64 exec, -1")
    stamp("spub")
    A("s_cmp_lg_u32 s36, 0"); A("s_cbranch_scc1 L_sdone")
    PS = 64
    def s_finish(b):
        if t64:
            for k in (0, 2): pkadd(T0 + 4 + k, b + k, b + 4 + k)
            return
        for k in (0, 2): pkadd(b + k, b + k, b + 4 + k); pkadd(b + 8 + k, b + 8 + k, b + 12 + k)
        for k in (0, 2): pkadd(T0 + 4 + k, b + k, b + 8 + k)
    poll_pipe("pollS", r2, d2, 4 * NG, NG, gather((48, 49, 56, 57)), s_finish if fast else reduce)
    stamp("sseen")
    reduce2()
    A(f"v_mul_f32 v{T0+4}, v{T0+4}, v{GV}")
    rbf(T0 + 4)
    A(f"v_add_f32 v{T0+4}, v{T0+4}, v{XV}")
    A(f"v_cvt_pk_bf16_f32 v{T0+4}, v{T0+4}, v{T0+4}")
    A("s_mov_b32 exec_lo, 0x000f000f"); A("s_mov_b32 exec_hi, 0x000f000f")
    A(f"buffer_store_short v{T0+4}, v{XF}, s[32:35], 0 offen {oflags}")
    A("L_sdone:")
    if stamps or probe: A("s_waitcnt vmcnt(0)")
    stamp("end")
    if probe:
        A("s_cmp_lg_u32 s2, 0"); A("s_cbranch_scc1 L_end")
        A("s_memrealtime s[84:85]"); A("s_waitcnt lgkmcnt(0)")
        A("s_sub_u32 s82, s82, s80"); A(f"s_mul_i32 s82, s82, {probek}"); A("s_min_u32 s82, s82, 100000")
        A("L_probe:")
        A("s_memrealtime s[86:87]"); A("s_waitcnt lgkmcnt(0)")
        A("s_sub_u32 s86, s86, s84"); A("s_cmp_lt_u32 s86, s82"); A("s_cbranch_scc1 L_probe")
    dump_stamps()
    A("L_end:")
    A("s_endpgm")
    A.L += stream_body

    body = A.fix()
    hdr = open("cdna_kernels/" + NAME + ".s.ref").read().split("\n")
    hdr = [l for l in hdr if l.startswith(";") and "@launch" not in l and "Override" not in l and "grid=ceil" not in l]
    doc = """;
; layernorm -> q projection -> single-query attention over the cache -> out projection, times silu(GLU(xn)), plus x; one kernel.
; 256 workgroups = 32 heads x 8 key splits, one per CU; 4 streaming waves + 1 service wave each.
;   streaming waves: read the split's 1024 keys, then its 1024 values, once (1 KiB per load, nt); true-max softmax per wave,
;     merged exactly across waves and splits through (max, sum) pairs.
;   service wave: layernorm, a 64-row slice of the q / gate / up projections, a slice of the down and out projections,
;     and the hand-offs between workgroups.
; Hand-offs go through d_ws. Every handed-over word carries a 10-bit tag in its low bits, taken from an epoch word in d_ws that
; each run reads at entry and advances once all workgroups have read it; a reader waits until all words carry the tag and
; clears the tag before use, so neither results nor control flow depend on what d_ws held before. All waits are bounded.""".split("\n")
    out = hdr + doc + [f"; @launch grid=(256,1,1) block=({384 if steal or bal else 320},1,1) lds={12288 if steal else 3072}",
                 '.amdgcn_target "amdgcn-amd-amdhsa--gfx950"', ".text", f".globl {KN}", ".p2align 8", f".type {KN},@function"]
    out += [l if l.endswith(":") and not l.startswith(";") else "    " + l for l in body]
    nv = max(48 + 4 * nslot + (4 if bal else 0), 224)
    out += ['.section .rodata,"a"', ".p2align 6", f".amdhsa_kernel {KN}", f"  .amdhsa_next_free_vgpr {nv}",
            "  .amdhsa_next_free_sgpr 102", f"  .amdhsa_accum_offset {nv}", "  .amdhsa_group_segment_fixed_size 0",
            "  .amdhsa_kernarg_size 96", "  .amdhsa_user_sgpr_count 2", "  .amdhsa_user_sgpr_kernarg_segment_ptr 1",
            "  .amdhsa_system_sgpr_workgroup_id_x 1", ".end_amdhsa_kernel"]
    return "\n".join(out) + "\n", stamp_list

if __name__ == "__main__":
    kw = eval("dict(" + (sys.argv[2] if len(sys.argv) > 2 else "") + ")")
    open(sys.argv[1], "w").write(gen(**kw)[0])
```

```python
import sys
from asmlib import Asm
NAME = "recurrent_scan__mha_block_cached__glu_gated_glu__decode"
KN = NAME + "_kernel"

WS_A  = 0x00000
WS_O  = 0x40000
WS_S  = 0x60000
WS_Y  = 0x80000
WS_ML = 0xA0000
WS_E  = 0xB0000
WS_D  = 0xB4000
WS_X  = 0x180000
WS_C  = 0xB8000
WS_B  = 0x200000
WS_P  = 0xC0000
WS_ST = 0x100000
WS_BYTES = 268435456
LQ, LML, LPROG, LQF, LH, LO = 0, 256, 288, 304, 320, 1024
LGO, LPF, LLV = 308, 312, 316
LF, LREC, LP, LPT = 576, 640, 3072, 4096
END = 0x7fffffff
LOG2E = "0x3fb8aa3b"
SCALE = "0x3db504f3"
SPIN = 1 << 17

SETS = {"early": "bar0 issued x ln apub aseen qdone ypub ml mlx end qready kdone vdone",
        "prog": "bar0 i16 i32 i48 i64 i80 i96 i112 i127 vdone apub aseen mlx end",
        "prog2": "i56 i64 i72 i80 i88 i96 i104 i112 i120 vdone end",
        "clk": "bar0 clk0 i64 clk1 vdone clk2 end",
        "steal2": "mlx table end i96 i102 i111 rec0 rec1 rec2 static tready vdone",
        "steal": "mlx table wiss bar2 opub oseen spub sseen end kdone static tready vdone qdone issued qready",
        "boot": "karg pre far bar0 i8 i12 skarg sx s8 s16 issued x ln",
        "late": "qdone mlx wiss bar2 opub oseen spub sseen end issued qready kdone vdone"}

def gen(nslot=48, npre=4, burst=4, every=6, cap=6, dist=None, plate=1, stamps=False, kvflags="nt", wflags="nt", gflags="",
        asleep=30, lsleep=1, psleep=4, mapx=False, r1=3, r2=3, d1=2, d2=2, local=False, skip="", probe=None, probek=8, touch=False, bar0=16, scap=0, amap=False, gap=0, steal=False, np_=8, ah=5, golate=2, noatom=False, aflags='sc0 sc1', capl=0, capsel=1, capfrom=0, bal=False, tk=4, th=4, lv=(5, 6, 7), bfrom=12, bto=108, bgrp=3, bstr=2, mlstr=4, mlat=None, oflags='', fast=False, pre='', preflags='', rnd='', sched=None, pat=None, ph=(0, 0, 0), osleep=0, sflags='sc1', lin=False, mlfull=False, t64=False, x2=False, woflags=None, ys=False, sofs=0, numa=False, par=0, parv=None, wpar=None, prb=0, old='sc1', sld='sc1', gsplit=0, ifirst=False):
    A = Asm()
    stamp_list = []
    role = ["S"]
    if bal: cap = lv[2]
    if dist is None: dist = cap
    if woflags is None: woflags = wflags
    def stamp(name):
        if probe and role[0] == "S" and name == probe:
            A("s_memrealtime s[82:83]")
        if stamps and name in SETS[stamps].split() and not (stamps in ("late", "steal") and role[0] == "S" and name == "issued"):
            k = len([x for x in stamp_list if x[0] == role[0]])
            stamp_list.append((role[0], name))
            A(f"{'s_memtime' if name.startswith('clk') else 's_memrealtime'} s[{80+2*k}:{81+2*k}]")
    def rbf(r):
        A(f"v_cvt_pk_bf16_f32 v{r}, v{r}, v{r}")
        A(f"v_and_b32 v{r}, 0xffff0000, v{r}")
    def masks(m0, t0, t1):
        A(f"v_and_b32 v{t0}, 1, v0")
        A(f"v_lshlrev_b32 v{t0}, 4, v{t0}")
        A(f"v_lshlrev_b32 v{t0}, v{t0}, s50")
        A(f"v_bfe_u32 v{t1}, v0, 1, 2")
        for r in range(4): A(f"v_cmp_eq_u32 s[{84+2*r if not (stamps or probe) else 62+2*r}:{85+2*r if not (stamps or probe) else 63+2*r}], {r}, v{t1}")
        for r in range(4): A(f"v_cndmask_b32 v{m0+r}, 0, v{t0}, s[{84+2*r if not (stamps or probe) else 62+2*r}:{85+2*r if not (stamps or probe) else 63+2*r}]")
    def abuild(a0, p, m0, n):
        for r in range(4):
            A(f"v_and_b32_dpp v{a0+r}, v{p}, v{m0+r} row_newbcast:{n} row_mask:0xf bank_mask:0xf")
    def dpp(op, d, s, ctl, rm="0xf", bm="0xf"):
        A(f"{op}_dpp v{d}, v{s}, v{s} {ctl} row_mask:{rm} bank_mask:{bm}")
    def wave_red(op, v):
        for c in ("quad_perm:[1,0,3,2]", "quad_perm:[2,3,0,1]", "row_half_mirror", "row_mirror"): dpp(op, v, v, c)
        dpp(op, v, v, "row_bcast:15", "0xa"); dpp(op, v, v, "row_bcast:31", "0xc")
    def mfma(d, a, b, first):
        A(f"v_mfma_f32_16x16x32_bf16 v[{d}:{d+3}], v[{a}:{a+3}], v[{b}:{b+3}], {0 if first else f'v[{d}:{d+3}]'}")
    def srd(d, off, nbytes):
        A(f"s_load_dwordx2 s[{d}:{d+1}], s[0:1], {off}")
        A(f"s_mov_b32 s{d+2}, {nbytes}")
        A(f"s_mov_b32 s{d+3}, 0x20000")
    def off(n): return f" offset:{n}" if n else ""
    def dump_stamps():
        if not stamps: return
        mine = [x for x in stamp_list if x[0] == role[0]]
        A("s_mov_b64 exec, -1")
        A("s_waitcnt lgkmcnt(0)")
        for k in range(len(mine)): A(f"v_writelane_b32 v0, s{80+2*k}, {k}")
        A("s_getreg_b32 s48, hwreg(HW_REG_XCC_ID)"); A("v_writelane_b32 v0, s48, 15")
        A("s_getreg_b32 s48, hwreg(HW_REG_HW_ID)"); A("v_writelane_b32 v0, s48, 14")
        A("s_load_dwordx2 s[40:41], s[0:1], 88"); A(f"s_mov_b32 s42, {WS_BYTES}"); A("s_mov_b32 s43, 0x20000")
        A("s_mul_i32 s48, s2, 5"); A("s_add_u32 s48, s48, s3"); A("s_lshl_b32 s48, s48, 6"); A(f"s_add_u32 s48, s48, {WS_ST}")
        A("v_mbcnt_lo_u32_b32 v1, -1, 0"); A("v_lshlrev_b32 v1, 2, v1")
        A("s_mov_b64 exec, 0xffff")
        A("s_waitcnt lgkmcnt(0)")
        A("buffer_store_dword v0, v1, s[40:43], s48 offen")

    A(f"{KN}:")
    if stamps or probe: A("s_memrealtime s[80:81]")
    if fast:
        A("s_load_dwordx2 s[8:9], s[0:1], 8"); A("s_load_dwordx2 s[12:13], s[0:1], 16")
    A("v_lshrrev_b32 v1, 6, v0")
    A("s_cmp_ge_u32 s2, 256")
    A("s_cbranch_scc1 L_end")
    A("v_readfirstlane_b32 s3, v1")
    if numa:
        A("s_lshr_b32 s4, s2, 1"); A("s_and_b32 s4, s4, 28"); A("s_and_b32 s5, s2, 3"); A("s_or_b32 s4, s4, s5")
        A("s_lshr_b32 s5, s2, 5"); A("s_and_b32 s5, s5, 6"); A("s_bfe_u32 s6, s2, 0x10002"); A("s_or_b32 s5, s5, s6")
    elif mapx:
        A("s_lshr_b32 s4, s2, 3"); A("s_and_b32 s5, s2, 7")
    else:
        A("s_and_b32 s4, s2, 31"); A("s_lshr_b32 s5, s2, 5")
    A("v_and_b32 v0, 63, v0")
    A("s_mov_b32 s50, 0xffff")
    A("s_cmp_eq_u32 s3, 4")
    A("s_cbranch_scc1 L_service")
    if steal or bal:
        A("s_cmp_eq_u32 s3, 5")
        A("s_cbranch_scc1 L_claim")
    nst = 128 - 2 * np_ if steal else 128

    role[0] = "W"; stamp_list.append(("W", "start"))
    VL16, M0, Q0, S0, AB, D0, P0, T0, RING = 1, 2, 6, 10, 14, 22, 26, 42, 48
    LVR, LVA = RING + 4 * nslot, RING + 4 * nslot + 1
    if fast:
        for d in (8, 12): A(f"s_mov_b32 s{d+2}, {64 << 20}"); A(f"s_mov_b32 s{d+3}, 0x20000")
    else:
        srd(8, 8, 64 << 20); srd(12, 16, 64 << 20)
    if numa:
        A("s_lshl_b32 s48, s4, 21"); A("s_lshr_b32 s49, s5, 1"); A("s_lshl_b32 s49, s49, 19"); A("s_add_u32 s48, s48, s49")
        A("s_xor_b32 s49, s4, s5"); A(f"s_xor_b32 s49, s49, {par}"); A("s_and_b32 s49, s49, 1"); A("s_lshl_b32 s49, s49, 13"); A("s_add_u32 s48, s48, s49")
        A("s_lshl_b32 s49, s3, 11"); A("s_add_u32 s48, s48, s49")
        A("s_mov_b32 s49, s48")
        A(f"v_lshlrev_b32 v{VL16}, 4, v0")
    else:
        A("s_lshl_b32 s48, s4, 21"); A("s_lshl_b32 s49, s5, 18"); A("s_add_u32 s48, s48, s49")
    if numa: pass
    elif not pat:
        if gsplit == 1:
            A("s_lshl_b32 s49, s3, 11"); A("s_add_u32 s48, s48, s49")
            A(f"v_and_b32 v2, 32, v0"); A(f"v_mul_u32_u24 v2, {256 - 16}, v2"); A(f"v_lshl_add_u32 v{VL16}, v0, 4, v2")
        elif gsplit == 2:
            A("s_lshl_b32 s49, s3, 11"); A("s_add_u32 s48, s48, s49")
            A(f"v_lshlrev_b32 v{VL16}, 4, v0")
        else:
            A("s_lshl_b32 s49, s3, 12"); A("s_add_u32 s48, s48, s49")
            A(f"v_lshlrev_b32 v{VL16}, 4, v0")
        A("s_mov_b32 s49, s48")
    else:
        assert not steal
        sh = {n: 8 + k for k, n in enumerate(pat.split())}
        assert sh["c0"] < sh["c1"] <= 11 and sh["c1"] < sh["c2"] < sh["c3"] < sh["c4"] < sh["c5"] and all(x % 4 == 0 for x in ph)
        CM = sum(1 << sh[f"c{k}"] for k in range(2, 6))
        for k in range(2):
            A(f"s_bfe_u32 s49, s3, {k | (1 << 16)}"); A(f"s_lshl_b32 s49, s49, {sh[f'w{k}']}"); A("s_add_u32 s48, s48, s49")
        A(f"v_and_b32 v{VL16}, 15, v0"); A(f"v_lshlrev_b32 v{VL16}, 4, v{VL16}")
        for k in range(2):
            A(f"v_bfe_u32 v2, v0, {4 + k}, 1"); A(f"v_lshl_add_u32 v{VL16}, v2, {sh[f'g{k}']}, v{VL16}")
        A(f"s_mul_i32 s59, s5, {ph[1]}")
        if ph[0]: A("s_and_b32 s49, s4, 7"); A(f"s_mul_i32 s49, s49, {ph[0]}"); A("s_add_u32 s59, s59, s49")
        if ph[2]: A("s_lshr_b32 s49, s4, 3"); A(f"s_mul_i32 s49, s49, {ph[2]}"); A("s_add_u32 s59, s59, s49")
        A("s_mov_b32 s56, 0")
        for k in range(2, 6):
            A(f"s_bfe_u32 s49, s59, {k | (1 << 16)}"); A(f"s_lshl_b32 s49, s49, {sh[f'c{k}']}"); A("s_add_u32 s56, s56, s49")
        A("s_add_u32 s49, s48, s56")
        A(f"s_mov_b32 s60, {hex(CM)}")
    A("s_waitcnt lgkmcnt(0)")
    stamp("karg")
    issued = [0]; waited = [-1]
    def slot(i): return RING + 4 * (i % nslot)
    extra = [None]
    def wait_for(i):
        if i > waited[0]:
            n = issued[0] - 1 - i + (1 if extra[0] is not None and i < extra[0] else 0)
            A(f"s_waitcnt vmcnt({n})"); waited[0] = i
    def capof(i):
        if not sched: return cap
        c = cap
        for frm, val in sched:
            if i >= frm: c = val
        return c[i % len(c)] if isinstance(c, tuple) else c
    def tick():
        A(f"ds_write_b32 v{T0+4}, v{T0+5} offset:{LPROG}")
        A(f"v_add_u32 v{T0+5}, 1, v{T0+5}")
    def issue():
        i = issued[0]
        ii = i % 64; s = 8 if i < 64 or "VK" in skip.split() else 12
        if pat:
            if ii % 4 == 0 and i:
                A("s_orn2_b32 s56, s56, s60"); A(f"s_add_u32 s56, s56, {1 << sh['c2']}"); A("s_and_b32 s56, s56, s60"); A("s_add_u32 s49, s48, s56")
        elif i == 64: A("s_mov_b32 s49, s48" if parv is None or parv == par else "s_xor_b32 s49, s48, 0x2000")
        elif gsplit == 2:
            if ii % 2 == 0 and i: A("s_addk_i32 s49, 0x2000")
        elif ii % (2 if numa else 4) == 0 and i:
            A("s_addk_i32 s49, 0x4000")
        if bal and i >= npre and ii % tk == 0 and bfrom <= i <= bto + tk:
            if i > bfrom:
                A("s_waitcnt lgkmcnt(0)"); A(f"v_readfirstlane_b32 s58, v{LVR}")
                A("s_and_b32 vcc_lo, s58, 2")
            if i <= bto:
                tick(); A(f"ds_read_b32 v{LVR}, v{LVA} offset:{LLV}")
        if bal and i >= npre and ii % 4 == 0: A("s_cmp_eq_u32 s58, 0")
        c_ = capof(i)
        if c_ and i >= c_: wait_for(i - c_)
        if bal and i >= max(npre, lv[0]):
            A(f"s_cbranch_vccnz L_c{i}")
            if i >= lv[1]: A(f"s_waitcnt vmcnt({lv[1] - 1})")
            A(f"s_cbranch_scc1 L_c{i}"); A(f"s_waitcnt vmcnt({lv[0] - 1})"); A(f"L_c{i}:")
        if capl and i >= max(capl, capfrom, npre) and i - capl > waited[0]:
            A(f"s_cbranch_vccnz L_c{i}"); A(f"s_waitcnt vmcnt({capl - 1})"); A(f"L_c{i}:")
        issued[0] += 1
        r = slot(i)
        imm = ((ii & 1) << sh["c0"]) + ((ii >> 1 & 1) << sh["c1"]) if pat else (ii % 4) * 512 if gsplit == 1 else (ii % (2 if numa or gsplit == 2 else 4)) * 1024
        A(f"buffer_load_dwordx4 v[{r}:{r+3}], v{VL16}, s[{s}:{s+3}], s49 offen{off(imm)} {kvflags}")
        stamp(f"i{i}")
        if steal and i >= nst - 2 * ah and (nst - i) % 2 == 0: tick()
        if i == 64: stamp("clk1")
    for _ in range(npre): issue()
    if touch:
        A(f"buffer_load_dword v{T0+3}, v{VL16}, s[12:15], s48 offen {kvflags}")
        extra[0] = issued[0]
    stamp("pre")
    A("s_branch L_stream")
    stream_at = len(A.L)
    A("L_stream:")
    stamp("far")
    masks(M0, T0, T0 + 1)
    A("s_mov_b32 s52, 0xcccccccc"); A("s_mov_b32 s53, 0xcccccccc")
    A("s_mov_b32 s54, 0xaaaaaaaa"); A("s_mov_b32 s55, 0xaaaaaaaa")
    A(f"v_and_b32 v{T0+2}, 15, v0"); A(f"v_lshlrev_b32 v{T0+2}, 4, v{T0+2}")
    A(f"v_mov_b32 v{T0+4}, s3"); A(f"v_lshlrev_b32 v{T0+4}, 2, v{T0+4}"); A(f"v_mov_b32 v{T0+5}, 1")
    def setlevel():
        if bal:
            A("s_and_b32 vcc_lo, s58, 2"); A("s_mov_b32 vcc_hi, 0"); A("s_cmp_eq_u32 s58, 0")
        if capl:
            A(f"s_and_b32 vcc_lo, s3, {capsel}"); A("s_mov_b32 vcc_hi, 0")
    if bal:
        A("s_mov_b32 s58, 0"); A(f"v_mov_b32 v{LVA}, 0")
    setlevel()
    A("s_barrier")
    stamp("bar0"); stamp("clk0")
    for _ in range(nslot - npre): issue()
    stamp("issued")
    A(f"v_mov_b32 v{T0+1}, 0")
    A(f"s_mov_b32 s57, {SPIN * 8}")
    A("L_pollQ:")
    A(f"ds_read_b32 v{T0}, v{T0+1} offset:{LQF}")
    A(f"ds_read_b128 v[{Q0}:{Q0+3}], v{T0+2} offset:{LQ}")
    A("s_sub_u32 s57, s57, 1"); A("s_cbranch_scc1 L_pollQ_done")
    A("s_waitcnt lgkmcnt(0)")
    A(f"v_cmp_eq_u32 vcc, 0, v{T0}")
    A("s_nop 1")
    A("s_cbranch_vccnz L_pollQ")
    A("L_pollQ_done:")
    setlevel()
    stamp("qready")
    def early_issue(i):
        if ifirst:
            d = max(capof(i + 1 + k) for k in range(13)) if sched else dist
            while issued[0] < min(nst, i + 1 + d) and issued[0] - nslot < i and issued[0] - capof(issued[0]) <= i: issue()
    def maybe_issue(i):
        want = max(nslot + min(i + 1, burst + i // every) if i < nslot else 0, min(i + 1 + (max(capof(i + 1 + k) for k in range(13)) if sched else dist), nslot + i + 1))
        while issued[0] < min(nst, want): issue()
    for i in range(64):
        n = i % 16; r = slot(i)
        A(f"v_mov_b32 v{P0+n}, 0")
        wait_for(i); early_issue(i)
        for k in range(4): A(f"v_dot2c_f32_bf16 v{P0+n}, v{r+k}, v{Q0+k}")
        maybe_issue(i)
        if n == 15:
            a = i // 16
            for k in range(8):
                dpp("v_add_f32", P0 + k, P0 + k, "row_ror:8", bm="0x3"); dpp("v_add_f32", P0 + k, P0 + k + 8, "row_ror:8", bm="0xc")
            if gap and i >= nslot - 1 and gap > 1: issue()
            for k in range(4):
                dpp("v_add_f32", P0 + k, P0 + k, "row_half_mirror", bm="0x5"); dpp("v_add_f32", P0 + k, P0 + k + 4, "row_half_mirror", bm="0xa")
            for k in range(4): dpp("v_add_f32", P0 + k, P0 + k, "quad_perm:[2,3,0,1]")
            A(f"v_cndmask_b32 v{P0}, v{P0}, v{P0+2}, s[52:53]")
            A(f"v_cndmask_b32 v{P0+1}, v{P0+1}, v{P0+3}, s[52:53]")
            for k in range(2): dpp("v_add_f32", P0 + k, P0 + k, "quad_perm:[1,0,3,2]")
            A(f"v_cndmask_b32 v{S0+a}, v{P0}, v{P0+1}, s[54:55]")
            rbf(S0 + a)
            A(f"v_mul_f32 v{S0+a}, {SCALE}, v{S0+a}")
            rbf(S0 + a)
    stamp("kdone")
    A(f"v_max3_f32 v{T0}, v{S0}, v{S0+1}, v{S0+2}")
    A(f"v_max_f32 v{T0}, v{T0}, v{S0+3}")
    wave_red("v_max_f32", T0)
    if gap: issue()
    A(f"v_readlane_b32 s51, v{T0}, 63")
    for a in range(4): A(f"v_subrev_f32 v{S0+a}, s51, v{S0+a}")
    for a in range(4): A(f"v_mul_f32 v{S0+a}, {LOG2E}, v{S0+a}")
    for a in range(4): A(f"v_exp_f32 v{S0+a}, v{S0+a}")
    A(f"v_add_f32 v{T0+1}, v{S0}, v{S0+1}")
    A(f"v_add_f32 v{T0+3}, v{S0+2}, v{S0+3}")
    A(f"v_add_f32 v{T0+1}, v{T0+1}, v{T0+3}")
    if steal:
        A(f"v_bfe_u32 v{P0}, v0, 2, 2"); A(f"v_and_b32 v{P0+1}, 3, v0"); A(f"v_lshrrev_b32 v{P0+2}, 4, v0")
        A(f"v_lshlrev_b32 v{P0}, 8, v{P0}"); A(f"v_lshl_add_u32 v{P0}, v{P0+1}, 4, v{P0}"); A(f"v_lshl_add_u32 v{P0}, v{P0+2}, 2, v{P0}")
        A(f"v_lshl_add_u32 v{P0}, v{T0+4}, 4, v{P0}")
        A(f"ds_write_b32 v{P0}, v{S0+3} offset:{LP}")
    for a in range(4): A(f"v_cvt_pk_bf16_f32 v{S0+a}, v{S0+a}, v{S0+a}")
    abuild(AB, S0, M0, 0)
    if gap: issue()
    wave_red("v_add_f32", T0 + 1)
    A(f"v_lshlrev_b32 v{T0+3}, 1, v{T0+4}")
    A("s_mov_b32 exec_lo, 0"); A("s_mov_b32 exec_hi, 0x80000000")
    A(f"ds_write_b64 v{T0+3}, v[{T0}:{T0+1}] offset:{LML}")
    A("s_mov_b64 exec, -1")
    A(f"v_and_b32 v{T0}, 15, v0"); A(f"v_lshlrev_b32 v{T0}, 5, v{T0}")
    A(f"v_and_b32 v{T0+2}, 16, v0"); A(f"v_add_u32 v{T0}, v{T0}, v{T0+2}")
    A(f"v_lshl_add_u32 v{T0}, v{T0+4}, 7, v{T0}")
    if mlat: A(f"v_mov_b32 v{T0+1}, 0")
    def procv(i):
        wait_for(i); early_issue(i)
        mfma(D0, AB + 4 * (i & 1), slot(i), i == 64)
        if i < nst - 1: abuild(AB + 4 * ((i + 1) & 1), S0 + (i + 1 - 64) // 16, M0, (i + 1) % 16)
    if not steal:
        for i in range(64, 128):
            procv(i); maybe_issue(i)
            if i == mlat: A(f"ds_write_b32 v{T0+4}, v{T0+5} offset:{LPROG}")
            if i == 127 - plate:
                if mlat: A(f"ds_write_b32 v{T0+1}, v{T0+5} offset:{LGO}")
                elif bal: A(f"ds_write_b32 v{LVA}, v{T0+5} offset:{LGO}")
                else: A(f"ds_write_b32 v{T0+4}, v{T0+5} offset:{LPROG}")
    else:
        assert dist == 6 and cap == 6
        PR, RECA, PTA = P0, P0 + 4, P0 + 5
        UB = [slot(nst + 2 * k) for k in range(4)]
        assert UB[3] + 8 <= RING + 4 * nslot and UB == [UB[0] + 8 * k for k in range(4)]
        A(f"v_mov_b32 v{RECA}, {LREC}")
        A(f"v_and_b32 v{PTA}, 1, v0"); A(f"v_lshrrev_b32 v{P0+6}, 4, v0"); A(f"v_lshl_add_u32 v{PTA}, v{PTA}, 2, v{P0+6}")
        A(f"v_lshlrev_b32 v{PTA}, 2, v{PTA}"); A(f"v_lshl_add_u32 v{PTA}, v{T0+4}, 3, v{PTA}")
        A("s_lshl_b32 s58, s4, 21"); A("s_lshl_b32 s59, s3, 11"); A("s_add_u32 s58, s58, s59"); A(f"s_add_u32 s58, s58, {(1024 - 32 * np_) * 256}")
        A("s_mov_b32 s59, 0x10000")
        A("s_mov_b32 s68, 0x7fff0000")
        for i in range(64, nst - 6):
            procv(i); maybe_issue(i)
        assert issued[0] == nst
        lab = [0]
        def fetch(k):
            n = lab[0]; lab[0] += 1
            tick()
            A("s_mov_b32 s64, s68")
            A("s_cmp_lt_u32 s59, 4"); A(f"s_cbranch_scc1 L_go{n}")
            A(f"s_mov_b32 s57, {SPIN * 8}")
            A(f"L_rec{n}:")
            A(f"ds_read_b32 v{P0+6}, v{RECA}")
            A("s_sub_u32 s57, s57, 1"); A(f"s_cbranch_scc1 L_stop{n}")
            A("s_waitcnt lgkmcnt(0)")
            A(f"v_readfirstlane_b32 s65, v{P0+6}")
            A("s_cmp_eq_u32 s65, -1"); A(f"s_cbranch_scc1 L_rec{n}")
            A(f"s_cmp_lt_u32 s65, {8 * np_}"); A(f"s_cbranch_scc1 L_unit{n}")
            A(f"L_stop{n}:")
            A("s_mov_b32 s59, 3")
            A(f"s_branch L_go{n}")
            A(f"L_unit{n}:")
            A("s_and_b32 s66, s65, 7"); A("s_lshl_b32 s66, s66, 18"); A("s_lshr_b32 s67, s65, 3"); A("s_lshl_b32 s67, s67, 13")
            A("s_add_u32 s64, s58, s66"); A("s_add_u32 s64, s64, s67")
            A(f"s_lshl_b32 s{60+k}, s65, 7")
            A(f"v_add_u32 v{RECA}, 4, v{RECA}")
            A(f"L_go{n}:")
            if n < 3: stamp(f"rec{n}")
            for b in range(2): A(f"buffer_load_dwordx4 v[{UB[k]+4*b}:{UB[k]+4*b+3}], v{VL16}, s[12:15], s64 offen{off(1024*b)} {kvflags}")
        def pread(k):
            A(f"v_add_u32 v{P0+7}, s{60+k}, v{PTA}")
            A(f"ds_read_b32 v{PR+k}, v{P0+7} offset:{LPT}")
        for k in range(4): A(f"s_mov_b32 s{60+k}, 0")
        for k in range(3):
            fetch(k)
            for i in (nst - 6 + 2 * k, nst - 5 + 2 * k):
                A(f"s_waitcnt vmcnt({nst - 1 - i + 2 * (k + 1)})"); waited[0] = i
                procv(i)
            A("s_sub_u32 s59, s59, 1")
        stamp("static")
        A(f"v_mov_b32 v{P0+6}, 0")
        A(f"s_mov_b32 s57, {SPIN * 8}")
        A("L_pollT:")
        A(f"ds_read_b32 v{P0+7}, v{P0+6} offset:{LPF}")
        A(f"ds_read_b32 v{P0+8}, v{T0+4} offset:{LF}")
        A("s_sub_u32 s57, s57, 1"); A("s_cbranch_scc1 L_pollT_done")
        A("s_waitcnt lgkmcnt(0)")
        A(f"v_cmp_eq_u32 vcc, 0, v{P0+7}")
        A("s_nop 1")
        A("s_cbranch_vccnz L_pollT")
        A("L_pollT_done:")
        stamp("tready")
        pread(0)
        A("s_nop 7")
        for k in range(4): A(f"v_mul_f32 v{D0+k}, v{D0+k}, v{P0+8}")
        A("s_cmp_eq_u32 s59, 0"); A("s_cbranch_scc1 L_pool_done")
        A("L_pool:")
        for k in range(4):
            fetch((k + 3) % 4)
            A("s_waitcnt lgkmcnt(0)")
            abuild(AB, PR + k, M0, 0); abuild(AB + 4, PR + k, M0, 1)
            pread((k + 1) % 4)
            A("s_waitcnt vmcnt(7)")
            mfma(D0, AB, UB[k], False)
            A("s_waitcnt vmcnt(6)")
            mfma(D0, AB + 4, UB[k] + 4, False)
            A("s_sub_u32 s59, s59, 1"); A("s_cmp_eq_u32 s59, 0")
            A("s_cbranch_scc1 L_pool_done" if k < 3 else "s_cbranch_scc0 L_pool")
        A("L_pool_done:")
        A("s_nop 5")
    stamp("vdone"); stamp("clk2")
    A("s_mov_b32 exec_hi, 0")
    A(f"ds_write_b128 v{T0}, v[{D0}:{D0+3}] offset:{LO}")
    A("s_waitcnt lgkmcnt(0)")
    A("s_barrier")
    dump_stamps()
    A("s_endpgm")
    if steal:
        A("L_claim:")
        srd(40, 88, WS_BYTES)
        A("s_lshl_b32 s48, s4, 7"); A(f"s_add_u32 s48, s48, {WS_C}")
        A("v_mov_b32 v1, 0"); A(f"v_mov_b32 v3, {LREC}"); A(f"v_mov_b32 v12, {END}")
        A("s_mov_b32 s49, 0")
        A("s_barrier")
        A("s_waitcnt lgkmcnt(0)")
        A("s_mov_b64 exec, 1")
        cl = [0]
        def wait_prog(lim):
            n = cl[0]; cl[0] += 1
            A(f"s_mov_b32 s57, {SPIN * 8}")
            A(f"L_cw{n}:")
            A(f"s_sleep {lsleep}")
            A(f"ds_read_b128 v[4:7], v1 offset:{LPROG}")
            A("s_sub_u32 s57, s57, 1"); A("s_cbranch_scc1 L_claim_end")
            A("s_waitcnt lgkmcnt(0)")
            A("v_max3_u32 v4, v4, v5, v6"); A("v_max_u32 v4, v4, v7")
            A(f"v_cmp_ge_u32 vcc, s{lim}, v4")
            A("s_nop 1")
            A(f"s_cbranch_vccnz L_cw{n}")
        def claim(k):
            wait_prog(49)
            if noatom:
                A("s_lshl_b32 s51, s49, 3"); A("s_add_u32 s51, s51, s5"); A(f"v_mov_b32 v{8+k}, s51")
            else:
                A(f"v_mov_b32 v{8+k}, 1")
                A(f"buffer_atomic_add v{8+k}, v1, s[40:43], s48 offen {aflags}")
            A("s_add_u32 s49, s49, 1")
        for k in range(3): claim(k)
        A("L_claim_loop:")
        for k in range(4):
            claim((k + 3) % 4)
            A("s_waitcnt vmcnt(3)")
            A(f"ds_write_b32 v3, v{8+k}")
            A(f"v_cmp_le_u32 vcc, {8 * np_}, v{8+k}")
            A("v_add_u32 v3, 4, v3")
            A("s_nop 0")
            A("s_cbranch_vccnz L_claim_done" if k < 3 else "s_cbranch_vccz L_claim_loop")
        A("L_claim_done:")
        A(f"s_add_u32 s49, s49, {ah - 4 + golate}")
        wait_prog(49)
        A("L_claim_end:")
        A("ds_write_b32 v3, v12")
        A("v_mov_b32 v2, 1")
        A(f"ds_write_b32 v1, v2 offset:{LGO}")
        A("s_waitcnt lgkmcnt(0)")
        A("s_endpgm")
    if bal:
        nt = (bto - bfrom) // tk + 1
        A("L_claim:")
        srd(40, 88, WS_BYTES)
        A(f"s_lshr_b32 s48, s2, {bgrp}"); A(f"s_lshl_b32 s48, s48, {max(7, bgrp + bstr)}"); A(f"s_add_u32 s48, s48, {WS_B}")
        A(f"s_and_b32 s51, s2, {(1 << bgrp) - 1}")
        A("v_mov_b32 v1, 0"); A(f"v_and_b32 v2, {(1 << bgrp) - 1}, v0"); A(f"v_lshlrev_b32 v2, {bstr}, v2")
        A(f"s_lshl_b32 s52, s51, {bstr}"); A("v_mov_b32 v3, s52")
        A(f"s_mov_b32 s79, {WS_E}")
        A("s_mov_b32 s49, 0")
        A("s_barrier")
        A("s_waitcnt lgkmcnt(0)")
        A("buffer_load_dword v8, v1, s[40:43], s79 offen sc1")
        A("s_waitcnt vmcnt(0)")
        A("v_add_u32 v8, 1, v8"); A("v_and_b32 v8, 0x3ff, v8")
        A("L_bal:")
        A(f"s_mov_b32 s57, {SPIN * 8}")
        A("L_balw:")
        A(f"s_sleep {lsleep}")
        A(f"ds_read_b128 v[4:7], v1 offset:{LPROG}")
        A("s_sub_u32 s57, s57, 1"); A("s_cbranch_scc1 L_bal_end")
        A("s_waitcnt lgkmcnt(0)")
        A("v_min3_u32 v4, v4, v5, v6"); A("v_min_u32 v4, v4, v7")
        A("v_readfirstlane_b32 s53, v4")
        A("s_cmp_le_u32 s53, s49"); A("s_cbranch_scc1 L_balw")
        A("s_mov_b32 s49, s53")
        A("v_lshl_or_b32 v4, v4, 10, v8")
        A("s_mov_b64 exec, 1")
        A("buffer_store_dword v4, v3, s[40:43], s48 offen sc1")
        A("s_mov_b64 exec, -1")
        A("buffer_load_dword v5, v2, s[40:43], s48 offen sc1")
        A("s_waitcnt vmcnt(0)")
        A("v_and_b32 v6, 0x3ff, v5"); A("v_cmp_eq_u32 vcc, v6, v8"); A("v_lshrrev_b32 v5, 10, v5")
        A("v_cndmask_b32 v5, 0, v5, vcc")
        A("v_readlane_b32 s54, v5, s51")
        for c in ("quad_perm:[1,0,3,2]", "quad_perm:[2,3,0,1]", "row_half_mirror") + (("row_mirror",) if bgrp > 3 else ()):
            A(f"v_add_u32_dpp v5, v5, v5 {c} row_mask:0xf bank_mask:0xf")
        A("v_readfirstlane_b32 s55, v5")
        A(f"s_lshl_b32 s54, s54, {bgrp}"); A("s_sub_i32 s55, s55, s54")
        A("s_mov_b32 s56, 0")
        A(f"s_cmp_gt_i32 s55, {th}"); A("s_cselect_b32 s56, 2, s56")
        A(f"s_cmp_lt_i32 s55, {-th}"); A("s_cselect_b32 s56, 1, s56")
        A("v_mov_b32 v6, s56")
        A(f"ds_write_b32 v1, v6 offset:{LLV}")
        A(f"s_cmp_lt_u32 s49, {nt}"); A("s_cbranch_scc1 L_bal")
        A("L_bal_end:")
        A("s_waitcnt lgkmcnt(0)")
        A("s_endpgm")
    stream_body = A.L[stream_at:]; del A.L[stream_at:]

    role[0] = "S"; stamp_list.append(("S", "start"))
    G, J, PD, M0, AB, DQ, DG, T0 = 1, 2, 3, 4, 8, 16, 20, 24
    XA, XR, EP, GA, OUTA, XF, PH, XV, WDA, WOA, RA, OGA, TAG, GV, L16 = 40, 44, 45, 46, 48, 49, 50, 51, 52, 58, 59, 60, 61, 62, 63
    WQ, GU = 64, 128
    WO, WD, PS = 64, 128, 160
    def tag(regs, kind=""):
        if kind and kind in rnd:
            for r in regs: A(f"v_add_u32 v{r}, 0x200, v{r}")
        for r in regs: A(f"v_and_or_b32 v{r}, v{r}, s7, v{TAG}")
    def untag(regs):
        for r in regs: A(f"v_and_b32 v{r}, s7, v{r}")
    def check(regs, t):
        regs = list(regs)
        pairs = [regs[k:k+2] for k in range(0, len(regs), 2)]
        A(f"v_bitop3_b32 v{t}, v{pairs[0][0]}, v{pairs[0][1]}, v{TAG} bitop3:0x7e")
        rest = pairs[1:]
        while rest:
            take = rest[:2]; rest = rest[2:]
            for k, p in enumerate(take): A(f"v_bitop3_b32 v{t+1+k}, v{p[0]}, v{p[1]}, v{TAG} bitop3:0x7e")
            if len(take) == 2: A(f"v_or3_b32 v{t}, v{t}, v{t+1}, v{t+2}")
            else: A(f"v_or_b32 v{t}, v{t}, v{t+1}")
        A(f"v_and_b32 v{t}, 0x3ff, v{t}")
        A(f"v_cmp_ne_u32 vcc, 0, v{t}")
    def strip(regs, t):
        regs = list(regs)
        for r in regs[::2]: A(f"v_lshl_add_u64 v[{r}:{r+1}], v[{r}:{r+1}], 0, s[14:15]")
        acc = [t, t + 1]; rest = regs[:]
        for a in acc: A(f"v_or3_b32 v{a}, v{rest[0]}, v{rest[1]}, v{rest[2]}"); rest = rest[3:]
        k = 0
        while len(rest) > 2 or (len(rest) == 2 and k & 1):
            A(f"v_or3_b32 v{acc[k&1]}, v{acc[k&1]}, v{rest[0]}, v{rest[1]}"); rest = rest[2:]; k += 1
        if len(rest) == 2:
            A(f"v_or3_b32 v{t}, v{t}, v{rest[0]}, v{rest[1]}"); rest = []
        assert not rest
        A(f"v_bitop3_b32 v{t}, v{t}, v{t+1}, s7 bitop3:0x54")
        A(f"v_cmp_ne_u32 vcc, 0, v{t}")
    def pkadd(d, a, b): A(f"v_pk_add_f32 v[{d}:{d+1}], v[{a}:{a+1}], v[{b}:{b+1}]")
    def poll(name, loads, regs, t, sleep):
        A(f"s_mov_b32 s70, {SPIN}")
        A(f"L_{name}:")
        if sleep: A(f"s_sleep {sleep}")
        loads()
        A("s_sub_u32 s70, s70, 1"); A(f"s_cbranch_scc1 L_{name}_done")
        A("s_waitcnt vmcnt(0)")
        if callable(regs): regs()
        else: check(regs, t)
        A("s_nop 1")
        if name not in skip.split(): A(f"s_cbranch_vccnz L_{name}")
        A(f"L_{name}_done:")
    def poll_pipe(name, R, delay, nreg, nld, loads, finish):
        A(f"s_mov_b32 s70, {SPIN}")
        for k in range(R - 1):
            loads(PS + nreg * k)
            if delay: A(f"s_sleep {delay}")
        A(f"L_{name}:")
        for k in range(R):
            if name == "pollO" and osleep: A(f"s_sleep {osleep}")
            loads(PS + nreg * ((k + R - 1) % R))
            if k == 0:
                A("s_sub_u32 s70, s70, 1"); A(f"s_cbranch_scc1 L_{name}_ok0")
            A(f"s_waitcnt vmcnt({nld * (R - 1)})")
            b = PS + nreg * k
            (strip if fast else check)(range(b, b + nreg), T0)
            A("s_nop 1")
            if name in skip.split(): A(f"s_branch L_{name}_ok{k}")
            A(f"s_cbranch_vccz L_{name}_ok{k}" if k < R - 1 else f"s_cbranch_vccnz L_{name}")
        for k in reversed(range(R)):
            A(f"L_{name}_ok{k}:")
            finish(PS + nreg * k)
            if k: A(f"s_branch L_{name}_done")
        A(f"L_{name}_done:")

    A("L_service:")
    A("s_setprio 3")
    srd(16, 0, 1024); srd(20, 24, 4 << 20); srd(40, 88, WS_BYTES)
    A("s_load_dwordx4 s[44:47], s[0:1], 48")
    srd(24, 32, 4 << 20); srd(28, 64, 1376 * 1024); srd(32, 72, 1024)
    A(f"v_lshrrev_b32 v{G}, 4, v0"); A(f"v_and_b32 v{J}, 15, v0")
    if amap:
        HP, SP = 38, 39
        A("s_lshr_b32 s38, s2, 3"); A("s_and_b32 s39, s2, 7")
    else: HP, SP = 4, 5
    def chunks(hreg):
        if numa:
            A(f"s_and_b32 s7, s{hreg}, 3"); A("s_lshl_b32 s7, s7, 3"); A(f"s_lshr_b32 s48, s{hreg}, 2"); A("s_add_u32 s7, s7, s48")
            A("s_mul_i32 s56, s7, 43")
        elif mapx or amap: A(f"s_mul_i32 s56, s{hreg}, 43")
        else:
            A(f"s_and_b32 s7, s{hreg}, 7"); A("s_lshl_b32 s7, s7, 2"); A(f"s_lshr_b32 s48, s{hreg}, 3"); A("s_add_u32 s7, s7, s48")
            A("s_mul_i32 s56, s7, 43")
        A("s_add_u32 s57, s56, 43"); A("s_lshr_b32 s56, s56, 3"); A("s_lshr_b32 s57, s57, 3")
        A("s_sub_u32 s57, s57, s56")
    chunks(HP)
    A(f"v_lshlrev_b32 v{L16}, 4, v0")
    A(f"s_lshl_b32 s48, s{SP}, 7")
    A(f"v_lshlrev_b32 v{T0+1}, 1, v0")
    A(f"v_lshlrev_b32 v{T0+3}, 4, v{J}")
    A(f"v_lshl_add_u32 v{T0+2}, v{G}, 17, v{T0+3}")
    A(f"s_lshl_b32 s49, s{SP}, 19"); A(f"s_lshl_b32 s51, s{HP}, 8"); A("s_add_u32 s49, s49, s51")
    A(f"v_and_b32 v{T0+4}, 7, v0")
    A(f"v_cmp_gt_u32 vcc, s57, v{T0+4}")
    A("s_mov_b32 s51, 44032"); A(f"s_mul_i32 s58, s{SP}, 176128")
    A(f"v_cndmask_b32 v{T0+4}, 0, v{T0+4}, vcc")
    A(f"v_add_lshl_u32 v{T0+4}, v{T0+4}, s56, 4")
    A(f"v_mad_u32_u24 v{T0+4}, v{G}, s51, v{T0+4}")
    A(f"v_add_u32 v{T0+4}, s58, v{T0+4}")
    A(f"v_mov_b32 v{T0+5}, 0")
    A(f"v_cmp_lt_u32 vcc, 7, v{J}")
    A(f"s_mov_b32 s79, {WS_E}")
    A("s_mov_b32 s60, 5504"); A("s_mov_b32 s61, 0")
    A("s_waitcnt lgkmcnt(0)")
    stamp("skarg")
    if steal:
        A(f"s_cmp_lg_u32 s{SP}, 0"); A("s_cbranch_scc1 L_noreset")
        A(f"s_lshl_b32 s51, s{HP}, 7"); A(f"s_add_u32 s51, s51, {WS_C}")
        A("s_mov_b64 exec, 1")
        A(f"buffer_store_dword v{T0+5}, v{T0+5}, s[40:43], s51 offen sc1")
        A("s_mov_b64 exec, -1")
        A("L_noreset:")
    if pre:
        A("s_lshl_b32 s6, s4, 3"); A("s_add_u32 s6, s6, s5")
        if "A" in pre:
            A(f"s_lshl_b32 s51, s{2 if amap else 6}, 10")
            A(f"buffer_load_dword v{T0+10}, v{L16}, s[40:43], s51 offen {preflags}")
        if "Y" in pre:
            A("s_lshl_b32 s51, s2, 9"); A(f"s_add_u32 s51, s51, {WS_Y}"); A(f"v_lshrrev_b32 v{T0+11}, 1, v{L16}")
            A(f"buffer_load_dword v{T0+10}, v{T0+11}, s[40:43], s51 offen {preflags}")
        if "S" in pre:
            A("s_lshl_b32 s51, s2, 9"); A(f"s_add_u32 s51, s51, {WS_S}"); A(f"v_lshrrev_b32 v{T0+11}, 1, v{L16}")
            A(f"buffer_load_dword v{T0+10}, v{T0+11}, s[40:43], s51 offen {preflags}")
    A(f"buffer_load_dwordx4 v[{XA}:{XA+3}], v{L16}, s[16:19], 0 offen")
    A(f"buffer_load_ushort v{XR}, v{T0+1}, s[16:19], s48 offen")
    A(f"buffer_load_dword v{EP}, v{T0+5}, s[40:43], s79 offen sc1")
    stamp("sx")
    A(f"v_mov_b32 v{T0+6}, s44"); A(f"v_mov_b32 v{T0+7}, s45"); A(f"v_mov_b32 v{T0+8}, s46"); A(f"v_mov_b32 v{T0+9}, s47")
    A(f"v_cndmask_b32 v{GA}, v{T0+6}, v{T0+8}, vcc"); A(f"v_cndmask_b32 v{GA+1}, v{T0+7}, v{T0+9}, vcc")
    A(f"v_lshl_add_u64 v[{GA}:{GA+1}], v[{T0+4}:{T0+5}], 0, v[{GA}:{GA+1}]")
    def lds_init():
        A(f"v_cmp_gt_u32 vcc, 8, v0"); A(f"v_lshlrev_b32 v{T0+7}, 2, v0"); A("s_mov_b32 s7, 0xfffffc00")
        A(f"v_cndmask_b32 v{T0+6}, 0, -1, vcc")
        A("s_mov_b64 exec, 0xffff")
        A(f"ds_write_b32 v{T0+7}, v{T0+6} offset:{LML}")
        A("s_mov_b64 exec, -1")
        if steal:
            A(f"v_mov_b32 v{T0+6}, -1")
            A(f"ds_write_b32 v{T0+7}, v{T0+6} offset:{LREC}"); A(f"ds_write_b32 v{T0+7}, v{T0+6} offset:{LREC+64}")
        A("s_waitcnt lgkmcnt(0)")
        A("s_barrier")
    for n in range(16):
        if n in (4, 8): stamp(f"s{2*n}")
        if n == bar0: lds_init()
        if scap and 2 * n + 3 >= scap: A(f"s_waitcnt vmcnt({scap - 2})")
        if "W" in skip.split(): A(f"buffer_load_dword v{WQ+4*n}, v{T0+5}, s[16:19], 0 offen")
        else: A(f"buffer_load_dwordx4 v[{WQ+4*n}:{WQ+4*n+3}], v{T0+2}, s[20:23], s49 offen {wflags}")
        if "G" in skip.split(): A(f"buffer_load_dword v{GU+4*n}, v{T0+5}, s[16:19], 0 offen")
        else: A(f"global_load_dwordx4 v[{GU+4*n}:{GU+4*n+3}], v[{GA}:{GA+1}], off{off(2752 * (n & 1))} {gflags}")
        if n < 15: A("s_addk_i32 s49, 0x2000")
        if n & 1 and n < 15: A(f"v_lshl_add_u64 v[{GA}:{GA+1}], v[{GA}:{GA+1}], 0, s[60:61]")
    if bar0 == 16: lds_init()
    stamp("issued")
    masks(M0, T0 + 6, T0 + 7)
    A("s_and_b32 s58, s5, 3"); A("s_lshr_b32 s59, s5, 2")
    A("s_lshl_b32 s6, s4, 3"); A("s_add_u32 s6, s6, s5")
    A(f"v_lshlrev_b32 v{OUTA}, 5, v{J}"); A(f"v_and_b32 v{T0}, 16, v0"); A(f"v_add_u32 v{OUTA}, v{OUTA}, v{T0}")
    A("s_lshl_b32 s63, s6, 9"); A(f"s_add_u32 s63, s63, {WS_O}")
    if t64:
        assert fast and not (lin or steal or mapx)
        A("s_lshl_b32 s64, s5, 5"); A("s_add_u32 s64, s64, s4"); A(f"s_lshl_b32 s64, s64, {9 if ys else 8}")
    else:
        A("s_lshl_b32 s64, s58, 6"); A("s_lshl_b32 s48, s4, 1"); A("s_add_u32 s64, s64, s48"); A("s_add_u32 s64, s64, s59")
        A("s_lshl_b32 s64, s64, 9")
    SBASE = WS_Y + 64 if ys else (sofs or WS_S)
    A(f"s_add_u32 s65, s64, {WS_Y}")
    if wpar is not None:
        assert t64 and not ys
        SBASE = WS_S + (wpar << 13) - 0
        A("s_lshl_b32 s48, s5, 13"); A("s_add_u32 s64, s64, s48")
    A(f"s_add_u32 s64, s64, {SBASE}")
    A(f"s_lshl_b32 s66, s6, {mlstr}"); A(f"s_add_u32 s66, s66, {WS_ML}")
    A(f"s_lshl_b32 s67, s{2 if amap else 6}, 10")
    if amap: chunks(4)
    A("s_mov_b32 s68, 0"); A("s_mov_b32 s69, -1")
    A("s_waitcnt vmcnt(32)")
    stamp("x")
    for k in range(4):
        A(f"v_lshlrev_b32 v{T0+2*k}, 16, v{XA+k}"); A(f"v_and_b32 v{T0+2*k+1}, 0xffff0000, v{XA+k}")
    A(f"v_add_f32 v{T0+8}, v{T0}, v{T0+1}"); A(f"v_add_f32 v{T0+9}, v{T0+2}, v{T0+3}")
    A(f"v_add_f32 v{T0+10}, v{T0+4}, v{T0+5}"); A(f"v_add_f32 v{T0+11}, v{T0+6}, v{T0+7}")
    A(f"v_add_f32 v{T0+8}, v{T0+8}, v{T0+9}"); A(f"v_add_f32 v{T0+10}, v{T0+10}, v{T0+11}")
    A(f"v_add_f32 v{T0+8}, v{T0+8}, v{T0+10}")
    A(f"v_add_u32 v{EP}, 1, v{EP}"); A(f"v_and_b32 v{TAG}, 0x3ff, v{EP}")
    if fast:
        A(f"v_readfirstlane_b32 s13, v{TAG}"); A("s_sub_u32 s14, 0, s13"); A("s_subb_u32 s15, 0, s13")
    wave_red("v_add_f32", T0 + 8)
    A(f"v_mul_f32 v{T0+8}, 0x3b000000, v{T0+8}")
    A(f"v_readlane_b32 s51, v{T0+8}, 63")
    for k in range(8): A(f"v_subrev_f32 v{T0+k}, s51, v{T0+k}")
    A(f"v_mul_f32 v{T0+9}, v{T0}, v{T0}"); A(f"v_mul_f32 v{T0+10}, v{T0+1}, v{T0+1}")
    for k in range(2, 8, 2):
        A(f"v_fmac_f32 v{T0+9}, v{T0+k}, v{T0+k}"); A(f"v_fmac_f32 v{T0+10}, v{T0+k+1}, v{T0+k+1}")
    A(f"v_add_f32 v{T0+9}, v{T0+9}, v{T0+10}")
    rbf(T0 + 8)
    wave_red("v_add_f32", T0 + 9)
    A(f"v_mul_f32 v{T0+9}, 0x3b000000, v{T0+9}")
    rbf(T0 + 9)
    A(f"v_add_f32 v{T0+9}, 0x3727c5ac, v{T0+9}")
    rbf(T0 + 9)
    A(f"v_sqrt_f32 v{T0+9}, v{T0+9}")
    A(f"v_readlane_b32 s51, v{T0+8}, 63")
    rbf(T0 + 9)
    A(f"v_lshlrev_b32 v{XR}, 16, v{XR}")
    A(f"v_readlane_b32 s62, v{T0+9}, 63")
    A(f"v_subrev_f32 v{XR}, s51, v{XR}")
    rbf(XR)
    A(f"v_rcp_f32 v{T0+10}, s62")
    A(f"v_mul_f32 v{T0+11}, v{XR}, v{T0+10}")
    A(f"v_fma_f32 v{T0+12}, -v{T0+11}, s62, v{XR}")
    A(f"v_fmac_f32 v{T0+11}, v{T0+12}, v{T0+10}")
    A(f"v_cvt_pk_bf16_f32 v{PD}, v{T0+11}, v{T0+11}")
    stamp("ln")
    abuild(AB, PD, M0, 0)
    for n in range(16):
        ab = AB + 4 * (n & 1)
        if n < 15: abuild(AB + 4 * ((n + 1) & 1), PD, M0, n + 1)
        A(f"s_waitcnt vmcnt({30-2*n})")
        mfma(DQ, ab, WQ + 4 * n, n == 0); mfma(DG, ab, GU + 4 * n, n == 0)
    A("s_lshl_b32 s48, s4, 13"); A("s_add_u32 s49, s48, 0x1000")
    A(f"v_lshrrev_b32 v{T0+3}, 1, v{OUTA}")
    for k in range(4): A(f"v_cndmask_b32 v{DQ+k}, v{DQ+k}, v{DG+k}, s[68:69]")
    tag(range(DQ, DQ + 4), "A")
    if "Ast" not in skip.split(): A(f"buffer_store_dwordx4 v[{DQ}:{DQ+3}], v{L16}, s[40:43], s67 offen {'' if 'Aplain' in skip.split() else 'sc1'}")
    stamp("apub")
    def a_loads():
        for k in range(8):
            if "Ald" not in skip.split(): A(f"buffer_load_dwordx4 v[{WQ+4*k}:{WQ+4*k+3}], v{L16}, s[40:43], s{48 + k // 4} offen{off((k&3)*1024)} sc1")
    poll("pollA", a_loads, range(WQ, WQ + 32), T0, asleep)
    stamp("aseen")
    untag(range(WQ, WQ + 32))
    for k in range(4):
        A(f"v_add_f32 v{WQ+k}, v{WQ+k}, v{WQ+4+k}"); A(f"v_add_f32 v{WQ+8+k}, v{WQ+8+k}, v{WQ+12+k}")
        A(f"v_add_f32 v{WQ+16+k}, v{WQ+16+k}, v{WQ+20+k}"); A(f"v_add_f32 v{WQ+24+k}, v{WQ+24+k}, v{WQ+28+k}")
    for k in range(4):
        A(f"v_add_f32 v{WQ+k}, v{WQ+k}, v{WQ+8+k}"); A(f"v_add_f32 v{WQ+16+k}, v{WQ+16+k}, v{WQ+24+k}")
    for k in range(4): A(f"v_add_f32 v{WQ+k}, v{WQ+k}, v{WQ+16+k}")
    A(f"v_cvt_pk_bf16_f32 v{T0+4}, v{WQ}, v{WQ+1}"); A(f"v_cvt_pk_bf16_f32 v{T0+5}, v{WQ+2}, v{WQ+3}")
    A(f"v_mov_b32 v{T0+6}, 0"); A(f"v_mov_b32 v{T0+7}, 1")
    A("s_mov_b32 exec_hi, 0")
    A(f"ds_write_b64 v{T0+3}, v[{T0+4}:{T0+5}] offset:{LQ}")
    A(f"ds_write_b32 v{T0+6}, v{T0+7} offset:{LQF}")
    A("s_mov_b64 exec, -1")
    stamp("qdone")
    A("s_setprio 0")
    MH, PD1 = 53, 54
    def tbuild(a0, src, qs=range(4)):
        for q in qs:
            p, n = src(q)
            A(f"v_and_b32_dpp v{a0+q}, v{p}, v{MH} row_newbcast:{n} row_mask:0xf bank_mask:0xf")
    def tgemv(base, nrho, src, wait):
        tbuild(AB, lambda q: src(0, q))
        for rho in range(nrho):
            a = AB + 4 * (rho & 1); nxt = AB + 4 * ((rho + 1) & 1)
            if rho + 1 < nrho: tbuild(nxt, lambda q: src(rho + 1, q), (0, 1))
            if wait: wait(rho)
            mfma(DQ, a, base + 8 * rho, rho == 0)
            if rho + 1 < nrho: tbuild(nxt, lambda q: src(rho + 1, q), (2, 3))
            mfma(DG, a, base + 8 * rho + 4, rho == 0)
    MH1, YSA = 55, 56
    def xgemv(base, npair, src, wait):
        def build(a0, k):
            for r in range(4):
                p, n = src(2 * k + (r >> 1))
                A(f"v_and_b32_dpp v{a0+r}, v{p}, v{(MH, MH1)[r & 1]} row_newbcast:{n} row_mask:0xf bank_mask:0xf")
        build(AB, 0)
        for k in range(npair):
            if k + 1 < npair: build(AB + 4 * ((k + 1) & 1), k + 1)
            if wait: wait(k)
            mfma(DQ, AB + 4 * (k & 1), base + 4 * k, k == 0)
    def tpublish(kind, sreg, flags):
        A("s_mov_b64 exec, 0xffff")
        src = [DQ, DQ + 1, DQ + 2, DQ + 3] if x2 else [DQ, DQ + 1, DG, DG + 1]
        if kind in rnd:
            for r in src: A(f"v_add_u32 v{r}, 0x200, v{r}")
        for k, r in enumerate(src): A(f"v_and_or_b32 v{T0+8+k}, v{r}, s7, v{TAG}")
        A(f"buffer_store_dwordx4 v[{T0+8}:{T0+11}], v{YSA if ys else L16}, s[40:43], s{sreg} offen {flags}")
        A("s_mov_b64 exec, -1")
    if t64:
        if x2:
            A(f"v_or_b32 v{MH}, v{M0}, v{M0+2}"); A(f"v_or_b32 v{MH1}, v{M0+1}, v{M0+3}")
        else:
            A(f"v_or3_b32 v{MH}, v{M0}, v{M0+1}, v{M0+2}"); A(f"v_or_b32 v{MH}, v{MH}, v{M0+3}")
        if ys:
            A(f"v_lshrrev_b32 v{YSA}, 2, v0"); A(f"v_and_b32 v{T0}, 3, v0"); A(f"v_lshlrev_b32 v{YSA}, 7, v{YSA}"); A(f"v_lshl_add_u32 v{YSA}, v{T0}, 4, v{YSA}")
        A(f"v_mul_u32_u24 v{T0}, 12, v{G}")
        A("s_lshl_b32 s48, s57, 3"); A("s_lshl_b32 s49, s56, 3"); A("s_lshl_b32 s72, s5, 7")
        A(f"v_lshlrev_b32 v{T0+2}, {3 if x2 else 2}, v{J}")
        A(f"v_add_u32 v{T0+3}, 4, v{T0}"); A(f"v_cmp_gt_u32 vcc, s48, v{T0+3}")
        A(f"v_add_u32 v{T0+3}, s49, v{T0}"); A(f"v_lshl_add_u32 v{T0+3}, v{T0+3}, 10, v{T0+2}")
        A(f"v_mov_b32 v{WDA}, 0x7ffffff0"); A(f"v_cndmask_b32 v{WDA}, v{WDA}, v{T0+3}, vcc")
        A("s_add_u32 s48, s72, 0x1000"); A("s_add_u32 s49, s72, 0x2000")
        for rho in range(3):
            for q in range(4):
                if x2:
                    A(f"buffer_load_dwordx2 v[{WD+8*rho+2*q}:{WD+8*rho+2*q+1}], v{WDA if rho else T0+3}, s[28:31], s{(72, 48, 49)[rho]} offen{off(1024*q)} {wflags}")
                    continue
                for t in range(2):
                    A(f"buffer_load_dword v{WD+8*rho+4*t+q}, v{WDA if rho else T0+3}, s[28:31], s{(72, 48, 49)[rho]} offen{off(1024*q + 64*t)} {woflags}")
    else:
        A("s_mul_i32 s48, s59, 24")
        A(f"v_mul_u32_u24 v{T0}, 6, v{G}"); A(f"v_add_u32 v{T0}, s48, v{T0}")
        A("s_lshl_b32 s48, s57, 3"); A("s_lshl_b32 s49, s56, 3"); A("s_lshl_b32 s72, s58, 8")
        A(f"v_lshlrev_b32 v{T0+2}, 4, v{J}")
        for n in range(6):
            A(f"v_add_u32 v{T0+3}, {n}, v{T0}")
            A(f"v_cmp_gt_u32 vcc, s48, v{T0+3}")
            A(f"v_add_u32 v{T0+3}, s49, v{T0+3}")
            A(f"v_lshl_add_u32 v{T0+3}, v{T0+3}, 10, v{T0+2}")
            A(f"v_mov_b32 v{WDA}, 0x7ffffff0")
            A(f"v_cndmask_b32 v{WDA}, v{WDA}, v{T0+3}, vcc")
            if "D" not in skip.split(): A(f"buffer_load_dwordx4 v[{WD+4*n}:{WD+4*n+3}], v{WDA}, s[28:31], s72 offen {wflags}")
    for k in range(4): rbf(WQ + k)
    for k in range(4): A(f"v_mov_b32_dpp v{T0+4+k}, v{WQ+k} row_ror:8 row_mask:0xf bank_mask:0xf")
    for k in range(4): A(f"v_mul_f32 v{WQ+k}, 0xbfb8aa3b, v{WQ+k}")
    for k in range(4): A(f"v_exp_f32 v{WQ+k}, v{WQ+k}")
    for k in range(4): A(f"v_add_f32 v{WQ+k}, 1.0, v{WQ+k}")
    for k in range(4): A(f"v_rcp_f32 v{WQ+k}, v{WQ+k}")
    for k in range(4): rbf(WQ + k)
    for k in range(4): A(f"v_mul_f32 v{WQ+k}, v{WQ+k}, v{T0+4+k}")
    A(f"v_cmp_gt_u32 vcc, s57, v{J}")
    for k in range(4): A(f"v_cvt_pk_bf16_f32 v{WQ+k}, v{WQ+k}, v{WQ+k}")
    for k in range(4): A(f"v_cndmask_b32 v{WQ+k}, 0, v{WQ+k}, vcc")
    A("s_mov_b32 exec_lo, 0"); A("s_mov_b32 exec_hi, 0x00ff00ff")
    A(f"ds_write_b128 v{OUTA}, v[{WQ}:{WQ+3}] offset:{LH}")
    A("s_mov_b64 exec, -1")
    A(f"v_add_lshl_u32 v{T0+1}, v{T0}, v{J}, 2")
    A("s_waitcnt lgkmcnt(0)")
    A(f"ds_read_b32 v{PH}, v{T0+1} offset:{LH}")
    if t64:
        A(f"v_lshl_add_u32 v{WOA}, v{G}, 15, v{T0+2}")
        A("s_lshl_b32 s71, s4, 17"); A("s_add_u32 s71, s71, s72")
        A(f"v_and_b32 v{T0+3}, 3, v0"); A("s_lshr_b32 s48, s4, 2"); A("s_and_b32 s49, s4, 3")
        if x2:
            A(f"v_lshl_add_u32 v{T0+4}, v{T0+3}, 2, v{G}"); A("s_lshl_b32 s51, s4, 4")
        else:
            A(f"v_and_b32 v{T0+4}, 1, v{G}"); A(f"v_lshl_add_u32 v{T0+4}, v{T0+3}, 1, v{T0+4}")
            A(f"v_lshrrev_b32 v{T0+5}, 1, v{G}"); A(f"v_lshl_add_u32 v{T0+4}, v{T0+5}, 5, v{T0+4}")
            A("s_lshl_b32 s51, s48, 6"); A("s_lshl_b32 s73, s49, 3"); A("s_add_u32 s51, s51, s73")
        A(f"v_add_lshl_u32 v{XF}, v{T0+4}, s51, 1")
        A(f"v_lshrrev_b32 v{RA}, 2, v0"); A(f"v_lshlrev_b32 v{RA}, {9 if ys else 8}, v{RA}"); A(f"v_lshl_add_u32 v{RA}, v{T0+3}, 4, v{RA}")
        A(f"s_lshl_b32 s73, s48, {14 if ys else 13}"); A(f"s_lshl_b32 s49, s49, {7 if ys else 6}"); A("s_add_u32 s73, s73, s49")
        A("s_mov_b32 s36, s5")
        A(f"buffer_load_ushort v{XV}, v{XF}, s[16:19], 0 offen")
        A(f"v_lshlrev_b32 v{OGA}, 3, v0")
    else:
        A(f"v_lshl_add_u32 v{WOA}, v{G}, 14, v{T0+2}")
        A("s_lshl_b32 s71, s4, 17"); A("s_lshl_b32 s48, s59, 16"); A("s_add_u32 s71, s71, s48"); A("s_add_u32 s71, s71, s72")
        A(f"v_and_b32 v{T0+3}, 3, v0")
        if lin:
            A(f"v_lshl_add_u32 v{T0+4}, v{T0+3}, 3, v{G}")
            A("s_lshr_b32 s48, s4, 3"); A("s_lshl_b32 s48, s48, 7"); A("s_and_b32 s49, s4, 3"); A("s_lshl_b32 s49, s49, 5"); A("s_add_u32 s48, s48, s49")
            A("s_and_b32 s49, s4, 4"); A("s_add_u32 s48, s48, s49")
        else:
            A(f"v_lshl_add_u32 v{T0+4}, v{T0+3}, 2, v{G}"); A("s_lshl_b32 s48, s4, 4")
        A(f"v_add_lshl_u32 v{XF}, v{T0+4}, s48, 1")
        A(f"v_lshrrev_b32 v{RA}, 2, v0"); A(f"v_lshlrev_b32 v{RA}, 9, v{RA}"); A(f"v_lshl_add_u32 v{RA}, v{T0+3}, 4, v{RA}")
        A("s_and_b32 s48, s4, 7"); A("s_lshl_b32 s49, s48, 6"); A("s_lshr_b32 s73, s4, 3"); A("s_lshl_b32 s73, s73, 15"); A("s_add_u32 s73, s73, s49")
        if mapx: A("s_sub_u32 s36, s5, s48")
        else: A("s_mov_b32 s36, s5")
        A(f"buffer_load_ushort v{XV}, v{XF}, s[16:19], 0 offen")
        if lin:
            A(f"v_bfe_u32 v{T0+4}, v0, 2, 1"); A(f"v_lshrrev_b32 v{T0+5}, 3, v0"); A(f"v_lshl_add_u32 v{T0+4}, v{T0+4}, 4, v{T0+5}")
            A(f"v_lshl_add_u32 v{T0+4}, v{T0+4}, 2, v{T0+3}"); A("s_lshl_b32 s48, s59, 7"); A(f"v_lshl_add_u32 v{OGA}, v{T0+4}, 2, s48")
        else:
            A("s_lshl_b32 s48, s59, 8"); A(f"v_lshl_add_u32 v{OGA}, v0, 2, s48")
    A("s_lshl_b32 s78, s4, 12"); A(f"s_add_u32 s78, s78, {WS_O}")
    A("s_waitcnt lgkmcnt(0)")
    if t64:
        if x2: xgemv(WD, 6, lambda e: (PH, e), lambda k: A(f"s_waitcnt vmcnt({11 - 2 * k})"))
        else: tgemv(WD, 3, lambda rho, q: (PH, 4 * rho + q), lambda rho: A(f"s_waitcnt vmcnt({17 - 8 * rho})"))
        tpublish("Y", 65, "sc1")
    else:
        abuild(AB, PH, M0, 0)
        for n in range(6):
            if n < 5: abuild(AB + 4 * ((n + 1) & 1), PH, M0, n + 1)
            A(f"s_waitcnt vmcnt({6-n})")
            mfma(DG, AB + 4 * (n & 1), WD + 4 * n, n == 0)
        tag(range(DG, DG + 4), "Y")
        A("s_mov_b32 exec_hi, 0")
        if "Yst" not in skip.split(): A(f"buffer_store_dwordx4 v[{DG}:{DG+3}], v{L16 if lin else OUTA}, s[40:43], s65 offen sc1")
        A("s_mov_b64 exec, -1")
    stamp("ypub")
    if prb:
        assert t64 and not ys and wpar is None and mlstr == 4 and not mlfull
        A("s_cmp_lg_u32 s2, 0"); A("s_cbranch_scc1 L_noprobe")
        A(f"s_mov_b32 s48, {WS_X}"); A("s_mov_b32 s10, -1"); A("s_mov_b32 s11, -1"); A(f"s_mov_b32 s49, {prb}")
        A("s_load_dword s8, s[40:41], s48"); A("s_waitcnt lgkmcnt(0)")
        A("L_probe_d:")
        for c in range(2):
            A("s_addk_i32 s48, 0x2000" if c == 0 else "s_addk_i32 s48, 0x2100")
            A("s_memtime s[56:57]"); A("s_waitcnt lgkmcnt(0)")
            A("s_load_dword s8, s[40:41], s48"); A("s_waitcnt lgkmcnt(0)")
            A("s_memtime s[58:59]"); A("s_waitcnt lgkmcnt(0)")
            A("s_sub_u32 s56, s58, s56"); A(f"s_min_u32 s{11 - c}, s{11 - c}, s56")
        A("s_sub_u32 s49, s49, 1"); A("s_cmp_lg_u32 s49, 0"); A("s_cbranch_scc1 L_probe_d")
        A("s_cmp_gt_u32 s10, s11"); A("s_cselect_b32 s48, 0x400, 0")
        A(f"v_or_b32 v{T0+4}, s48, v{TAG}"); A(f"v_mov_b32 v{T0+5}, v{TAG}"); A(f"v_mov_b32 v{T0+6}, v{EP}"); A(f"v_mov_b32 v{T0+7}, v{EP}")
        A(f"v_mov_b32 v{T0+1}, 0"); A(f"s_mov_b32 s48, {WS_D}")
        A("s_mov_b64 exec, 1")
        A(f"buffer_store_dwordx4 v[{T0+4}:{T0+7}], v{T0+1}, s[40:43], s48 offen sc1")
        A("s_mov_b64 exec, -1")
        if stamps == "prb":
            A("s_mov_b32 s98, s10"); A("s_mov_b32 s100, s11")
        A("L_noprobe:")
    A(f"v_and_b32 v{T0}, 3, v0"); A(f"v_lshlrev_b32 v{T0}, 3, v{T0}")
    A(f"s_mov_b32 s70, {SPIN * 8}")
    A("L_pollML:")
    A(f"s_sleep {lsleep}")
    A(f"ds_read_b64 v[{T0+2}:{T0+3}], v{T0} offset:{LML}")
    A("s_sub_u32 s70, s70, 1"); A("s_cbranch_scc1 L_pollML_done")
    A("s_waitcnt lgkmcnt(0)")
    A(f"v_cmp_eq_u32 vcc, -1, v{T0+3}")
    A("s_nop 1")
    A("s_cbranch_vccnz L_pollML")
    A("L_pollML_done:")
    stamp("ml")
    dpp("v_max_f32", T0 + 4, T0 + 2, "quad_perm:[1,0,3,2]"); dpp("v_max_f32", T0 + 4, T0 + 4, "quad_perm:[2,3,0,1]")
    A(f"v_sub_f32 v{T0+5}, v{T0+2}, v{T0+4}"); A(f"v_mul_f32 v{T0+5}, {LOG2E}, v{T0+5}"); A(f"v_exp_f32 v{T0+5}, v{T0+5}")
    A(f"v_mul_f32 v{T0+5}, v{T0+5}, v{T0+3}")
    dpp("v_add_f32", T0 + 5, T0 + 5, "quad_perm:[1,0,3,2]"); dpp("v_add_f32", T0 + 5, T0 + 5, "quad_perm:[2,3,0,1]")
    if steal:
        A(f"v_bfe_u32 v{T0+6}, v0, 2, 2"); A(f"v_lshlrev_b32 v{T0+6}, 3, v{T0+6}")
        A(f"ds_read_b32 v{T0+7}, v{T0+6} offset:{LML}")
        A(f"ds_read_b128 v[{T0+8}:{T0+11}], v{L16} offset:{LP}")
        A("s_lshl_b32 s51, s6, 10"); A(f"s_add_u32 s51, s51, {WS_P}")
        A("s_waitcnt lgkmcnt(0)")
        A(f"v_sub_f32 v{T0+7}, v{T0+7}, v{T0+4}"); A(f"v_mul_f32 v{T0+7}, {LOG2E}, v{T0+7}"); A(f"v_exp_f32 v{T0+7}, v{T0+7}")
        for k in range(4): A(f"v_mul_f32 v{T0+8+k}, v{T0+8+k}, v{T0+7}")
        tag(range(T0 + 8, T0 + 12))
        A(f"buffer_store_dwordx4 v[{T0+8}:{T0+11}], v{L16}, s[40:43], s51 offen sc1")
    tag((T0 + 4, T0 + 5))
    if local:
        A("s_getreg_b32 s37, hwreg(HW_REG_XCC_ID, 0, 4)"); A("s_lshl_b32 s37, s37, 10")
        A(f"v_or_b32 v{T0+4}, s37, v{T0+4}")
    if mlfull:
        assert mlstr == 7
        A(f"v_mov_b32 v{T0+1}, v{L16}"); A("s_mov_b64 exec, 0xff")
    else:
        A(f"v_mov_b32 v{T0+1}, 0"); A("s_mov_b64 exec, 1")
    A(f"v_mov_b32 v{T0+6}, v{EP}"); A(f"v_mov_b32 v{T0+7}, v{EP}")
    if "Mst" not in skip.split(): A(f"buffer_store_dwordx4 v[{T0+4}:{T0+7}], v{T0+1}, s[40:43], s66 offen {'' if 'Mplain' in skip.split() else 'sc1'}")
    A("s_mov_b64 exec, -1")
    A(f"v_and_b32 v{T0+1}, 7, v0"); A(f"v_lshlrev_b32 v{T0+1}, {mlstr}, v{T0+1}")
    A(f"s_lshl_b32 s48, s4, {mlstr + 3}"); A(f"s_add_u32 s48, s48, {WS_ML}")
    if prb:
        A(f"s_sub_u32 s49, {WS_D}, s48"); A(f"v_mov_b32 v{T0+8}, s49"); A("s_mov_b32 s56, 0xff00ff00"); A("s_mov_b32 s57, 0xff00ff00")
        A(f"v_cndmask_b32 v{T0+1}, v{T0+1}, v{T0+8}, s[56:57]")
    if mlat:
        A(f"v_mov_b32 v{T0+8}, 0")
        A(f"s_mov_b32 s70, {SPIN * 8}")
        A("L_pollM:")
        A(f"s_sleep {max(lsleep, 4)}")
        A(f"ds_read_b128 v[{T0+4}:{T0+7}], v{T0+8} offset:{LPROG}")
        A("s_sub_u32 s70, s70, 1"); A("s_cbranch_scc1 L_pollM_done")
        A("s_waitcnt lgkmcnt(0)")
        A(f"v_or3_b32 v{T0+4}, v{T0+4}, v{T0+5}, v{T0+6}"); A(f"v_or_b32 v{T0+4}, v{T0+4}, v{T0+7}")
        A(f"v_cmp_eq_u32 vcc, 0, v{T0+4}")
        A("s_nop 1")
        A("s_cbranch_vccnz L_pollM")
        A("L_pollM_done:")
    def ml_check():
        A(f"v_bitop3_b32 v{T0+8}, v{T0+4}, v{T0+5}, v{TAG} bitop3:0x7e"); A(f"v_bitop3_b32 v{T0+9}, v{T0+6}, v{T0+7}, v{EP} bitop3:0x7e")
        A(f"v_and_or_b32 v{T0+8}, v{T0+8}, s12, v{T0+9}")
        A(f"v_cmp_ne_u32 vcc, 0, v{T0+8}")
    A("s_movk_i32 s12, 0x3ff")
    poll("pollML2", lambda: A(f"buffer_load_dwordx4 v[{T0+4}:{T0+7}], v{T0+1}, s[40:43], s48 offen sc1"), ml_check, None, psleep)
    if local:
        A(f"v_and_b32 v{T0+6}, 0x3c00, v{T0+4}"); A(f"v_cmp_ne_u32 vcc, s37, v{T0+6}")
        A("s_nop 1")
        if prb: A("s_and_b32 s37, vcc_lo, 0xff")
        else: A("s_or_b32 s37, vcc_lo, vcc_hi")
    if prb:
        A(f"v_readlane_b32 s38, v{T0+4}, 8"); A("s_and_b32 s38, s38, 0x400"); A("s_lshl_b32 s38, s38, 3"); A("s_xor_b32 s64, s64, s38")
    A(f"v_and_b32 v{T0+4}, 0xffff0000, v{T0+4}"); untag((T0 + 5,))
    A(f"v_lshlrev_b32 v{XV}, 16, v{XV}")
    for c in ("quad_perm:[1,0,3,2]",): dpp("v_max_f32", T0 + 6, T0 + 4, c)
    for c in ("quad_perm:[2,3,0,1]", "row_half_mirror"): dpp("v_max_f32", T0 + 6, T0 + 6, c)
    A(f"v_sub_f32 v{T0+4}, v{T0+4}, v{T0+6}"); A(f"v_sub_f32 v{T0+2}, v{T0+2}, v{T0+6}")
    A(f"v_mul_f32 v{T0+4}, {LOG2E}, v{T0+4}"); A(f"v_mul_f32 v{T0+2}, {LOG2E}, v{T0+2}")
    A(f"v_exp_f32 v{T0+4}, v{T0+4}"); A(f"v_exp_f32 v{T0+2}, v{T0+2}")
    A(f"v_mul_f32 v{T0+5}, v{T0+4}, v{T0+5}")
    for c in ("quad_perm:[1,0,3,2]", "quad_perm:[2,3,0,1]", "row_half_mirror"): dpp("v_add_f32", T0 + 5, T0 + 5, c)
    A(f"v_rcp_f32 v{T0+5}, v{T0+5}")
    A(f"v_mul_f32 v{T0+2}, v{T0+2}, v{T0+5}")
    if not steal:
        for w in range(4): A(f"v_readlane_b32 s{74+w}, v{T0+2}, {w}")
        stamp("mlx")
    else:
        A(f"v_mul_f32 v{T0+4}, v{T0+4}, v{T0+5}")
        A(f"v_lshrrev_b32 v{T0}, 1, v{T0}")
        A(f"ds_write_b32 v{T0}, v{T0+2} offset:{LF}")
        stamp("mlx")
        A("s_lshl_b32 s48, s4, 13"); A(f"s_add_u32 s48, s48, {WS_P}"); A("s_add_u32 s49, s48, 0x1000")
        poll("pollPT", a_loads, range(WQ, WQ + 32), T0 + 6, 0)
        untag(range(WQ, WQ + 32))
        A(f"v_lshrrev_b32 v{T0+6}, 3, v0"); A(f"v_and_b32 v{T0+7}, 7, v0"); A(f"v_lshlrev_b32 v{T0+6}, 10, v{T0+6}")
        A(f"v_lshl_add_u32 v{T0+6}, v{T0+7}, 4, v{T0+6}")
        if np_ < 8:
            A(f"v_subrev_u32 v{T0+6}, {(8 - np_) * 1024}, v{T0+6}")
            m = (~((1 << (8 * (8 - np_))) - 1)) & (2**64 - 1)
            A(f"s_mov_b32 exec_lo, {hex(m & 0xffffffff)}"); A(f"s_mov_b32 exec_hi, {hex(m >> 32)}")
        for k in range(8):
            A(f"v_readlane_b32 s51, v{T0+4}, {k}")
            for r in range(4): A(f"v_mul_f32 v{WQ+4*k+r}, s51, v{WQ+4*k+r}")
            for r in range(4): A(f"v_cvt_pk_bf16_f32 v{WQ+4*k+r}, v{WQ+4*k+r}, v{WQ+4*k+r}")
            A(f"ds_write_b128 v{T0+6}, v[{WQ+4*k}:{WQ+4*k+3}] offset:{LPT + 128*k}")
        A("s_mov_b64 exec, -1")
        A(f"v_mov_b32 v{T0+6}, 0"); A(f"v_mov_b32 v{T0+7}, 1")
        A(f"ds_write_b32 v{T0+6}, v{T0+7} offset:{LPF}")
        stamp("table")
    NG = 2 if t64 else 4
    def reduce(base):
        if t64:
            untag(range(base, base + 8))
            for k in range(4): A(f"v_add_f32 v{T0+4+k}, v{base+k}, v{base+4+k}")
            return
        untag(range(base, base + 16))
        for k in range(4):
            A(f"v_add_f32 v{base+k}, v{base+k}, v{base+4+k}"); A(f"v_add_f32 v{base+8+k}, v{base+8+k}, v{base+12+k}")
        for k in range(4): A(f"v_add_f32 v{T0+4+k}, v{base+k}, v{base+8+k}")
    def reduce2():
        b = T0 + 4
        A(f"v_permlane32_swap_b32 v{b}, v{b+2}"); A(f"v_permlane32_swap_b32 v{b+1}, v{b+3}")
        A(f"v_add_f32 v{b}, v{b}, v{b+2}"); A(f"v_add_f32 v{b+1}, v{b+1}, v{b+3}")
        A(f"v_permlane16_swap_b32 v{b}, v{b+1}")
        A(f"v_add_f32 v{b}, v{b}, v{b+1}")
        dpp("v_add_f32", b, b, "row_ror:4"); dpp("v_add_f32", b, b, "row_ror:8")
        rbf(b)
    def gather(sregs, fl="sc1"):
        def f(base=PS):
            for k in range(NG): A(f"buffer_load_dwordx4 v[{base+4*k}:{base+4*k+3}], v{RA}, s[40:43], s{sregs[k]} offen {fl}")
        return f
    A("s_cmp_lg_u32 s36, 0"); A("s_cbranch_scc1 L_noY")
    A(f"s_add_u32 s48, s73, {WS_Y}")
    A(f"s_add_u32 s49, s48, {4096 if t64 and not ys else 8192}"); A(f"s_add_u32 s56, s48, 16384"); A(f"s_add_u32 s57, s48, 24576")
    poll("pollY", gather((48, 49, 56, 57)), range(PS, PS + 4 * NG), T0, psleep)
    reduce(PS); reduce2()
    A(f"v_mul_f32 v{T0}, 0xbfb8aa3b, v{T0+4}"); A(f"v_exp_f32 v{T0}, v{T0}"); A(f"v_add_f32 v{T0}, 1.0, v{T0}")
    A(f"v_rcp_f32 v{T0}, v{T0}"); A(f"v_mul_f32 v{GV}, v{T0+4}, v{T0}")
    rbf(GV)
    A("s_cmp_lg_u32 s2, 0"); A("s_cbranch_scc1 L_noY")
    A("s_mov_b64 exec, 1")
    A(f"v_mov_b32 v{T0}, 0")
    A(f"buffer_store_dword v{EP}, v{T0}, s[40:43], s79 offen sc1")
    A("s_mov_b64 exec, -1")
    A("L_noY:")
    A(f"s_add_u32 s48, s73, {SBASE}")
    if prb: A("s_xor_b32 s48, s48, s38")
    if wpar is not None:
        A("s_lshr_b32 s49, s4, 2"); A("s_lshl_b32 s49, s49, 13"); A("s_add_u32 s48, s48, s49")
    A(f"s_add_u32 s49, s48, {4096 if t64 and not ys else 8192}"); A(f"s_add_u32 s56, s48, 16384"); A(f"s_add_u32 s57, s48, 24576")
    A(f"v_mov_b32 v{T0}, 0")
    A(f"s_mov_b32 s70, {SPIN * 8}")
    A("L_pollP:")
    A(f"s_sleep {lsleep}")
    if steal or bal or mlat: A(f"ds_read_b32 v{T0+4}, v{T0} offset:{LGO}")
    else: A(f"ds_read_b128 v[{T0+4}:{T0+7}], v{T0} offset:{LPROG}")
    A("s_sub_u32 s70, s70, 1"); A("s_cbranch_scc1 L_pollP_done")
    A("s_waitcnt lgkmcnt(0)")
    if not (steal or bal or mlat):
        A(f"v_or3_b32 v{T0+4}, v{T0+4}, v{T0+5}, v{T0+6}"); A(f"v_or_b32 v{T0+4}, v{T0+4}, v{T0+7}")
    A(f"v_cmp_eq_u32 vcc, 0, v{T0+4}")
    A("s_nop 1")
    A("s_cbranch_vccnz L_pollP")
    A("L_pollP_done:")
    A("s_setprio 3")
    for n in range(16):
        if t64:
            if n < 8:
                for q in range(4):
                    if x2:
                        A(f"buffer_load_dwordx2 v[{WO+8*n+2*q}:{WO+8*n+2*q+1}], v{WOA}, s[24:27], s71 offen{off(1024*q)} {woflags}")
                        continue
                    for t in range(2): A(f"buffer_load_dword v{WO+8*n+4*t+q}, v{WOA}, s[24:27], s71 offen{off(1024*q + 64*t)} {woflags}")
                if n < 7: A("s_addk_i32 s71, 0x1000")
            continue
        A(f"buffer_load_dwordx4 v[{WO+4*n}:{WO+4*n+3}], v{WOA}, s[24:27], s71 offen{off((n&3)*1024)} {woflags}")
        if n & 3 == 3 and n < 15: A("s_addk_i32 s71, 0x1000")
    stamp("wiss")
    A("s_mov_b32 exec_hi, 0")
    if local: A("s_cmp_lg_u32 s37, 0")
    A("s_barrier")
    for w in range(4): A(f"ds_read_b128 v[{T0+4*w}:{T0+4*w+3}], v{OUTA} offset:{LO+512*w}")
    stamp("bar2")
    for w in range(4):
        A(f"s_waitcnt lgkmcnt({3-w})" if not (stamps or probe) else "s_waitcnt lgkmcnt(0)")
        if fast and not steal:
            p = 74 + (w & 2); sel = "op_sel:[0,1] op_sel_hi:[1,1]" if w & 1 else "op_sel_hi:[1,0]"
            for k in (0, 2):
                if w == 0: A(f"v_pk_mul_f32 v[{DQ+k}:{DQ+k+1}], v[{T0+k}:{T0+k+1}], s[{p}:{p+1}] {sel}")
                else:
                    sel3 = "op_sel:[0,1,0] op_sel_hi:[1,1,1]" if w & 1 else "op_sel_hi:[1,0,1]"
                    A(f"v_pk_fma_f32 v[{DQ+k}:{DQ+k+1}], v[{T0+4*w+k}:{T0+4*w+k+1}], s[{p}:{p+1}], v[{DQ+k}:{DQ+k+1}] {sel3}")
            continue
        for k in range(4):
            if steal:
                if w == 1: A(f"v_add_f32 v{DQ+k}, v{T0+k}, v{T0+4+k}")
                elif w > 1: A(f"v_add_f32 v{DQ+k}, v{DQ+k}, v{T0+4*w+k}")
            elif w == 0: A(f"v_mul_f32 v{DQ+k}, s74, v{T0+k}")
            else: A(f"v_fmac_f32 v{DQ+k}, s{74+w}, v{T0+4*w+k}")
    tag(range(DQ, DQ + 4), "O")
    if local:
        A("s_cbranch_scc1 L_far")
        A(f"buffer_store_dwordx4 v[{DQ}:{DQ+3}], v{L16 if lin else OUTA}, s[40:43], s63 offen")
        A("s_branch L_near")
        A("L_far:")
    if "Ost" not in skip.split(): A(f"buffer_store_dwordx4 v[{DQ}:{DQ+3}], v{L16 if lin else OUTA}, s[40:43], s63 offen sc1")
    if local: A("L_near:")
    A("s_mov_b64 exec, -1")
    stamp("opub")
    def o_loads(base):
        for k in range(8): A(f"buffer_load_dword v{base+k}, v{OGA}, s[40:43], s78 offen{off(k*512)} sc1")
    def o_finish(b):
        if fast:
            pkadd(b, b, b + 2); pkadd(b + 4, b + 4, b + 6); pkadd(b, b, b + 4)
            A(f"v_add_f32 v{T0+3}, v{b}, v{b+1}")
            return
        untag(range(b, b + 8))
        for k in range(4): A(f"v_add_f32 v{b+2*k}, v{b+2*k}, v{b+2*k+1}")
        A(f"v_add_f32 v{b}, v{b}, v{b+2}"); A(f"v_add_f32 v{b+4}, v{b+4}, v{b+6}")
        A(f"v_add_f32 v{T0+3}, v{b}, v{b+4}")
    A("; o = bf16(sum of the eight partial outputs); partial out projection: " + ("the head's 128 rows, 64 columns" if t64 else "64 of the head's rows, 128 columns"))
    if t64:
        def o_loads2(base):
            for k in range(8): A(f"buffer_load_dwordx2 v[{base+2*k}:{base+2*k+1}], v{OGA}, s[40:43], s78 offen{off(k*512)} {old}")
        def o_finish2(b):
            for k in (0, 4, 8, 12): pkadd(b + k, b + k, b + k + 2)
            pkadd(b, b, b + 4); pkadd(b + 8, b + 8, b + 12); pkadd(T0 + 2, b, b + 8)
        poll_pipe("pollO", r1, d1, 16, 8, o_loads2, o_finish2)
        stamp("oseen")
        A(f"v_cvt_pk_bf16_f32 v{PD}, v{T0+2}, v{T0+2}"); A(f"v_cvt_pk_bf16_f32 v{PD1}, v{T0+3}, v{T0+3}")
        if x2: xgemv(WO, 16, lambda e: ((PD, PD1)[e & 1], e >> 1), None)
        else: tgemv(WO, 8, lambda rho, q: ((PD, PD1)[q & 1], 2 * rho + (q >> 1)), None)
        tpublish("S", 64, sflags)
    else:
        poll_pipe("pollO", r1, d1, 8, 8, o_loads, o_finish)
        stamp("oseen")
        A(f"v_cvt_pk_bf16_f32 v{PD}, v{T0+3}, v{T0+3}")
        abuild(AB, PD, M0, 0)
        for n in range(16):
            if n < 15: abuild(AB + 4 * ((n + 1) & 1), PD, M0, n + 1)
            mfma(DQ, AB + 4 * (n & 1), WO + 4 * n, n == 0)
        A("s_mov_b32 exec_hi, 0")
        tag(range(DQ, DQ + 4), "S")
        if "Sst" not in skip.split(): A(f"buffer_store_dwordx4 v[{DQ}:{DQ+3}], v{L16 if lin else OUTA}, s[40:43], s64 offen {sflags}")
        A("s_mov_b64 exec, -1")
    stamp("spub")
    A("s_cmp_lg_u32 s36, 0"); A("s_cbranch_scc1 L_sdone")
    PS = 64
    def s_finish(b):
        if t64:
            for k in (0, 2): pkadd(T0 + 4 + k, b + k, b + 4 + k)
            return
        for k in (0, 2): pkadd(b + k, b + k, b + 4 + k); pkadd(b + 8 + k, b + 8 + k, b + 12 + k)
        for k in (0, 2): pkadd(T0 + 4 + k, b + k, b + 8 + k)
    poll_pipe("pollS", r2, d2, 4 * NG, NG, gather((48, 49, 56, 57), sld), s_finish if fast else reduce)
    stamp("sseen")
    reduce2()
    A(f"v_mul_f32 v{T0+4}, v{T0+4}, v{GV}")
    rbf(T0 + 4)
    A(f"v_add_f32 v{T0+4}, v{T0+4}, v{XV}")
    A(f"v_cvt_pk_bf16_f32 v{T0+4}, v{T0+4}, v{T0+4}")
    A("s_mov_b32 exec_lo, 0x000f000f"); A("s_mov_b32 exec_hi, 0x000f000f")
    A(f"buffer_store_short v{T0+4}, v{XF}, s[32:35], 0 offen {oflags}")
    A("L_sdone:")
    if stamps or probe: A("s_waitcnt vmcnt(0)")
    stamp("end")
    if probe:
        A("s_cmp_lg_u32 s2, 0"); A("s_cbranch_scc1 L_end")
        A("s_memrealtime s[84:85]"); A("s_waitcnt lgkmcnt(0)")
        A("s_sub_u32 s82, s82, s80"); A(f"s_mul_i32 s82, s82, {probek}"); A("s_min_u32 s82, s82, 100000")
        A("L_probe:")
        A("s_memrealtime s[86:87]"); A("s_waitcnt lgkmcnt(0)")
        A("s_sub_u32 s86, s86, s84"); A("s_cmp_lt_u32 s86, s82"); A("s_cbranch_scc1 L_probe")
    dump_stamps()
    A("L_end:")
    A("s_endpgm")
    A.L += stream_body

    body = A.fix()
    hdr = open("cdna_kernels/" + NAME + ".s.ref").read().split("\n")
    hdr = [l for l in hdr if l.startswith(";") and "@launch" not in l and "Override" not in l and "grid=ceil" not in l]
    doc = """;
; layernorm -> q projection -> single-query attention over the cache -> out projection, times silu(GLU(xn)), plus x; one kernel.
; 256 workgroups = 32 heads x 8 key splits, one per CU; 4 streaming waves + 1 service wave each.
;   streaming waves: read the split's 1024 keys, then its 1024 values, once (1 KiB per load, nt); true-max softmax per wave,
;     merged exactly across waves and splits through (max, sum) pairs.
;   service wave: layernorm, a 64-row slice of the q / gate / up projections, a slice of the down and out projections,
;     and the hand-offs between workgroups.
; Hand-offs go through d_ws. Every handed-over word carries a 10-bit tag in its low bits, taken from an epoch word in d_ws that
; each run reads at entry and advances once all workgroups have read it; a reader waits until all words carry the tag and
; clears the tag before use, so neither results nor control flow depend on what d_ws held before. All waits are bounded.""".split("\n")
    out = hdr + doc + [f"; @launch grid=(256,1,1) block=({384 if steal or bal else 320},1,1) lds={12288 if steal else 3072}",
                 '.amdgcn_target "amdgcn-amd-amdhsa--gfx950"', ".text", f".globl {KN}", ".p2align 8", f".type {KN},@function"]
    out += [l if l.endswith(":") and not l.startswith(";") else "    " + l for l in body]
    nv = max(48 + 4 * nslot + (4 if bal else 0), 224)
    out += ['.section .rodata,"a"', ".p2align 6", f".amdhsa_kernel {KN}", f"  .amdhsa_next_free_vgpr {nv}",
            "  .amdhsa_next_free_sgpr 102", f"  .amdhsa_accum_offset {nv}", "  .amdhsa_group_segment_fixed_size 0",
            "  .amdhsa_kernarg_size 96", "  .amdhsa_user_sgpr_count 2", "  .amdhsa_user_sgpr_kernarg_segment_ptr 1",
            "  .amdhsa_system_sgpr_workgroup_id_x 1", ".end_amdhsa_kernel"]
    return "\n".join(out) + "\n", stamp_list

if __name__ == "__main__":
    kw = eval("dict(" + (sys.argv[2] if len(sys.argv) > 2 else "") + ")")
    open(sys.argv[1], "w").write(gen(**kw)[0])
```

```python
import sys
from asmlib import Asm
NAME = "recurrent_scan__mha_block_cached__glu_gated_glu__decode"
KN = NAME + "_kernel"

WS_A  = 0x00000
WS_O  = 0x40000
WS_S  = 0x60000
WS_Y  = 0x80000
WS_ML = 0xA0000
WS_E  = 0xB0000
WS_D  = 0xB4000
WS_X  = 0x180000
WS_C  = 0xB8000
WS_B  = 0x200000
WS_P  = 0xC0000
WS_ST = 0x100000
WS_BYTES = 268435456
LQ, LML, LPROG, LQF, LH, LO = 0, 256, 288, 304, 320, 1024
LGO, LPF, LLV = 308, 312, 316
LF, LREC, LP, LPT = 576, 640, 3072, 4096
END = 0x7fffffff
LOG2E = "0x3fb8aa3b"
SCALE = "0x3db504f3"
SPIN = 1 << 17

SETS = {"early": "bar0 issued x ln apub aseen qdone ypub ml mlx end qready kdone vdone",
        "prog": "bar0 i16 i32 i48 i64 i80 i96 i112 i127 vdone apub aseen mlx end",
        "prog2": "i56 i64 i72 i80 i88 i96 i104 i112 i120 vdone end",
        "clk": "bar0 clk0 i64 clk1 vdone clk2 end",
        "steal2": "mlx table end i96 i102 i111 rec0 rec1 rec2 static tready vdone",
        "steal": "mlx table wiss bar2 opub oseen spub sseen end kdone static tready vdone qdone issued qready",
        "boot": "karg pre far bar0 i8 i12 skarg sx s8 s16 issued x ln",
        "late": "qdone mlx wiss bar2 opub oseen spub sseen end issued qready kdone vdone"}

def gen(nslot=48, npre=4, burst=4, every=6, cap=6, dist=None, plate=1, stamps=False, kvflags="nt", wflags="nt", gflags="",
        asleep=30, lsleep=1, psleep=4, mapx=False, r1=3, r2=3, d1=2, d2=2, local=False, skip="", probe=None, probek=8, touch=False, bar0=16, scap=0, amap=False, gap=0, steal=False, np_=8, ah=5, golate=2, noatom=False, aflags='sc0 sc1', capl=0, capsel=1, capfrom=0, bal=False, tk=4, th=4, lv=(5, 6, 7), bfrom=12, bto=108, bgrp=3, bstr=2, mlstr=4, mlat=None, oflags='', fast=False, pre='', preflags='', rnd='', sched=None, pat=None, ph=(0, 0, 0), osleep=0, sflags='sc1', lin=False, mlfull=False, t64=False, x2=False, woflags=None, ys=False, sofs=0, numa=False, par=0, parv=None, wpar=None, prb=0, old='sc1', sld='sc1', gsplit=0, ifirst=False, onat=False, olflags='', atom='', prio=(3, 0, 3), wprio=0):
    A = Asm()
    stamp_list = []
    role = ["S"]
    if bal: cap = lv[2]
    if dist is None: dist = cap
    if woflags is None: woflags = wflags
    def stamp(name):
        if probe and role[0] == "S" and name == probe:
            A("s_memrealtime s[82:83]")
        if stamps and name in SETS[stamps].split() and not (stamps in ("late", "steal") and role[0] == "S" and name == "issued"):
            k = len([x for x in stamp_list if x[0] == role[0]])
            stamp_list.append((role[0], name))
            A(f"{'s_memtime' if name.startswith('clk') else 's_memrealtime'} s[{80+2*k}:{81+2*k}]")
    def rbf(r):
        A(f"v_cvt_pk_bf16_f32 v{r}, v{r}, v{r}")
        A(f"v_and_b32 v{r}, 0xffff0000, v{r}")
    def masks(m0, t0, t1):
        A(f"v_and_b32 v{t0}, 1, v0")
        A(f"v_lshlrev_b32 v{t0}, 4, v{t0}")
        A(f"v_lshlrev_b32 v{t0}, v{t0}, s50")
        A(f"v_bfe_u32 v{t1}, v0, 1, 2")
        for r in range(4): A(f"v_cmp_eq_u32 s[{84+2*r if not (stamps or probe) else 62+2*r}:{85+2*r if not (stamps or probe) else 63+2*r}], {r}, v{t1}")
        for r in range(4): A(f"v_cndmask_b32 v{m0+r}, 0, v{t0}, s[{84+2*r if not (stamps or probe) else 62+2*r}:{85+2*r if not (stamps or probe) else 63+2*r}]")
    def abuild(a0, p, m0, n):
        for r in range(4):
            A(f"v_and_b32_dpp v{a0+r}, v{p}, v{m0+r} row_newbcast:{n} row_mask:0xf bank_mask:0xf")
    def dpp(op, d, s, ctl, rm="0xf", bm="0xf"):
        A(f"{op}_dpp v{d}, v{s}, v{s} {ctl} row_mask:{rm} bank_mask:{bm}")
    def wave_red(op, v):
        for c in ("quad_perm:[1,0,3,2]", "quad_perm:[2,3,0,1]", "row_half_mirror", "row_mirror"): dpp(op, v, v, c)
        dpp(op, v, v, "row_bcast:15", "0xa"); dpp(op, v, v, "row_bcast:31", "0xc")
    def mfma(d, a, b, first):
        A(f"v_mfma_f32_16x16x32_bf16 v[{d}:{d+3}], v[{a}:{a+3}], v[{b}:{b+3}], {0 if first else f'v[{d}:{d+3}]'}")
    def srd(d, off, nbytes):
        A(f"s_load_dwordx2 s[{d}:{d+1}], s[0:1], {off}")
        A(f"s_mov_b32 s{d+2}, {nbytes}")
        A(f"s_mov_b32 s{d+3}, 0x20000")
    def off(n): return f" offset:{n}" if n else ""
    def dump_stamps():
        if not stamps: return
        mine = [x for x in stamp_list if x[0] == role[0]]
        A("s_mov_b64 exec, -1")
        A("s_waitcnt lgkmcnt(0)")
        for k in range(len(mine)): A(f"v_writelane_b32 v0, s{80+2*k}, {k}")
        A("s_getreg_b32 s48, hwreg(HW_REG_XCC_ID)"); A("v_writelane_b32 v0, s48, 15")
        A("s_getreg_b32 s48, hwreg(HW_REG_HW_ID)"); A("v_writelane_b32 v0, s48, 14")
        A("s_load_dwordx2 s[40:41], s[0:1], 88"); A(f"s_mov_b32 s42, {WS_BYTES}"); A("s_mov_b32 s43, 0x20000")
        A("s_mul_i32 s48, s2, 5"); A("s_add_u32 s48, s48, s3"); A("s_lshl_b32 s48, s48, 6"); A(f"s_add_u32 s48, s48, {WS_ST}")
        A("v_mbcnt_lo_u32_b32 v1, -1, 0"); A("v_lshlrev_b32 v1, 2, v1")
        A("s_mov_b64 exec, 0xffff")
        A("s_waitcnt lgkmcnt(0)")
        A("buffer_store_dword v0, v1, s[40:43], s48 offen")

    A(f"{KN}:")
    if stamps or probe: A("s_memrealtime s[80:81]")
    if fast:
        A("s_load_dwordx2 s[8:9], s[0:1], 8"); A("s_load_dwordx2 s[12:13], s[0:1], 16")
    A("v_lshrrev_b32 v1, 6, v0")
    A("s_cmp_ge_u32 s2, 256")
    A("s_cbranch_scc1 L_end")
    A("v_readfirstlane_b32 s3, v1")
    if numa:
        A("s_lshr_b32 s4, s2, 1"); A("s_and_b32 s4, s4, 28"); A("s_and_b32 s5, s2, 3"); A("s_or_b32 s4, s4, s5")
        A("s_lshr_b32 s5, s2, 5"); A("s_and_b32 s5, s5, 6"); A("s_bfe_u32 s6, s2, 0x10002"); A("s_or_b32 s5, s5, s6")
    elif mapx:
        A("s_lshr_b32 s4, s2, 3"); A("s_and_b32 s5, s2, 7")
    else:
        A("s_and_b32 s4, s2, 31"); A("s_lshr_b32 s5, s2, 5")
    A("v_and_b32 v0, 63, v0")
    A("s_mov_b32 s50, 0xffff")
    A("s_cmp_eq_u32 s3, 4")
    A("s_cbranch_scc1 L_service")
    if steal or bal:
        A("s_cmp_eq_u32 s3, 5")
        A("s_cbranch_scc1 L_claim")
    nst = 128 - 2 * np_ if steal else 128

    role[0] = "W"; stamp_list.append(("W", "start"))
    VL16, M0, Q0, S0, AB, D0, P0, T0, RING = 1, 2, 6, 10, 14, 22, 26, 42, 48
    LVR, LVA = RING + 4 * nslot, RING + 4 * nslot + 1
    if fast:
        for d in (8, 12): A(f"s_mov_b32 s{d+2}, {64 << 20}"); A(f"s_mov_b32 s{d+3}, 0x20000")
    else:
        srd(8, 8, 64 << 20); srd(12, 16, 64 << 20)
    if numa:
        A("s_lshl_b32 s48, s4, 21"); A("s_lshr_b32 s49, s5, 1"); A("s_lshl_b32 s49, s49, 19"); A("s_add_u32 s48, s48, s49")
        A("s_xor_b32 s49, s4, s5"); A(f"s_xor_b32 s49, s49, {par}"); A("s_and_b32 s49, s49, 1"); A("s_lshl_b32 s49, s49, 13"); A("s_add_u32 s48, s48, s49")
        A("s_lshl_b32 s49, s3, 11"); A("s_add_u32 s48, s48, s49")
        A("s_mov_b32 s49, s48")
        A(f"v_lshlrev_b32 v{VL16}, 4, v0")
    else:
        A("s_lshl_b32 s48, s4, 21"); A("s_lshl_b32 s49, s5, 18"); A("s_add_u32 s48, s48, s49")
    if numa: pass
    elif not pat:
        if gsplit == 1:
            A("s_lshl_b32 s49, s3, 11"); A("s_add_u32 s48, s48, s49")
            A(f"v_and_b32 v2, 32, v0"); A(f"v_mul_u32_u24 v2, {256 - 16}, v2"); A(f"v_lshl_add_u32 v{VL16}, v0, 4, v2")
        elif gsplit == 2:
            A("s_lshl_b32 s49, s3, 11"); A("s_add_u32 s48, s48, s49")
            A(f"v_lshlrev_b32 v{VL16}, 4, v0")
        else:
            A("s_lshl_b32 s49, s3, 12"); A("s_add_u32 s48, s48, s49")
            A(f"v_lshlrev_b32 v{VL16}, 4, v0")
        A("s_mov_b32 s49, s48")
    else:
        assert not steal
        sh = {n: 8 + k for k, n in enumerate(pat.split())}
        assert sh["c0"] < sh["c1"] <= 11 and sh["c1"] < sh["c2"] < sh["c3"] < sh["c4"] < sh["c5"] and all(x % 4 == 0 for x in ph)
        CM = sum(1 << sh[f"c{k}"] for k in range(2, 6))
        for k in range(2):
            A(f"s_bfe_u32 s49, s3, {k | (1 << 16)}"); A(f"s_lshl_b32 s49, s49, {sh[f'w{k}']}"); A("s_add_u32 s48, s48, s49")
        A(f"v_and_b32 v{VL16}, 15, v0"); A(f"v_lshlrev_b32 v{VL16}, 4, v{VL16}")
        for k in range(2):
            A(f"v_bfe_u32 v2, v0, {4 + k}, 1"); A(f"v_lshl_add_u32 v{VL16}, v2, {sh[f'g{k}']}, v{VL16}")
        A(f"s_mul_i32 s59, s5, {ph[1]}")
        if ph[0]: A("s_and_b32 s49, s4, 7"); A(f"s_mul_i32 s49, s49, {ph[0]}"); A("s_add_u32 s59, s59, s49")
        if ph[2]: A("s_lshr_b32 s49, s4, 3"); A(f"s_mul_i32 s49, s49, {ph[2]}"); A("s_add_u32 s59, s59, s49")
        A("s_mov_b32 s56, 0")
        for k in range(2, 6):
            A(f"s_bfe_u32 s49, s59, {k | (1 << 16)}"); A(f"s_lshl_b32 s49, s49, {sh[f'c{k}']}"); A("s_add_u32 s56, s56, s49")
        A("s_add_u32 s49, s48, s56")
        A(f"s_mov_b32 s60, {hex(CM)}")
    A("s_waitcnt lgkmcnt(0)")
    stamp("karg")
    issued = [0]; waited = [-1]
    def slot(i): return RING + 4 * (i % nslot)
    extra = [None]
    def wait_for(i):
        if i > waited[0]:
            n = issued[0] - 1 - i + (1 if extra[0] is not None and i < extra[0] else 0)
            A(f"s_waitcnt vmcnt({n})"); waited[0] = i
    def capof(i):
        if not sched: return cap
        c = cap
        for frm, val in sched:
            if i >= frm: c = val
        return c[i % len(c)] if isinstance(c, tuple) else c
    def tick():
        A(f"ds_write_b32 v{T0+4}, v{T0+5} offset:{LPROG}")
        A(f"v_add_u32 v{T0+5}, 1, v{T0+5}")
    def issue():
        i = issued[0]
        ii = i % 64; s = 8 if i < 64 or "VK" in skip.split() else 12
        if pat:
            if ii % 4 == 0 and i:
                A("s_orn2_b32 s56, s56, s60"); A(f"s_add_u32 s56, s56, {1 << sh['c2']}"); A("s_and_b32 s56, s56, s60"); A("s_add_u32 s49, s48, s56")
        elif i == 64: A("s_mov_b32 s49, s48" if parv is None or parv == par else "s_xor_b32 s49, s48, 0x2000")
        elif gsplit == 2:
            if ii % 2 == 0 and i: A("s_addk_i32 s49, 0x2000")
        elif ii % (2 if numa else 4) == 0 and i:
            A("s_addk_i32 s49, 0x4000")
        if bal and i >= npre and ii % tk == 0 and bfrom <= i <= bto + tk:
            if i > bfrom:
                A("s_waitcnt lgkmcnt(0)"); A(f"v_readfirstlane_b32 s58, v{LVR}")
                A("s_and_b32 vcc_lo, s58, 2")
            if i <= bto:
                tick(); A(f"ds_read_b32 v{LVR}, v{LVA} offset:{LLV}")
        if bal and i >= npre and ii % 4 == 0: A("s_cmp_eq_u32 s58, 0")
        c_ = capof(i)
        if c_ and i >= c_: wait_for(i - c_)
        if bal and i >= max(npre, lv[0]):
            A(f"s_cbranch_vccnz L_c{i}")
            if i >= lv[1]: A(f"s_waitcnt vmcnt({lv[1] - 1})")
            A(f"s_cbranch_scc1 L_c{i}"); A(f"s_waitcnt vmcnt({lv[0] - 1})"); A(f"L_c{i}:")
        if capl and i >= max(capl, capfrom, npre) and i - capl > waited[0]:
            A(f"s_cbranch_vccnz L_c{i}"); A(f"s_waitcnt vmcnt({capl - 1})"); A(f"L_c{i}:")
        issued[0] += 1
        r = slot(i)
        imm = ((ii & 1) << sh["c0"]) + ((ii >> 1 & 1) << sh["c1"]) if pat else (ii % 4) * 512 if gsplit == 1 else (ii % (2 if numa or gsplit == 2 else 4)) * 1024
        A(f"buffer_load_dwordx4 v[{r}:{r+3}], v{VL16}, s[{s}:{s+3}], s49 offen{off(imm)} {kvflags}")
        stamp(f"i{i}")
        if steal and i >= nst - 2 * ah and (nst - i) % 2 == 0: tick()
        if i == 64: stamp("clk1")
    for _ in range(npre): issue()
    if touch:
        A(f"buffer_load_dword v{T0+3}, v{VL16}, s[12:15], s48 offen {kvflags}")
        extra[0] = issued[0]
    stamp("pre")
    A("s_branch L_stream")
    stream_at = len(A.L)
    A("L_stream:")
    stamp("far")
    if wprio: A(f"s_setprio {wprio}")
    masks(M0, T0, T0 + 1)
    A("s_mov_b32 s52, 0xcccccccc"); A("s_mov_b32 s53, 0xcccccccc")
    A("s_mov_b32 s54, 0xaaaaaaaa"); A("s_mov_b32 s55, 0xaaaaaaaa")
    A(f"v_and_b32 v{T0+2}, 15, v0"); A(f"v_lshlrev_b32 v{T0+2}, 4, v{T0+2}")
    A(f"v_mov_b32 v{T0+4}, s3"); A(f"v_lshlrev_b32 v{T0+4}, 2, v{T0+4}"); A(f"v_mov_b32 v{T0+5}, 1")
    def setlevel():
        if bal:
            A("s_and_b32 vcc_lo, s58, 2"); A("s_mov_b32 vcc_hi, 0"); A("s_cmp_eq_u32 s58, 0")
        if capl:
            A(f"s_and_b32 vcc_lo, s3, {capsel}"); A("s_mov_b32 vcc_hi, 0")
    if bal:
        A("s_mov_b32 s58, 0"); A(f"v_mov_b32 v{LVA}, 0")
    setlevel()
    A("s_barrier")
    stamp("bar0"); stamp("clk0")
    for _ in range(nslot - npre): issue()
    stamp("issued")
    A(f"v_mov_b32 v{T0+1}, 0")
    A(f"s_mov_b32 s57, {SPIN * 8}")
    A("L_pollQ:")
    A(f"ds_read_b32 v{T0}, v{T0+1} offset:{LQF}")
    A(f"ds_read_b128 v[{Q0}:{Q0+3}], v{T0+2} offset:{LQ}")
    A("s_sub_u32 s57, s57, 1"); A("s_cbranch_scc1 L_pollQ_done")
    A("s_waitcnt lgkmcnt(0)")
    A(f"v_cmp_eq_u32 vcc, 0, v{T0}")
    A("s_nop 1")
    A("s_cbranch_vccnz L_pollQ")
    A("L_pollQ_done:")
    setlevel()
    stamp("qready")
    def early_issue(i):
        if ifirst:
            d = max(capof(i + 1 + k) for k in range(13)) if sched else dist
            while issued[0] < min(nst, i + 1 + d) and issued[0] - nslot < i and issued[0] - capof(issued[0]) <= i: issue()
    def maybe_issue(i):
        want = max(nslot + min(i + 1, burst + i // every) if i < nslot else 0, min(i + 1 + (max(capof(i + 1 + k) for k in range(13)) if sched else dist), nslot + i + 1))
        while issued[0] < min(nst, want): issue()
    for i in range(64):
        n = i % 16; r = slot(i)
        A(f"v_mov_b32 v{P0+n}, 0")
        wait_for(i); early_issue(i)
        for k in range(4): A(f"v_dot2c_f32_bf16 v{P0+n}, v{r+k}, v{Q0+k}")
        maybe_issue(i)
        if n == 15:
            a = i // 16
            for k in range(8):
                dpp("v_add_f32", P0 + k, P0 + k, "row_ror:8", bm="0x3"); dpp("v_add_f32", P0 + k, P0 + k + 8, "row_ror:8", bm="0xc")
            if gap and i >= nslot - 1 and gap > 1: issue()
            for k in range(4):
                dpp("v_add_f32", P0 + k, P0 + k, "row_half_mirror", bm="0x5"); dpp("v_add_f32", P0 + k, P0 + k + 4, "row_half_mirror", bm="0xa")
            for k in range(4): dpp("v_add_f32", P0 + k, P0 + k, "quad_perm:[2,3,0,1]")
            A(f"v_cndmask_b32 v{P0}, v{P0}, v{P0+2}, s[52:53]")
            A(f"v_cndmask_b32 v{P0+1}, v{P0+1}, v{P0+3}, s[52:53]")
            for k in range(2): dpp("v_add_f32", P0 + k, P0 + k, "quad_perm:[1,0,3,2]")
            A(f"v_cndmask_b32 v{S0+a}, v{P0}, v{P0+1}, s[54:55]")
            rbf(S0 + a)
            A(f"v_mul_f32 v{S0+a}, {SCALE}, v{S0+a}")
            rbf(S0 + a)
    stamp("kdone")
    A(f"v_max3_f32 v{T0}, v{S0}, v{S0+1}, v{S0+2}")
    A(f"v_max_f32 v{T0}, v{T0}, v{S0+3}")
    wave_red("v_max_f32", T0)
    if gap: issue()
    A(f"v_readlane_b32 s51, v{T0}, 63")
    for a in range(4): A(f"v_subrev_f32 v{S0+a}, s51, v{S0+a}")
    for a in range(4): A(f"v_mul_f32 v{S0+a}, {LOG2E}, v{S0+a}")
    for a in range(4): A(f"v_exp_f32 v{S0+a}, v{S0+a}")
    A(f"v_add_f32 v{T0+1}, v{S0}, v{S0+1}")
    A(f"v_add_f32 v{T0+3}, v{S0+2}, v{S0+3}")
    A(f"v_add_f32 v{T0+1}, v{T0+1}, v{T0+3}")
    if steal:
        A(f"v_bfe_u32 v{P0}, v0, 2, 2"); A(f"v_and_b32 v{P0+1}, 3, v0"); A(f"v_lshrrev_b32 v{P0+2}, 4, v0")
        A(f"v_lshlrev_b32 v{P0}, 8, v{P0}"); A(f"v_lshl_add_u32 v{P0}, v{P0+1}, 4, v{P0}"); A(f"v_lshl_add_u32 v{P0}, v{P0+2}, 2, v{P0}")
        A(f"v_lshl_add_u32 v{P0}, v{T0+4}, 4, v{P0}")
        A(f"ds_write_b32 v{P0}, v{S0+3} offset:{LP}")
    for a in range(4): A(f"v_cvt_pk_bf16_f32 v{S0+a}, v{S0+a}, v{S0+a}")
    abuild(AB, S0, M0, 0)
    if gap: issue()
    wave_red("v_add_f32", T0 + 1)
    A(f"v_lshlrev_b32 v{T0+3}, 1, v{T0+4}")
    A("s_mov_b32 exec_lo, 0"); A("s_mov_b32 exec_hi, 0x80000000")
    A(f"ds_write_b64 v{T0+3}, v[{T0}:{T0+1}] offset:{LML}")
    A("s_mov_b64 exec, -1")
    A(f"v_and_b32 v{T0}, 15, v0"); A(f"v_lshlrev_b32 v{T0}, 5, v{T0}")
    A(f"v_and_b32 v{T0+2}, 16, v0"); A(f"v_add_u32 v{T0}, v{T0}, v{T0+2}")
    A(f"v_lshl_add_u32 v{T0}, v{T0+4}, 7, v{T0}")
    if mlat: A(f"v_mov_b32 v{T0+1}, 0")
    def procv(i):
        wait_for(i); early_issue(i)
        mfma(D0, AB + 4 * (i & 1), slot(i), i == 64)
        if i < nst - 1: abuild(AB + 4 * ((i + 1) & 1), S0 + (i + 1 - 64) // 16, M0, (i + 1) % 16)
    if not steal:
        for i in range(64, 128):
            procv(i); maybe_issue(i)
            if i == mlat: A(f"ds_write_b32 v{T0+4}, v{T0+5} offset:{LPROG}")
            if i == 127 - plate:
                if mlat: A(f"ds_write_b32 v{T0+1}, v{T0+5} offset:{LGO}")
                elif bal: A(f"ds_write_b32 v{LVA}, v{T0+5} offset:{LGO}")
                else: A(f"ds_write_b32 v{T0+4}, v{T0+5} offset:{LPROG}")
    else:
        assert dist == 6 and cap == 6
        PR, RECA, PTA = P0, P0 + 4, P0 + 5
        UB = [slot(nst + 2 * k) for k in range(4)]
        assert UB[3] + 8 <= RING + 4 * nslot and UB == [UB[0] + 8 * k for k in range(4)]
        A(f"v_mov_b32 v{RECA}, {LREC}")
        A(f"v_and_b32 v{PTA}, 1, v0"); A(f"v_lshrrev_b32 v{P0+6}, 4, v0"); A(f"v_lshl_add_u32 v{PTA}, v{PTA}, 2, v{P0+6}")
        A(f"v_lshlrev_b32 v{PTA}, 2, v{PTA}"); A(f"v_lshl_add_u32 v{PTA}, v{T0+4}, 3, v{PTA}")
        A("s_lshl_b32 s58, s4, 21"); A("s_lshl_b32 s59, s3, 11"); A("s_add_u32 s58, s58, s59"); A(f"s_add_u32 s58, s58, {(1024 - 32 * np_) * 256}")
        A("s_mov_b32 s59, 0x10000")
        A("s_mov_b32 s68, 0x7fff0000")
        for i in range(64, nst - 6):
            procv(i); maybe_issue(i)
        assert issued[0] == nst
        lab = [0]
        def fetch(k):
            n = lab[0]; lab[0] += 1
            tick()
            A("s_mov_b32 s64, s68")
            A("s_cmp_lt_u32 s59, 4"); A(f"s_cbranch_scc1 L_go{n}")
            A(f"s_mov_b32 s57, {SPIN * 8}")
            A(f"L_rec{n}:")
            A(f"ds_read_b32 v{P0+6}, v{RECA}")
            A("s_sub_u32 s57, s57, 1"); A(f"s_cbranch_scc1 L_stop{n}")
            A("s_waitcnt lgkmcnt(0)")
            A(f"v_readfirstlane_b32 s65, v{P0+6}")
            A("s_cmp_eq_u32 s65, -1"); A(f"s_cbranch_scc1 L_rec{n}")
            A(f"s_cmp_lt_u32 s65, {8 * np_}"); A(f"s_cbranch_scc1 L_unit{n}")
            A(f"L_stop{n}:")
            A("s_mov_b32 s59, 3")
            A(f"s_branch L_go{n}")
            A(f"L_unit{n}:")
            A("s_and_b32 s66, s65, 7"); A("s_lshl_b32 s66, s66, 18"); A("s_lshr_b32 s67, s65, 3"); A("s_lshl_b32 s67, s67, 13")
            A("s_add_u32 s64, s58, s66"); A("s_add_u32 s64, s64, s67")
            A(f"s_lshl_b32 s{60+k}, s65, 7")
            A(f"v_add_u32 v{RECA}, 4, v{RECA}")
            A(f"L_go{n}:")
            if n < 3: stamp(f"rec{n}")
            for b in range(2): A(f"buffer_load_dwordx4 v[{UB[k]+4*b}:{UB[k]+4*b+3}], v{VL16}, s[12:15], s64 offen{off(1024*b)} {kvflags}")
        def pread(k):
            A(f"v_add_u32 v{P0+7}, s{60+k}, v{PTA}")
            A(f"ds_read_b32 v{PR+k}, v{P0+7} offset:{LPT}")
        for k in range(4): A(f"s_mov_b32 s{60+k}, 0")
        for k in range(3):
            fetch(k)
            for i in (nst - 6 + 2 * k, nst - 5 + 2 * k):
                A(f"s_waitcnt vmcnt({nst - 1 - i + 2 * (k + 1)})"); waited[0] = i
                procv(i)
            A("s_sub_u32 s59, s59, 1")
        stamp("static")
        A(f"v_mov_b32 v{P0+6}, 0")
        A(f"s_mov_b32 s57, {SPIN * 8}")
        A("L_pollT:")
        A(f"ds_read_b32 v{P0+7}, v{P0+6} offset:{LPF}")
        A(f"ds_read_b32 v{P0+8}, v{T0+4} offset:{LF}")
        A("s_sub_u32 s57, s57, 1"); A("s_cbranch_scc1 L_pollT_done")
        A("s_waitcnt lgkmcnt(0)")
        A(f"v_cmp_eq_u32 vcc, 0, v{P0+7}")
        A("s_nop 1")
        A("s_cbranch_vccnz L_pollT")
        A("L_pollT_done:")
        stamp("tready")
        pread(0)
        A("s_nop 7")
        for k in range(4): A(f"v_mul_f32 v{D0+k}, v{D0+k}, v{P0+8}")
        A("s_cmp_eq_u32 s59, 0"); A("s_cbranch_scc1 L_pool_done")
        A("L_pool:")
        for k in range(4):
            fetch((k + 3) % 4)
            A("s_waitcnt lgkmcnt(0)")
            abuild(AB, PR + k, M0, 0); abuild(AB + 4, PR + k, M0, 1)
            pread((k + 1) % 4)
            A("s_waitcnt vmcnt(7)")
            mfma(D0, AB, UB[k], False)
            A("s_waitcnt vmcnt(6)")
            mfma(D0, AB + 4, UB[k] + 4, False)
            A("s_sub_u32 s59, s59, 1"); A("s_cmp_eq_u32 s59, 0")
            A("s_cbranch_scc1 L_pool_done" if k < 3 else "s_cbranch_scc0 L_pool")
        A("L_pool_done:")
        A("s_nop 5")
    stamp("vdone"); stamp("clk2")
    A("s_mov_b32 exec_hi, 0")
    A(f"ds_write_b128 v{T0}, v[{D0}:{D0+3}] offset:{LO}")
    A("s_waitcnt lgkmcnt(0)")
    A("s_barrier")
    dump_stamps()
    A("s_endpgm")
    if steal:
        A("L_claim:")
        srd(40, 88, WS_BYTES)
        A("s_lshl_b32 s48, s4, 7"); A(f"s_add_u32 s48, s48, {WS_C}")
        A("v_mov_b32 v1, 0"); A(f"v_mov_b32 v3, {LREC}"); A(f"v_mov_b32 v12, {END}")
        A("s_mov_b32 s49, 0")
        A("s_barrier")
        A("s_waitcnt lgkmcnt(0)")
        A("s_mov_b64 exec, 1")
        cl = [0]
        def wait_prog(lim):
            n = cl[0]; cl[0] += 1
            A(f"s_mov_b32 s57, {SPIN * 8}")
            A(f"L_cw{n}:")
            A(f"s_sleep {lsleep}")
            A(f"ds_read_b128 v[4:7], v1 offset:{LPROG}")
            A("s_sub_u32 s57, s57, 1"); A("s_cbranch_scc1 L_claim_end")
            A("s_waitcnt lgkmcnt(0)")
            A("v_max3_u32 v4, v4, v5, v6"); A("v_max_u32 v4, v4, v7")
            A(f"v_cmp_ge_u32 vcc, s{lim}, v4")
            A("s_nop 1")
            A(f"s_cbranch_vccnz L_cw{n}")
        def claim(k):
            wait_prog(49)
            if noatom:
                A("s_lshl_b32 s51, s49, 3"); A("s_add_u32 s51, s51, s5"); A(f"v_mov_b32 v{8+k}, s51")
            else:
                A(f"v_mov_b32 v{8+k}, 1")
                A(f"buffer_atomic_add v{8+k}, v1, s[40:43], s48 offen {aflags}")
            A("s_add_u32 s49, s49, 1")
        for k in range(3): claim(k)
        A("L_claim_loop:")
        for k in range(4):
            claim((k + 3) % 4)
            A("s_waitcnt vmcnt(3)")
            A(f"ds_write_b32 v3, v{8+k}")
            A(f"v_cmp_le_u32 vcc, {8 * np_}, v{8+k}")
            A("v_add_u32 v3, 4, v3")
            A("s_nop 0")
            A("s_cbranch_vccnz L_claim_done" if k < 3 else "s_cbranch_vccz L_claim_loop")
        A("L_claim_done:")
        A(f"s_add_u32 s49, s49, {ah - 4 + golate}")
        wait_prog(49)
        A("L_claim_end:")
        A("ds_write_b32 v3, v12")
        A("v_mov_b32 v2, 1")
        A(f"ds_write_b32 v1, v2 offset:{LGO}")
        A("s_waitcnt lgkmcnt(0)")
        A("s_endpgm")
    if bal:
        nt = (bto - bfrom) // tk + 1
        A("L_claim:")
        srd(40, 88, WS_BYTES)
        A(f"s_lshr_b32 s48, s2, {bgrp}"); A(f"s_lshl_b32 s48, s48, {max(7, bgrp + bstr)}"); A(f"s_add_u32 s48, s48, {WS_B}")
        A(f"s_and_b32 s51, s2, {(1 << bgrp) - 1}")
        A("v_mov_b32 v1, 0"); A(f"v_and_b32 v2, {(1 << bgrp) - 1}, v0"); A(f"v_lshlrev_b32 v2, {bstr}, v2")
        A(f"s_lshl_b32 s52, s51, {bstr}"); A("v_mov_b32 v3, s52")
        A(f"s_mov_b32 s79, {WS_E}")
        A("s_mov_b32 s49, 0")
        A("s_barrier")
        A("s_waitcnt lgkmcnt(0)")
        A("buffer_load_dword v8, v1, s[40:43], s79 offen sc1")
        A("s_waitcnt vmcnt(0)")
        A("v_add_u32 v8, 1, v8"); A("v_and_b32 v8, 0x3ff, v8")
        A("L_bal:")
        A(f"s_mov_b32 s57, {SPIN * 8}")
        A("L_balw:")
        A(f"s_sleep {lsleep}")
        A(f"ds_read_b128 v[4:7], v1 offset:{LPROG}")
        A("s_sub_u32 s57, s57, 1"); A("s_cbranch_scc1 L_bal_end")
        A("s_waitcnt lgkmcnt(0)")
        A("v_min3_u32 v4, v4, v5, v6"); A("v_min_u32 v4, v4, v7")
        A("v_readfirstlane_b32 s53, v4")
        A("s_cmp_le_u32 s53, s49"); A("s_cbranch_scc1 L_balw")
        A("s_mov_b32 s49, s53")
        A("v_lshl_or_b32 v4, v4, 10, v8")
        A("s_mov_b64 exec, 1")
        A("buffer_store_dword v4, v3, s[40:43], s48 offen sc1")
        A("s_mov_b64 exec, -1")
        A("buffer_load_dword v5, v2, s[40:43], s48 offen sc1")
        A("s_waitcnt vmcnt(0)")
        A("v_and_b32 v6, 0x3ff, v5"); A("v_cmp_eq_u32 vcc, v6, v8"); A("v_lshrrev_b32 v5, 10, v5")
        A("v_cndmask_b32 v5, 0, v5, vcc")
        A("v_readlane_b32 s54, v5, s51")
        for c in ("quad_perm:[1,0,3,2]", "quad_perm:[2,3,0,1]", "row_half_mirror") + (("row_mirror",) if bgrp > 3 else ()):
            A(f"v_add_u32_dpp v5, v5, v5 {c} row_mask:0xf bank_mask:0xf")
        A("v_readfirstlane_b32 s55, v5")
        A(f"s_lshl_b32 s54, s54, {bgrp}"); A("s_sub_i32 s55, s55, s54")
        A("s_mov_b32 s56, 0")
        A(f"s_cmp_gt_i32 s55, {th}"); A("s_cselect_b32 s56, 2, s56")
        A(f"s_cmp_lt_i32 s55, {-th}"); A("s_cselect_b32 s56, 1, s56")
        A("v_mov_b32 v6, s56")
        A(f"ds_write_b32 v1, v6 offset:{LLV}")
        A(f"s_cmp_lt_u32 s49, {nt}"); A("s_cbranch_scc1 L_bal")
        A("L_bal_end:")
        A("s_waitcnt lgkmcnt(0)")
        A("s_endpgm")
    stream_body = A.L[stream_at:]; del A.L[stream_at:]

    role[0] = "S"; stamp_list.append(("S", "start"))
    G, J, PD, M0, AB, DQ, DG, T0 = 1, 2, 3, 4, 8, 16, 20, 24
    XA, XR, EP, GA, OUTA, XF, PH, XV, WDA, WOA, RA, OGA, TAG, GV, L16 = 40, 44, 45, 46, 48, 49, 50, 51, 52, 58, 59, 60, 61, 62, 63
    WQ, GU = 64, 128
    WO, WD, PS = 64, 128, 160
    def tag(regs, kind=""):
        if kind and kind in rnd:
            for r in regs: A(f"v_add_u32 v{r}, 0x200, v{r}")
        for r in regs: A(f"v_and_or_b32 v{r}, v{r}, s7, v{TAG}")
    def untag(regs):
        for r in regs: A(f"v_and_b32 v{r}, s7, v{r}")
    def check(regs, t):
        regs = list(regs)
        pairs = [regs[k:k+2] for k in range(0, len(regs), 2)]
        A(f"v_bitop3_b32 v{t}, v{pairs[0][0]}, v{pairs[0][1]}, v{TAG} bitop3:0x7e")
        rest = pairs[1:]
        while rest:
            take = rest[:2]; rest = rest[2:]
            for k, p in enumerate(take): A(f"v_bitop3_b32 v{t+1+k}, v{p[0]}, v{p[1]}, v{TAG} bitop3:0x7e")
            if len(take) == 2: A(f"v_or3_b32 v{t}, v{t}, v{t+1}, v{t+2}")
            else: A(f"v_or_b32 v{t}, v{t}, v{t+1}")
        A(f"v_and_b32 v{t}, 0x3ff, v{t}")
        A(f"v_cmp_ne_u32 vcc, 0, v{t}")
    def strip(regs, t):
        regs = list(regs)
        for r in regs[::2]: A(f"v_lshl_add_u64 v[{r}:{r+1}], v[{r}:{r+1}], 0, s[14:15]")
        acc = [t, t + 1]; rest = regs[:]
        for a in acc: A(f"v_or3_b32 v{a}, v{rest[0]}, v{rest[1]}, v{rest[2]}"); rest = rest[3:]
        k = 0
        while len(rest) > 2 or (len(rest) == 2 and k & 1):
            A(f"v_or3_b32 v{acc[k&1]}, v{acc[k&1]}, v{rest[0]}, v{rest[1]}"); rest = rest[2:]; k += 1
        if len(rest) == 2:
            A(f"v_or3_b32 v{t}, v{t}, v{rest[0]}, v{rest[1]}"); rest = []
        assert not rest
        A(f"v_bitop3_b32 v{t}, v{t}, v{t+1}, s7 bitop3:0x54")
        A(f"v_cmp_ne_u32 vcc, 0, v{t}")
    def pub4(kind, r, va, sreg, flags="sc1"):
        if kind in atom:
            for k in (0, 2): A(f"buffer_atomic_swap_x2 v[{r+k}:{r+k+1}], v{va}, s[40:43], s{sreg} offen{off(4*k)} sc1")
        else: A(f"buffer_store_dwordx4 v[{r}:{r+3}], v{va}, s[40:43], s{sreg} offen {flags}")
    def pkadd(d, a, b): A(f"v_pk_add_f32 v[{d}:{d+1}], v[{a}:{a+1}], v[{b}:{b+1}]")
    def poll(name, loads, regs, t, sleep):
        A(f"s_mov_b32 s70, {SPIN}")
        A(f"L_{name}:")
        if sleep: A(f"s_sleep {sleep}")
        loads()
        A("s_sub_u32 s70, s70, 1"); A(f"s_cbranch_scc1 L_{name}_done")
        A("s_waitcnt vmcnt(0)")
        if callable(regs): regs()
        else: check(regs, t)
        A("s_nop 1")
        if name not in skip.split(): A(f"s_cbranch_vccnz L_{name}")
        A(f"L_{name}_done:")
    def poll_pipe(name, R, delay, nreg, nld, loads, finish):
        A(f"s_mov_b32 s70, {SPIN}")
        for k in range(R - 1):
            loads(PS + nreg * k)
            if delay: A(f"s_sleep {delay}")
        A(f"L_{name}:")
        for k in range(R):
            if name == "pollO" and osleep: A(f"s_sleep {osleep}")
            loads(PS + nreg * ((k + R - 1) % R))
            if k == 0:
                A("s_sub_u32 s70, s70, 1"); A(f"s_cbranch_scc1 L_{name}_ok0")
            A(f"s_waitcnt vmcnt({nld * (R - 1)})")
            b = PS + nreg * k
            (strip if fast else check)(range(b, b + nreg), T0)
            A("s_nop 1")
            if name in skip.split(): A(f"s_branch L_{name}_ok{k}")
            A(f"s_cbranch_vccz L_{name}_ok{k}" if k < R - 1 else f"s_cbranch_vccnz L_{name}")
        for k in reversed(range(R)):
            A(f"L_{name}_ok{k}:")
            finish(PS + nreg * k)
            if k: A(f"s_branch L_{name}_done")
        A(f"L_{name}_done:")

    A("L_service:")
    (any(prio) and A(f"s_setprio {prio[0]}"))
    srd(16, 0, 1024); srd(20, 24, 4 << 20); srd(40, 88, WS_BYTES)
    A("s_load_dwordx4 s[44:47], s[0:1], 48")
    srd(24, 32, 4 << 20); srd(28, 64, 1376 * 1024); srd(32, 72, 1024)
    A(f"v_lshrrev_b32 v{G}, 4, v0"); A(f"v_and_b32 v{J}, 15, v0")
    if amap:
        HP, SP = 38, 39
        A("s_lshr_b32 s38, s2, 3"); A("s_and_b32 s39, s2, 7")
    else: HP, SP = 4, 5
    def chunks(hreg):
        if numa:
            A(f"s_and_b32 s7, s{hreg}, 3"); A("s_lshl_b32 s7, s7, 3"); A(f"s_lshr_b32 s48, s{hreg}, 2"); A("s_add_u32 s7, s7, s48")
            A("s_mul_i32 s56, s7, 43")
        elif mapx or amap: A(f"s_mul_i32 s56, s{hreg}, 43")
        else:
            A(f"s_and_b32 s7, s{hreg}, 7"); A("s_lshl_b32 s7, s7, 2"); A(f"s_lshr_b32 s48, s{hreg}, 3"); A("s_add_u32 s7, s7, s48")
            A("s_mul_i32 s56, s7, 43")
        A("s_add_u32 s57, s56, 43"); A("s_lshr_b32 s56, s56, 3"); A("s_lshr_b32 s57, s57, 3")
        A("s_sub_u32 s57, s57, s56")
    chunks(HP)
    A(f"v_lshlrev_b32 v{L16}, 4, v0")
    A(f"s_lshl_b32 s48, s{SP}, 7")
    A(f"v_lshlrev_b32 v{T0+1}, 1, v0")
    A(f"v_lshlrev_b32 v{T0+3}, 4, v{J}")
    A(f"v_lshl_add_u32 v{T0+2}, v{G}, 17, v{T0+3}")
    A(f"s_lshl_b32 s49, s{SP}, 19"); A(f"s_lshl_b32 s51, s{HP}, 8"); A("s_add_u32 s49, s49, s51")
    A(f"v_and_b32 v{T0+4}, 7, v0")
    A(f"v_cmp_gt_u32 vcc, s57, v{T0+4}")
    A("s_mov_b32 s51, 44032"); A(f"s_mul_i32 s58, s{SP}, 176128")
    A(f"v_cndmask_b32 v{T0+4}, 0, v{T0+4}, vcc")
    A(f"v_add_lshl_u32 v{T0+4}, v{T0+4}, s56, 4")
    A(f"v_mad_u32_u24 v{T0+4}, v{G}, s51, v{T0+4}")
    A(f"v_add_u32 v{T0+4}, s58, v{T0+4}")
    A(f"v_mov_b32 v{T0+5}, 0")
    A(f"v_cmp_lt_u32 vcc, 7, v{J}")
    A(f"s_mov_b32 s79, {WS_E}")
    A("s_mov_b32 s60, 5504"); A("s_mov_b32 s61, 0")
    A("s_waitcnt lgkmcnt(0)")
    stamp("skarg")
    if steal:
        A(f"s_cmp_lg_u32 s{SP}, 0"); A("s_cbranch_scc1 L_noreset")
        A(f"s_lshl_b32 s51, s{HP}, 7"); A(f"s_add_u32 s51, s51, {WS_C}")
        A("s_mov_b64 exec, 1")
        A(f"buffer_store_dword v{T0+5}, v{T0+5}, s[40:43], s51 offen sc1")
        A("s_mov_b64 exec, -1")
        A("L_noreset:")
    if pre:
        A("s_lshl_b32 s6, s4, 3"); A("s_add_u32 s6, s6, s5")
        if "A" in pre:
            A(f"s_lshl_b32 s51, s{2 if amap else 6}, 10")
            A(f"buffer_load_dword v{T0+10}, v{L16}, s[40:43], s51 offen {preflags}")
        if "Y" in pre:
            A("s_lshl_b32 s51, s2, 9"); A(f"s_add_u32 s51, s51, {WS_Y}"); A(f"v_lshrrev_b32 v{T0+11}, 1, v{L16}")
            A(f"buffer_load_dword v{T0+10}, v{T0+11}, s[40:43], s51 offen {preflags}")
        if "S" in pre:
            A("s_lshl_b32 s51, s2, 9"); A(f"s_add_u32 s51, s51, {WS_S}"); A(f"v_lshrrev_b32 v{T0+11}, 1, v{L16}")
            A(f"buffer_load_dword v{T0+10}, v{T0+11}, s[40:43], s51 offen {preflags}")
    A(f"buffer_load_dwordx4 v[{XA}:{XA+3}], v{L16}, s[16:19], 0 offen")
    A(f"buffer_load_ushort v{XR}, v{T0+1}, s[16:19], s48 offen")
    A(f"buffer_load_dword v{EP}, v{T0+5}, s[40:43], s79 offen sc1")
    stamp("sx")
    A(f"v_mov_b32 v{T0+6}, s44"); A(f"v_mov_b32 v{T0+7}, s45"); A(f"v_mov_b32 v{T0+8}, s46"); A(f"v_mov_b32 v{T0+9}, s47")
    A(f"v_cndmask_b32 v{GA}, v{T0+6}, v{T0+8}, vcc"); A(f"v_cndmask_b32 v{GA+1}, v{T0+7}, v{T0+9}, vcc")
    A(f"v_lshl_add_u64 v[{GA}:{GA+1}], v[{T0+4}:{T0+5}], 0, v[{GA}:{GA+1}]")
    def lds_init():
        A(f"v_cmp_gt_u32 vcc, 8, v0"); A(f"v_lshlrev_b32 v{T0+7}, 2, v0"); A("s_mov_b32 s7, 0xfffffc00")
        A(f"v_cndmask_b32 v{T0+6}, 0, -1, vcc")
        A("s_mov_b64 exec, 0xffff")
        A(f"ds_write_b32 v{T0+7}, v{T0+6} offset:{LML}")
        A("s_mov_b64 exec, -1")
        if steal:
            A(f"v_mov_b32 v{T0+6}, -1")
            A(f"ds_write_b32 v{T0+7}, v{T0+6} offset:{LREC}"); A(f"ds_write_b32 v{T0+7}, v{T0+6} offset:{LREC+64}")
        A("s_waitcnt lgkmcnt(0)")
        A("s_barrier")
    for n in range(16):
        if n in (4, 8): stamp(f"s{2*n}")
        if n == bar0: lds_init()
        if scap and 2 * n + 3 >= scap: A(f"s_waitcnt vmcnt({scap - 2})")
        if "W" in skip.split(): A(f"buffer_load_dword v{WQ+4*n}, v{T0+5}, s[16:19], 0 offen")
        else: A(f"buffer_load_dwordx4 v[{WQ+4*n}:{WQ+4*n+3}], v{T0+2}, s[20:23], s49 offen {wflags}")
        if "G" in skip.split(): A(f"buffer_load_dword v{GU+4*n}, v{T0+5}, s[16:19], 0 offen")
        else: A(f"global_load_dwordx4 v[{GU+4*n}:{GU+4*n+3}], v[{GA}:{GA+1}], off{off(2752 * (n & 1))} {gflags}")
        if n < 15: A("s_addk_i32 s49, 0x2000")
        if n & 1 and n < 15: A(f"v_lshl_add_u64 v[{GA}:{GA+1}], v[{GA}:{GA+1}], 0, s[60:61]")
    if bar0 == 16: lds_init()
    stamp("issued")
    masks(M0, T0 + 6, T0 + 7)
    A("s_and_b32 s58, s5, 3"); A("s_lshr_b32 s59, s5, 2")
    A("s_lshl_b32 s6, s4, 3"); A("s_add_u32 s6, s6, s5")
    A(f"v_lshlrev_b32 v{OUTA}, 5, v{J}"); A(f"v_and_b32 v{T0}, 16, v0"); A(f"v_add_u32 v{OUTA}, v{OUTA}, v{T0}")
    A("s_lshl_b32 s63, s6, 9"); A(f"s_add_u32 s63, s63, {WS_O}")
    if t64:
        assert fast and not (lin or steal or mapx)
        A("s_lshl_b32 s64, s5, 5"); A("s_add_u32 s64, s64, s4"); A(f"s_lshl_b32 s64, s64, {9 if ys else 8}")
    else:
        A("s_lshl_b32 s64, s58, 6"); A("s_lshl_b32 s48, s4, 1"); A("s_add_u32 s64, s64, s48"); A("s_add_u32 s64, s64, s59")
        A("s_lshl_b32 s64, s64, 9")
    SBASE = WS_Y + 64 if ys else (sofs or WS_S)
    A(f"s_add_u32 s65, s64, {WS_Y}")
    if wpar is not None:
        assert t64 and not ys
        SBASE = WS_S + (wpar << 13) - 0
        A("s_lshl_b32 s48, s5, 13"); A("s_add_u32 s64, s64, s48")
    A(f"s_add_u32 s64, s64, {SBASE}")
    A(f"s_lshl_b32 s66, s6, {mlstr}"); A(f"s_add_u32 s66, s66, {WS_ML}")
    A(f"s_lshl_b32 s67, s{2 if amap else 6}, 10")
    if amap: chunks(4)
    A("s_mov_b32 s68, 0"); A("s_mov_b32 s69, -1")
    A("s_waitcnt vmcnt(32)")
    stamp("x")
    for k in range(4):
        A(f"v_lshlrev_b32 v{T0+2*k}, 16, v{XA+k}"); A(f"v_and_b32 v{T0+2*k+1}, 0xffff0000, v{XA+k}")
    A(f"v_add_f32 v{T0+8}, v{T0}, v{T0+1}"); A(f"v_add_f32 v{T0+9}, v{T0+2}, v{T0+3}")
    A(f"v_add_f32 v{T0+10}, v{T0+4}, v{T0+5}"); A(f"v_add_f32 v{T0+11}, v{T0+6}, v{T0+7}")
    A(f"v_add_f32 v{T0+8}, v{T0+8}, v{T0+9}"); A(f"v_add_f32 v{T0+10}, v{T0+10}, v{T0+11}")
    A(f"v_add_f32 v{T0+8}, v{T0+8}, v{T0+10}")
    A(f"v_add_u32 v{EP}, 1, v{EP}"); A(f"v_and_b32 v{TAG}, 0x3ff, v{EP}")
    if fast:
        A(f"v_readfirstlane_b32 s13, v{TAG}"); A("s_sub_u32 s14, 0, s13"); A("s_subb_u32 s15, 0, s13")
    wave_red("v_add_f32", T0 + 8)
    A(f"v_mul_f32 v{T0+8}, 0x3b000000, v{T0+8}")
    A(f"v_readlane_b32 s51, v{T0+8}, 63")
    for k in range(8): A(f"v_subrev_f32 v{T0+k}, s51, v{T0+k}")
    A(f"v_mul_f32 v{T0+9}, v{T0}, v{T0}"); A(f"v_mul_f32 v{T0+10}, v{T0+1}, v{T0+1}")
    for k in range(2, 8, 2):
        A(f"v_fmac_f32 v{T0+9}, v{T0+k}, v{T0+k}"); A(f"v_fmac_f32 v{T0+10}, v{T0+k+1}, v{T0+k+1}")
    A(f"v_add_f32 v{T0+9}, v{T0+9}, v{T0+10}")
    rbf(T0 + 8)
    wave_red("v_add_f32", T0 + 9)
    A(f"v_mul_f32 v{T0+9}, 0x3b000000, v{T0+9}")
    rbf(T0 + 9)
    A(f"v_add_f32 v{T0+9}, 0x3727c5ac, v{T0+9}")
    rbf(T0 + 9)
    A(f"v_sqrt_f32 v{T0+9}, v{T0+9}")
    A(f"v_readlane_b32 s51, v{T0+8}, 63")
    rbf(T0 + 9)
    A(f"v_lshlrev_b32 v{XR}, 16, v{XR}")
    A(f"v_readlane_b32 s62, v{T0+9}, 63")
    A(f"v_subrev_f32 v{XR}, s51, v{XR}")
    rbf(XR)
    A(f"v_rcp_f32 v{T0+10}, s62")
    A(f"v_mul_f32 v{T0+11}, v{XR}, v{T0+10}")
    A(f"v_fma_f32 v{T0+12}, -v{T0+11}, s62, v{XR}")
    A(f"v_fmac_f32 v{T0+11}, v{T0+12}, v{T0+10}")
    A(f"v_cvt_pk_bf16_f32 v{PD}, v{T0+11}, v{T0+11}")
    stamp("ln")
    abuild(AB, PD, M0, 0)
    for n in range(16):
        ab = AB + 4 * (n & 1)
        if n < 15: abuild(AB + 4 * ((n + 1) & 1), PD, M0, n + 1)
        A(f"s_waitcnt vmcnt({30-2*n})")
        mfma(DQ, ab, WQ + 4 * n, n == 0); mfma(DG, ab, GU + 4 * n, n == 0)
    A("s_lshl_b32 s48, s4, 13"); A("s_add_u32 s49, s48, 0x1000")
    A(f"v_lshrrev_b32 v{T0+3}, 1, v{OUTA}")
    for k in range(4): A(f"v_cndmask_b32 v{DQ+k}, v{DQ+k}, v{DG+k}, s[68:69]")
    tag(range(DQ, DQ + 4), "A")
    if "Ast" not in skip.split(): pub4("A", DQ, L16, 67, '' if 'Aplain' in skip.split() else 'sc1')
    stamp("apub")
    def a_loads():
        for k in range(8):
            if "Ald" not in skip.split(): A(f"buffer_load_dwordx4 v[{WQ+4*k}:{WQ+4*k+3}], v{L16}, s[40:43], s{48 + k // 4} offen{off((k&3)*1024)} sc1")
    poll("pollA", a_loads, range(WQ, WQ + 32), T0, asleep)
    stamp("aseen")
    untag(range(WQ, WQ + 32))
    for k in range(4):
        A(f"v_add_f32 v{WQ+k}, v{WQ+k}, v{WQ+4+k}"); A(f"v_add_f32 v{WQ+8+k}, v{WQ+8+k}, v{WQ+12+k}")
        A(f"v_add_f32 v{WQ+16+k}, v{WQ+16+k}, v{WQ+20+k}"); A(f"v_add_f32 v{WQ+24+k}, v{WQ+24+k}, v{WQ+28+k}")
    for k in range(4):
        A(f"v_add_f32 v{WQ+k}, v{WQ+k}, v{WQ+8+k}"); A(f"v_add_f32 v{WQ+16+k}, v{WQ+16+k}, v{WQ+24+k}")
    for k in range(4): A(f"v_add_f32 v{WQ+k}, v{WQ+k}, v{WQ+16+k}")
    A(f"v_cvt_pk_bf16_f32 v{T0+4}, v{WQ}, v{WQ+1}"); A(f"v_cvt_pk_bf16_f32 v{T0+5}, v{WQ+2}, v{WQ+3}")
    A(f"v_mov_b32 v{T0+6}, 0"); A(f"v_mov_b32 v{T0+7}, 1")
    A("s_mov_b32 exec_hi, 0")
    A(f"ds_write_b64 v{T0+3}, v[{T0+4}:{T0+5}] offset:{LQ}")
    A(f"ds_write_b32 v{T0+6}, v{T0+7} offset:{LQF}")
    A("s_mov_b64 exec, -1")
    stamp("qdone")
    (any(prio) and A(f"s_setprio {prio[1]}"))
    MH, PD1 = 53, 54
    def tbuild(a0, src, qs=range(4)):
        for q in qs:
            p, n = src(q)
            A(f"v_and_b32_dpp v{a0+q}, v{p}, v{MH} row_newbcast:{n} row_mask:0xf bank_mask:0xf")
    def tgemv(base, nrho, src, wait):
        tbuild(AB, lambda q: src(0, q))
        for rho in range(nrho):
            a = AB + 4 * (rho & 1); nxt = AB + 4 * ((rho + 1) & 1)
            if rho + 1 < nrho: tbuild(nxt, lambda q: src(rho + 1, q), (0, 1))
            if wait: wait(rho)
            mfma(DQ, a, base + 8 * rho, rho == 0)
            if rho + 1 < nrho: tbuild(nxt, lambda q: src(rho + 1, q), (2, 3))
            mfma(DG, a, base + 8 * rho + 4, rho == 0)
    MH1, YSA = 55, 56
    def xgemv(base, npair, src, wait):
        def build(a0, k):
            for r in range(4):
                p, n = src(2 * k + (r >> 1))
                A(f"v_and_b32_dpp v{a0+r}, v{p}, v{(MH, MH1)[r & 1]} row_newbcast:{n} row_mask:0xf bank_mask:0xf")
        build(AB, 0)
        for k in range(npair):
            if k + 1 < npair: build(AB + 4 * ((k + 1) & 1), k + 1)
            if wait: wait(k)
            mfma(DQ, AB + 4 * (k & 1), base + 4 * k, k == 0)
    def tpublish(kind, sreg, flags):
        A("s_mov_b64 exec, 0xffff")
        src = [DQ, DQ + 1, DQ + 2, DQ + 3] if x2 else [DQ, DQ + 1, DG, DG + 1]
        if kind in rnd:
            for r in src: A(f"v_add_u32 v{r}, 0x200, v{r}")
        for k, r in enumerate(src): A(f"v_and_or_b32 v{T0+8+k}, v{r}, s7, v{TAG}")
        pub4(kind, T0 + 8, YSA if ys else L16, sreg, flags)
        A("s_mov_b64 exec, -1")
    if t64:
        if x2:
            A(f"v_or_b32 v{MH}, v{M0}, v{M0+2}"); A(f"v_or_b32 v{MH1}, v{M0+1}, v{M0+3}")
        else:
            A(f"v_or3_b32 v{MH}, v{M0}, v{M0+1}, v{M0+2}"); A(f"v_or_b32 v{MH}, v{MH}, v{M0+3}")
        if ys:
            A(f"v_lshrrev_b32 v{YSA}, 2, v0"); A(f"v_and_b32 v{T0}, 3, v0"); A(f"v_lshlrev_b32 v{YSA}, 7, v{YSA}"); A(f"v_lshl_add_u32 v{YSA}, v{T0}, 4, v{YSA}")
        A(f"v_mul_u32_u24 v{T0}, 12, v{G}")
        A("s_lshl_b32 s48, s57, 3"); A("s_lshl_b32 s49, s56, 3"); A("s_lshl_b32 s72, s5, 7")
        A(f"v_lshlrev_b32 v{T0+2}, {3 if x2 else 2}, v{J}")
        A(f"v_add_u32 v{T0+3}, 4, v{T0}"); A(f"v_cmp_gt_u32 vcc, s48, v{T0+3}")
        A(f"v_add_u32 v{T0+3}, s49, v{T0}"); A(f"v_lshl_add_u32 v{T0+3}, v{T0+3}, 10, v{T0+2}")
        A(f"v_mov_b32 v{WDA}, 0x7ffffff0"); A(f"v_cndmask_b32 v{WDA}, v{WDA}, v{T0+3}, vcc")
        A("s_add_u32 s48, s72, 0x1000"); A("s_add_u32 s49, s72, 0x2000")
        for rho in range(3):
            for q in range(4):
                if x2:
                    A(f"buffer_load_dwordx2 v[{WD+8*rho+2*q}:{WD+8*rho+2*q+1}], v{WDA if rho else T0+3}, s[28:31], s{(72, 48, 49)[rho]} offen{off(1024*q)} {wflags}")
                    continue
                for t in range(2):
                    A(f"buffer_load_dword v{WD+8*rho+4*t+q}, v{WDA if rho else T0+3}, s[28:31], s{(72, 48, 49)[rho]} offen{off(1024*q + 64*t)} {woflags}")
    else:
        A("s_mul_i32 s48, s59, 24")
        A(f"v_mul_u32_u24 v{T0}, 6, v{G}"); A(f"v_add_u32 v{T0}, s48, v{T0}")
        A("s_lshl_b32 s48, s57, 3"); A("s_lshl_b32 s49, s56, 3"); A("s_lshl_b32 s72, s58, 8")
        A(f"v_lshlrev_b32 v{T0+2}, 4, v{J}")
        for n in range(6):
            A(f"v_add_u32 v{T0+3}, {n}, v{T0}")
            A(f"v_cmp_gt_u32 vcc, s48, v{T0+3}")
            A(f"v_add_u32 v{T0+3}, s49, v{T0+3}")
            A(f"v_lshl_add_u32 v{T0+3}, v{T0+3}, 10, v{T0+2}")
            A(f"v_mov_b32 v{WDA}, 0x7ffffff0")
            A(f"v_cndmask_b32 v{WDA}, v{WDA}, v{T0+3}, vcc")
            if "D" not in skip.split(): A(f"buffer_load_dwordx4 v[{WD+4*n}:{WD+4*n+3}], v{WDA}, s[28:31], s72 offen {wflags}")
    for k in range(4): rbf(WQ + k)
    for k in range(4): A(f"v_mov_b32_dpp v{T0+4+k}, v{WQ+k} row_ror:8 row_mask:0xf bank_mask:0xf")
    for k in range(4): A(f"v_mul_f32 v{WQ+k}, 0xbfb8aa3b, v{WQ+k}")
    for k in range(4): A(f"v_exp_f32 v{WQ+k}, v{WQ+k}")
    for k in range(4): A(f"v_add_f32 v{WQ+k}, 1.0, v{WQ+k}")
    for k in range(4): A(f"v_rcp_f32 v{WQ+k}, v{WQ+k}")
    for k in range(4): rbf(WQ + k)
    for k in range(4): A(f"v_mul_f32 v{WQ+k}, v{WQ+k}, v{T0+4+k}")
    A(f"v_cmp_gt_u32 vcc, s57, v{J}")
    for k in range(4): A(f"v_cvt_pk_bf16_f32 v{WQ+k}, v{WQ+k}, v{WQ+k}")
    for k in range(4): A(f"v_cndmask_b32 v{WQ+k}, 0, v{WQ+k}, vcc")
    A("s_mov_b32 exec_lo, 0"); A("s_mov_b32 exec_hi, 0x00ff00ff")
    A(f"ds_write_b128 v{OUTA}, v[{WQ}:{WQ+3}] offset:{LH}")
    A("s_mov_b64 exec, -1")
    A(f"v_add_lshl_u32 v{T0+1}, v{T0}, v{J}, 2")
    A("s_waitcnt lgkmcnt(0)")
    A(f"ds_read_b32 v{PH}, v{T0+1} offset:{LH}")
    if t64:
        A(f"v_lshl_add_u32 v{WOA}, v{G}, 15, v{T0+2}")
        A("s_lshl_b32 s71, s4, 17"); A("s_add_u32 s71, s71, s72")
        A(f"v_and_b32 v{T0+3}, 3, v0"); A("s_lshr_b32 s48, s4, 2"); A("s_and_b32 s49, s4, 3")
        if x2:
            A(f"v_lshl_add_u32 v{T0+4}, v{T0+3}, 2, v{G}"); A("s_lshl_b32 s51, s4, 4")
        else:
            A(f"v_and_b32 v{T0+4}, 1, v{G}"); A(f"v_lshl_add_u32 v{T0+4}, v{T0+3}, 1, v{T0+4}")
            A(f"v_lshrrev_b32 v{T0+5}, 1, v{G}"); A(f"v_lshl_add_u32 v{T0+4}, v{T0+5}, 5, v{T0+4}")
            A("s_lshl_b32 s51, s48, 6"); A("s_lshl_b32 s73, s49, 3"); A("s_add_u32 s51, s51, s73")
        A(f"v_add_lshl_u32 v{XF}, v{T0+4}, s51, 1")
        A(f"v_lshrrev_b32 v{RA}, 2, v0"); A(f"v_lshlrev_b32 v{RA}, {9 if ys else 8}, v{RA}"); A(f"v_lshl_add_u32 v{RA}, v{T0+3}, 4, v{RA}")
        A(f"s_lshl_b32 s73, s48, {14 if ys else 13}"); A(f"s_lshl_b32 s49, s49, {7 if ys else 6}"); A("s_add_u32 s73, s73, s49")
        A("s_mov_b32 s36, s5")
        A(f"buffer_load_ushort v{XV}, v{XF}, s[16:19], 0 offen")
        A(f"v_lshlrev_b32 v{OGA}, 3, v0")
    else:
        A(f"v_lshl_add_u32 v{WOA}, v{G}, 14, v{T0+2}")
        A("s_lshl_b32 s71, s4, 17"); A("s_lshl_b32 s48, s59, 16"); A("s_add_u32 s71, s71, s48"); A("s_add_u32 s71, s71, s72")
        A(f"v_and_b32 v{T0+3}, 3, v0")
        if lin:
            A(f"v_lshl_add_u32 v{T0+4}, v{T0+3}, 3, v{G}")
            A("s_lshr_b32 s48, s4, 3"); A("s_lshl_b32 s48, s48, 7"); A("s_and_b32 s49, s4, 3"); A("s_lshl_b32 s49, s49, 5"); A("s_add_u32 s48, s48, s49")
            A("s_and_b32 s49, s4, 4"); A("s_add_u32 s48, s48, s49")
        else:
            A(f"v_lshl_add_u32 v{T0+4}, v{T0+3}, 2, v{G}"); A("s_lshl_b32 s48, s4, 4")
        A(f"v_add_lshl_u32 v{XF}, v{T0+4}, s48, 1")
        A(f"v_lshrrev_b32 v{RA}, 2, v0"); A(f"v_lshlrev_b32 v{RA}, 9, v{RA}"); A(f"v_lshl_add_u32 v{RA}, v{T0+3}, 4, v{RA}")
        A("s_and_b32 s48, s4, 7"); A("s_lshl_b32 s49, s48, 6"); A("s_lshr_b32 s73, s4, 3"); A("s_lshl_b32 s73, s73, 15"); A("s_add_u32 s73, s73, s49")
        if mapx: A("s_sub_u32 s36, s5, s48")
        else: A("s_mov_b32 s36, s5")
        A(f"buffer_load_ushort v{XV}, v{XF}, s[16:19], 0 offen")
        if lin:
            A(f"v_bfe_u32 v{T0+4}, v0, 2, 1"); A(f"v_lshrrev_b32 v{T0+5}, 3, v0"); A(f"v_lshl_add_u32 v{T0+4}, v{T0+4}, 4, v{T0+5}")
            A(f"v_lshl_add_u32 v{T0+4}, v{T0+4}, 2, v{T0+3}"); A("s_lshl_b32 s48, s59, 7"); A(f"v_lshl_add_u32 v{OGA}, v{T0+4}, 2, s48")
        else:
            A("s_lshl_b32 s48, s59, 8"); A(f"v_lshl_add_u32 v{OGA}, v0, 2, s48")
    A("s_lshl_b32 s78, s4, 12"); A(f"s_add_u32 s78, s78, {WS_O}")
    A("s_waitcnt lgkmcnt(0)")
    if t64:
        if x2: xgemv(WD, 6, lambda e: (PH, e), lambda k: A(f"s_waitcnt vmcnt({11 - 2 * k})"))
        else: tgemv(WD, 3, lambda rho, q: (PH, 4 * rho + q), lambda rho: A(f"s_waitcnt vmcnt({17 - 8 * rho})"))
        tpublish("Y", 65, "sc1")
    else:
        abuild(AB, PH, M0, 0)
        for n in range(6):
            if n < 5: abuild(AB + 4 * ((n + 1) & 1), PH, M0, n + 1)
            A(f"s_waitcnt vmcnt({6-n})")
            mfma(DG, AB + 4 * (n & 1), WD + 4 * n, n == 0)
        tag(range(DG, DG + 4), "Y")
        A("s_mov_b32 exec_hi, 0")
        if "Yst" not in skip.split(): A(f"buffer_store_dwordx4 v[{DG}:{DG+3}], v{L16 if lin else OUTA}, s[40:43], s65 offen sc1")
        A("s_mov_b64 exec, -1")
    stamp("ypub")
    if prb:
        assert t64 and not ys and wpar is None and mlstr == 4 and not mlfull
        A("s_cmp_lg_u32 s2, 0"); A("s_cbranch_scc1 L_noprobe")
        A(f"s_mov_b32 s48, {WS_X}"); A("s_mov_b32 s10, -1"); A("s_mov_b32 s11, -1"); A(f"s_mov_b32 s49, {prb}")
        A("s_load_dword s8, s[40:41], s48"); A("s_waitcnt lgkmcnt(0)")
        A("L_probe_d:")
        for c in range(2):
            A("s_addk_i32 s48, 0x2000" if c == 0 else "s_addk_i32 s48, 0x2100")
            A("s_memtime s[56:57]"); A("s_waitcnt lgkmcnt(0)")
            A("s_load_dword s8, s[40:41], s48"); A("s_waitcnt lgkmcnt(0)")
            A("s_memtime s[58:59]"); A("s_waitcnt lgkmcnt(0)")
            A("s_sub_u32 s56, s58, s56"); A(f"s_min_u32 s{11 - c}, s{11 - c}, s56")
        A("s_sub_u32 s49, s49, 1"); A("s_cmp_lg_u32 s49, 0"); A("s_cbranch_scc1 L_probe_d")
        A("s_cmp_gt_u32 s10, s11"); A("s_cselect_b32 s48, 0x400, 0")
        A(f"v_or_b32 v{T0+4}, s48, v{TAG}"); A(f"v_mov_b32 v{T0+5}, v{TAG}"); A(f"v_mov_b32 v{T0+6}, v{EP}"); A(f"v_mov_b32 v{T0+7}, v{EP}")
        A(f"v_mov_b32 v{T0+1}, 0"); A(f"s_mov_b32 s48, {WS_D}")
        A("s_mov_b64 exec, 1")
        A(f"buffer_store_dwordx4 v[{T0+4}:{T0+7}], v{T0+1}, s[40:43], s48 offen sc1")
        A("s_mov_b64 exec, -1")
        if stamps == "prb":
            A("s_mov_b32 s98, s10"); A("s_mov_b32 s100, s11")
        A("L_noprobe:")
    A(f"v_and_b32 v{T0}, 3, v0"); A(f"v_lshlrev_b32 v{T0}, 3, v{T0}")
    A(f"s_mov_b32 s70, {SPIN * 8}")
    A("L_pollML:")
    A(f"s_sleep {lsleep}")
    A(f"ds_read_b64 v[{T0+2}:{T0+3}], v{T0} offset:{LML}")
    A("s_sub_u32 s70, s70, 1"); A("s_cbranch_scc1 L_pollML_done")
    A("s_waitcnt lgkmcnt(0)")
    A(f"v_cmp_eq_u32 vcc, -1, v{T0+3}")
    A("s_nop 1")
    A("s_cbranch_vccnz L_pollML")
    A("L_pollML_done:")
    stamp("ml")
    dpp("v_max_f32", T0 + 4, T0 + 2, "quad_perm:[1,0,3,2]"); dpp("v_max_f32", T0 + 4, T0 + 4, "quad_perm:[2,3,0,1]")
    A(f"v_sub_f32 v{T0+5}, v{T0+2}, v{T0+4}"); A(f"v_mul_f32 v{T0+5}, {LOG2E}, v{T0+5}"); A(f"v_exp_f32 v{T0+5}, v{T0+5}")
    A(f"v_mul_f32 v{T0+5}, v{T0+5}, v{T0+3}")
    dpp("v_add_f32", T0 + 5, T0 + 5, "quad_perm:[1,0,3,2]"); dpp("v_add_f32", T0 + 5, T0 + 5, "quad_perm:[2,3,0,1]")
    if steal:
        A(f"v_bfe_u32 v{T0+6}, v0, 2, 2"); A(f"v_lshlrev_b32 v{T0+6}, 3, v{T0+6}")
        A(f"ds_read_b32 v{T0+7}, v{T0+6} offset:{LML}")
        A(f"ds_read_b128 v[{T0+8}:{T0+11}], v{L16} offset:{LP}")
        A("s_lshl_b32 s51, s6, 10"); A(f"s_add_u32 s51, s51, {WS_P}")
        A("s_waitcnt lgkmcnt(0)")
        A(f"v_sub_f32 v{T0+7}, v{T0+7}, v{T0+4}"); A(f"v_mul_f32 v{T0+7}, {LOG2E}, v{T0+7}"); A(f"v_exp_f32 v{T0+7}, v{T0+7}")
        for k in range(4): A(f"v_mul_f32 v{T0+8+k}, v{T0+8+k}, v{T0+7}")
        tag(range(T0 + 8, T0 + 12))
        A(f"buffer_store_dwordx4 v[{T0+8}:{T0+11}], v{L16}, s[40:43], s51 offen sc1")
    tag((T0 + 4, T0 + 5))
    if local:
        A("s_getreg_b32 s37, hwreg(HW_REG_XCC_ID, 0, 4)"); A("s_lshl_b32 s37, s37, 10")
        A(f"v_or_b32 v{T0+4}, s37, v{T0+4}")
    if mlfull:
        assert mlstr == 7
        A(f"v_mov_b32 v{T0+1}, v{L16}"); A("s_mov_b64 exec, 0xff")
    else:
        A(f"v_mov_b32 v{T0+1}, 0"); A("s_mov_b64 exec, 1")
    A(f"v_mov_b32 v{T0+6}, v{EP}"); A(f"v_mov_b32 v{T0+7}, v{EP}")
    if "Mst" not in skip.split(): A(f"buffer_store_dwordx4 v[{T0+4}:{T0+7}], v{T0+1}, s[40:43], s66 offen {'' if 'Mplain' in skip.split() else 'sc1'}")
    A("s_mov_b64 exec, -1")
    A(f"v_and_b32 v{T0+1}, 7, v0"); A(f"v_lshlrev_b32 v{T0+1}, {mlstr}, v{T0+1}")
    A(f"s_lshl_b32 s48, s4, {mlstr + 3}"); A(f"s_add_u32 s48, s48, {WS_ML}")
    if prb:
        A(f"s_sub_u32 s49, {WS_D}, s48"); A(f"v_mov_b32 v{T0+8}, s49"); A("s_mov_b32 s56, 0xff00ff00"); A("s_mov_b32 s57, 0xff00ff00")
        A(f"v_cndmask_b32 v{T0+1}, v{T0+1}, v{T0+8}, s[56:57]")
    if mlat:
        A(f"v_mov_b32 v{T0+8}, 0")
        A(f"s_mov_b32 s70, {SPIN * 8}")
        A("L_pollM:")
        A(f"s_sleep {max(lsleep, 4)}")
        A(f"ds_read_b128 v[{T0+4}:{T0+7}], v{T0+8} offset:{LPROG}")
        A("s_sub_u32 s70, s70, 1"); A("s_cbranch_scc1 L_pollM_done")
        A("s_waitcnt lgkmcnt(0)")
        A(f"v_or3_b32 v{T0+4}, v{T0+4}, v{T0+5}, v{T0+6}"); A(f"v_or_b32 v{T0+4}, v{T0+4}, v{T0+7}")
        A(f"v_cmp_eq_u32 vcc, 0, v{T0+4}")
        A("s_nop 1")
        A("s_cbranch_vccnz L_pollM")
        A("L_pollM_done:")
    def ml_check():
        A(f"v_bitop3_b32 v{T0+8}, v{T0+4}, v{T0+5}, v{TAG} bitop3:0x7e"); A(f"v_bitop3_b32 v{T0+9}, v{T0+6}, v{T0+7}, v{EP} bitop3:0x7e")
        A(f"v_and_or_b32 v{T0+8}, v{T0+8}, s12, v{T0+9}")
        A(f"v_cmp_ne_u32 vcc, 0, v{T0+8}")
    A("s_movk_i32 s12, 0x3ff")
    poll("pollML2", lambda: A(f"buffer_load_dwordx4 v[{T0+4}:{T0+7}], v{T0+1}, s[40:43], s48 offen sc1"), ml_check, None, psleep)
    if local:
        A(f"v_and_b32 v{T0+6}, 0x3c00, v{T0+4}"); A(f"v_cmp_ne_u32 vcc, s37, v{T0+6}")
        A("s_nop 1")
        if prb: A("s_and_b32 s37, vcc_lo, 0xff")
        else: A("s_or_b32 s37, vcc_lo, vcc_hi")
    if prb:
        A(f"v_readlane_b32 s38, v{T0+4}, 8"); A("s_and_b32 s38, s38, 0x400"); A("s_lshl_b32 s38, s38, 3"); A("s_xor_b32 s64, s64, s38")
    A(f"v_and_b32 v{T0+4}, 0xffff0000, v{T0+4}"); untag((T0 + 5,))
    A(f"v_lshlrev_b32 v{XV}, 16, v{XV}")
    for c in ("quad_perm:[1,0,3,2]",): dpp("v_max_f32", T0 + 6, T0 + 4, c)
    for c in ("quad_perm:[2,3,0,1]", "row_half_mirror"): dpp("v_max_f32", T0 + 6, T0 + 6, c)
    A(f"v_sub_f32 v{T0+4}, v{T0+4}, v{T0+6}"); A(f"v_sub_f32 v{T0+2}, v{T0+2}, v{T0+6}")
    A(f"v_mul_f32 v{T0+4}, {LOG2E}, v{T0+4}"); A(f"v_mul_f32 v{T0+2}, {LOG2E}, v{T0+2}")
    A(f"v_exp_f32 v{T0+4}, v{T0+4}"); A(f"v_exp_f32 v{T0+2}, v{T0+2}")
    A(f"v_mul_f32 v{T0+5}, v{T0+4}, v{T0+5}")
    for c in ("quad_perm:[1,0,3,2]", "quad_perm:[2,3,0,1]", "row_half_mirror"): dpp("v_add_f32", T0 + 5, T0 + 5, c)
    A(f"v_rcp_f32 v{T0+5}, v{T0+5}")
    A(f"v_mul_f32 v{T0+2}, v{T0+2}, v{T0+5}")
    if not steal:
        for w in range(4): A(f"v_readlane_b32 s{74+w}, v{T0+2}, {w}")
        stamp("mlx")
    else:
        A(f"v_mul_f32 v{T0+4}, v{T0+4}, v{T0+5}")
        A(f"v_lshrrev_b32 v{T0}, 1, v{T0}")
        A(f"ds_write_b32 v{T0}, v{T0+2} offset:{LF}")
        stamp("mlx")
        A("s_lshl_b32 s48, s4, 13"); A(f"s_add_u32 s48, s48, {WS_P}"); A("s_add_u32 s49, s48, 0x1000")
        poll("pollPT", a_loads, range(WQ, WQ + 32), T0 + 6, 0)
        untag(range(WQ, WQ + 32))
        A(f"v_lshrrev_b32 v{T0+6}, 3, v0"); A(f"v_and_b32 v{T0+7}, 7, v0"); A(f"v_lshlrev_b32 v{T0+6}, 10, v{T0+6}")
        A(f"v_lshl_add_u32 v{T0+6}, v{T0+7}, 4, v{T0+6}")
        if np_ < 8:
            A(f"v_subrev_u32 v{T0+6}, {(8 - np_) * 1024}, v{T0+6}")
            m = (~((1 << (8 * (8 - np_))) - 1)) & (2**64 - 1)
            A(f"s_mov_b32 exec_lo, {hex(m & 0xffffffff)}"); A(f"s_mov_b32 exec_hi, {hex(m >> 32)}")
        for k in range(8):
            A(f"v_readlane_b32 s51, v{T0+4}, {k}")
            for r in range(4): A(f"v_mul_f32 v{WQ+4*k+r}, s51, v{WQ+4*k+r}")
            for r in range(4): A(f"v_cvt_pk_bf16_f32 v{WQ+4*k+r}, v{WQ+4*k+r}, v{WQ+4*k+r}")
            A(f"ds_write_b128 v{T0+6}, v[{WQ+4*k}:{WQ+4*k+3}] offset:{LPT + 128*k}")
        A("s_mov_b64 exec, -1")
        A(f"v_mov_b32 v{T0+6}, 0"); A(f"v_mov_b32 v{T0+7}, 1")
        A(f"ds_write_b32 v{T0+6}, v{T0+7} offset:{LPF}")
        stamp("table")
    NG = 2 if t64 else 4
    def reduce(base):
        if t64:
            untag(range(base, base + 8))
            for k in range(4): A(f"v_add_f32 v{T0+4+k}, v{base+k}, v{base+4+k}")
            return
        untag(range(base, base + 16))
        for k in range(4):
            A(f"v_add_f32 v{base+k}, v{base+k}, v{base+4+k}"); A(f"v_add_f32 v{base+8+k}, v{base+8+k}, v{base+12+k}")
        for k in range(4): A(f"v_add_f32 v{T0+4+k}, v{base+k}, v{base+8+k}")
    def reduce2():
        b = T0 + 4
        A(f"v_permlane32_swap_b32 v{b}, v{b+2}"); A(f"v_permlane32_swap_b32 v{b+1}, v{b+3}")
        A(f"v_add_f32 v{b}, v{b}, v{b+2}"); A(f"v_add_f32 v{b+1}, v{b+1}, v{b+3}")
        A(f"v_permlane16_swap_b32 v{b}, v{b+1}")
        A(f"v_add_f32 v{b}, v{b}, v{b+1}")
        dpp("v_add_f32", b, b, "row_ror:4"); dpp("v_add_f32", b, b, "row_ror:8")
        rbf(b)
    def gather(sregs, fl="sc1"):
        def f(base=PS):
            for k in range(NG): A(f"buffer_load_dwordx4 v[{base+4*k}:{base+4*k+3}], v{RA}, s[40:43], s{sregs[k]} offen {fl}")
        return f
    A("s_cmp_lg_u32 s36, 0"); A("s_cbranch_scc1 L_noY")
    A(f"s_add_u32 s48, s73, {WS_Y}")
    A(f"s_add_u32 s49, s48, {4096 if t64 and not ys else 8192}"); A(f"s_add_u32 s56, s48, 16384"); A(f"s_add_u32 s57, s48, 24576")
    poll("pollY", gather((48, 49, 56, 57)), range(PS, PS + 4 * NG), T0, psleep)
    reduce(PS); reduce2()
    A(f"v_mul_f32 v{T0}, 0xbfb8aa3b, v{T0+4}"); A(f"v_exp_f32 v{T0}, v{T0}"); A(f"v_add_f32 v{T0}, 1.0, v{T0}")
    A(f"v_rcp_f32 v{T0}, v{T0}"); A(f"v_mul_f32 v{GV}, v{T0+4}, v{T0}")
    rbf(GV)
    A("s_cmp_lg_u32 s2, 0"); A("s_cbranch_scc1 L_noY")
    A("s_mov_b64 exec, 1")
    A(f"v_mov_b32 v{T0}, 0")
    A(f"buffer_store_dword v{EP}, v{T0}, s[40:43], s79 offen sc1")
    A("s_mov_b64 exec, -1")
    A("L_noY:")
    A(f"s_add_u32 s48, s73, {SBASE}")
    if prb: A("s_xor_b32 s48, s48, s38")
    if wpar is not None:
        A("s_lshr_b32 s49, s4, 2"); A("s_lshl_b32 s49, s49, 13"); A("s_add_u32 s48, s48, s49")
    A(f"s_add_u32 s49, s48, {4096 if t64 and not ys else 8192}"); A(f"s_add_u32 s56, s48, 16384"); A(f"s_add_u32 s57, s48, 24576")
    A(f"v_mov_b32 v{T0}, 0")
    A(f"s_mov_b32 s70, {SPIN * 8}")
    A("L_pollP:")
    A(f"s_sleep {lsleep}")
    if steal or bal or mlat: A(f"ds_read_b32 v{T0+4}, v{T0} offset:{LGO}")
    else: A(f"ds_read_b128 v[{T0+4}:{T0+7}], v{T0} offset:{LPROG}")
    A("s_sub_u32 s70, s70, 1"); A("s_cbranch_scc1 L_pollP_done")
    A("s_waitcnt lgkmcnt(0)")
    if not (steal or bal or mlat):
        A(f"v_or3_b32 v{T0+4}, v{T0+4}, v{T0+5}, v{T0+6}"); A(f"v_or_b32 v{T0+4}, v{T0+4}, v{T0+7}")
    A(f"v_cmp_eq_u32 vcc, 0, v{T0+4}")
    A("s_nop 1")
    A("s_cbranch_vccnz L_pollP")
    A("L_pollP_done:")
    (any(prio) and A(f"s_setprio {prio[2]}"))
    for n in range(16):
        if t64:
            if n < 8:
                for q in range(4):
                    if x2:
                        A(f"buffer_load_dwordx2 v[{WO+8*n+2*q}:{WO+8*n+2*q+1}], v{WOA}, s[24:27], s71 offen{off(1024*q)} {woflags}")
                        continue
                    for t in range(2): A(f"buffer_load_dword v{WO+8*n+4*t+q}, v{WOA}, s[24:27], s71 offen{off(1024*q + 64*t)} {woflags}")
                if n < 7: A("s_addk_i32 s71, 0x1000")
            continue
        A(f"buffer_load_dwordx4 v[{WO+4*n}:{WO+4*n+3}], v{WOA}, s[24:27], s71 offen{off((n&3)*1024)} {woflags}")
        if n & 3 == 3 and n < 15: A("s_addk_i32 s71, 0x1000")
    stamp("wiss")
    A("s_mov_b32 exec_hi, 0")
    if local: A("s_cmp_lg_u32 s37, 0")
    A("s_barrier")
    for w in range(4): A(f"ds_read_b128 v[{T0+4*w}:{T0+4*w+3}], v{L16 if onat else OUTA} offset:{LO+512*w}")
    stamp("bar2")
    for w in range(4):
        A(f"s_waitcnt lgkmcnt({3-w})" if not (stamps or probe) else "s_waitcnt lgkmcnt(0)")
        if fast and not steal:
            p = 74 + (w & 2); sel = "op_sel:[0,1] op_sel_hi:[1,1]" if w & 1 else "op_sel_hi:[1,0]"
            for k in (0, 2):
                if w == 0: A(f"v_pk_mul_f32 v[{DQ+k}:{DQ+k+1}], v[{T0+k}:{T0+k+1}], s[{p}:{p+1}] {sel}")
                else:
                    sel3 = "op_sel:[0,1,0] op_sel_hi:[1,1,1]" if w & 1 else "op_sel_hi:[1,0,1]"
                    A(f"v_pk_fma_f32 v[{DQ+k}:{DQ+k+1}], v[{T0+4*w+k}:{T0+4*w+k+1}], s[{p}:{p+1}], v[{DQ+k}:{DQ+k+1}] {sel3}")
            continue
        for k in range(4):
            if steal:
                if w == 1: A(f"v_add_f32 v{DQ+k}, v{T0+k}, v{T0+4+k}")
                elif w > 1: A(f"v_add_f32 v{DQ+k}, v{DQ+k}, v{T0+4*w+k}")
            elif w == 0: A(f"v_mul_f32 v{DQ+k}, s74, v{T0+k}")
            else: A(f"v_fmac_f32 v{DQ+k}, s{74+w}, v{T0+4*w+k}")
    tag(range(DQ, DQ + 4), "O")
    if local:
        A("s_cbranch_scc1 L_far")
        A(f"buffer_store_dwordx4 v[{DQ}:{DQ+3}], v{L16 if lin or onat else OUTA}, s[40:43], s63 offen {olflags}")
        A("s_branch L_near")
        A("L_far:")
    if "Ost" not in skip.split(): pub4("O", DQ, L16 if lin or onat else OUTA, 63)
    if local: A("L_near:")
    A("s_mov_b64 exec, -1")
    stamp("opub")
    def o_loads(base):
        for k in range(8): A(f"buffer_load_dword v{base+k}, v{OGA}, s[40:43], s78 offen{off(k*512)} sc1")
    def o_finish(b):
        if fast:
            pkadd(b, b, b + 2); pkadd(b + 4, b + 4, b + 6); pkadd(b, b, b + 4)
            A(f"v_add_f32 v{T0+3}, v{b}, v{b+1}")
            return
        untag(range(b, b + 8))
        for k in range(4): A(f"v_add_f32 v{b+2*k}, v{b+2*k}, v{b+2*k+1}")
        A(f"v_add_f32 v{b}, v{b}, v{b+2}"); A(f"v_add_f32 v{b+4}, v{b+4}, v{b+6}")
        A(f"v_add_f32 v{T0+3}, v{b}, v{b+4}")
    A("; o = bf16(sum of the eight partial outputs); partial out projection: " + ("the head's 128 rows, 64 columns" if t64 else "64 of the head's rows, 128 columns"))
    if t64:
        def o_loads2(base):
            for k in range(8): A(f"buffer_load_dwordx2 v[{base+2*k}:{base+2*k+1}], v{OGA}, s[40:43], s78 offen{off(k*512)} {old}")
        def o_finish2(b):
            for k in (0, 4, 8, 12): pkadd(b + k, b + k, b + k + 2)
            pkadd(b, b, b + 4); pkadd(b + 8, b + 8, b + 12); pkadd(T0 + 2, b, b + 8)
        poll_pipe("pollO", r1, d1, 16, 8, o_loads2, o_finish2)
        stamp("oseen")
        A(f"v_cvt_pk_bf16_f32 v{PD}, v{T0+2}, v{T0+2}"); A(f"v_cvt_pk_bf16_f32 v{PD1}, v{T0+3}, v{T0+3}")
        if x2: xgemv(WO, 16, lambda e: ((PD, PD1)[e & 1], e >> 1), None)
        else: tgemv(WO, 8, lambda rho, q: ((PD, PD1)[q & 1], 2 * rho + (q >> 1)), None)
        tpublish("S", 64, sflags)
    else:
        poll_pipe("pollO", r1, d1, 8, 8, o_loads, o_finish)
        stamp("oseen")
        A(f"v_cvt_pk_bf16_f32 v{PD}, v{T0+3}, v{T0+3}")
        abuild(AB, PD, M0, 0)
        for n in range(16):
            if n < 15: abuild(AB + 4 * ((n + 1) & 1), PD, M0, n + 1)
            mfma(DQ, AB + 4 * (n & 1), WO + 4 * n, n == 0)
        A("s_mov_b32 exec_hi, 0")
        tag(range(DQ, DQ + 4), "S")
        if "Sst" not in skip.split(): A(f"buffer_store_dwordx4 v[{DQ}:{DQ+3}], v{L16 if lin else OUTA}, s[40:43], s64 offen {sflags}")
        A("s_mov_b64 exec, -1")
    stamp("spub")
    A("s_cmp_lg_u32 s36, 0"); A("s_cbranch_scc1 L_sdone")
    PS = 64
    def s_finish(b):
        if t64:
            for k in (0, 2): pkadd(T0 + 4 + k, b + k, b + 4 + k)
            return
        for k in (0, 2): pkadd(b + k, b + k, b + 4 + k); pkadd(b + 8 + k, b + 8 + k, b + 12 + k)
        for k in (0, 2): pkadd(T0 + 4 + k, b + k, b + 8 + k)
    poll_pipe("pollS", r2, d2, 4 * NG, NG, gather((48, 49, 56, 57), sld), s_finish if fast else reduce)
    stamp("sseen")
    reduce2()
    A(f"v_mul_f32 v{T0+4}, v{T0+4}, v{GV}")
    rbf(T0 + 4)
    A(f"v_add_f32 v{T0+4}, v{T0+4}, v{XV}")
    A(f"v_cvt_pk_bf16_f32 v{T0+4}, v{T0+4}, v{T0+4}")
    A("s_mov_b32 exec_lo, 0x000f000f"); A("s_mov_b32 exec_hi, 0x000f000f")
    A(f"buffer_store_short v{T0+4}, v{XF}, s[32:35], 0 offen {oflags}")
    A("L_sdone:")
    if stamps or probe: A("s_waitcnt vmcnt(0)")
    stamp("end")
    if probe:
        A("s_cmp_lg_u32 s2, 0"); A("s_cbranch_scc1 L_end")
        A("s_memrealtime s[84:85]"); A("s_waitcnt lgkmcnt(0)")
        A("s_sub_u32 s82, s82, s80"); A(f"s_mul_i32 s82, s82, {probek}"); A("s_min_u32 s82, s82, 100000")
        A("L_probe:")
        A("s_memrealtime s[86:87]"); A("s_waitcnt lgkmcnt(0)")
        A("s_sub_u32 s86, s86, s84"); A("s_cmp_lt_u32 s86, s82"); A("s_cbranch_scc1 L_probe")
    dump_stamps()
    A("L_end:")
    A("s_endpgm")
    A.L += stream_body

    body = A.fix()
    hdr = open("cdna_kernels/" + NAME + ".s.ref").read().split("\n")
    hdr = [l for l in hdr if l.startswith(";") and "@launch" not in l and "Override" not in l and "grid=ceil" not in l]
    doc = """;
; layernorm -> q projection -> single-query attention over the cache -> out projection, times silu(GLU(xn)), plus x; one kernel.
; 256 workgroups = 32 heads x 8 key splits, one per CU; 4 streaming waves + 1 service wave each.
;   streaming waves: read the split's 1024 keys, then its 1024 values, once (1 KiB per load, nt); true-max softmax per wave,
;     merged exactly across waves and splits through (max, sum) pairs.
;   service wave: layernorm, a 64-row slice of the q / gate / up projections, a slice of the down and out projections,
;     and the hand-offs between workgroups.
; Hand-offs go through d_ws. Every handed-over word carries a 10-bit tag in its low bits, taken from an epoch word in d_ws that
; each run reads at entry and advances once all workgroups have read it; a reader waits until all words carry the tag and
; clears the tag before use, so neither results nor control flow depend on what d_ws held before. All waits are bounded.""".split("\n")
    out = hdr + doc + [f"; @launch grid=(256,1,1) block=({384 if steal or bal else 320},1,1) lds={12288 if steal else 3072}",
                 '.amdgcn_target "amdgcn-amd-amdhsa--gfx950"', ".text", f".globl {KN}", ".p2align 8", f".type {KN},@function"]
    out += [l if l.endswith(":") and not l.startswith(";") else "    " + l for l in body]
    nv = max(48 + 4 * nslot + (4 if bal else 0), 224)
    out += ['.section .rodata,"a"', ".p2align 6", f".amdhsa_kernel {KN}", f"  .amdhsa_next_free_vgpr {nv}",
            "  .amdhsa_next_free_sgpr 102", f"  .amdhsa_accum_offset {nv}", "  .amdhsa_group_segment_fixed_size 0",
            "  .amdhsa_kernarg_size 96", "  .amdhsa_user_sgpr_count 2", "  .amdhsa_user_sgpr_kernarg_segment_ptr 1",
            "  .amdhsa_system_sgpr_workgroup_id_x 1", ".end_amdhsa_kernel"]
    return "\n".join(out) + "\n", stamp_list

if __name__ == "__main__":
    kw = eval("dict(" + (sys.argv[2] if len(sys.argv) > 2 else "") + ")")
    open(sys.argv[1], "w").write(gen(**kw)[0])
```

```python
import sys
from asmlib import Asm
NAME = "recurrent_scan__mha_block_cached__glu_gated_glu__decode"
KN = NAME + "_kernel"

WS_A  = 0x00000
WS_O  = 0x40000
WS_S  = 0x60000
WS_Y  = 0x80000
WS_ML = 0xA0000
WS_E  = 0xB0000
WS_D  = 0xB4000
WS_G  = 0x201000
WS_X  = 0x180000
WS_C  = 0xB8000
WS_B  = 0x200000
WS_P  = 0xC0000
WS_ST = 0x100000
WS_BYTES = 268435456
LQ, LML, LPROG, LQF, LH, LO = 0, 256, 288, 304, 320, 1024
LGO, LPF, LLV = 308, 312, 316
LTAG = 592
LF, LREC, LP, LPT = 576, 640, 3072, 4096
END = 0x7fffffff
LOG2E = "0x3fb8aa3b"
SCALE = "0x3db504f3"
SPIN = 1 << 17

SETS = {"early": "bar0 issued x ln apub aseen qdone ypub ml mlx end qready kdone vdone",
        "prog": "bar0 i16 i32 i48 i64 i80 i96 i112 i127 vdone apub aseen mlx end",
        "prog2": "i56 i64 i72 i80 i88 i96 i104 i112 i120 vdone end",
        "clk": "bar0 clk0 i64 clk1 vdone clk2 end",
        "steal2": "mlx table end i96 i102 i111 rec0 rec1 rec2 static tready vdone",
        "steal": "mlx table wiss bar2 opub oseen spub sseen end kdone static tready vdone qdone issued qready",
        "boot": "karg pre far bar0 i8 i12 skarg sx s8 s16 issued x ln",
        "late": "qdone mlx wiss bar2 opub oseen spub sseen end issued qready kdone vdone"}

def gen(nslot=48, npre=4, burst=4, every=6, cap=6, dist=None, plate=1, stamps=False, kvflags="nt", wflags="nt", gflags="",
        asleep=30, lsleep=1, psleep=4, mapx=False, r1=3, r2=3, d1=2, d2=2, local=False, skip="", probe=None, probek=8, touch=False, bar0=16, scap=0, amap=False, gap=0, steal=False, np_=8, ah=5, golate=2, noatom=False, aflags='sc0 sc1', capl=0, capsel=1, capfrom=0, bal=False, tk=4, th=4, lv=(5, 6, 7), bfrom=12, bto=108, bgrp=3, bstr=2, mlstr=4, mlat=None, oflags='', fast=False, pre='', preflags='', rnd='', sched=None, pat=None, ph=(0, 0, 0), osleep=0, sflags='sc1', lin=False, mlfull=False, t64=False, x2=False, woflags=None, ys=False, sofs=0, numa=False, par=0, parv=None, wpar=None, prb=0, old='sc1', sld='sc1', gsplit=0, ifirst=False, onat=False, olflags='', atom='', prio=(3, 0, 3), wprio=0, bloc=False, bend=None, bmid=0, lv2=None, bsm=False, lfast=False, xb=None, bv=False, xper=1, thl=None):
    A = Asm()
    stamp_list = []
    role = ["S"]
    if bal:
        cap = lv[2]
        sched = [(64, (lv2 or lv)[2])] + ([(bend, 8)] if bend else [])
    if dist is None: dist = cap
    if woflags is None: woflags = wflags
    def stamp(name):
        if probe and role[0] == "S" and name == probe:
            A("s_memrealtime s[82:83]")
        if stamps and name in SETS[stamps].split() and not (stamps in ("late", "steal") and role[0] == "S" and name == "issued"):
            k = len([x for x in stamp_list if x[0] == role[0]])
            stamp_list.append((role[0], name))
            A(f"{'s_memtime' if name.startswith('clk') else 's_memrealtime'} s[{80+2*k}:{81+2*k}]")
    def rbf(r):
        A(f"v_cvt_pk_bf16_f32 v{r}, v{r}, v{r}")
        A(f"v_and_b32 v{r}, 0xffff0000, v{r}")
    def masks(m0, t0, t1):
        A(f"v_and_b32 v{t0}, 1, v0")
        A(f"v_lshlrev_b32 v{t0}, 4, v{t0}")
        A(f"v_lshlrev_b32 v{t0}, v{t0}, s50")
        A(f"v_bfe_u32 v{t1}, v0, 1, 2")
        for r in range(4): A(f"v_cmp_eq_u32 s[{84+2*r if not (stamps or probe) else 62+2*r}:{85+2*r if not (stamps or probe) else 63+2*r}], {r}, v{t1}")
        for r in range(4): A(f"v_cndmask_b32 v{m0+r}, 0, v{t0}, s[{84+2*r if not (stamps or probe) else 62+2*r}:{85+2*r if not (stamps or probe) else 63+2*r}]")
    def abuild(a0, p, m0, n):
        for r in range(4):
            A(f"v_and_b32_dpp v{a0+r}, v{p}, v{m0+r} row_newbcast:{n} row_mask:0xf bank_mask:0xf")
    def dpp(op, d, s, ctl, rm="0xf", bm="0xf"):
        A(f"{op}_dpp v{d}, v{s}, v{s} {ctl} row_mask:{rm} bank_mask:{bm}")
    def wave_red(op, v):
        for c in ("quad_perm:[1,0,3,2]", "quad_perm:[2,3,0,1]", "row_half_mirror", "row_mirror"): dpp(op, v, v, c)
        dpp(op, v, v, "row_bcast:15", "0xa"); dpp(op, v, v, "row_bcast:31", "0xc")
    def mfma(d, a, b, first):
        A(f"v_mfma_f32_16x16x32_bf16 v[{d}:{d+3}], v[{a}:{a+3}], v[{b}:{b+3}], {0 if first else f'v[{d}:{d+3}]'}")
    def srd(d, off, nbytes):
        A(f"s_load_dwordx2 s[{d}:{d+1}], s[0:1], {off}")
        A(f"s_mov_b32 s{d+2}, {nbytes}")
        A(f"s_mov_b32 s{d+3}, 0x20000")
    def off(n): return f" offset:{n}" if n else ""
    def dump_stamps():
        if not stamps: return
        mine = [x for x in stamp_list if x[0] == role[0]]
        A("s_mov_b64 exec, -1")
        A("s_waitcnt lgkmcnt(0)")
        for k in range(len(mine)): A(f"v_writelane_b32 v0, s{80+2*k}, {k}")
        A("s_getreg_b32 s48, hwreg(HW_REG_XCC_ID)"); A("v_writelane_b32 v0, s48, 15")
        A("s_getreg_b32 s48, hwreg(HW_REG_HW_ID)"); A("v_writelane_b32 v0, s48, 14")
        A("s_load_dwordx2 s[40:41], s[0:1], 88"); A(f"s_mov_b32 s42, {WS_BYTES}"); A("s_mov_b32 s43, 0x20000")
        A("s_mul_i32 s48, s2, 5"); A("s_add_u32 s48, s48, s3"); A("s_lshl_b32 s48, s48, 6"); A(f"s_add_u32 s48, s48, {WS_ST}")
        A("v_mbcnt_lo_u32_b32 v1, -1, 0"); A("v_lshlrev_b32 v1, 2, v1")
        A("s_mov_b64 exec, 0xffff")
        A("s_waitcnt lgkmcnt(0)")
        A("buffer_store_dword v0, v1, s[40:43], s48 offen")

    A(f"{KN}:")
    if stamps or probe: A("s_memrealtime s[80:81]")
    if fast:
        A("s_load_dwordx2 s[8:9], s[0:1], 8"); A("s_load_dwordx2 s[12:13], s[0:1], 16")
    A("v_lshrrev_b32 v1, 6, v0")
    A("s_cmp_ge_u32 s2, 256")
    A("s_cbranch_scc1 L_end")
    A("v_readfirstlane_b32 s3, v1")
    if numa:
        A("s_lshr_b32 s4, s2, 1"); A("s_and_b32 s4, s4, 28"); A("s_and_b32 s5, s2, 3"); A("s_or_b32 s4, s4, s5")
        A("s_lshr_b32 s5, s2, 5"); A("s_and_b32 s5, s5, 6"); A("s_bfe_u32 s6, s2, 0x10002"); A("s_or_b32 s5, s5, s6")
    elif mapx:
        A("s_lshr_b32 s4, s2, 3"); A("s_and_b32 s5, s2, 7")
    else:
        A("s_and_b32 s4, s2, 31"); A("s_lshr_b32 s5, s2, 5")
    A("v_and_b32 v0, 63, v0")
    A("s_mov_b32 s50, 0xffff")
    A("s_cmp_eq_u32 s3, 4")
    A("s_cbranch_scc1 L_service")
    if steal or bal:
        A("s_cmp_eq_u32 s3, 5")
        A("s_cbranch_scc1 L_claim")
    nst = 128 - 2 * np_ if steal else 128

    role[0] = "W"; stamp_list.append(("W", "start"))
    VL16, M0, Q0, S0, AB, D0, P0, T0, RING = 1, 2, 6, 10, 14, 22, 26, 42, 48
    LVR, LVA = RING + 4 * nslot, RING + 4 * nslot + 1
    if fast:
        for d in (8, 12): A(f"s_mov_b32 s{d+2}, {64 << 20}"); A(f"s_mov_b32 s{d+3}, 0x20000")
    else:
        srd(8, 8, 64 << 20); srd(12, 16, 64 << 20)
    if numa:
        A("s_lshl_b32 s48, s4, 21"); A("s_lshr_b32 s49, s5, 1"); A("s_lshl_b32 s49, s49, 19"); A("s_add_u32 s48, s48, s49")
        A("s_xor_b32 s49, s4, s5"); A(f"s_xor_b32 s49, s49, {par}"); A("s_and_b32 s49, s49, 1"); A("s_lshl_b32 s49, s49, 13"); A("s_add_u32 s48, s48, s49")
        A("s_lshl_b32 s49, s3, 11"); A("s_add_u32 s48, s48, s49")
        A("s_mov_b32 s49, s48")
        A(f"v_lshlrev_b32 v{VL16}, 4, v0")
    else:
        A("s_lshl_b32 s48, s4, 21"); A("s_lshl_b32 s49, s5, 18"); A("s_add_u32 s48, s48, s49")
    if numa: pass
    elif not pat:
        if gsplit == 1:
            A("s_lshl_b32 s49, s3, 11"); A("s_add_u32 s48, s48, s49")
            A(f"v_and_b32 v2, 32, v0"); A(f"v_mul_u32_u24 v2, {256 - 16}, v2"); A(f"v_lshl_add_u32 v{VL16}, v0, 4, v2")
        elif gsplit == 2:
            A("s_lshl_b32 s49, s3, 11"); A("s_add_u32 s48, s48, s49")
            A(f"v_lshlrev_b32 v{VL16}, 4, v0")
        else:
            A("s_lshl_b32 s49, s3, 12"); A("s_add_u32 s48, s48, s49")
            A(f"v_lshlrev_b32 v{VL16}, 4, v0")
        A("s_mov_b32 s49, s48")
    else:
        assert not steal
        sh = {n: 8 + k for k, n in enumerate(pat.split())}
        assert sh["c0"] < sh["c1"] <= 11 and sh["c1"] < sh["c2"] < sh["c3"] < sh["c4"] < sh["c5"] and all(x % 4 == 0 for x in ph)
        CM = sum(1 << sh[f"c{k}"] for k in range(2, 6))
        for k in range(2):
            A(f"s_bfe_u32 s49, s3, {k | (1 << 16)}"); A(f"s_lshl_b32 s49, s49, {sh[f'w{k}']}"); A("s_add_u32 s48, s48, s49")
        A(f"v_and_b32 v{VL16}, 15, v0"); A(f"v_lshlrev_b32 v{VL16}, 4, v{VL16}")
        for k in range(2):
            A(f"v_bfe_u32 v2, v0, {4 + k}, 1"); A(f"v_lshl_add_u32 v{VL16}, v2, {sh[f'g{k}']}, v{VL16}")
        A(f"s_mul_i32 s59, s5, {ph[1]}")
        if ph[0]: A("s_and_b32 s49, s4, 7"); A(f"s_mul_i32 s49, s49, {ph[0]}"); A("s_add_u32 s59, s59, s49")
        if ph[2]: A("s_lshr_b32 s49, s4, 3"); A(f"s_mul_i32 s49, s49, {ph[2]}"); A("s_add_u32 s59, s59, s49")
        A("s_mov_b32 s56, 0")
        for k in range(2, 6):
            A(f"s_bfe_u32 s49, s59, {k | (1 << 16)}"); A(f"s_lshl_b32 s49, s49, {sh[f'c{k}']}"); A("s_add_u32 s56, s56, s49")
        A("s_add_u32 s49, s48, s56")
        A(f"s_mov_b32 s60, {hex(CM)}")
    A("s_waitcnt lgkmcnt(0)")
    stamp("karg")
    issued = [0]; waited = [-1]
    def slot(i): return RING + 4 * (i % nslot)
    extra = [None]
    def wait_for(i):
        if i > waited[0]:
            n = issued[0] - 1 - i + (1 if extra[0] is not None and i < extra[0] else 0)
            A(f"s_waitcnt vmcnt({n})"); waited[0] = i
    def capof(i):
        if not sched: return cap
        c = cap
        for frm, val in sched:
            if i >= frm: c = val
        return c[i % len(c)] if isinstance(c, tuple) else c
    three = lv[0] < lv[1] or (lv2 and lv2[0] < lv2[1])
    def tick():
        A(f"ds_write_b32 v{T0+4}, v{T0+5} offset:{LPROG}")
        A(f"v_add_u32 v{T0+5}, 1, v{T0+5}")
    def issue():
        i = issued[0]
        ii = i % 64; s = 8 if i < 64 or "VK" in skip.split() else 12
        if pat:
            if ii % 4 == 0 and i:
                A("s_orn2_b32 s56, s56, s60"); A(f"s_add_u32 s56, s56, {1 << sh['c2']}"); A("s_and_b32 s56, s56, s60"); A("s_add_u32 s49, s48, s56")
        elif i == 64: A("s_mov_b32 s49, s48" if parv is None or parv == par else "s_xor_b32 s49, s48, 0x2000")
        elif gsplit == 2:
            if ii % 2 == 0 and i: A("s_addk_i32 s49, 0x2000")
        elif ii % (2 if numa else 4) == 0 and i:
            A("s_addk_i32 s49, 0x4000")
        if bal and not lfast:
            if i >= npre and ii % tk == 0 and bfrom <= i <= bto + tk:
                if i > bfrom:
                    A("s_waitcnt lgkmcnt(0)"); A(f"v_readfirstlane_b32 s58, v{LVR}")
                    A("s_and_b32 vcc_lo, s58, 2")
                if i <= bto:
                    tick(); A(f"ds_read_b32 v{LVR}, v{LVA} offset:{LLV}")
            if i >= npre and ii % 4 == 0: A("s_cmp_lg_u32 s58, 1")
        if bal and lfast:
            upd = bfrom < i <= bto + 1 and (i - 1 - bfrom) % tk == 0
            if upd:
                A("s_waitcnt lgkmcnt(0)"); A(f"v_readfirstlane_b32 s58, v{LVR}")
                A("s_and_b32 vcc_lo, s58, 2")
            if bfrom <= i <= bto and (i - bfrom) % tk == 0:
                tick(); A(f"ds_read_b32 v{LVR}, v{LVA} offset:{LLV}")
            if i >= npre and (ii % 4 == 0 or upd) and three: A("s_cmp_lg_u32 s58, 1")
        c_ = capof(i)
        if c_ and i >= c_: wait_for(i - c_)
        if bal and i >= max(npre, lv[0]) and not (bend and i >= bend):
            l = lv2 if lv2 and i >= 64 else lv
            assert l[2] == c_
            if l[1] < l[2]:
                A(f"s_cbranch_vccnz L_c{i}")
                if i >= l[1]: A(f"s_waitcnt vmcnt({l[1] - 1})")
            if l[0] < l[1]:
                A(f"s_cbranch_scc1 L_c{i}"); A(f"s_waitcnt vmcnt({l[0] - 1})")
            A(f"L_c{i}:")
        if capl and i >= max(capl, capfrom, npre) and i - capl > waited[0]:
            A(f"s_cbranch_vccnz L_c{i}"); A(f"s_waitcnt vmcnt({capl - 1})"); A(f"L_c{i}:")
        issued[0] += 1
        r = slot(i)
        imm = ((ii & 1) << sh["c0"]) + ((ii >> 1 & 1) << sh["c1"]) if pat else (ii % 4) * 512 if gsplit == 1 else (ii % (2 if numa or gsplit == 2 else 4)) * 1024
        A(f"buffer_load_dwordx4 v[{r}:{r+3}], v{VL16}, s[{s}:{s+3}], s49 offen{off(imm)} {kvflags}")
        stamp(f"i{i}")
        if steal and i >= nst - 2 * ah and (nst - i) % 2 == 0: tick()
        if i == 64: stamp("clk1")
    for _ in range(npre): issue()
    if touch:
        A(f"buffer_load_dword v{T0+3}, v{VL16}, s[12:15], s48 offen {kvflags}")
        extra[0] = issued[0]
    stamp("pre")
    A("s_branch L_stream")
    stream_at = len(A.L)
    A("L_stream:")
    stamp("far")
    if wprio: A(f"s_setprio {wprio}")
    masks(M0, T0, T0 + 1)
    A("s_mov_b32 s52, 0xcccccccc"); A("s_mov_b32 s53, 0xcccccccc")
    A("s_mov_b32 s54, 0xaaaaaaaa"); A("s_mov_b32 s55, 0xaaaaaaaa")
    A(f"v_and_b32 v{T0+2}, 15, v0"); A(f"v_lshlrev_b32 v{T0+2}, 4, v{T0+2}")
    A(f"v_mov_b32 v{T0+4}, s3"); A(f"v_lshlrev_b32 v{T0+4}, 2, v{T0+4}"); A(f"v_mov_b32 v{T0+5}, 1")
    def setlevel():
        if bal:
            A("s_and_b32 vcc_lo, s58, 2"); A("s_mov_b32 vcc_hi, 0")
            if three: A("s_cmp_lg_u32 s58, 1")
        if capl:
            A(f"s_and_b32 vcc_lo, s3, {capsel}"); A("s_mov_b32 vcc_hi, 0")
    if bal:
        A("s_mov_b32 s58, 0"); A(f"v_mov_b32 v{LVA}, 0")
    setlevel()
    A("s_barrier")
    stamp("bar0"); stamp("clk0")
    for _ in range(nslot - npre): issue()
    stamp("issued")
    A(f"v_mov_b32 v{T0+1}, 0")
    A(f"s_mov_b32 s57, {SPIN * 8}")
    A("L_pollQ:")
    A(f"ds_read_b32 v{T0}, v{T0+1} offset:{LQF}")
    A(f"ds_read_b128 v[{Q0}:{Q0+3}], v{T0+2} offset:{LQ}")
    A("s_sub_u32 s57, s57, 1"); A("s_cbranch_scc1 L_pollQ_done")
    A("s_waitcnt lgkmcnt(0)")
    A(f"v_cmp_eq_u32 vcc, 0, v{T0}")
    A("s_nop 1")
    A("s_cbranch_vccnz L_pollQ")
    A("L_pollQ_done:")
    setlevel()
    stamp("qready")
    def early_issue(i):
        if ifirst:
            d = max(capof(i + 1 + k) for k in range(13)) if sched else dist
            while issued[0] < min(nst, i + 1 + d) and issued[0] - nslot < i and issued[0] - capof(issued[0]) <= i: issue()
    def maybe_issue(i):
        want = max(nslot + min(i + 1, burst + i // every) if i < nslot else 0, min(i + 1 + (max(capof(i + 1 + k) for k in range(13)) if sched else dist), nslot + i + 1))
        while issued[0] < min(nst, want): issue()
    for i in range(64):
        n = i % 16; r = slot(i)
        A(f"v_mov_b32 v{P0+n}, 0")
        wait_for(i); early_issue(i)
        for k in range(4): A(f"v_dot2c_f32_bf16 v{P0+n}, v{r+k}, v{Q0+k}")
        maybe_issue(i)
        if n == 15:
            a = i // 16
            for k in range(8):
                dpp("v_add_f32", P0 + k, P0 + k, "row_ror:8", bm="0x3"); dpp("v_add_f32", P0 + k, P0 + k + 8, "row_ror:8", bm="0xc")
            if gap and i >= nslot - 1 and gap > 1: issue()
            for k in range(4):
                dpp("v_add_f32", P0 + k, P0 + k, "row_half_mirror", bm="0x5"); dpp("v_add_f32", P0 + k, P0 + k + 4, "row_half_mirror", bm="0xa")
            for k in range(4): dpp("v_add_f32", P0 + k, P0 + k, "quad_perm:[2,3,0,1]")
            A(f"v_cndmask_b32 v{P0}, v{P0}, v{P0+2}, s[52:53]")
            A(f"v_cndmask_b32 v{P0+1}, v{P0+1}, v{P0+3}, s[52:53]")
            for k in range(2): dpp("v_add_f32", P0 + k, P0 + k, "quad_perm:[1,0,3,2]")
            A(f"v_cndmask_b32 v{S0+a}, v{P0}, v{P0+1}, s[54:55]")
            rbf(S0 + a)
            A(f"v_mul_f32 v{S0+a}, {SCALE}, v{S0+a}")
            rbf(S0 + a)
    stamp("kdone")
    A(f"v_max3_f32 v{T0}, v{S0}, v{S0+1}, v{S0+2}")
    A(f"v_max_f32 v{T0}, v{T0}, v{S0+3}")
    wave_red("v_max_f32", T0)
    if gap: issue()
    A(f"v_readlane_b32 s51, v{T0}, 63")
    for a in range(4): A(f"v_subrev_f32 v{S0+a}, s51, v{S0+a}")
    for a in range(4): A(f"v_mul_f32 v{S0+a}, {LOG2E}, v{S0+a}")
    for a in range(4): A(f"v_exp_f32 v{S0+a}, v{S0+a}")
    A(f"v_add_f32 v{T0+1}, v{S0}, v{S0+1}")
    A(f"v_add_f32 v{T0+3}, v{S0+2}, v{S0+3}")
    A(f"v_add_f32 v{T0+1}, v{T0+1}, v{T0+3}")
    if steal:
        A(f"v_bfe_u32 v{P0}, v0, 2, 2"); A(f"v_and_b32 v{P0+1}, 3, v0"); A(f"v_lshrrev_b32 v{P0+2}, 4, v0")
        A(f"v_lshlrev_b32 v{P0}, 8, v{P0}"); A(f"v_lshl_add_u32 v{P0}, v{P0+1}, 4, v{P0}"); A(f"v_lshl_add_u32 v{P0}, v{P0+2}, 2, v{P0}")
        A(f"v_lshl_add_u32 v{P0}, v{T0+4}, 4, v{P0}")
        A(f"ds_write_b32 v{P0}, v{S0+3} offset:{LP}")
    for a in range(4): A(f"v_cvt_pk_bf16_f32 v{S0+a}, v{S0+a}, v{S0+a}")
    abuild(AB, S0, M0, 0)
    if gap: issue()
    wave_red("v_add_f32", T0 + 1)
    A(f"v_lshlrev_b32 v{T0+3}, 1, v{T0+4}")
    A("s_mov_b32 exec_lo, 0"); A("s_mov_b32 exec_hi, 0x80000000")
    A(f"ds_write_b64 v{T0+3}, v[{T0}:{T0+1}] offset:{LML}")
    A("s_mov_b64 exec, -1")
    A(f"v_and_b32 v{T0}, 15, v0"); A(f"v_lshlrev_b32 v{T0}, 5, v{T0}")
    A(f"v_and_b32 v{T0+2}, 16, v0"); A(f"v_add_u32 v{T0}, v{T0}, v{T0+2}")
    A(f"v_lshl_add_u32 v{T0}, v{T0+4}, 7, v{T0}")
    if mlat: A(f"v_mov_b32 v{T0+1}, 0")
    def procv(i):
        wait_for(i); early_issue(i)
        mfma(D0, AB + 4 * (i & 1), slot(i), i == 64)
        if i < nst - 1: abuild(AB + 4 * ((i + 1) & 1), S0 + (i + 1 - 64) // 16, M0, (i + 1) % 16)
    if not steal:
        for i in range(64, 128):
            procv(i); maybe_issue(i)
            if i == mlat: A(f"ds_write_b32 v{T0+1}, v{T0+5} offset:{LPF}" if bal else f"ds_write_b32 v{T0+4}, v{T0+5} offset:{LPROG}")
            if i == 127 - plate:
                if mlat: A(f"ds_write_b32 v{T0+1}, v{T0+5} offset:{LGO}")
                elif bal: A(f"ds_write_b32 v{LVA}, v{T0+5} offset:{LGO}")
                else: A(f"ds_write_b32 v{T0+4}, v{T0+5} offset:{LPROG}")
    else:
        assert dist == 6 and cap == 6
        PR, RECA, PTA = P0, P0 + 4, P0 + 5
        UB = [slot(nst + 2 * k) for k in range(4)]
        assert UB[3] + 8 <= RING + 4 * nslot and UB == [UB[0] + 8 * k for k in range(4)]
        A(f"v_mov_b32 v{RECA}, {LREC}")
        A(f"v_and_b32 v{PTA}, 1, v0"); A(f"v_lshrrev_b32 v{P0+6}, 4, v0"); A(f"v_lshl_add_u32 v{PTA}, v{PTA}, 2, v{P0+6}")
        A(f"v_lshlrev_b32 v{PTA}, 2, v{PTA}"); A(f"v_lshl_add_u32 v{PTA}, v{T0+4}, 3, v{PTA}")
        A("s_lshl_b32 s58, s4, 21"); A("s_lshl_b32 s59, s3, 11"); A("s_add_u32 s58, s58, s59"); A(f"s_add_u32 s58, s58, {(1024 - 32 * np_) * 256}")
        A("s_mov_b32 s59, 0x10000")
        A("s_mov_b32 s68, 0x7fff0000")
        for i in range(64, nst - 6):
            procv(i); maybe_issue(i)
        assert issued[0] == nst
        lab = [0]
        def fetch(k):
            n = lab[0]; lab[0] += 1
            tick()
            A("s_mov_b32 s64, s68")
            A("s_cmp_lt_u32 s59, 4"); A(f"s_cbranch_scc1 L_go{n}")
            A(f"s_mov_b32 s57, {SPIN * 8}")
            A(f"L_rec{n}:")
            A(f"ds_read_b32 v{P0+6}, v{RECA}")
            A("s_sub_u32 s57, s57, 1"); A(f"s_cbranch_scc1 L_stop{n}")
            A("s_waitcnt lgkmcnt(0)")
            A(f"v_readfirstlane_b32 s65, v{P0+6}")
            A("s_cmp_eq_u32 s65, -1"); A(f"s_cbranch_scc1 L_rec{n}")
            A(f"s_cmp_lt_u32 s65, {8 * np_}"); A(f"s_cbranch_scc1 L_unit{n}")
            A(f"L_stop{n}:")
            A("s_mov_b32 s59, 3")
            A(f"s_branch L_go{n}")
            A(f"L_unit{n}:")
            A("s_and_b32 s66, s65, 7"); A("s_lshl_b32 s66, s66, 18"); A("s_lshr_b32 s67, s65, 3"); A("s_lshl_b32 s67, s67, 13")
            A("s_add_u32 s64, s58, s66"); A("s_add_u32 s64, s64, s67")
            A(f"s_lshl_b32 s{60+k}, s65, 7")
            A(f"v_add_u32 v{RECA}, 4, v{RECA}")
            A(f"L_go{n}:")
            if n < 3: stamp(f"rec{n}")
            for b in range(2): A(f"buffer_load_dwordx4 v[{UB[k]+4*b}:{UB[k]+4*b+3}], v{VL16}, s[12:15], s64 offen{off(1024*b)} {kvflags}")
        def pread(k):
            A(f"v_add_u32 v{P0+7}, s{60+k}, v{PTA}")
            A(f"ds_read_b32 v{PR+k}, v{P0+7} offset:{LPT}")
        for k in range(4): A(f"s_mov_b32 s{60+k}, 0")
        for k in range(3):
            fetch(k)
            for i in (nst - 6 + 2 * k, nst - 5 + 2 * k):
                A(f"s_waitcnt vmcnt({nst - 1 - i + 2 * (k + 1)})"); waited[0] = i
                procv(i)
            A("s_sub_u32 s59, s59, 1")
        stamp("static")
        A(f"v_mov_b32 v{P0+6}, 0")
        A(f"s_mov_b32 s57, {SPIN * 8}")
        A("L_pollT:")
        A(f"ds_read_b32 v{P0+7}, v{P0+6} offset:{LPF}")
        A(f"ds_read_b32 v{P0+8}, v{T0+4} offset:{LF}")
        A("s_sub_u32 s57, s57, 1"); A("s_cbranch_scc1 L_pollT_done")
        A("s_waitcnt lgkmcnt(0)")
        A(f"v_cmp_eq_u32 vcc, 0, v{P0+7}")
        A("s_nop 1")
        A("s_cbranch_vccnz L_pollT")
        A("L_pollT_done:")
        stamp("tready")
        pread(0)
        A("s_nop 7")
        for k in range(4): A(f"v_mul_f32 v{D0+k}, v{D0+k}, v{P0+8}")
        A("s_cmp_eq_u32 s59, 0"); A("s_cbranch_scc1 L_pool_done")
        A("L_pool:")
        for k in range(4):
            fetch((k + 3) % 4)
            A("s_waitcnt lgkmcnt(0)")
            abuild(AB, PR + k, M0, 0); abuild(AB + 4, PR + k, M0, 1)
            pread((k + 1) % 4)
            A("s_waitcnt vmcnt(7)")
            mfma(D0, AB, UB[k], False)
            A("s_waitcnt vmcnt(6)")
            mfma(D0, AB + 4, UB[k] + 4, False)
            A("s_sub_u32 s59, s59, 1"); A("s_cmp_eq_u32 s59, 0")
            A("s_cbranch_scc1 L_pool_done" if k < 3 else "s_cbranch_scc0 L_pool")
        A("L_pool_done:")
        A("s_nop 5")
    stamp("vdone"); stamp("clk2")
    A("s_mov_b32 exec_hi, 0")
    A(f"ds_write_b128 v{T0}, v[{D0}:{D0+3}] offset:{LO}")
    A("s_waitcnt lgkmcnt(0)")
    A("s_barrier")
    dump_stamps()
    A("s_endpgm")
    if steal:
        A("L_claim:")
        srd(40, 88, WS_BYTES)
        A("s_lshl_b32 s48, s4, 7"); A(f"s_add_u32 s48, s48, {WS_C}")
        A("v_mov_b32 v1, 0"); A(f"v_mov_b32 v3, {LREC}"); A(f"v_mov_b32 v12, {END}")
        A("s_mov_b32 s49, 0")
        A("s_barrier")
        A("s_waitcnt lgkmcnt(0)")
        A("s_mov_b64 exec, 1")
        cl = [0]
        def wait_prog(lim):
            n = cl[0]; cl[0] += 1
            A(f"s_mov_b32 s57, {SPIN * 8}")
            A(f"L_cw{n}:")
            A(f"s_sleep {lsleep}")
            A(f"ds_read_b128 v[4:7], v1 offset:{LPROG}")
            A("s_sub_u32 s57, s57, 1"); A("s_cbranch_scc1 L_claim_end")
            A("s_waitcnt lgkmcnt(0)")
            A("v_max3_u32 v4, v4, v5, v6"); A("v_max_u32 v4, v4, v7")
            A(f"v_cmp_ge_u32 vcc, s{lim}, v4")
            A("s_nop 1")
            A(f"s_cbranch_vccnz L_cw{n}")
        def claim(k):
            wait_prog(49)
            if noatom:
                A("s_lshl_b32 s51, s49, 3"); A("s_add_u32 s51, s51, s5"); A(f"v_mov_b32 v{8+k}, s51")
            else:
                A(f"v_mov_b32 v{8+k}, 1")
                A(f"buffer_atomic_add v{8+k}, v1, s[40:43], s48 offen {aflags}")
            A("s_add_u32 s49, s49, 1")
        for k in range(3): claim(k)
        A("L_claim_loop:")
        for k in range(4):
            claim((k + 3) % 4)
            A("s_waitcnt vmcnt(3)")
            A(f"ds_write_b32 v3, v{8+k}")
            A(f"v_cmp_le_u32 vcc, {8 * np_}, v{8+k}")
            A("v_add_u32 v3, 4, v3")
            A("s_nop 0")
            A("s_cbranch_vccnz L_claim_done" if k < 3 else "s_cbranch_vccz L_claim_loop")
        A("L_claim_done:")
        A(f"s_add_u32 s49, s49, {ah - 4 + golate}")
        wait_prog(49)
        A("L_claim_end:")
        A("ds_write_b32 v3, v12")
        A("v_mov_b32 v2, 1")
        A(f"ds_write_b32 v1, v2 offset:{LGO}")
        A("s_waitcnt lgkmcnt(0)")
        A("s_endpgm")
    if bal and bsm:
        nt = (bto - bfrom) // tk + 1
        A("L_claim:")
        srd(40, 88, WS_BYTES)
        A("s_and_b32 s52, s2, 7"); A("s_lshl_b32 s52, s52, 7"); A(f"s_add_u32 s48, s52, {WS_B}"); A("s_add_u32 s46, s48, 64")
        A("s_lshr_b32 s51, s2, 3"); A("s_lshl_b32 s53, s51, 2")
        A("v_mov_b32 v1, 0"); A("v_mov_b32 v3, s53")
        A("s_mov_b32 s49, 0"); A("s_mov_b32 s47, 0")
        A("s_barrier")
        A("s_mov_b64 exec, 1")
        A(f"s_mov_b32 s57, {SPIN * 8}")
        A("L_baltag:")
        A("s_sleep 4")
        A(f"ds_read_b32 v8, v1 offset:{LTAG}")
        A("s_sub_u32 s57, s57, 1"); A("s_cbranch_scc1 L_bal_end")
        A("s_waitcnt lgkmcnt(0)")
        A("v_readfirstlane_b32 s60, v8")
        A("s_cmp_eq_u32 s60, -1"); A("s_cbranch_scc1 L_baltag")
        if xb: A(f"s_add_u32 s44, s52, {WS_G}"); A("s_add_u32 s45, s44, 0x800")
        A("L_bal:")
        A(f"s_mov_b32 s57, {SPIN * 8}")
        A("L_balw:")
        A(f"s_sleep {lsleep}")
        A(f"ds_read_b128 v[4:7], v1 offset:{LPROG}")
        A("s_sub_u32 s57, s57, 1"); A("s_cbranch_scc1 L_bal_end")
        A("s_waitcnt lgkmcnt(0)")
        A("v_min3_u32 v4, v4, v5, v6"); A("v_min_u32 v4, v4, v7")
        A("v_readfirstlane_b32 s53, v4")
        A("s_cmp_le_u32 s53, s49"); A("s_cbranch_scc1 L_balw")
        A("s_mov_b32 s49, s53")
        A("v_lshl_or_b32 v4, v4, 10, v8")
        A("buffer_store_dword v4, v3, s[40:43], s48 offen")
        A("s_load_dwordx16 s[64:79], s[40:41], s48 glc"); A("s_load_dwordx16 s[80:95], s[40:41], s46 glc")
        if xb: A("s_load_dword s61, s[40:41], s45 glc")
        A("s_waitcnt lgkmcnt(0)")
        A("s_cmp_lg_u32 s47, 0"); A("s_cbranch_scc1 L_bal_sum")
        A("s_mov_b32 s54, 0")
        for k in range(32): A(f"s_xor_b32 s55, s{64+k}, s60"); A("s_or_b32 s54, s54, s55")
        A("s_and_b32 s54, s54, 0x3ff"); A("s_cbranch_scc1 L_bal_next")
        A("s_mov_b32 s47, 1")
        A("L_bal_sum:")
        for st in (16, 8, 4, 2, 1):
            for k in range(st): A(f"s_add_u32 s{64+k}, s{64+k}, s{64+k+st}")
        A("s_mul_i32 s54, s60, 32"); A("s_sub_u32 s64, s64, s54"); A("s_lshr_b32 s64, s64, 10")
        A("s_lshl_b32 s54, s49, 5"); A("s_sub_i32 s55, s64, s54")
        if xb:
            gnum, gsh, gmid = xb
            A("s_xor_b32 s54, s61, s60"); A("s_and_b32 s54, s54, 0x3ff"); A("s_ashr_i32 s61, s61, 10")
            A("s_cmp_eq_u32 s54, 0"); A("s_cselect_b32 s61, s61, 0"); A("s_add_i32 s55, s55, s61")
        A("s_mov_b32 s56, 0")
        A(f"s_cmp_gt_i32 s55, {bmid + th}"); A("s_cselect_b32 s56, 2, s56")
        A(f"s_cmp_lt_i32 s55, {bmid - (th if thl is None else thl)}"); A("s_cselect_b32 s56, 1, s56")
        A("v_mov_b32 v6, s56")
        A(f"ds_write_b32 v1, v6 offset:{LLV}")
        if xb:
            A("s_cmp_lg_u32 s51, 0"); A("s_cbranch_scc1 L_bal_next")
            A("s_lshl_b32 s54, s64, 10"); A("s_or_b32 s54, s54, s60"); A("v_mov_b32 v5, s54")
            A("buffer_store_dword v5, v1, s[40:43], s44 offen sc1")
            for k in range(8): A(f"s_mov_b32 s54, {WS_G + 128 * k}"); A(f"s_load_dword s{66+k}, s[40:41], s54 glc")
            A("s_waitcnt lgkmcnt(0)")
            A("s_mov_b32 s54, 0"); A("s_mov_b32 s62, 0")
            for k in range(8):
                A(f"s_xor_b32 s55, s{66+k}, s60"); A("s_or_b32 s54, s54, s55"); A(f"s_lshr_b32 s55, s{66+k}, 10"); A("s_add_u32 s62, s62, s55")
            A("s_and_b32 s54, s54, 0x3ff"); A("s_cbranch_scc1 L_bal_next")
            A("s_lshl_b32 s54, s64, 3"); A("s_sub_i32 s62, s62, s54"); A(f"s_add_i32 s62, s62, {gmid * 8}")
            A(f"s_mul_i32 s62, s62, {gnum}"); A(f"s_ashr_i32 s62, s62, {gsh + 3}")
            A("s_lshl_b32 s62, s62, 10"); A("s_or_b32 s62, s62, s60"); A("v_mov_b32 v5, s62")
            A("buffer_store_dword v5, v1, s[40:43], s45 offen")
        A("L_bal_next:")
        A(f"s_cmp_lt_u32 s49, {nt}"); A("s_cbranch_scc1 L_bal")
        A("L_bal_end:")
        A("s_endpgm")
    elif bal and bv:
        nt = (bto - bfrom) // tk + 1
        A("L_claim:")
        srd(40, 88, WS_BYTES)
        A("s_and_b32 s52, s2, 7"); A("s_lshl_b32 s52, s52, 7"); A(f"s_add_u32 s48, s52, {WS_B}")
        A("s_lshr_b32 s51, s2, 3"); A("s_lshl_b32 s53, s51, 2")
        A("v_mov_b32 v1, 0"); A("v_mov_b32 v3, s53"); A("v_and_b32 v2, 31, v0"); A("v_lshlrev_b32 v2, 2, v2")
        if xb:
            A(f"v_mov_b32 v9, {WS_G + 0x800 - WS_B}"); A("s_mov_b32 s62, 0"); A("s_mov_b32 s63, -1"); A("v_cndmask_b32 v2, v2, v9, s[62:63]")
            A(f"s_add_u32 s44, s52, {WS_G}"); A("s_add_u32 s45, s44, 0x800")
        A("s_mov_b32 s49, 0")
        A("s_barrier")
        A(f"s_mov_b32 s57, {SPIN * 8}")
        A("L_baltag:")
        A("s_sleep 4")
        A(f"ds_read_b32 v8, v1 offset:{LTAG}")
        A("s_sub_u32 s57, s57, 1"); A("s_cbranch_scc1 L_bal_end")
        A("s_waitcnt lgkmcnt(0)")
        A("v_cmp_eq_u32 vcc, -1, v8")
        A("s_nop 1")
        A("s_cbranch_vccnz L_baltag")
        if xb: A(f"s_add_u32 s46, s40, {WS_G}"); A("s_addc_u32 s47, s41, 0")
        A("L_bal:")
        A(f"s_mov_b32 s57, {SPIN * 8}")
        A("L_balw:")
        A(f"s_sleep {lsleep}")
        A(f"ds_read_b128 v[4:7], v1 offset:{LPROG}")
        A("s_sub_u32 s57, s57, 1"); A("s_cbranch_scc1 L_bal_end")
        A("s_waitcnt lgkmcnt(0)")
        A("v_min3_u32 v4, v4, v5, v6"); A("v_min_u32 v4, v4, v7")
        A("v_readfirstlane_b32 s53, v4")
        A("s_cmp_le_u32 s53, s49"); A("s_cbranch_scc1 L_balw")
        A("s_mov_b32 s49, s53")
        A("v_lshl_or_b32 v6, v4, 10, v8")
        A("s_mov_b64 exec, 1")
        A("buffer_store_dword v6, v3, s[40:43], s48 offen")
        A("s_mov_b64 exec, -1")
        A("buffer_load_dword v5, v2, s[40:43], s48 offen sc1")
        A("s_waitcnt vmcnt(0)")
        A("v_and_b32 v6, 0x3ff, v5"); A("v_cmp_eq_u32 vcc, v6, v8"); A("v_ashrrev_i32 v5, 10, v5")
        if xb:
            A("v_cndmask_b32 v6, 0, v5, vcc"); A("v_readlane_b32 s61, v6, 32")
        A("v_cndmask_b32 v5, v4, v5, vcc")
        for c in ("quad_perm:[1,0,3,2]", "quad_perm:[2,3,0,1]", "row_half_mirror", "row_mirror"):
            A(f"v_add_u32_dpp v5, v5, v5 {c} row_mask:0xf bank_mask:0xf")
        A("v_add_u32_dpp v5, v5, v5 row_bcast:15 row_mask:0xa bank_mask:0xf")
        A("v_readlane_b32 s60, v5, 31")
        A("s_lshl_b32 s54, s49, 5"); A("s_sub_i32 s55, s60, s54")
        if xb: A("s_add_i32 s55, s55, s61")
        A("s_mov_b32 s56, 0")
        A(f"s_cmp_gt_i32 s55, {bmid + th}"); A("s_cselect_b32 s56, 2, s56")
        A(f"s_cmp_lt_i32 s55, {bmid - (th if thl is None else thl)}"); A("s_cselect_b32 s56, 1, s56")
        A("v_mov_b32 v6, s56")
        A(f"ds_write_b32 v1, v6 offset:{LLV}")
        if xb:
            gnum, gsh, gmid = xb
            A("s_cmp_lg_u32 s51, 0"); A("s_cbranch_scc1 L_bal_next")
            if xper > 1:
                A(f"s_and_b32 s54, s49, {xper - 1}"); A("s_cbranch_scc1 L_bal_next")
            A("v_mov_b32 v4, s60"); A("v_lshl_or_b32 v6, v4, 10, v8")
            A("s_mov_b64 exec, 1")
            A("buffer_store_dword v6, v1, s[40:43], s44 offen sc1")
            A("s_mov_b64 exec, -1")
            for k in range(8): A(f"s_load_dword s{66+k}, s[46:47], {128 * k} glc")
            A("v_readfirstlane_b32 s65, v8")
            A("s_waitcnt lgkmcnt(0)")
            A("s_mov_b32 s54, 0"); A("s_mov_b32 s62, 0")
            for k in range(8):
                A(f"s_xor_b32 s55, s{66+k}, s65"); A("s_or_b32 s54, s54, s55"); A(f"s_lshr_b32 s55, s{66+k}, 10"); A("s_add_u32 s62, s62, s55")
            A("s_and_b32 s54, s54, 0x3ff"); A("s_cbranch_scc1 L_bal_next")
            A("s_lshl_b32 s54, s60, 3"); A("s_sub_i32 s62, s62, s54"); A(f"s_add_i32 s62, s62, {gmid * 8}")
            A(f"s_mul_i32 s62, s62, {gnum}"); A(f"s_ashr_i32 s62, s62, {gsh + 3}")
            A("v_mov_b32 v4, s62"); A("v_lshl_or_b32 v6, v4, 10, v8")
            A("s_mov_b64 exec, 1")
            A("buffer_store_dword v6, v1, s[40:43], s45 offen")
            A("s_mov_b64 exec, -1")
        A("L_bal_next:")
        A(f"s_cmp_lt_u32 s49, {nt}"); A("s_cbranch_scc1 L_bal")
        A("L_bal_end:")
        A("s_endpgm")
    elif bal:
        nt = (bto - bfrom) // tk + 1
        A("L_claim:")
        srd(40, 88, WS_BYTES)
        if bloc:
            A("s_and_b32 s48, s2, 7"); A("s_lshl_b32 s48, s48, 7"); A(f"s_add_u32 s48, s48, {WS_B}")
            A("s_lshr_b32 s51, s2, 3")
            A("v_mov_b32 v1, 0"); A("v_and_b32 v2, 31, v0"); A("v_lshlrev_b32 v2, 2, v2")
            A("s_lshl_b32 s52, s51, 2"); A("v_mov_b32 v3, s52")
        else:
            A(f"s_lshr_b32 s48, s2, {bgrp}"); A(f"s_lshl_b32 s48, s48, {max(7, bgrp + bstr)}"); A(f"s_add_u32 s48, s48, {WS_B}")
            A(f"s_and_b32 s51, s2, {(1 << bgrp) - 1}")
            A("v_mov_b32 v1, 0"); A(f"v_and_b32 v2, {(1 << bgrp) - 1}, v0"); A(f"v_lshlrev_b32 v2, {bstr}, v2")
            A(f"s_lshl_b32 s52, s51, {bstr}"); A("v_mov_b32 v3, s52")
        A(f"s_mov_b32 s79, {WS_E}")
        A("s_mov_b32 s49, 0")
        A("s_barrier")
        A("s_waitcnt lgkmcnt(0)")
        A("buffer_load_dword v8, v1, s[40:43], s79 offen sc1")
        A("s_waitcnt vmcnt(0)")
        A("v_add_u32 v8, 1, v8"); A("v_and_b32 v8, 0x3ff, v8")
        A("L_bal:")
        A(f"s_mov_b32 s57, {SPIN * 8}")
        A("L_balw:")
        A(f"s_sleep {lsleep}")
        A(f"ds_read_b128 v[4:7], v1 offset:{LPROG}")
        A("s_sub_u32 s57, s57, 1"); A("s_cbranch_scc1 L_bal_end")
        A("s_waitcnt lgkmcnt(0)")
        A("v_min3_u32 v4, v4, v5, v6"); A("v_min_u32 v4, v4, v7")
        A("v_readfirstlane_b32 s53, v4")
        A("s_cmp_le_u32 s53, s49"); A("s_cbranch_scc1 L_balw")
        A("s_mov_b32 s49, s53")
        A("v_lshl_or_b32 v4, v4, 10, v8")
        A("s_mov_b64 exec, 1")
        A(f"buffer_store_dword v4, v3, s[40:43], s48 offen {'' if bloc else 'sc1'}")
        A("s_mov_b64 exec, -1")
        A("buffer_load_dword v5, v2, s[40:43], s48 offen sc1")
        A("s_waitcnt vmcnt(0)")
        A("v_and_b32 v6, 0x3ff, v5"); A("v_cmp_eq_u32 vcc, v6, v8"); A("v_lshrrev_b32 v5, 10, v5")
        A("v_cndmask_b32 v5, 0, v5, vcc")
        A("v_readlane_b32 s54, v5, s51")
        if bloc:
            A("v_mov_b32 v6, s54"); A("v_cndmask_b32 v5, v6, v5, vcc")
            for c in ("quad_perm:[1,0,3,2]", "quad_perm:[2,3,0,1]", "row_half_mirror", "row_mirror"):
                A(f"v_add_u32_dpp v5, v5, v5 {c} row_mask:0xf bank_mask:0xf")
            A("v_add_u32_dpp v5, v5, v5 row_bcast:15 row_mask:0xa bank_mask:0xf")
            A("v_readlane_b32 s55, v5, 31")
            A("s_lshl_b32 s54, s54, 5"); A("s_sub_i32 s55, s55, s54")
        else:
            for c in ("quad_perm:[1,0,3,2]", "quad_perm:[2,3,0,1]", "row_half_mirror") + (("row_mirror",) if bgrp > 3 else ()):
                A(f"v_add_u32_dpp v5, v5, v5 {c} row_mask:0xf bank_mask:0xf")
            A("v_readfirstlane_b32 s55, v5")
            A(f"s_lshl_b32 s54, s54, {bgrp}"); A("s_sub_i32 s55, s55, s54")
        A("s_mov_b32 s56, 0")
        A(f"s_cmp_gt_i32 s55, {bmid + th}"); A("s_cselect_b32 s56, 2, s56")
        A(f"s_cmp_lt_i32 s55, {bmid - (th if thl is None else thl)}"); A("s_cselect_b32 s56, 1, s56")
        A("v_mov_b32 v6, s56")
        A(f"ds_write_b32 v1, v6 offset:{LLV}")
        A(f"s_cmp_lt_u32 s49, {nt}"); A("s_cbranch_scc1 L_bal")
        A("L_bal_end:")
        A("s_waitcnt lgkmcnt(0)")
        A("s_endpgm")
    stream_body = A.L[stream_at:]; del A.L[stream_at:]

    role[0] = "S"; stamp_list.append(("S", "start"))
    G, J, PD, M0, AB, DQ, DG, T0 = 1, 2, 3, 4, 8, 16, 20, 24
    XA, XR, EP, GA, OUTA, XF, PH, XV, WDA, WOA, RA, OGA, TAG, GV, L16 = 40, 44, 45, 46, 48, 49, 50, 51, 52, 58, 59, 60, 61, 62, 63
    WQ, GU = 64, 128
    WO, WD, PS = 64, 128, 160
    def tag(regs, kind=""):
        if kind and kind in rnd:
            for r in regs: A(f"v_add_u32 v{r}, 0x200, v{r}")
        for r in regs: A(f"v_and_or_b32 v{r}, v{r}, s7, v{TAG}")
    def untag(regs):
        for r in regs: A(f"v_and_b32 v{r}, s7, v{r}")
    def check(regs, t):
        regs = list(regs)
        pairs = [regs[k:k+2] for k in range(0, len(regs), 2)]
        A(f"v_bitop3_b32 v{t}, v{pairs[0][0]}, v{pairs[0][1]}, v{TAG} bitop3:0x7e")
        rest = pairs[1:]
        while rest:
            take = rest[:2]; rest = rest[2:]
            for k, p in enumerate(take): A(f"v_bitop3_b32 v{t+1+k}, v{p[0]}, v{p[1]}, v{TAG} bitop3:0x7e")
            if len(take) == 2: A(f"v_or3_b32 v{t}, v{t}, v{t+1}, v{t+2}")
            else: A(f"v_or_b32 v{t}, v{t}, v{t+1}")
        A(f"v_and_b32 v{t}, 0x3ff, v{t}")
        A(f"v_cmp_ne_u32 vcc, 0, v{t}")
    def strip(regs, t):
        regs = list(regs)
        for r in regs[::2]: A(f"v_lshl_add_u64 v[{r}:{r+1}], v[{r}:{r+1}], 0, s[14:15]")
        acc = [t, t + 1]; rest = regs[:]
        for a in acc: A(f"v_or3_b32 v{a}, v{rest[0]}, v{rest[1]}, v{rest[2]}"); rest = rest[3:]
        k = 0
        while len(rest) > 2 or (len(rest) == 2 and k & 1):
            A(f"v_or3_b32 v{acc[k&1]}, v{acc[k&1]}, v{rest[0]}, v{rest[1]}"); rest = rest[2:]; k += 1
        if len(rest) == 2:
            A(f"v_or3_b32 v{t}, v{t}, v{rest[0]}, v{rest[1]}"); rest = []
        assert not rest
        A(f"v_bitop3_b32 v{t}, v{t}, v{t+1}, s7 bitop3:0x54")
        A(f"v_cmp_ne_u32 vcc, 0, v{t}")
    def pub4(kind, r, va, sreg, flags="sc1"):
        if kind in atom:
            for k in (0, 2): A(f"buffer_atomic_swap_x2 v[{r+k}:{r+k+1}], v{va}, s[40:43], s{sreg} offen{off(4*k)} sc1")
        else: A(f"buffer_store_dwordx4 v[{r}:{r+3}], v{va}, s[40:43], s{sreg} offen {flags}")
    def pkadd(d, a, b): A(f"v_pk_add_f32 v[{d}:{d+1}], v[{a}:{a+1}], v[{b}:{b+1}]")
    def poll(name, loads, regs, t, sleep):
        A(f"s_mov_b32 s70, {SPIN}")
        A(f"L_{name}:")
        if sleep: A(f"s_sleep {sleep}")
        loads()
        A("s_sub_u32 s70, s70, 1"); A(f"s_cbranch_scc1 L_{name}_done")
        A("s_waitcnt vmcnt(0)")
        if callable(regs): regs()
        else: check(regs, t)
        A("s_nop 1")
        if name not in skip.split(): A(f"s_cbranch_vccnz L_{name}")
        A(f"L_{name}_done:")
    def poll_pipe(name, R, delay, nreg, nld, loads, finish):
        A(f"s_mov_b32 s70, {SPIN}")
        for k in range(R - 1):
            loads(PS + nreg * k)
            if delay: A(f"s_sleep {delay}")
        A(f"L_{name}:")
        for k in range(R):
            if name == "pollO" and osleep: A(f"s_sleep {osleep}")
            loads(PS + nreg * ((k + R - 1) % R))
            if k == 0:
                A("s_sub_u32 s70, s70, 1"); A(f"s_cbranch_scc1 L_{name}_ok0")
            A(f"s_waitcnt vmcnt({nld * (R - 1)})")
            b = PS + nreg * k
            (strip if fast else check)(range(b, b + nreg), T0)
            A("s_nop 1")
            if name in skip.split(): A(f"s_branch L_{name}_ok{k}")
            A(f"s_cbranch_vccz L_{name}_ok{k}" if k < R - 1 else f"s_cbranch_vccnz L_{name}")
        for k in reversed(range(R)):
            A(f"L_{name}_ok{k}:")
            finish(PS + nreg * k)
            if k: A(f"s_branch L_{name}_done")
        A(f"L_{name}_done:")

    A("L_service:")
    (any(prio) and A(f"s_setprio {prio[0]}"))
    srd(16, 0, 1024); srd(20, 24, 4 << 20); srd(40, 88, WS_BYTES)
    A("s_load_dwordx4 s[44:47], s[0:1], 48")
    srd(24, 32, 4 << 20); srd(28, 64, 1376 * 1024); srd(32, 72, 1024)
    A(f"v_lshrrev_b32 v{G}, 4, v0"); A(f"v_and_b32 v{J}, 15, v0")
    if amap:
        HP, SP = 38, 39
        A("s_lshr_b32 s38, s2, 3"); A("s_and_b32 s39, s2, 7")
    else: HP, SP = 4, 5
    def chunks(hreg):
        if numa:
            A(f"s_and_b32 s7, s{hreg}, 3"); A("s_lshl_b32 s7, s7, 3"); A(f"s_lshr_b32 s48, s{hreg}, 2"); A("s_add_u32 s7, s7, s48")
            A("s_mul_i32 s56, s7, 43")
        elif mapx or amap: A(f"s_mul_i32 s56, s{hreg}, 43")
        else:
            A(f"s_and_b32 s7, s{hreg}, 7"); A("s_lshl_b32 s7, s7, 2"); A(f"s_lshr_b32 s48, s{hreg}, 3"); A("s_add_u32 s7, s7, s48")
            A("s_mul_i32 s56, s7, 43")
        A("s_add_u32 s57, s56, 43"); A("s_lshr_b32 s56, s56, 3"); A("s_lshr_b32 s57, s57, 3")
        A("s_sub_u32 s57, s57, s56")
    chunks(HP)
    A(f"v_lshlrev_b32 v{L16}, 4, v0")
    A(f"s_lshl_b32 s48, s{SP}, 7")
    A(f"v_lshlrev_b32 v{T0+1}, 1, v0")
    A(f"v_lshlrev_b32 v{T0+3}, 4, v{J}")
    A(f"v_lshl_add_u32 v{T0+2}, v{G}, 17, v{T0+3}")
    A(f"s_lshl_b32 s49, s{SP}, 19"); A(f"s_lshl_b32 s51, s{HP}, 8"); A("s_add_u32 s49, s49, s51")
    A(f"v_and_b32 v{T0+4}, 7, v0")
    A(f"v_cmp_gt_u32 vcc, s57, v{T0+4}")
    A("s_mov_b32 s51, 44032"); A(f"s_mul_i32 s58, s{SP}, 176128")
    A(f"v_cndmask_b32 v{T0+4}, 0, v{T0+4}, vcc")
    A(f"v_add_lshl_u32 v{T0+4}, v{T0+4}, s56, 4")
    A(f"v_mad_u32_u24 v{T0+4}, v{G}, s51, v{T0+4}")
    A(f"v_add_u32 v{T0+4}, s58, v{T0+4}")
    A(f"v_mov_b32 v{T0+5}, 0")
    A(f"v_cmp_lt_u32 vcc, 7, v{J}")
    A(f"s_mov_b32 s79, {WS_E}")
    A("s_mov_b32 s60, 5504"); A("s_mov_b32 s61, 0")
    A("s_waitcnt lgkmcnt(0)")
    stamp("skarg")
    if steal:
        A(f"s_cmp_lg_u32 s{SP}, 0"); A("s_cbranch_scc1 L_noreset")
        A(f"s_lshl_b32 s51, s{HP}, 7"); A(f"s_add_u32 s51, s51, {WS_C}")
        A("s_mov_b64 exec, 1")
        A(f"buffer_store_dword v{T0+5}, v{T0+5}, s[40:43], s51 offen sc1")
        A("s_mov_b64 exec, -1")
        A("L_noreset:")
    if pre:
        A("s_lshl_b32 s6, s4, 3"); A("s_add_u32 s6, s6, s5")
        if "A" in pre:
            A(f"s_lshl_b32 s51, s{2 if amap else 6}, 10")
            A(f"buffer_load_dword v{T0+10}, v{L16}, s[40:43], s51 offen {preflags}")
        if "Y" in pre:
            A("s_lshl_b32 s51, s2, 9"); A(f"s_add_u32 s51, s51, {WS_Y}"); A(f"v_lshrrev_b32 v{T0+11}, 1, v{L16}")
            A(f"buffer_load_dword v{T0+10}, v{T0+11}, s[40:43], s51 offen {preflags}")
        if "S" in pre:
            A("s_lshl_b32 s51, s2, 9"); A(f"s_add_u32 s51, s51, {WS_S}"); A(f"v_lshrrev_b32 v{T0+11}, 1, v{L16}")
            A(f"buffer_load_dword v{T0+10}, v{T0+11}, s[40:43], s51 offen {preflags}")
    A(f"buffer_load_dwordx4 v[{XA}:{XA+3}], v{L16}, s[16:19], 0 offen")
    A(f"buffer_load_ushort v{XR}, v{T0+1}, s[16:19], s48 offen")
    A(f"buffer_load_dword v{EP}, v{T0+5}, s[40:43], s79 offen sc1")
    stamp("sx")
    A(f"v_mov_b32 v{T0+6}, s44"); A(f"v_mov_b32 v{T0+7}, s45"); A(f"v_mov_b32 v{T0+8}, s46"); A(f"v_mov_b32 v{T0+9}, s47")
    A(f"v_cndmask_b32 v{GA}, v{T0+6}, v{T0+8}, vcc"); A(f"v_cndmask_b32 v{GA+1}, v{T0+7}, v{T0+9}, vcc")
    A(f"v_lshl_add_u64 v[{GA}:{GA+1}], v[{T0+4}:{T0+5}], 0, v[{GA}:{GA+1}]")
    def lds_init():
        A(f"v_cmp_gt_u32 vcc, 8, v0"); A(f"v_lshlrev_b32 v{T0+7}, 2, v0"); A("s_mov_b32 s7, 0xfffffc00")
        A(f"v_cndmask_b32 v{T0+6}, 0, -1, vcc")
        A("s_mov_b64 exec, 0xffff")
        A(f"ds_write_b32 v{T0+7}, v{T0+6} offset:{LML}")
        A("s_mov_b64 exec, -1")
        if bal and (bsm or bv):
            A(f"v_mov_b32 v{T0+6}, -1"); A(f"ds_write_b32 v{T0+5}, v{T0+6} offset:{LTAG}")
        if steal:
            A(f"v_mov_b32 v{T0+6}, -1")
            A(f"ds_write_b32 v{T0+7}, v{T0+6} offset:{LREC}"); A(f"ds_write_b32 v{T0+7}, v{T0+6} offset:{LREC+64}")
        A("s_waitcnt lgkmcnt(0)")
        A("s_barrier")
    for n in range(16):
        if n in (4, 8): stamp(f"s{2*n}")
        if n == bar0: lds_init()
        if scap and 2 * n + 3 >= scap: A(f"s_waitcnt vmcnt({scap - 2})")
        if "W" in skip.split(): A(f"buffer_load_dword v{WQ+4*n}, v{T0+5}, s[16:19], 0 offen")
        else: A(f"buffer_load_dwordx4 v[{WQ+4*n}:{WQ+4*n+3}], v{T0+2}, s[20:23], s49 offen {wflags}")
        if "G" in skip.split(): A(f"buffer_load_dword v{GU+4*n}, v{T0+5}, s[16:19], 0 offen")
        else: A(f"global_load_dwordx4 v[{GU+4*n}:{GU+4*n+3}], v[{GA}:{GA+1}], off{off(2752 * (n & 1))} {gflags}")
        if n < 15: A("s_addk_i32 s49, 0x2000")
        if n & 1 and n < 15: A(f"v_lshl_add_u64 v[{GA}:{GA+1}], v[{GA}:{GA+1}], 0, s[60:61]")
    if bar0 == 16: lds_init()
    stamp("issued")
    masks(M0, T0 + 6, T0 + 7)
    A("s_and_b32 s58, s5, 3"); A("s_lshr_b32 s59, s5, 2")
    A("s_lshl_b32 s6, s4, 3"); A("s_add_u32 s6, s6, s5")
    A(f"v_lshlrev_b32 v{OUTA}, 5, v{J}"); A(f"v_and_b32 v{T0}, 16, v0"); A(f"v_add_u32 v{OUTA}, v{OUTA}, v{T0}")
    A("s_lshl_b32 s63, s6, 9"); A(f"s_add_u32 s63, s63, {WS_O}")
    if t64:
        assert fast and not (lin or steal or mapx)
        A("s_lshl_b32 s64, s5, 5"); A("s_add_u32 s64, s64, s4"); A(f"s_lshl_b32 s64, s64, {9 if ys else 8}")
    else:
        A("s_lshl_b32 s64, s58, 6"); A("s_lshl_b32 s48, s4, 1"); A("s_add_u32 s64, s64, s48"); A("s_add_u32 s64, s64, s59")
        A("s_lshl_b32 s64, s64, 9")
    SBASE = WS_Y + 64 if ys else (sofs or WS_S)
    A(f"s_add_u32 s65, s64, {WS_Y}")
    if wpar is not None:
        assert t64 and not ys
        SBASE = WS_S + (wpar << 13) - 0
        A("s_lshl_b32 s48, s5, 13"); A("s_add_u32 s64, s64, s48")
    A(f"s_add_u32 s64, s64, {SBASE}")
    A(f"s_lshl_b32 s66, s6, {mlstr}"); A(f"s_add_u32 s66, s66, {WS_ML}")
    A(f"s_lshl_b32 s67, s{2 if amap else 6}, 10")
    if amap: chunks(4)
    A("s_mov_b32 s68, 0"); A("s_mov_b32 s69, -1")
    A("s_waitcnt vmcnt(32)")
    stamp("x")
    for k in range(4):
        A(f"v_lshlrev_b32 v{T0+2*k}, 16, v{XA+k}"); A(f"v_and_b32 v{T0+2*k+1}, 0xffff0000, v{XA+k}")
    A(f"v_add_f32 v{T0+8}, v{T0}, v{T0+1}"); A(f"v_add_f32 v{T0+9}, v{T0+2}, v{T0+3}")
    A(f"v_add_f32 v{T0+10}, v{T0+4}, v{T0+5}"); A(f"v_add_f32 v{T0+11}, v{T0+6}, v{T0+7}")
    A(f"v_add_f32 v{T0+8}, v{T0+8}, v{T0+9}"); A(f"v_add_f32 v{T0+10}, v{T0+10}, v{T0+11}")
    A(f"v_add_f32 v{T0+8}, v{T0+8}, v{T0+10}")
    A(f"v_add_u32 v{EP}, 1, v{EP}"); A(f"v_and_b32 v{TAG}, 0x3ff, v{EP}")
    if bal and (bsm or bv):
        A(f"v_mov_b32 v{T0+12}, 0"); A(f"ds_write_b32 v{T0+12}, v{TAG} offset:{LTAG}")
    if fast:
        A(f"v_readfirstlane_b32 s13, v{TAG}"); A("s_sub_u32 s14, 0, s13"); A("s_subb_u32 s15, 0, s13")
    wave_red("v_add_f32", T0 + 8)
    A(f"v_mul_f32 v{T0+8}, 0x3b000000, v{T0+8}")
    A(f"v_readlane_b32 s51, v{T0+8}, 63")
    for k in range(8): A(f"v_subrev_f32 v{T0+k}, s51, v{T0+k}")
    A(f"v_mul_f32 v{T0+9}, v{T0}, v{T0}"); A(f"v_mul_f32 v{T0+10}, v{T0+1}, v{T0+1}")
    for k in range(2, 8, 2):
        A(f"v_fmac_f32 v{T0+9}, v{T0+k}, v{T0+k}"); A(f"v_fmac_f32 v{T0+10}, v{T0+k+1}, v{T0+k+1}")
    A(f"v_add_f32 v{T0+9}, v{T0+9}, v{T0+10}")
    rbf(T0 + 8)
    wave_red("v_add_f32", T0 + 9)
    A(f"v_mul_f32 v{T0+9}, 0x3b000000, v{T0+9}")
    rbf(T0 + 9)
    A(f"v_add_f32 v{T0+9}, 0x3727c5ac, v{T0+9}")
    rbf(T0 + 9)
    A(f"v_sqrt_f32 v{T0+9}, v{T0+9}")
    A(f"v_readlane_b32 s51, v{T0+8}, 63")
    rbf(T0 + 9)
    A(f"v_lshlrev_b32 v{XR}, 16, v{XR}")
    A(f"v_readlane_b32 s62, v{T0+9}, 63")
    A(f"v_subrev_f32 v{XR}, s51, v{XR}")
    rbf(XR)
    A(f"v_rcp_f32 v{T0+10}, s62")
    A(f"v_mul_f32 v{T0+11}, v{XR}, v{T0+10}")
    A(f"v_fma_f32 v{T0+12}, -v{T0+11}, s62, v{XR}")
    A(f"v_fmac_f32 v{T0+11}, v{T0+12}, v{T0+10}")
    A(f"v_cvt_pk_bf16_f32 v{PD}, v{T0+11}, v{T0+11}")
    stamp("ln")
    abuild(AB, PD, M0, 0)
    for n in range(16):
        ab = AB + 4 * (n & 1)
        if n < 15: abuild(AB + 4 * ((n + 1) & 1), PD, M0, n + 1)
        A(f"s_waitcnt vmcnt({30-2*n})")
        mfma(DQ, ab, WQ + 4 * n, n == 0); mfma(DG, ab, GU + 4 * n, n == 0)
    A("s_lshl_b32 s48, s4, 13"); A("s_add_u32 s49, s48, 0x1000")
    A(f"v_lshrrev_b32 v{T0+3}, 1, v{OUTA}")
    for k in range(4): A(f"v_cndmask_b32 v{DQ+k}, v{DQ+k}, v{DG+k}, s[68:69]")
    tag(range(DQ, DQ + 4), "A")
    if "Ast" not in skip.split(): pub4("A", DQ, L16, 67, '' if 'Aplain' in skip.split() else 'sc1')
    stamp("apub")
    def a_loads():
        for k in range(8):
            if "Ald" not in skip.split(): A(f"buffer_load_dwordx4 v[{WQ+4*k}:{WQ+4*k+3}], v{L16}, s[40:43], s{48 + k // 4} offen{off((k&3)*1024)} sc1")
    poll("pollA", a_loads, range(WQ, WQ + 32), T0, asleep)
    stamp("aseen")
    untag(range(WQ, WQ + 32))
    for k in range(4):
        A(f"v_add_f32 v{WQ+k}, v{WQ+k}, v{WQ+4+k}"); A(f"v_add_f32 v{WQ+8+k}, v{WQ+8+k}, v{WQ+12+k}")
        A(f"v_add_f32 v{WQ+16+k}, v{WQ+16+k}, v{WQ+20+k}"); A(f"v_add_f32 v{WQ+24+k}, v{WQ+24+k}, v{WQ+28+k}")
    for k in range(4):
        A(f"v_add_f32 v{WQ+k}, v{WQ+k}, v{WQ+8+k}"); A(f"v_add_f32 v{WQ+16+k}, v{WQ+16+k}, v{WQ+24+k}")
    for k in range(4): A(f"v_add_f32 v{WQ+k}, v{WQ+k}, v{WQ+16+k}")
    A(f"v_cvt_pk_bf16_f32 v{T0+4}, v{WQ}, v{WQ+1}"); A(f"v_cvt_pk_bf16_f32 v{T0+5}, v{WQ+2}, v{WQ+3}")
    A(f"v_mov_b32 v{T0+6}, 0"); A(f"v_mov_b32 v{T0+7}, 1")
    A("s_mov_b32 exec_hi, 0")
    A(f"ds_write_b64 v{T0+3}, v[{T0+4}:{T0+5}] offset:{LQ}")
    A(f"ds_write_b32 v{T0+6}, v{T0+7} offset:{LQF}")
    A("s_mov_b64 exec, -1")
    stamp("qdone")
    (any(prio) and A(f"s_setprio {prio[1]}"))
    MH, PD1 = 53, 54
    def tbuild(a0, src, qs=range(4)):
        for q in qs:
            p, n = src(q)
            A(f"v_and_b32_dpp v{a0+q}, v{p}, v{MH} row_newbcast:{n} row_mask:0xf bank_mask:0xf")
    def tgemv(base, nrho, src, wait):
        tbuild(AB, lambda q: src(0, q))
        for rho in range(nrho):
            a = AB + 4 * (rho & 1); nxt = AB + 4 * ((rho + 1) & 1)
            if rho + 1 < nrho: tbuild(nxt, lambda q: src(rho + 1, q), (0, 1))
            if wait: wait(rho)
            mfma(DQ, a, base + 8 * rho, rho == 0)
            if rho + 1 < nrho: tbuild(nxt, lambda q: src(rho + 1, q), (2, 3))
            mfma(DG, a, base + 8 * rho + 4, rho == 0)
    MH1, YSA = 55, 56
    def xgemv(base, npair, src, wait):
        def build(a0, k):
            for r in range(4):
                p, n = src(2 * k + (r >> 1))
                A(f"v_and_b32_dpp v{a0+r}, v{p}, v{(MH, MH1)[r & 1]} row_newbcast:{n} row_mask:0xf bank_mask:0xf")
        build(AB, 0)
        for k in range(npair):
            if k + 1 < npair: build(AB + 4 * ((k + 1) & 1), k + 1)
            if wait: wait(k)
            mfma(DQ, AB + 4 * (k & 1), base + 4 * k, k == 0)
    def tpublish(kind, sreg, flags):
        A("s_mov_b64 exec, 0xffff")
        src = [DQ, DQ + 1, DQ + 2, DQ + 3] if x2 else [DQ, DQ + 1, DG, DG + 1]
        if kind in rnd:
            for r in src: A(f"v_add_u32 v{r}, 0x200, v{r}")
        for k, r in enumerate(src): A(f"v_and_or_b32 v{T0+8+k}, v{r}, s7, v{TAG}")
        pub4(kind, T0 + 8, YSA if ys else L16, sreg, flags)
        A("s_mov_b64 exec, -1")
    if t64:
        if x2:
            A(f"v_or_b32 v{MH}, v{M0}, v{M0+2}"); A(f"v_or_b32 v{MH1}, v{M0+1}, v{M0+3}")
        else:
            A(f"v_or3_b32 v{MH}, v{M0}, v{M0+1}, v{M0+2}"); A(f"v_or_b32 v{MH}, v{MH}, v{M0+3}")
        if ys:
            A(f"v_lshrrev_b32 v{YSA}, 2, v0"); A(f"v_and_b32 v{T0}, 3, v0"); A(f"v_lshlrev_b32 v{YSA}, 7, v{YSA}"); A(f"v_lshl_add_u32 v{YSA}, v{T0}, 4, v{YSA}")
        A(f"v_mul_u32_u24 v{T0}, 12, v{G}")
        A("s_lshl_b32 s48, s57, 3"); A("s_lshl_b32 s49, s56, 3"); A("s_lshl_b32 s72, s5, 7")
        A(f"v_lshlrev_b32 v{T0+2}, {3 if x2 else 2}, v{J}")
        A(f"v_add_u32 v{T0+3}, 4, v{T0}"); A(f"v_cmp_gt_u32 vcc, s48, v{T0+3}")
        A(f"v_add_u32 v{T0+3}, s49, v{T0}"); A(f"v_lshl_add_u32 v{T0+3}, v{T0+3}, 10, v{T0+2}")
        A(f"v_mov_b32 v{WDA}, 0x7ffffff0"); A(f"v_cndmask_b32 v{WDA}, v{WDA}, v{T0+3}, vcc")
        A("s_add_u32 s48, s72, 0x1000"); A("s_add_u32 s49, s72, 0x2000")
        for rho in range(3):
            for q in range(4):
                if x2:
                    A(f"buffer_load_dwordx2 v[{WD+8*rho+2*q}:{WD+8*rho+2*q+1}], v{WDA if rho else T0+3}, s[28:31], s{(72, 48, 49)[rho]} offen{off(1024*q)} {wflags}")
                    continue
                for t in range(2):
                    A(f"buffer_load_dword v{WD+8*rho+4*t+q}, v{WDA if rho else T0+3}, s[28:31], s{(72, 48, 49)[rho]} offen{off(1024*q + 64*t)} {woflags}")
    else:
        A("s_mul_i32 s48, s59, 24")
        A(f"v_mul_u32_u24 v{T0}, 6, v{G}"); A(f"v_add_u32 v{T0}, s48, v{T0}")
        A("s_lshl_b32 s48, s57, 3"); A("s_lshl_b32 s49, s56, 3"); A("s_lshl_b32 s72, s58, 8")
        A(f"v_lshlrev_b32 v{T0+2}, 4, v{J}")
        for n in range(6):
            A(f"v_add_u32 v{T0+3}, {n}, v{T0}")
            A(f"v_cmp_gt_u32 vcc, s48, v{T0+3}")
            A(f"v_add_u32 v{T0+3}, s49, v{T0+3}")
            A(f"v_lshl_add_u32 v{T0+3}, v{T0+3}, 10, v{T0+2}")
            A(f"v_mov_b32 v{WDA}, 0x7ffffff0")
            A(f"v_cndmask_b32 v{WDA}, v{WDA}, v{T0+3}, vcc")
            if "D" not in skip.split(): A(f"buffer_load_dwordx4 v[{WD+4*n}:{WD+4*n+3}], v{WDA}, s[28:31], s72 offen {wflags}")
    for k in range(4): rbf(WQ + k)
    for k in range(4): A(f"v_mov_b32_dpp v{T0+4+k}, v{WQ+k} row_ror:8 row_mask:0xf bank_mask:0xf")
    for k in range(4): A(f"v_mul_f32 v{WQ+k}, 0xbfb8aa3b, v{WQ+k}")
    for k in range(4): A(f"v_exp_f32 v{WQ+k}, v{WQ+k}")
    for k in range(4): A(f"v_add_f32 v{WQ+k}, 1.0, v{WQ+k}")
    for k in range(4): A(f"v_rcp_f32 v{WQ+k}, v{WQ+k}")
    for k in range(4): rbf(WQ + k)
    for k in range(4): A(f"v_mul_f32 v{WQ+k}, v{WQ+k}, v{T0+4+k}")
    A(f"v_cmp_gt_u32 vcc, s57, v{J}")
    for k in range(4): A(f"v_cvt_pk_bf16_f32 v{WQ+k}, v{WQ+k}, v{WQ+k}")
    for k in range(4): A(f"v_cndmask_b32 v{WQ+k}, 0, v{WQ+k}, vcc")
    A("s_mov_b32 exec_lo, 0"); A("s_mov_b32 exec_hi, 0x00ff00ff")
    A(f"ds_write_b128 v{OUTA}, v[{WQ}:{WQ+3}] offset:{LH}")
    A("s_mov_b64 exec, -1")
    A(f"v_add_lshl_u32 v{T0+1}, v{T0}, v{J}, 2")
    A("s_waitcnt lgkmcnt(0)")
    A(f"ds_read_b32 v{PH}, v{T0+1} offset:{LH}")
    if t64:
        A(f"v_lshl_add_u32 v{WOA}, v{G}, 15, v{T0+2}")
        A("s_lshl_b32 s71, s4, 17"); A("s_add_u32 s71, s71, s72")
        A(f"v_and_b32 v{T0+3}, 3, v0"); A("s_lshr_b32 s48, s4, 2"); A("s_and_b32 s49, s4, 3")
        if x2:
            A(f"v_lshl_add_u32 v{T0+4}, v{T0+3}, 2, v{G}"); A("s_lshl_b32 s51, s4, 4")
        else:
            A(f"v_and_b32 v{T0+4}, 1, v{G}"); A(f"v_lshl_add_u32 v{T0+4}, v{T0+3}, 1, v{T0+4}")
            A(f"v_lshrrev_b32 v{T0+5}, 1, v{G}"); A(f"v_lshl_add_u32 v{T0+4}, v{T0+5}, 5, v{T0+4}")
            A("s_lshl_b32 s51, s48, 6"); A("s_lshl_b32 s73, s49, 3"); A("s_add_u32 s51, s51, s73")
        A(f"v_add_lshl_u32 v{XF}, v{T0+4}, s51, 1")
        A(f"v_lshrrev_b32 v{RA}, 2, v0"); A(f"v_lshlrev_b32 v{RA}, {9 if ys else 8}, v{RA}"); A(f"v_lshl_add_u32 v{RA}, v{T0+3}, 4, v{RA}")
        A(f"s_lshl_b32 s73, s48, {14 if ys else 13}"); A(f"s_lshl_b32 s49, s49, {7 if ys else 6}"); A("s_add_u32 s73, s73, s49")
        A("s_mov_b32 s36, s5")
        A(f"buffer_load_ushort v{XV}, v{XF}, s[16:19], 0 offen")
        A(f"v_lshlrev_b32 v{OGA}, 3, v0")
    else:
        A(f"v_lshl_add_u32 v{WOA}, v{G}, 14, v{T0+2}")
        A("s_lshl_b32 s71, s4, 17"); A("s_lshl_b32 s48, s59, 16"); A("s_add_u32 s71, s71, s48"); A("s_add_u32 s71, s71, s72")
        A(f"v_and_b32 v{T0+3}, 3, v0")
        if lin:
            A(f"v_lshl_add_u32 v{T0+4}, v{T0+3}, 3, v{G}")
            A("s_lshr_b32 s48, s4, 3"); A("s_lshl_b32 s48, s48, 7"); A("s_and_b32 s49, s4, 3"); A("s_lshl_b32 s49, s49, 5"); A("s_add_u32 s48, s48, s49")
            A("s_and_b32 s49, s4, 4"); A("s_add_u32 s48, s48, s49")
        else:
            A(f"v_lshl_add_u32 v{T0+4}, v{T0+3}, 2, v{G}"); A("s_lshl_b32 s48, s4, 4")
        A(f"v_add_lshl_u32 v{XF}, v{T0+4}, s48, 1")
        A(f"v_lshrrev_b32 v{RA}, 2, v0"); A(f"v_lshlrev_b32 v{RA}, 9, v{RA}"); A(f"v_lshl_add_u32 v{RA}, v{T0+3}, 4, v{RA}")
        A("s_and_b32 s48, s4, 7"); A("s_lshl_b32 s49, s48, 6"); A("s_lshr_b32 s73, s4, 3"); A("s_lshl_b32 s73, s73, 15"); A("s_add_u32 s73, s73, s49")
        if mapx: A("s_sub_u32 s36, s5, s48")
        else: A("s_mov_b32 s36, s5")
        A(f"buffer_load_ushort v{XV}, v{XF}, s[16:19], 0 offen")
        if lin:
            A(f"v_bfe_u32 v{T0+4}, v0, 2, 1"); A(f"v_lshrrev_b32 v{T0+5}, 3, v0"); A(f"v_lshl_add_u32 v{T0+4}, v{T0+4}, 4, v{T0+5}")
            A(f"v_lshl_add_u32 v{T0+4}, v{T0+4}, 2, v{T0+3}"); A("s_lshl_b32 s48, s59, 7"); A(f"v_lshl_add_u32 v{OGA}, v{T0+4}, 2, s48")
        else:
            A("s_lshl_b32 s48, s59, 8"); A(f"v_lshl_add_u32 v{OGA}, v0, 2, s48")
    A("s_lshl_b32 s78, s4, 12"); A(f"s_add_u32 s78, s78, {WS_O}")
    A("s_waitcnt lgkmcnt(0)")
    if t64:
        if x2: xgemv(WD, 6, lambda e: (PH, e), lambda k: A(f"s_waitcnt vmcnt({11 - 2 * k})"))
        else: tgemv(WD, 3, lambda rho, q: (PH, 4 * rho + q), lambda rho: A(f"s_waitcnt vmcnt({17 - 8 * rho})"))
        tpublish("Y", 65, "sc1")
    else:
        abuild(AB, PH, M0, 0)
        for n in range(6):
            if n < 5: abuild(AB + 4 * ((n + 1) & 1), PH, M0, n + 1)
            A(f"s_waitcnt vmcnt({6-n})")
            mfma(DG, AB + 4 * (n & 1), WD + 4 * n, n == 0)
        tag(range(DG, DG + 4), "Y")
        A("s_mov_b32 exec_hi, 0")
        if "Yst" not in skip.split(): A(f"buffer_store_dwordx4 v[{DG}:{DG+3}], v{L16 if lin else OUTA}, s[40:43], s65 offen sc1")
        A("s_mov_b64 exec, -1")
    stamp("ypub")
    if prb:
        assert t64 and not ys and wpar is None and mlstr == 4 and not mlfull
        A("s_cmp_lg_u32 s2, 0"); A("s_cbranch_scc1 L_noprobe")
        A(f"s_mov_b32 s48, {WS_X}"); A("s_mov_b32 s10, -1"); A("s_mov_b32 s11, -1"); A(f"s_mov_b32 s49, {prb}")
        A("s_load_dword s8, s[40:41], s48"); A("s_waitcnt lgkmcnt(0)")
        A("L_probe_d:")
        for c in range(2):
            A("s_addk_i32 s48, 0x2000" if c == 0 else "s_addk_i32 s48, 0x2100")
            A("s_memtime s[56:57]"); A("s_waitcnt lgkmcnt(0)")
            A("s_load_dword s8, s[40:41], s48"); A("s_waitcnt lgkmcnt(0)")
            A("s_memtime s[58:59]"); A("s_waitcnt lgkmcnt(0)")
            A("s_sub_u32 s56, s58, s56"); A(f"s_min_u32 s{11 - c}, s{11 - c}, s56")
        A("s_sub_u32 s49, s49, 1"); A("s_cmp_lg_u32 s49, 0"); A("s_cbranch_scc1 L_probe_d")
        A("s_cmp_gt_u32 s10, s11"); A("s_cselect_b32 s48, 0x400, 0")
        A(f"v_or_b32 v{T0+4}, s48, v{TAG}"); A(f"v_mov_b32 v{T0+5}, v{TAG}"); A(f"v_mov_b32 v{T0+6}, v{EP}"); A(f"v_mov_b32 v{T0+7}, v{EP}")
        A(f"v_mov_b32 v{T0+1}, 0"); A(f"s_mov_b32 s48, {WS_D}")
        A("s_mov_b64 exec, 1")
        A(f"buffer_store_dwordx4 v[{T0+4}:{T0+7}], v{T0+1}, s[40:43], s48 offen sc1")
        A("s_mov_b64 exec, -1")
        if stamps == "prb":
            A("s_mov_b32 s98, s10"); A("s_mov_b32 s100, s11")
        A("L_noprobe:")
    A(f"v_and_b32 v{T0}, 3, v0"); A(f"v_lshlrev_b32 v{T0}, 3, v{T0}")
    A(f"s_mov_b32 s70, {SPIN * 8}")
    A("L_pollML:")
    A(f"s_sleep {lsleep}")
    A(f"ds_read_b64 v[{T0+2}:{T0+3}], v{T0} offset:{LML}")
    A("s_sub_u32 s70, s70, 1"); A("s_cbranch_scc1 L_pollML_done")
    A("s_waitcnt lgkmcnt(0)")
    A(f"v_cmp_eq_u32 vcc, -1, v{T0+3}")
    A("s_nop 1")
    A("s_cbranch_vccnz L_pollML")
    A("L_pollML_done:")
    stamp("ml")
    dpp("v_max_f32", T0 + 4, T0 + 2, "quad_perm:[1,0,3,2]"); dpp("v_max_f32", T0 + 4, T0 + 4, "quad_perm:[2,3,0,1]")
    A(f"v_sub_f32 v{T0+5}, v{T0+2}, v{T0+4}"); A(f"v_mul_f32 v{T0+5}, {LOG2E}, v{T0+5}"); A(f"v_exp_f32 v{T0+5}, v{T0+5}")
    A(f"v_mul_f32 v{T0+5}, v{T0+5}, v{T0+3}")
    dpp("v_add_f32", T0 + 5, T0 + 5, "quad_perm:[1,0,3,2]"); dpp("v_add_f32", T0 + 5, T0 + 5, "quad_perm:[2,3,0,1]")
    if steal:
        A(f"v_bfe_u32 v{T0+6}, v0, 2, 2"); A(f"v_lshlrev_b32 v{T0+6}, 3, v{T0+6}")
        A(f"ds_read_b32 v{T0+7}, v{T0+6} offset:{LML}")
        A(f"ds_read_b128 v[{T0+8}:{T0+11}], v{L16} offset:{LP}")
        A("s_lshl_b32 s51, s6, 10"); A(f"s_add_u32 s51, s51, {WS_P}")
        A("s_waitcnt lgkmcnt(0)")
        A(f"v_sub_f32 v{T0+7}, v{T0+7}, v{T0+4}"); A(f"v_mul_f32 v{T0+7}, {LOG2E}, v{T0+7}"); A(f"v_exp_f32 v{T0+7}, v{T0+7}")
        for k in range(4): A(f"v_mul_f32 v{T0+8+k}, v{T0+8+k}, v{T0+7}")
        tag(range(T0 + 8, T0 + 12))
        A(f"buffer_store_dwordx4 v[{T0+8}:{T0+11}], v{L16}, s[40:43], s51 offen sc1")
    tag((T0 + 4, T0 + 5))
    if local:
        A("s_getreg_b32 s37, hwreg(HW_REG_XCC_ID, 0, 4)"); A("s_lshl_b32 s37, s37, 10")
        A(f"v_or_b32 v{T0+4}, s37, v{T0+4}")
    if mlfull:
        assert mlstr == 7
        A(f"v_mov_b32 v{T0+1}, v{L16}"); A("s_mov_b64 exec, 0xff")
    else:
        A(f"v_mov_b32 v{T0+1}, 0"); A("s_mov_b64 exec, 1")
    A(f"v_mov_b32 v{T0+6}, v{EP}"); A(f"v_mov_b32 v{T0+7}, v{EP}")
    if "Mst" not in skip.split(): A(f"buffer_store_dwordx4 v[{T0+4}:{T0+7}], v{T0+1}, s[40:43], s66 offen {'' if 'Mplain' in skip.split() else 'sc1'}")
    A("s_mov_b64 exec, -1")
    A(f"v_and_b32 v{T0+1}, 7, v0"); A(f"v_lshlrev_b32 v{T0+1}, {mlstr}, v{T0+1}")
    A(f"s_lshl_b32 s48, s4, {mlstr + 3}"); A(f"s_add_u32 s48, s48, {WS_ML}")
    if prb:
        A(f"s_sub_u32 s49, {WS_D}, s48"); A(f"v_mov_b32 v{T0+8}, s49"); A("s_mov_b32 s56, 0xff00ff00"); A("s_mov_b32 s57, 0xff00ff00")
        A(f"v_cndmask_b32 v{T0+1}, v{T0+1}, v{T0+8}, s[56:57]")
    if mlat:
        A(f"v_mov_b32 v{T0+8}, 0")
        A(f"s_mov_b32 s70, {SPIN * 8}")
        A("L_pollM:")
        A(f"s_sleep {max(lsleep, 4)}")
        A(f"ds_read_b32 v{T0+4}, v{T0+8} offset:{LPF}" if bal else f"ds_read_b128 v[{T0+4}:{T0+7}], v{T0+8} offset:{LPROG}")
        A("s_sub_u32 s70, s70, 1"); A("s_cbranch_scc1 L_pollM_done")
        A("s_waitcnt lgkmcnt(0)")
        if not bal:
            A(f"v_or3_b32 v{T0+4}, v{T0+4}, v{T0+5}, v{T0+6}"); A(f"v_or_b32 v{T0+4}, v{T0+4}, v{T0+7}")
        A(f"v_cmp_eq_u32 vcc, 0, v{T0+4}")
        A("s_nop 1")
        A("s_cbranch_vccnz L_pollM")
        A("L_pollM_done:")
    def ml_check():
        A(f"v_bitop3_b32 v{T0+8}, v{T0+4}, v{T0+5}, v{TAG} bitop3:0x7e"); A(f"v_bitop3_b32 v{T0+9}, v{T0+6}, v{T0+7}, v{EP} bitop3:0x7e")
        A(f"v_and_or_b32 v{T0+8}, v{T0+8}, s12, v{T0+9}")
        A(f"v_cmp_ne_u32 vcc, 0, v{T0+8}")
    A("s_movk_i32 s12, 0x3ff")
    poll("pollML2", lambda: A(f"buffer_load_dwordx4 v[{T0+4}:{T0+7}], v{T0+1}, s[40:43], s48 offen sc1"), ml_check, None, psleep)
    if local:
        A(f"v_and_b32 v{T0+6}, 0x3c00, v{T0+4}"); A(f"v_cmp_ne_u32 vcc, s37, v{T0+6}")
        A("s_nop 1")
        if prb: A("s_and_b32 s37, vcc_lo, 0xff")
        else: A("s_or_b32 s37, vcc_lo, vcc_hi")
    if prb:
        A(f"v_readlane_b32 s38, v{T0+4}, 8"); A("s_and_b32 s38, s38, 0x400"); A("s_lshl_b32 s38, s38, 3"); A("s_xor_b32 s64, s64, s38")
    A(f"v_and_b32 v{T0+4}, 0xffff0000, v{T0+4}"); untag((T0 + 5,))
    A(f"v_lshlrev_b32 v{XV}, 16, v{XV}")
    for c in ("quad_perm:[1,0,3,2]",): dpp("v_max_f32", T0 + 6, T0 + 4, c)
    for c in ("quad_perm:[2,3,0,1]", "row_half_mirror"): dpp("v_max_f32", T0 + 6, T0 + 6, c)
    A(f"v_sub_f32 v{T0+4}, v{T0+4}, v{T0+6}"); A(f"v_sub_f32 v{T0+2}, v{T0+2}, v{T0+6}")
    A(f"v_mul_f32 v{T0+4}, {LOG2E}, v{T0+4}"); A(f"v_mul_f32 v{T0+2}, {LOG2E}, v{T0+2}")
    A(f"v_exp_f32 v{T0+4}, v{T0+4}"); A(f"v_exp_f32 v{T0+2}, v{T0+2}")
    A(f"v_mul_f32 v{T0+5}, v{T0+4}, v{T0+5}")
    for c in ("quad_perm:[1,0,3,2]", "quad_perm:[2,3,0,1]", "row_half_mirror"): dpp("v_add_f32", T0 + 5, T0 + 5, c)
    A(f"v_rcp_f32 v{T0+5}, v{T0+5}")
    A(f"v_mul_f32 v{T0+2}, v{T0+2}, v{T0+5}")
    if not steal:
        for w in range(4): A(f"v_readlane_b32 s{74+w}, v{T0+2}, {w}")
        stamp("mlx")
    else:
        A(f"v_mul_f32 v{T0+4}, v{T0+4}, v{T0+5}")
        A(f"v_lshrrev_b32 v{T0}, 1, v{T0}")
        A(f"ds_write_b32 v{T0}, v{T0+2} offset:{LF}")
        stamp("mlx")
        A("s_lshl_b32 s48, s4, 13"); A(f"s_add_u32 s48, s48, {WS_P}"); A("s_add_u32 s49, s48, 0x1000")
        poll("pollPT", a_loads, range(WQ, WQ + 32), T0 + 6, 0)
        untag(range(WQ, WQ + 32))
        A(f"v_lshrrev_b32 v{T0+6}, 3, v0"); A(f"v_and_b32 v{T0+7}, 7, v0"); A(f"v_lshlrev_b32 v{T0+6}, 10, v{T0+6}")
        A(f"v_lshl_add_u32 v{T0+6}, v{T0+7}, 4, v{T0+6}")
        if np_ < 8:
            A(f"v_subrev_u32 v{T0+6}, {(8 - np_) * 1024}, v{T0+6}")
            m = (~((1 << (8 * (8 - np_))) - 1)) & (2**64 - 1)
            A(f"s_mov_b32 exec_lo, {hex(m & 0xffffffff)}"); A(f"s_mov_b32 exec_hi, {hex(m >> 32)}")
        for k in range(8):
            A(f"v_readlane_b32 s51, v{T0+4}, {k}")
            for r in range(4): A(f"v_mul_f32 v{WQ+4*k+r}, s51, v{WQ+4*k+r}")
            for r in range(4): A(f"v_cvt_pk_bf16_f32 v{WQ+4*k+r}, v{WQ+4*k+r}, v{WQ+4*k+r}")
            A(f"ds_write_b128 v{T0+6}, v[{WQ+4*k}:{WQ+4*k+3}] offset:{LPT + 128*k}")
        A("s_mov_b64 exec, -1")
        A(f"v_mov_b32 v{T0+6}, 0"); A(f"v_mov_b32 v{T0+7}, 1")
        A(f"ds_write_b32 v{T0+6}, v{T0+7} offset:{LPF}")
        stamp("table")
    NG = 2 if t64 else 4
    def reduce(base):
        if t64:
            untag(range(base, base + 8))
            for k in range(4): A(f"v_add_f32 v{T0+4+k}, v{base+k}, v{base+4+k}")
            return
        untag(range(base, base + 16))
        for k in range(4):
            A(f"v_add_f32 v{base+k}, v{base+k}, v{base+4+k}"); A(f"v_add_f32 v{base+8+k}, v{base+8+k}, v{base+12+k}")
        for k in range(4): A(f"v_add_f32 v{T0+4+k}, v{base+k}, v{base+8+k}")
    def reduce2():
        b = T0 + 4
        A(f"v_permlane32_swap_b32 v{b}, v{b+2}"); A(f"v_permlane32_swap_b32 v{b+1}, v{b+3}")
        A(f"v_add_f32 v{b}, v{b}, v{b+2}"); A(f"v_add_f32 v{b+1}, v{b+1}, v{b+3}")
        A(f"v_permlane16_swap_b32 v{b}, v{b+1}")
        A(f"v_add_f32 v{b}, v{b}, v{b+1}")
        dpp("v_add_f32", b, b, "row_ror:4"); dpp("v_add_f32", b, b, "row_ror:8")
        rbf(b)
    def gather(sregs, fl="sc1"):
        def f(base=PS):
            for k in range(NG): A(f"buffer_load_dwordx4 v[{base+4*k}:{base+4*k+3}], v{RA}, s[40:43], s{sregs[k]} offen {fl}")
        return f
    A("s_cmp_lg_u32 s36, 0"); A("s_cbranch_scc1 L_noY")
    A(f"s_add_u32 s48, s73, {WS_Y}")
    A(f"s_add_u32 s49, s48, {4096 if t64 and not ys else 8192}"); A(f"s_add_u32 s56, s48, 16384"); A(f"s_add_u32 s57, s48, 24576")
    poll("pollY", gather((48, 49, 56, 57)), range(PS, PS + 4 * NG), T0, psleep)
    reduce(PS); reduce2()
    A(f"v_mul_f32 v{T0}, 0xbfb8aa3b, v{T0+4}"); A(f"v_exp_f32 v{T0}, v{T0}"); A(f"v_add_f32 v{T0}, 1.0, v{T0}")
    A(f"v_rcp_f32 v{T0}, v{T0}"); A(f"v_mul_f32 v{GV}, v{T0+4}, v{T0}")
    rbf(GV)
    A("s_cmp_lg_u32 s2, 0"); A("s_cbranch_scc1 L_noY")
    A("s_mov_b64 exec, 1")
    A(f"v_mov_b32 v{T0}, 0")
    A(f"buffer_store_dword v{EP}, v{T0}, s[40:43], s79 offen sc1")
    A("s_mov_b64 exec, -1")
    A("L_noY:")
    A(f"s_add_u32 s48, s73, {SBASE}")
    if prb: A("s_xor_b32 s48, s48, s38")
    if wpar is not None:
        A("s_lshr_b32 s49, s4, 2"); A("s_lshl_b32 s49, s49, 13"); A("s_add_u32 s48, s48, s49")
    A(f"s_add_u32 s49, s48, {4096 if t64 and not ys else 8192}"); A(f"s_add_u32 s56, s48, 16384"); A(f"s_add_u32 s57, s48, 24576")
    A(f"v_mov_b32 v{T0}, 0")
    A(f"s_mov_b32 s70, {SPIN * 8}")
    A("L_pollP:")
    A(f"s_sleep {lsleep}")
    if steal or bal or mlat: A(f"ds_read_b32 v{T0+4}, v{T0} offset:{LGO}")
    else: A(f"ds_read_b128 v[{T0+4}:{T0+7}], v{T0} offset:{LPROG}")
    A("s_sub_u32 s70, s70, 1"); A("s_cbranch_scc1 L_pollP_done")
    A("s_waitcnt lgkmcnt(0)")
    if not (steal or bal or mlat):
        A(f"v_or3_b32 v{T0+4}, v{T0+4}, v{T0+5}, v{T0+6}"); A(f"v_or_b32 v{T0+4}, v{T0+4}, v{T0+7}")
    A(f"v_cmp_eq_u32 vcc, 0, v{T0+4}")
    A("s_nop 1")
    A("s_cbranch_vccnz L_pollP")
    A("L_pollP_done:")
    (any(prio) and A(f"s_setprio {prio[2]}"))
    for n in range(16):
        if t64:
            if n < 8:
                for q in range(4):
                    if x2:
                        A(f"buffer_load_dwordx2 v[{WO+8*n+2*q}:{WO+8*n+2*q+1}], v{WOA}, s[24:27], s71 offen{off(1024*q)} {woflags}")
                        continue
                    for t in range(2): A(f"buffer_load_dword v{WO+8*n+4*t+q}, v{WOA}, s[24:27], s71 offen{off(1024*q + 64*t)} {woflags}")
                if n < 7: A("s_addk_i32 s71, 0x1000")
            continue
        A(f"buffer_load_dwordx4 v[{WO+4*n}:{WO+4*n+3}], v{WOA}, s[24:27], s71 offen{off((n&3)*1024)} {woflags}")
        if n & 3 == 3 and n < 15: A("s_addk_i32 s71, 0x1000")
    stamp("wiss")
    A("s_mov_b32 exec_hi, 0")
    if local: A("s_cmp_lg_u32 s37, 0")
    A("s_barrier")
    for w in range(4): A(f"ds_read_b128 v[{T0+4*w}:{T0+4*w+3}], v{L16 if onat else OUTA} offset:{LO+512*w}")
    stamp("bar2")
    for w in range(4):
        A(f"s_waitcnt lgkmcnt({3-w})" if not (stamps or probe) else "s_waitcnt lgkmcnt(0)")
        if fast and not steal:
            p = 74 + (w & 2); sel = "op_sel:[0,1] op_sel_hi:[1,1]" if w & 1 else "op_sel_hi:[1,0]"
            for k in (0, 2):
                if w == 0: A(f"v_pk_mul_f32 v[{DQ+k}:{DQ+k+1}], v[{T0+k}:{T0+k+1}], s[{p}:{p+1}] {sel}")
                else:
                    sel3 = "op_sel:[0,1,0] op_sel_hi:[1,1,1]" if w & 1 else "op_sel_hi:[1,0,1]"
                    A(f"v_pk_fma_f32 v[{DQ+k}:{DQ+k+1}], v[{T0+4*w+k}:{T0+4*w+k+1}], s[{p}:{p+1}], v[{DQ+k}:{DQ+k+1}] {sel3}")
            continue
        for k in range(4):
            if steal:
                if w == 1: A(f"v_add_f32 v{DQ+k}, v{T0+k}, v{T0+4+k}")
                elif w > 1: A(f"v_add_f32 v{DQ+k}, v{DQ+k}, v{T0+4*w+k}")
            elif w == 0: A(f"v_mul_f32 v{DQ+k}, s74, v{T0+k}")
            else: A(f"v_fmac_f32 v{DQ+k}, s{74+w}, v{T0+4*w+k}")
    tag(range(DQ, DQ + 4), "O")
    if local:
        A("s_cbranch_scc1 L_far")
        A(f"buffer_store_dwordx4 v[{DQ}:{DQ+3}], v{L16 if lin or onat else OUTA}, s[40:43], s63 offen {olflags}")
        A("s_branch L_near")
        A("L_far:")
    if "Ost" not in skip.split(): pub4("O", DQ, L16 if lin or onat else OUTA, 63)
    if local: A("L_near:")
    A("s_mov_b64 exec, -1")
    stamp("opub")
    def o_loads(base):
        for k in range(8): A(f"buffer_load_dword v{base+k}, v{OGA}, s[40:43], s78 offen{off(k*512)} sc1")
    def o_finish(b):
        if fast:
            pkadd(b, b, b + 2); pkadd(b + 4, b + 4, b + 6); pkadd(b, b, b + 4)
            A(f"v_add_f32 v{T0+3}, v{b}, v{b+1}")
            return
        untag(range(b, b + 8))
        for k in range(4): A(f"v_add_f32 v{b+2*k}, v{b+2*k}, v{b+2*k+1}")
        A(f"v_add_f32 v{b}, v{b}, v{b+2}"); A(f"v_add_f32 v{b+4}, v{b+4}, v{b+6}")
        A(f"v_add_f32 v{T0+3}, v{b}, v{b+4}")
    A("; o = bf16(sum of the eight partial outputs); partial out projection: " + ("the head's 128 rows, 64 columns" if t64 else "64 of the head's rows, 128 columns"))
    if t64:
        def o_loads2(base):
            for k in range(8): A(f"buffer_load_dwordx2 v[{base+2*k}:{base+2*k+1}], v{OGA}, s[40:43], s78 offen{off(k*512)} {old}")
        def o_finish2(b):
            for k in (0, 4, 8, 12): pkadd(b + k, b + k, b + k + 2)
            pkadd(b, b, b + 4); pkadd(b + 8, b + 8, b + 12); pkadd(T0 + 2, b, b + 8)
        poll_pipe("pollO", r1, d1, 16, 8, o_loads2, o_finish2)
        stamp("oseen")
        A(f"v_cvt_pk_bf16_f32 v{PD}, v{T0+2}, v{T0+2}"); A(f"v_cvt_pk_bf16_f32 v{PD1}, v{T0+3}, v{T0+3}")
        if x2: xgemv(WO, 16, lambda e: ((PD, PD1)[e & 1], e >> 1), None)
        else: tgemv(WO, 8, lambda rho, q: ((PD, PD1)[q & 1], 2 * rho + (q >> 1)), None)
        tpublish("S", 64, sflags)
    else:
        poll_pipe("pollO", r1, d1, 8, 8, o_loads, o_finish)
        stamp("oseen")
        A(f"v_cvt_pk_bf16_f32 v{PD}, v{T0+3}, v{T0+3}")
        abuild(AB, PD, M0, 0)
        for n in range(16):
            if n < 15: abuild(AB + 4 * ((n + 1) & 1), PD, M0, n + 1)
            mfma(DQ, AB + 4 * (n & 1), WO + 4 * n, n == 0)
        A("s_mov_b32 exec_hi, 0")
        tag(range(DQ, DQ + 4), "S")
        if "Sst" not in skip.split(): A(f"buffer_store_dwordx4 v[{DQ}:{DQ+3}], v{L16 if lin else OUTA}, s[40:43], s64 offen {sflags}")
        A("s_mov_b64 exec, -1")
    stamp("spub")
    A("s_cmp_lg_u32 s36, 0"); A("s_cbranch_scc1 L_sdone")
    PS = 64
    def s_finish(b):
        if t64:
            for k in (0, 2): pkadd(T0 + 4 + k, b + k, b + 4 + k)
            return
        for k in (0, 2): pkadd(b + k, b + k, b + 4 + k); pkadd(b + 8 + k, b + 8 + k, b + 12 + k)
        for k in (0, 2): pkadd(T0 + 4 + k, b + k, b + 8 + k)
    poll_pipe("pollS", r2, d2, 4 * NG, NG, gather((48, 49, 56, 57), sld), s_finish if fast else reduce)
    stamp("sseen")
    reduce2()
    A(f"v_mul_f32 v{T0+4}, v{T0+4}, v{GV}")
    rbf(T0 + 4)
    A(f"v_add_f32 v{T0+4}, v{T0+4}, v{XV}")
    A(f"v_cvt_pk_bf16_f32 v{T0+4}, v{T0+4}, v{T0+4}")
    A("s_mov_b32 exec_lo, 0x000f000f"); A("s_mov_b32 exec_hi, 0x000f000f")
    A(f"buffer_store_short v{T0+4}, v{XF}, s[32:35], 0 offen {oflags}")
    A("L_sdone:")
    if stamps or probe: A("s_waitcnt vmcnt(0)")
    stamp("end")
    if probe:
        A("s_cmp_lg_u32 s2, 0"); A("s_cbranch_scc1 L_end")
        A("s_memrealtime s[84:85]"); A("s_waitcnt lgkmcnt(0)")
        A("s_sub_u32 s82, s82, s80"); A(f"s_mul_i32 s82, s82, {probek}"); A("s_min_u32 s82, s82, 100000")
        A("L_probe:")
        A("s_memrealtime s[86:87]"); A("s_waitcnt lgkmcnt(0)")
        A("s_sub_u32 s86, s86, s84"); A("s_cmp_lt_u32 s86, s82"); A("s_cbranch_scc1 L_probe")
    dump_stamps()
    A("L_end:")
    A("s_endpgm")
    A.L += stream_body

    body = A.fix()
    hdr = open("cdna_kernels/" + NAME + ".s.ref").read().split("\n")
    hdr = [l for l in hdr if l.startswith(";") and "@launch" not in l and "Override" not in l and "grid=ceil" not in l]
    doc = """;
; layernorm -> q projection -> single-query attention over the cache -> out projection, times silu(GLU(xn)), plus x; one kernel.
; 256 workgroups = 32 heads x 8 key splits, one per CU; 4 streaming waves, a service wave and a balance wave each.
;   streaming waves: read the split's 1024 keys, then its 1024 values, once (1 KiB per load, nt); true-max softmax per wave,
;     merged exactly across waves and splits through (max, sum) pairs.
;   service wave: layernorm, a 64-row slice of the q / gate / up projections, a slice of the down and out projections,
;     and the hand-offs between workgroups.
;   balance wave: lets a workgroup that has fallen behind its neighbours keep more loads in flight (speed only).
; Hand-offs go through d_ws. Every handed-over word carries a 10-bit tag in its low bits, taken from an epoch word in d_ws that
; each run reads at entry and advances once all workgroups have read it; a reader waits until all words carry the tag and
; clears the tag before use, so neither results nor control flow depend on what d_ws held before. All waits are bounded.""".split("\n")
    out = hdr + doc + [f"; @launch grid=(256,1,1) block=({384 if steal or bal else 320},1,1) lds={12288 if steal else 3072}",
                 '.amdgcn_target "amdgcn-amd-amdhsa--gfx950"', ".text", f".globl {KN}", ".p2align 8", f".type {KN},@function"]
    out += [l if l.endswith(":") and not l.startswith(";") else "    " + l for l in body]
    nv = max(48 + 4 * nslot + (4 if bal else 0), 224)
    out += ['.section .rodata,"a"', ".p2align 6", f".amdhsa_kernel {KN}", f"  .amdhsa_next_free_vgpr {nv}",
            "  .amdhsa_next_free_sgpr 102", f"  .amdhsa_accum_offset {nv}", "  .amdhsa_group_segment_fixed_size 0",
            "  .amdhsa_kernarg_size 96", "  .amdhsa_user_sgpr_count 2", "  .amdhsa_user_sgpr_kernarg_segment_ptr 1",
            "  .amdhsa_system_sgpr_workgroup_id_x 1", ".end_amdhsa_kernel"]
    return "\n".join(out) + "\n", stamp_list

if __name__ == "__main__":
    kw = eval("dict(" + (sys.argv[2] if len(sys.argv) > 2 else "") + ")")
    open(sys.argv[1], "w").write(gen(**kw)[0])
```

```python
import sys
from asmlib import Asm
NAME = "recurrent_scan__mha_block_cached__glu_gated_glu__decode"
KN = NAME + "_kernel"

WS_A  = 0x00000
WS_O  = 0x40000
WS_S  = 0x60000
WS_Y  = 0x80000
WS_ML = 0xA0000
WS_E  = 0xB0000
WS_D  = 0xB4000
WS_G  = 0x201000
WS_X  = 0x180000
WS_C  = 0xB8000
WS_B  = 0x200000
WS_P  = 0xC0000
WS_ST = 0x100000
WS_BYTES = 268435456
LQ, LML, LPROG, LQF, LH, LO = 0, 256, 288, 304, 320, 1024
LGO, LPF, LLV = 308, 312, 316
LTAG = 592
LF, LREC, LP, LPT = 576, 640, 3072, 4096
END = 0x7fffffff
LOG2E = "0x3fb8aa3b"
SCALE = "0x3db504f3"
SPIN = 1 << 17

SETS = {"early": "bar0 issued x ln apub aseen qdone ypub ml mlx end qready kdone vdone",
        "prog": "bar0 i16 i32 i48 i64 i80 i96 i112 i127 vdone apub aseen mlx end",
        "prog2": "i56 i64 i72 i80 i88 i96 i104 i112 i120 vdone end",
        "clk": "bar0 clk0 i64 clk1 vdone clk2 end",
        "steal2": "mlx table end i96 i102 i111 rec0 rec1 rec2 static tready vdone",
        "steal": "mlx table wiss bar2 opub oseen spub sseen end kdone static tready vdone qdone issued qready",
        "boot": "karg pre far bar0 i8 i12 skarg sx s8 s16 issued x ln",
        "late": "qdone mlx wiss bar2 opub oseen spub sseen end issued qready kdone vdone"}

def gen(nslot=48, npre=4, burst=4, every=6, cap=6, dist=None, plate=1, stamps=False, kvflags="nt", wflags="nt", gflags="",
        asleep=30, lsleep=1, psleep=4, mapx=False, r1=3, r2=3, d1=2, d2=2, local=False, skip="", probe=None, probek=8, touch=False, bar0=16, scap=0, amap=False, gap=0, steal=False, np_=8, ah=5, golate=2, noatom=False, aflags='sc0 sc1', capl=0, capsel=1, capfrom=0, bal=False, tk=4, th=4, lv=(5, 6, 7), bfrom=12, bto=108, bgrp=3, bstr=2, mlstr=4, mlat=None, oflags='', fast=False, pre='', preflags='', rnd='', sched=None, pat=None, ph=(0, 0, 0), osleep=0, sflags='sc1', lin=False, mlfull=False, t64=False, x2=False, woflags=None, ys=False, sofs=0, numa=False, par=0, parv=None, wpar=None, prb=0, old='sc1', sld='sc1', gsplit=0, ifirst=False, onat=False, olflags='', atom='', prio=(3, 0, 3), wprio=0, bloc=False, bend=None, bmid=0, lv2=None, bsm=False, lfast=False, xb=None, bv=False, xper=1, thl=None, lv3=None):
    A = Asm()
    stamp_list = []
    role = ["S"]
    if bal:
        cap = lv[2]
        sched = [(64, (lv2 or lv)[2])] + ([(bend, lv3[2] if lv3 else 8)] if bend else [])
    if dist is None: dist = cap
    if woflags is None: woflags = wflags
    def stamp(name):
        if probe and role[0] == "S" and name == probe:
            A("s_memrealtime s[82:83]")
        if stamps and name in SETS[stamps].split() and not (stamps in ("late", "steal") and role[0] == "S" and name == "issued"):
            k = len([x for x in stamp_list if x[0] == role[0]])
            stamp_list.append((role[0], name))
            A(f"{'s_memtime' if name.startswith('clk') else 's_memrealtime'} s[{80+2*k}:{81+2*k}]")
    def rbf(r):
        A(f"v_cvt_pk_bf16_f32 v{r}, v{r}, v{r}")
        A(f"v_and_b32 v{r}, 0xffff0000, v{r}")
    def masks(m0, t0, t1):
        A(f"v_and_b32 v{t0}, 1, v0")
        A(f"v_lshlrev_b32 v{t0}, 4, v{t0}")
        A(f"v_lshlrev_b32 v{t0}, v{t0}, s50")
        A(f"v_bfe_u32 v{t1}, v0, 1, 2")
        for r in range(4): A(f"v_cmp_eq_u32 s[{84+2*r if not (stamps or probe) else 62+2*r}:{85+2*r if not (stamps or probe) else 63+2*r}], {r}, v{t1}")
        for r in range(4): A(f"v_cndmask_b32 v{m0+r}, 0, v{t0}, s[{84+2*r if not (stamps or probe) else 62+2*r}:{85+2*r if not (stamps or probe) else 63+2*r}]")
    def abuild(a0, p, m0, n):
        for r in range(4):
            A(f"v_and_b32_dpp v{a0+r}, v{p}, v{m0+r} row_newbcast:{n} row_mask:0xf bank_mask:0xf")
    def dpp(op, d, s, ctl, rm="0xf", bm="0xf"):
        A(f"{op}_dpp v{d}, v{s}, v{s} {ctl} row_mask:{rm} bank_mask:{bm}")
    def wave_red(op, v):
        for c in ("quad_perm:[1,0,3,2]", "quad_perm:[2,3,0,1]", "row_half_mirror", "row_mirror"): dpp(op, v, v, c)
        dpp(op, v, v, "row_bcast:15", "0xa"); dpp(op, v, v, "row_bcast:31", "0xc")
    def mfma(d, a, b, first):
        A(f"v_mfma_f32_16x16x32_bf16 v[{d}:{d+3}], v[{a}:{a+3}], v[{b}:{b+3}], {0 if first else f'v[{d}:{d+3}]'}")
    def srd(d, off, nbytes):
        A(f"s_load_dwordx2 s[{d}:{d+1}], s[0:1], {off}")
        A(f"s_mov_b32 s{d+2}, {nbytes}")
        A(f"s_mov_b32 s{d+3}, 0x20000")
    def off(n): return f" offset:{n}" if n else ""
    def dump_stamps():
        if not stamps: return
        mine = [x for x in stamp_list if x[0] == role[0]]
        A("s_mov_b64 exec, -1")
        A("s_waitcnt lgkmcnt(0)")
        for k in range(len(mine)): A(f"v_writelane_b32 v0, s{80+2*k}, {k}")
        A("s_getreg_b32 s48, hwreg(HW_REG_XCC_ID)"); A("v_writelane_b32 v0, s48, 15")
        A("s_getreg_b32 s48, hwreg(HW_REG_HW_ID)"); A("v_writelane_b32 v0, s48, 14")
        A("s_load_dwordx2 s[40:41], s[0:1], 88"); A(f"s_mov_b32 s42, {WS_BYTES}"); A("s_mov_b32 s43, 0x20000")
        A("s_mul_i32 s48, s2, 5"); A("s_add_u32 s48, s48, s3"); A("s_lshl_b32 s48, s48, 6"); A(f"s_add_u32 s48, s48, {WS_ST}")
        A("v_mbcnt_lo_u32_b32 v1, -1, 0"); A("v_lshlrev_b32 v1, 2, v1")
        A("s_mov_b64 exec, 0xffff")
        A("s_waitcnt lgkmcnt(0)")
        A("buffer_store_dword v0, v1, s[40:43], s48 offen")

    A(f"{KN}:")
    if stamps or probe: A("s_memrealtime s[80:81]")
    if fast:
        A("s_load_dwordx2 s[8:9], s[0:1], 8"); A("s_load_dwordx2 s[12:13], s[0:1], 16")
    A("v_lshrrev_b32 v1, 6, v0")
    A("s_cmp_ge_u32 s2, 256")
    A("s_cbranch_scc1 L_end")
    A("v_readfirstlane_b32 s3, v1")
    if numa:
        A("s_lshr_b32 s4, s2, 1"); A("s_and_b32 s4, s4, 28"); A("s_and_b32 s5, s2, 3"); A("s_or_b32 s4, s4, s5")
        A("s_lshr_b32 s5, s2, 5"); A("s_and_b32 s5, s5, 6"); A("s_bfe_u32 s6, s2, 0x10002"); A("s_or_b32 s5, s5, s6")
    elif mapx:
        A("s_lshr_b32 s4, s2, 3"); A("s_and_b32 s5, s2, 7")
    else:
        A("s_and_b32 s4, s2, 31"); A("s_lshr_b32 s5, s2, 5")
    A("v_and_b32 v0, 63, v0")
    A("s_mov_b32 s50, 0xffff")
    A("s_cmp_eq_u32 s3, 4")
    A("s_cbranch_scc1 L_service")
    if steal or bal:
        A("s_cmp_eq_u32 s3, 5")
        A("s_cbranch_scc1 L_claim")
    nst = 128 - 2 * np_ if steal else 128

    role[0] = "W"; stamp_list.append(("W", "start"))
    VL16, M0, Q0, S0, AB, D0, P0, T0, RING = 1, 2, 6, 10, 14, 22, 26, 42, 48
    LVR, LVA = RING + 4 * nslot, RING + 4 * nslot + 1
    if fast:
        for d in (8, 12): A(f"s_mov_b32 s{d+2}, {64 << 20}"); A(f"s_mov_b32 s{d+3}, 0x20000")
    else:
        srd(8, 8, 64 << 20); srd(12, 16, 64 << 20)
    if numa:
        A("s_lshl_b32 s48, s4, 21"); A("s_lshr_b32 s49, s5, 1"); A("s_lshl_b32 s49, s49, 19"); A("s_add_u32 s48, s48, s49")
        A("s_xor_b32 s49, s4, s5"); A(f"s_xor_b32 s49, s49, {par}"); A("s_and_b32 s49, s49, 1"); A("s_lshl_b32 s49, s49, 13"); A("s_add_u32 s48, s48, s49")
        A("s_lshl_b32 s49, s3, 11"); A("s_add_u32 s48, s48, s49")
        A("s_mov_b32 s49, s48")
        A(f"v_lshlrev_b32 v{VL16}, 4, v0")
    else:
        A("s_lshl_b32 s48, s4, 21"); A("s_lshl_b32 s49, s5, 18"); A("s_add_u32 s48, s48, s49")
    if numa: pass
    elif not pat:
        if gsplit == 1:
            A("s_lshl_b32 s49, s3, 11"); A("s_add_u32 s48, s48, s49")
            A(f"v_and_b32 v2, 32, v0"); A(f"v_mul_u32_u24 v2, {256 - 16}, v2"); A(f"v_lshl_add_u32 v{VL16}, v0, 4, v2")
        elif gsplit == 2:
            A("s_lshl_b32 s49, s3, 11"); A("s_add_u32 s48, s48, s49")
            A(f"v_lshlrev_b32 v{VL16}, 4, v0")
        else:
            A("s_lshl_b32 s49, s3, 12"); A("s_add_u32 s48, s48, s49")
            A(f"v_lshlrev_b32 v{VL16}, 4, v0")
        A("s_mov_b32 s49, s48")
    else:
        assert not steal
        sh = {n: 8 + k for k, n in enumerate(pat.split())}
        assert sh["c0"] < sh["c1"] <= 11 and sh["c1"] < sh["c2"] < sh["c3"] < sh["c4"] < sh["c5"] and all(x % 4 == 0 for x in ph)
        CM = sum(1 << sh[f"c{k}"] for k in range(2, 6))
        for k in range(2):
            A(f"s_bfe_u32 s49, s3, {k | (1 << 16)}"); A(f"s_lshl_b32 s49, s49, {sh[f'w{k}']}"); A("s_add_u32 s48, s48, s49")
        A(f"v_and_b32 v{VL16}, 15, v0"); A(f"v_lshlrev_b32 v{VL16}, 4, v{VL16}")
        for k in range(2):
            A(f"v_bfe_u32 v2, v0, {4 + k}, 1"); A(f"v_lshl_add_u32 v{VL16}, v2, {sh[f'g{k}']}, v{VL16}")
        A(f"s_mul_i32 s59, s5, {ph[1]}")
        if ph[0]: A("s_and_b32 s49, s4, 7"); A(f"s_mul_i32 s49, s49, {ph[0]}"); A("s_add_u32 s59, s59, s49")
        if ph[2]: A("s_lshr_b32 s49, s4, 3"); A(f"s_mul_i32 s49, s49, {ph[2]}"); A("s_add_u32 s59, s59, s49")
        A("s_mov_b32 s56, 0")
        for k in range(2, 6):
            A(f"s_bfe_u32 s49, s59, {k | (1 << 16)}"); A(f"s_lshl_b32 s49, s49, {sh[f'c{k}']}"); A("s_add_u32 s56, s56, s49")
        A("s_add_u32 s49, s48, s56")
        A(f"s_mov_b32 s60, {hex(CM)}")
    A("s_waitcnt lgkmcnt(0)")
    stamp("karg")
    issued = [0]; waited = [-1]
    def slot(i): return RING + 4 * (i % nslot)
    extra = [None]
    def wait_for(i):
        if i > waited[0]:
            n = issued[0] - 1 - i + (1 if extra[0] is not None and i < extra[0] else 0)
            A(f"s_waitcnt vmcnt({n})"); waited[0] = i
    def capof(i):
        if not sched: return cap
        c = cap
        for frm, val in sched:
            if i >= frm: c = val
        return c[i % len(c)] if isinstance(c, tuple) else c
    three = lv[0] < lv[1] or (lv2 and lv2[0] < lv2[1])
    def tick():
        A(f"ds_write_b32 v{T0+4}, v{T0+5} offset:{LPROG}")
        A(f"v_add_u32 v{T0+5}, 1, v{T0+5}")
    def issue():
        i = issued[0]
        ii = i % 64; s = 8 if i < 64 or "VK" in skip.split() else 12
        if pat:
            if ii % 4 == 0 and i:
                A("s_orn2_b32 s56, s56, s60"); A(f"s_add_u32 s56, s56, {1 << sh['c2']}"); A("s_and_b32 s56, s56, s60"); A("s_add_u32 s49, s48, s56")
        elif i == 64: A("s_mov_b32 s49, s48" if parv is None or parv == par else "s_xor_b32 s49, s48, 0x2000")
        elif gsplit == 2:
            if ii % 2 == 0 and i: A("s_addk_i32 s49, 0x2000")
        elif ii % (2 if numa else 4) == 0 and i:
            A("s_addk_i32 s49, 0x4000")
        if bal and not lfast:
            if i >= npre and ii % tk == 0 and bfrom <= i <= bto + tk:
                if i > bfrom:
                    A("s_waitcnt lgkmcnt(0)"); A(f"v_readfirstlane_b32 s58, v{LVR}")
                    A("s_and_b32 vcc_lo, s58, 2")
                if i <= bto:
                    tick(); A(f"ds_read_b32 v{LVR}, v{LVA} offset:{LLV}")
            if i >= npre and ii % 4 == 0: A("s_cmp_lg_u32 s58, 1")
        if bal and lfast:
            upd = bfrom < i <= bto + 1 and (i - 1 - bfrom) % tk == 0
            if upd:
                A("s_waitcnt lgkmcnt(0)"); A(f"v_readfirstlane_b32 s58, v{LVR}")
                A("s_and_b32 vcc_lo, s58, 2")
            if bfrom <= i <= bto and (i - bfrom) % tk == 0:
                tick(); A(f"ds_read_b32 v{LVR}, v{LVA} offset:{LLV}")
            if i >= npre and (ii % 4 == 0 or upd) and three: A("s_cmp_lg_u32 s58, 1")
        c_ = capof(i)
        if c_ and i >= c_: wait_for(i - c_)
        if bal and i >= max(npre, lv[0]) and not (bend and i >= bend and not lv3):
            l = lv3 if lv3 and i >= bend else lv2 if lv2 and i >= 64 else lv
            assert l[2] == c_
            if l[1] < l[2]:
                A(f"s_cbranch_vccnz L_c{i}")
                if i >= l[1]: A(f"s_waitcnt vmcnt({l[1] - 1})")
            if l[0] < l[1]:
                A(f"s_cbranch_scc1 L_c{i}"); A(f"s_waitcnt vmcnt({l[0] - 1})")
            A(f"L_c{i}:")
        if capl and i >= max(capl, capfrom, npre) and i - capl > waited[0]:
            A(f"s_cbranch_vccnz L_c{i}"); A(f"s_waitcnt vmcnt({capl - 1})"); A(f"L_c{i}:")
        issued[0] += 1
        r = slot(i)
        imm = ((ii & 1) << sh["c0"]) + ((ii >> 1 & 1) << sh["c1"]) if pat else (ii % 4) * 512 if gsplit == 1 else (ii % (2 if numa or gsplit == 2 else 4)) * 1024
        A(f"buffer_load_dwordx4 v[{r}:{r+3}], v{VL16}, s[{s}:{s+3}], s49 offen{off(imm)} {kvflags}")
        stamp(f"i{i}")
        if steal and i >= nst - 2 * ah and (nst - i) % 2 == 0: tick()
        if i == 64: stamp("clk1")
    for _ in range(npre): issue()
    if touch:
        A(f"buffer_load_dword v{T0+3}, v{VL16}, s[12:15], s48 offen {kvflags}")
        extra[0] = issued[0]
    stamp("pre")
    A("s_branch L_stream")
    stream_at = len(A.L)
    A("L_stream:")
    stamp("far")
    if wprio: A(f"s_setprio {wprio}")
    masks(M0, T0, T0 + 1)
    A("s_mov_b32 s52, 0xcccccccc"); A("s_mov_b32 s53, 0xcccccccc")
    A("s_mov_b32 s54, 0xaaaaaaaa"); A("s_mov_b32 s55, 0xaaaaaaaa")
    A(f"v_and_b32 v{T0+2}, 15, v0"); A(f"v_lshlrev_b32 v{T0+2}, 4, v{T0+2}")
    A(f"v_mov_b32 v{T0+4}, s3"); A(f"v_lshlrev_b32 v{T0+4}, 2, v{T0+4}"); A(f"v_mov_b32 v{T0+5}, 1")
    def setlevel():
        if bal:
            A("s_and_b32 vcc_lo, s58, 2"); A("s_mov_b32 vcc_hi, 0")
            if three: A("s_cmp_lg_u32 s58, 1")
        if capl:
            A(f"s_and_b32 vcc_lo, s3, {capsel}"); A("s_mov_b32 vcc_hi, 0")
    if bal:
        A("s_mov_b32 s58, 0"); A(f"v_mov_b32 v{LVA}, 0")
    setlevel()
    A("s_barrier")
    stamp("bar0"); stamp("clk0")
    for _ in range(nslot - npre): issue()
    stamp("issued")
    A(f"v_mov_b32 v{T0+1}, 0")
    A(f"s_mov_b32 s57, {SPIN * 8}")
    A("L_pollQ:")
    A(f"ds_read_b32 v{T0}, v{T0+1} offset:{LQF}")
    A(f"ds_read_b128 v[{Q0}:{Q0+3}], v{T0+2} offset:{LQ}")
    A("s_sub_u32 s57, s57, 1"); A("s_cbranch_scc1 L_pollQ_done")
    A("s_waitcnt lgkmcnt(0)")
    A(f"v_cmp_eq_u32 vcc, 0, v{T0}")
    A("s_nop 1")
    A("s_cbranch_vccnz L_pollQ")
    A("L_pollQ_done:")
    setlevel()
    stamp("qready")
    def early_issue(i):
        if ifirst:
            d = max(capof(i + 1 + k) for k in range(13)) if sched else dist
            while issued[0] < min(nst, i + 1 + d) and issued[0] - nslot < i and issued[0] - capof(issued[0]) <= i: issue()
    def maybe_issue(i):
        want = max(nslot + min(i + 1, burst + i // every) if i < nslot else 0, min(i + 1 + (max(capof(i + 1 + k) for k in range(13)) if sched else dist), nslot + i + 1))
        while issued[0] < min(nst, want): issue()
    for i in range(64):
        n = i % 16; r = slot(i)
        A(f"v_mov_b32 v{P0+n}, 0")
        wait_for(i); early_issue(i)
        for k in range(4): A(f"v_dot2c_f32_bf16 v{P0+n}, v{r+k}, v{Q0+k}")
        maybe_issue(i)
        if n == 15:
            a = i // 16
            for k in range(8):
                dpp("v_add_f32", P0 + k, P0 + k, "row_ror:8", bm="0x3"); dpp("v_add_f32", P0 + k, P0 + k + 8, "row_ror:8", bm="0xc")
            if gap and i >= nslot - 1 and gap > 1: issue()
            for k in range(4):
                dpp("v_add_f32", P0 + k, P0 + k, "row_half_mirror", bm="0x5"); dpp("v_add_f32", P0 + k, P0 + k + 4, "row_half_mirror", bm="0xa")
            for k in range(4): dpp("v_add_f32", P0 + k, P0 + k, "quad_perm:[2,3,0,1]")
            A(f"v_cndmask_b32 v{P0}, v{P0}, v{P0+2}, s[52:53]")
            A(f"v_cndmask_b32 v{P0+1}, v{P0+1}, v{P0+3}, s[52:53]")
            for k in range(2): dpp("v_add_f32", P0 + k, P0 + k, "quad_perm:[1,0,3,2]")
            A(f"v_cndmask_b32 v{S0+a}, v{P0}, v{P0+1}, s[54:55]")
            rbf(S0 + a)
            A(f"v_mul_f32 v{S0+a}, {SCALE}, v{S0+a}")
            rbf(S0 + a)
    stamp("kdone")
    A(f"v_max3_f32 v{T0}, v{S0}, v{S0+1}, v{S0+2}")
    A(f"v_max_f32 v{T0}, v{T0}, v{S0+3}")
    wave_red("v_max_f32", T0)
    if gap: issue()
    A(f"v_readlane_b32 s51, v{T0}, 63")
    for a in range(4): A(f"v_subrev_f32 v{S0+a}, s51, v{S0+a}")
    for a in range(4): A(f"v_mul_f32 v{S0+a}, {LOG2E}, v{S0+a}")
    for a in range(4): A(f"v_exp_f32 v{S0+a}, v{S0+a}")
    A(f"v_add_f32 v{T0+1}, v{S0}, v{S0+1}")
    A(f"v_add_f32 v{T0+3}, v{S0+2}, v{S0+3}")
    A(f"v_add_f32 v{T0+1}, v{T0+1}, v{T0+3}")
    if steal:
        A(f"v_bfe_u32 v{P0}, v0, 2, 2"); A(f"v_and_b32 v{P0+1}, 3, v0"); A(f"v_lshrrev_b32 v{P0+2}, 4, v0")
        A(f"v_lshlrev_b32 v{P0}, 8, v{P0}"); A(f"v_lshl_add_u32 v{P0}, v{P0+1}, 4, v{P0}"); A(f"v_lshl_add_u32 v{P0}, v{P0+2}, 2, v{P0}")
        A(f"v_lshl_add_u32 v{P0}, v{T0+4}, 4, v{P0}")
        A(f"ds_write_b32 v{P0}, v{S0+3} offset:{LP}")
    for a in range(4): A(f"v_cvt_pk_bf16_f32 v{S0+a}, v{S0+a}, v{S0+a}")
    abuild(AB, S0, M0, 0)
    if gap: issue()
    wave_red("v_add_f32", T0 + 1)
    A(f"v_lshlrev_b32 v{T0+3}, 1, v{T0+4}")
    A("s_mov_b32 exec_lo, 0"); A("s_mov_b32 exec_hi, 0x80000000")
    A(f"ds_write_b64 v{T0+3}, v[{T0}:{T0+1}] offset:{LML}")
    A("s_mov_b64 exec, -1")
    A(f"v_and_b32 v{T0}, 15, v0"); A(f"v_lshlrev_b32 v{T0}, 5, v{T0}")
    A(f"v_and_b32 v{T0+2}, 16, v0"); A(f"v_add_u32 v{T0}, v{T0}, v{T0+2}")
    A(f"v_lshl_add_u32 v{T0}, v{T0+4}, 7, v{T0}")
    if mlat: A(f"v_mov_b32 v{T0+1}, 0")
    def procv(i):
        wait_for(i); early_issue(i)
        mfma(D0, AB + 4 * (i & 1), slot(i), i == 64)
        if i < nst - 1: abuild(AB + 4 * ((i + 1) & 1), S0 + (i + 1 - 64) // 16, M0, (i + 1) % 16)
    if not steal:
        for i in range(64, 128):
            procv(i); maybe_issue(i)
            if i == mlat: A(f"ds_write_b32 v{T0+1}, v{T0+5} offset:{LPF}" if bal else f"ds_write_b32 v{T0+4}, v{T0+5} offset:{LPROG}")
            if i == 127 - plate:
                if mlat: A(f"ds_write_b32 v{T0+1}, v{T0+5} offset:{LGO}")
                elif bal: A(f"ds_write_b32 v{LVA}, v{T0+5} offset:{LGO}")
                else: A(f"ds_write_b32 v{T0+4}, v{T0+5} offset:{LPROG}")
    else:
        assert dist == 6 and cap == 6
        PR, RECA, PTA = P0, P0 + 4, P0 + 5
        UB = [slot(nst + 2 * k) for k in range(4)]
        assert UB[3] + 8 <= RING + 4 * nslot and UB == [UB[0] + 8 * k for k in range(4)]
        A(f"v_mov_b32 v{RECA}, {LREC}")
        A(f"v_and_b32 v{PTA}, 1, v0"); A(f"v_lshrrev_b32 v{P0+6}, 4, v0"); A(f"v_lshl_add_u32 v{PTA}, v{PTA}, 2, v{P0+6}")
        A(f"v_lshlrev_b32 v{PTA}, 2, v{PTA}"); A(f"v_lshl_add_u32 v{PTA}, v{T0+4}, 3, v{PTA}")
        A("s_lshl_b32 s58, s4, 21"); A("s_lshl_b32 s59, s3, 11"); A("s_add_u32 s58, s58, s59"); A(f"s_add_u32 s58, s58, {(1024 - 32 * np_) * 256}")
        A("s_mov_b32 s59, 0x10000")
        A("s_mov_b32 s68, 0x7fff0000")
        for i in range(64, nst - 6):
            procv(i); maybe_issue(i)
        assert issued[0] == nst
        lab = [0]
        def fetch(k):
            n = lab[0]; lab[0] += 1
            tick()
            A("s_mov_b32 s64, s68")
            A("s_cmp_lt_u32 s59, 4"); A(f"s_cbranch_scc1 L_go{n}")
            A(f"s_mov_b32 s57, {SPIN * 8}")
            A(f"L_rec{n}:")
            A(f"ds_read_b32 v{P0+6}, v{RECA}")
            A("s_sub_u32 s57, s57, 1"); A(f"s_cbranch_scc1 L_stop{n}")
            A("s_waitcnt lgkmcnt(0)")
            A(f"v_readfirstlane_b32 s65, v{P0+6}")
            A("s_cmp_eq_u32 s65, -1"); A(f"s_cbranch_scc1 L_rec{n}")
            A(f"s_cmp_lt_u32 s65, {8 * np_}"); A(f"s_cbranch_scc1 L_unit{n}")
            A(f"L_stop{n}:")
            A("s_mov_b32 s59, 3")
            A(f"s_branch L_go{n}")
            A(f"L_unit{n}:")
            A("s_and_b32 s66, s65, 7"); A("s_lshl_b32 s66, s66, 18"); A("s_lshr_b32 s67, s65, 3"); A("s_lshl_b32 s67, s67, 13")
            A("s_add_u32 s64, s58, s66"); A("s_add_u32 s64, s64, s67")
            A(f"s_lshl_b32 s{60+k}, s65, 7")
            A(f"v_add_u32 v{RECA}, 4, v{RECA}")
            A(f"L_go{n}:")
            if n < 3: stamp(f"rec{n}")
            for b in range(2): A(f"buffer_load_dwordx4 v[{UB[k]+4*b}:{UB[k]+4*b+3}], v{VL16}, s[12:15], s64 offen{off(1024*b)} {kvflags}")
        def pread(k):
            A(f"v_add_u32 v{P0+7}, s{60+k}, v{PTA}")
            A(f"ds_read_b32 v{PR+k}, v{P0+7} offset:{LPT}")
        for k in range(4): A(f"s_mov_b32 s{60+k}, 0")
        for k in range(3):
            fetch(k)
            for i in (nst - 6 + 2 * k, nst - 5 + 2 * k):
                A(f"s_waitcnt vmcnt({nst - 1 - i + 2 * (k + 1)})"); waited[0] = i
                procv(i)
            A("s_sub_u32 s59, s59, 1")
        stamp("static")
        A(f"v_mov_b32 v{P0+6}, 0")
        A(f"s_mov_b32 s57, {SPIN * 8}")
        A("L_pollT:")
        A(f"ds_read_b32 v{P0+7}, v{P0+6} offset:{LPF}")
        A(f"ds_read_b32 v{P0+8}, v{T0+4} offset:{LF}")
        A("s_sub_u32 s57, s57, 1"); A("s_cbranch_scc1 L_pollT_done")
        A("s_waitcnt lgkmcnt(0)")
        A(f"v_cmp_eq_u32 vcc, 0, v{P0+7}")
        A("s_nop 1")
        A("s_cbranch_vccnz L_pollT")
        A("L_pollT_done:")
        stamp("tready")
        pread(0)
        A("s_nop 7")
        for k in range(4): A(f"v_mul_f32 v{D0+k}, v{D0+k}, v{P0+8}")
        A("s_cmp_eq_u32 s59, 0"); A("s_cbranch_scc1 L_pool_done")
        A("L_pool:")
        for k in range(4):
            fetch((k + 3) % 4)
            A("s_waitcnt lgkmcnt(0)")
            abuild(AB, PR + k, M0, 0); abuild(AB + 4, PR + k, M0, 1)
            pread((k + 1) % 4)
            A("s_waitcnt vmcnt(7)")
            mfma(D0, AB, UB[k], False)
            A("s_waitcnt vmcnt(6)")
            mfma(D0, AB + 4, UB[k] + 4, False)
            A("s_sub_u32 s59, s59, 1"); A("s_cmp_eq_u32 s59, 0")
            A("s_cbranch_scc1 L_pool_done" if k < 3 else "s_cbranch_scc0 L_pool")
        A("L_pool_done:")
        A("s_nop 5")
    stamp("vdone"); stamp("clk2")
    A("s_mov_b32 exec_hi, 0")
    A(f"ds_write_b128 v{T0}, v[{D0}:{D0+3}] offset:{LO}")
    A("s_waitcnt lgkmcnt(0)")
    A("s_barrier")
    dump_stamps()
    A("s_endpgm")
    if steal:
        A("L_claim:")
        srd(40, 88, WS_BYTES)
        A("s_lshl_b32 s48, s4, 7"); A(f"s_add_u32 s48, s48, {WS_C}")
        A("v_mov_b32 v1, 0"); A(f"v_mov_b32 v3, {LREC}"); A(f"v_mov_b32 v12, {END}")
        A("s_mov_b32 s49, 0")
        A("s_barrier")
        A("s_waitcnt lgkmcnt(0)")
        A("s_mov_b64 exec, 1")
        cl = [0]
        def wait_prog(lim):
            n = cl[0]; cl[0] += 1
            A(f"s_mov_b32 s57, {SPIN * 8}")
            A(f"L_cw{n}:")
            A(f"s_sleep {lsleep}")
            A(f"ds_read_b128 v[4:7], v1 offset:{LPROG}")
            A("s_sub_u32 s57, s57, 1"); A("s_cbranch_scc1 L_claim_end")
            A("s_waitcnt lgkmcnt(0)")
            A("v_max3_u32 v4, v4, v5, v6"); A("v_max_u32 v4, v4, v7")
            A(f"v_cmp_ge_u32 vcc, s{lim}, v4")
            A("s_nop 1")
            A(f"s_cbranch_vccnz L_cw{n}")
        def claim(k):
            wait_prog(49)
            if noatom:
                A("s_lshl_b32 s51, s49, 3"); A("s_add_u32 s51, s51, s5"); A(f"v_mov_b32 v{8+k}, s51")
            else:
                A(f"v_mov_b32 v{8+k}, 1")
                A(f"buffer_atomic_add v{8+k}, v1, s[40:43], s48 offen {aflags}")
            A("s_add_u32 s49, s49, 1")
        for k in range(3): claim(k)
        A("L_claim_loop:")
        for k in range(4):
            claim((k + 3) % 4)
            A("s_waitcnt vmcnt(3)")
            A(f"ds_write_b32 v3, v{8+k}")
            A(f"v_cmp_le_u32 vcc, {8 * np_}, v{8+k}")
            A("v_add_u32 v3, 4, v3")
            A("s_nop 0")
            A("s_cbranch_vccnz L_claim_done" if k < 3 else "s_cbranch_vccz L_claim_loop")
        A("L_claim_done:")
        A(f"s_add_u32 s49, s49, {ah - 4 + golate}")
        wait_prog(49)
        A("L_claim_end:")
        A("ds_write_b32 v3, v12")
        A("v_mov_b32 v2, 1")
        A(f"ds_write_b32 v1, v2 offset:{LGO}")
        A("s_waitcnt lgkmcnt(0)")
        A("s_endpgm")
    if bal and bsm:
        nt = (bto - bfrom) // tk + 1
        A("L_claim:")
        srd(40, 88, WS_BYTES)
        A("s_and_b32 s52, s2, 7"); A("s_lshl_b32 s52, s52, 7"); A(f"s_add_u32 s48, s52, {WS_B}"); A("s_add_u32 s46, s48, 64")
        A("s_lshr_b32 s51, s2, 3"); A("s_lshl_b32 s53, s51, 2")
        A("v_mov_b32 v1, 0"); A("v_mov_b32 v3, s53")
        A("s_mov_b32 s49, 0"); A("s_mov_b32 s47, 0")
        A("s_barrier")
        A("s_mov_b64 exec, 1")
        A(f"s_mov_b32 s57, {SPIN * 8}")
        A("L_baltag:")
        A("s_sleep 4")
        A(f"ds_read_b32 v8, v1 offset:{LTAG}")
        A("s_sub_u32 s57, s57, 1"); A("s_cbranch_scc1 L_bal_end")
        A("s_waitcnt lgkmcnt(0)")
        A("v_readfirstlane_b32 s60, v8")
        A("s_cmp_eq_u32 s60, -1"); A("s_cbranch_scc1 L_baltag")
        if xb: A(f"s_add_u32 s44, s52, {WS_G}"); A("s_add_u32 s45, s44, 0x800")
        A("L_bal:")
        A(f"s_mov_b32 s57, {SPIN * 8}")
        A("L_balw:")
        A(f"s_sleep {lsleep}")
        A(f"ds_read_b128 v[4:7], v1 offset:{LPROG}")
        A("s_sub_u32 s57, s57, 1"); A("s_cbranch_scc1 L_bal_end")
        A("s_waitcnt lgkmcnt(0)")
        A("v_min3_u32 v4, v4, v5, v6"); A("v_min_u32 v4, v4, v7")
        A("v_readfirstlane_b32 s53, v4")
        A("s_cmp_le_u32 s53, s49"); A("s_cbranch_scc1 L_balw")
        A("s_mov_b32 s49, s53")
        A("v_lshl_or_b32 v4, v4, 10, v8")
        A("buffer_store_dword v4, v3, s[40:43], s48 offen")
        A("s_load_dwordx16 s[64:79], s[40:41], s48 glc"); A("s_load_dwordx16 s[80:95], s[40:41], s46 glc")
        if xb: A("s_load_dword s61, s[40:41], s45 glc")
        A("s_waitcnt lgkmcnt(0)")
        A("s_cmp_lg_u32 s47, 0"); A("s_cbranch_scc1 L_bal_sum")
        A("s_mov_b32 s54, 0")
        for k in range(32): A(f"s_xor_b32 s55, s{64+k}, s60"); A("s_or_b32 s54, s54, s55")
        A("s_and_b32 s54, s54, 0x3ff"); A("s_cbranch_scc1 L_bal_next")
        A("s_mov_b32 s47, 1")
        A("L_bal_sum:")
        for st in (16, 8, 4, 2, 1):
            for k in range(st): A(f"s_add_u32 s{64+k}, s{64+k}, s{64+k+st}")
        A("s_mul_i32 s54, s60, 32"); A("s_sub_u32 s64, s64, s54"); A("s_lshr_b32 s64, s64, 10")
        A("s_lshl_b32 s54, s49, 5"); A("s_sub_i32 s55, s64, s54")
        if xb:
            gnum, gsh, gmid = xb
            A("s_xor_b32 s54, s61, s60"); A("s_and_b32 s54, s54, 0x3ff"); A("s_ashr_i32 s61, s61, 10")
            A("s_cmp_eq_u32 s54, 0"); A("s_cselect_b32 s61, s61, 0"); A("s_add_i32 s55, s55, s61")
        A("s_mov_b32 s56, 0")
        A(f"s_cmp_gt_i32 s55, {bmid + th}"); A("s_cselect_b32 s56, 2, s56")
        A(f"s_cmp_lt_i32 s55, {bmid - (th if thl is None else thl)}"); A("s_cselect_b32 s56, 1, s56")
        A("v_mov_b32 v6, s56")
        A(f"ds_write_b32 v1, v6 offset:{LLV}")
        if xb:
            A("s_cmp_lg_u32 s51, 0"); A("s_cbranch_scc1 L_bal_next")
            A("s_lshl_b32 s54, s64, 10"); A("s_or_b32 s54, s54, s60"); A("v_mov_b32 v5, s54")
            A("buffer_store_dword v5, v1, s[40:43], s44 offen sc1")
            for k in range(8): A(f"s_mov_b32 s54, {WS_G + 128 * k}"); A(f"s_load_dword s{66+k}, s[40:41], s54 glc")
            A("s_waitcnt lgkmcnt(0)")
            A("s_mov_b32 s54, 0"); A("s_mov_b32 s62, 0")
            for k in range(8):
                A(f"s_xor_b32 s55, s{66+k}, s60"); A("s_or_b32 s54, s54, s55"); A(f"s_lshr_b32 s55, s{66+k}, 10"); A("s_add_u32 s62, s62, s55")
            A("s_and_b32 s54, s54, 0x3ff"); A("s_cbranch_scc1 L_bal_next")
            A("s_lshl_b32 s54, s64, 3"); A("s_sub_i32 s62, s62, s54"); A(f"s_add_i32 s62, s62, {gmid * 8}")
            A(f"s_mul_i32 s62, s62, {gnum}"); A(f"s_ashr_i32 s62, s62, {gsh + 3}")
            A("s_lshl_b32 s62, s62, 10"); A("s_or_b32 s62, s62, s60"); A("v_mov_b32 v5, s62")
            A("buffer_store_dword v5, v1, s[40:43], s45 offen")
        A("L_bal_next:")
        A(f"s_cmp_lt_u32 s49, {nt}"); A("s_cbranch_scc1 L_bal")
        A("L_bal_end:")
        A("s_endpgm")
    elif bal and bv:
        nt = (bto - bfrom) // tk + 1
        assert nt < 31 and not xb
        A("L_claim:")
        srd(40, 88, WS_BYTES)
        A("s_and_b32 s52, s2, 7"); A("s_lshl_b32 s52, s52, 7"); A(f"s_add_u32 s48, s52, {WS_B}")
        A("s_lshr_b32 s51, s2, 3"); A("s_lshl_b32 s53, s51, 2")
        A("v_mov_b32 v1, 0"); A("v_mov_b32 v3, s53"); A("v_and_b32 v2, 31, v0"); A("v_lshlrev_b32 v2, 2, v2")
        if xb:
            A(f"v_mov_b32 v9, {WS_G + 0x800 - WS_B}"); A("s_mov_b32 s62, 0"); A("s_mov_b32 s63, -1"); A("v_cndmask_b32 v2, v2, v9, s[62:63]")
            A(f"s_add_u32 s44, s52, {WS_G}"); A("s_add_u32 s45, s44, 0x800")
        A("s_mov_b32 s49, 0")
        A("s_barrier")
        A(f"s_mov_b32 s57, {SPIN * 8}")
        A("L_baltag:")
        A("s_sleep 4")
        A(f"ds_read_b32 v8, v1 offset:{LTAG}")
        A("s_sub_u32 s57, s57, 1"); A("s_cbranch_scc1 L_bal_end")
        A("s_waitcnt lgkmcnt(0)")
        A("v_cmp_eq_u32 vcc, 0, v8")
        A("v_and_b32 v8, 0xffffffe0, v8")
        A("s_nop 0")
        A("s_cbranch_vccnz L_baltag")
        if xb: A(f"s_add_u32 s46, s40, {WS_G}"); A("s_addc_u32 s47, s41, 0")
        A("L_bal:")
        A(f"s_mov_b32 s57, {SPIN * 8}")
        A("L_balw:")
        A(f"s_sleep {lsleep}")
        A(f"ds_read_b128 v[4:7], v1 offset:{LPROG}")
        A("s_sub_u32 s57, s57, 1"); A("s_cbranch_scc1 L_bal_end")
        A("s_waitcnt lgkmcnt(0)")
        A("v_min3_u32 v4, v4, v5, v6"); A("v_min_u32 v4, v4, v7")
        A("v_readfirstlane_b32 s53, v4")
        A("s_cmp_le_u32 s53, s49"); A("s_cbranch_scc1 L_balw")
        A("s_mov_b32 s49, s53")
        A("v_or_b32 v6, v4, v8")
        A("s_mov_b64 exec, 1")
        A("buffer_store_dword v6, v3, s[40:43], s48 offen")
        A("s_mov_b64 exec, -1")
        A("buffer_load_dword v5, v2, s[40:43], s48 offen sc1")
        A("s_waitcnt vmcnt(0)")
        A("v_xor_b32 v5, v5, v8"); A("v_cmp_gt_u32 vcc, 32, v5")
        if xb:
            A("v_cndmask_b32 v6, 0, v5, vcc"); A("v_readlane_b32 s61, v6, 32")
        A("v_cndmask_b32 v5, v4, v5, vcc")
        for c in ("quad_perm:[1,0,3,2]", "quad_perm:[2,3,0,1]", "row_half_mirror", "row_mirror"):
            A(f"v_add_u32_dpp v5, v5, v5 {c} row_mask:0xf bank_mask:0xf")
        A("v_add_u32_dpp v5, v5, v5 row_bcast:15 row_mask:0xa bank_mask:0xf")
        A("v_readlane_b32 s60, v5, 31")
        A("s_lshl_b32 s54, s49, 5"); A("s_sub_i32 s55, s60, s54")
        if xb: A("s_add_i32 s55, s55, s61")
        A("s_mov_b32 s56, 0")
        A(f"s_cmp_gt_i32 s55, {bmid + th}"); A("s_cselect_b32 s56, 2, s56")
        A(f"s_cmp_lt_i32 s55, {bmid - (th if thl is None else thl)}"); A("s_cselect_b32 s56, 1, s56")
        A("v_mov_b32 v6, s56")
        A(f"ds_write_b32 v1, v6 offset:{LLV}")
        if xb:
            gnum, gsh, gmid = xb
            A("s_cmp_lg_u32 s51, 0"); A("s_cbranch_scc1 L_bal_next")
            if xper > 1:
                A(f"s_and_b32 s54, s49, {xper - 1}"); A("s_cbranch_scc1 L_bal_next")
            A("v_mov_b32 v4, s60"); A("v_lshl_or_b32 v6, v4, 10, v8")
            A("s_mov_b64 exec, 1")
            A("buffer_store_dword v6, v1, s[40:43], s44 offen sc1")
            A("s_mov_b64 exec, -1")
            for k in range(8): A(f"s_load_dword s{66+k}, s[46:47], {128 * k} glc")
            A("v_readfirstlane_b32 s65, v8")
            A("s_waitcnt lgkmcnt(0)")
            A("s_mov_b32 s54, 0"); A("s_mov_b32 s62, 0")
            for k in range(8):
                A(f"s_xor_b32 s55, s{66+k}, s65"); A("s_or_b32 s54, s54, s55"); A(f"s_lshr_b32 s55, s{66+k}, 10"); A("s_add_u32 s62, s62, s55")
            A("s_and_b32 s54, s54, 0x3ff"); A("s_cbranch_scc1 L_bal_next")
            A("s_lshl_b32 s54, s60, 3"); A("s_sub_i32 s62, s62, s54"); A(f"s_add_i32 s62, s62, {gmid * 8}")
            A(f"s_mul_i32 s62, s62, {gnum}"); A(f"s_ashr_i32 s62, s62, {gsh + 3}")
            A("v_mov_b32 v4, s62"); A("v_lshl_or_b32 v6, v4, 10, v8")
            A("s_mov_b64 exec, 1")
            A("buffer_store_dword v6, v1, s[40:43], s45 offen")
            A("s_mov_b64 exec, -1")
        A("L_bal_next:")
        A(f"s_cmp_lt_u32 s49, {nt}"); A("s_cbranch_scc1 L_bal")
        A("L_bal_end:")
        A("s_endpgm")
    elif bal:
        nt = (bto - bfrom) // tk + 1
        A("L_claim:")
        srd(40, 88, WS_BYTES)
        if bloc:
            A("s_and_b32 s48, s2, 7"); A("s_lshl_b32 s48, s48, 7"); A(f"s_add_u32 s48, s48, {WS_B}")
            A("s_lshr_b32 s51, s2, 3")
            A("v_mov_b32 v1, 0"); A("v_and_b32 v2, 31, v0"); A("v_lshlrev_b32 v2, 2, v2")
            A("s_lshl_b32 s52, s51, 2"); A("v_mov_b32 v3, s52")
        else:
            A(f"s_lshr_b32 s48, s2, {bgrp}"); A(f"s_lshl_b32 s48, s48, {max(7, bgrp + bstr)}"); A(f"s_add_u32 s48, s48, {WS_B}")
            A(f"s_and_b32 s51, s2, {(1 << bgrp) - 1}")
            A("v_mov_b32 v1, 0"); A(f"v_and_b32 v2, {(1 << bgrp) - 1}, v0"); A(f"v_lshlrev_b32 v2, {bstr}, v2")
            A(f"s_lshl_b32 s52, s51, {bstr}"); A("v_mov_b32 v3, s52")
        A(f"s_mov_b32 s79, {WS_E}")
        A("s_mov_b32 s49, 0")
        A("s_barrier")
        A("s_waitcnt lgkmcnt(0)")
        A("buffer_load_dword v8, v1, s[40:43], s79 offen sc1")
        A("s_waitcnt vmcnt(0)")
        A("v_add_u32 v8, 1, v8"); A("v_and_b32 v8, 0x3ff, v8")
        A("L_bal:")
        A(f"s_mov_b32 s57, {SPIN * 8}")
        A("L_balw:")
        A(f"s_sleep {lsleep}")
        A(f"ds_read_b128 v[4:7], v1 offset:{LPROG}")
        A("s_sub_u32 s57, s57, 1"); A("s_cbranch_scc1 L_bal_end")
        A("s_waitcnt lgkmcnt(0)")
        A("v_min3_u32 v4, v4, v5, v6"); A("v_min_u32 v4, v4, v7")
        A("v_readfirstlane_b32 s53, v4")
        A("s_cmp_le_u32 s53, s49"); A("s_cbranch_scc1 L_balw")
        A("s_mov_b32 s49, s53")
        A("v_lshl_or_b32 v4, v4, 10, v8")
        A("s_mov_b64 exec, 1")
        A(f"buffer_store_dword v4, v3, s[40:43], s48 offen {'' if bloc else 'sc1'}")
        A("s_mov_b64 exec, -1")
        A("buffer_load_dword v5, v2, s[40:43], s48 offen sc1")
        A("s_waitcnt vmcnt(0)")
        A("v_and_b32 v6, 0x3ff, v5"); A("v_cmp_eq_u32 vcc, v6, v8"); A("v_lshrrev_b32 v5, 10, v5")
        A("v_cndmask_b32 v5, 0, v5, vcc")
        A("v_readlane_b32 s54, v5, s51")
        if bloc:
            A("v_mov_b32 v6, s54"); A("v_cndmask_b32 v5, v6, v5, vcc")
            for c in ("quad_perm:[1,0,3,2]", "quad_perm:[2,3,0,1]", "row_half_mirror", "row_mirror"):
                A(f"v_add_u32_dpp v5, v5, v5 {c} row_mask:0xf bank_mask:0xf")
            A("v_add_u32_dpp v5, v5, v5 row_bcast:15 row_mask:0xa bank_mask:0xf")
            A("v_readlane_b32 s55, v5, 31")
            A("s_lshl_b32 s54, s54, 5"); A("s_sub_i32 s55, s55, s54")
        else:
            for c in ("quad_perm:[1,0,3,2]", "quad_perm:[2,3,0,1]", "row_half_mirror") + (("row_mirror",) if bgrp > 3 else ()):
                A(f"v_add_u32_dpp v5, v5, v5 {c} row_mask:0xf bank_mask:0xf")
            A("v_readfirstlane_b32 s55, v5")
            A(f"s_lshl_b32 s54, s54, {bgrp}"); A("s_sub_i32 s55, s55, s54")
        A("s_mov_b32 s56, 0")
        A(f"s_cmp_gt_i32 s55, {bmid + th}"); A("s_cselect_b32 s56, 2, s56")
        A(f"s_cmp_lt_i32 s55, {bmid - (th if thl is None else thl)}"); A("s_cselect_b32 s56, 1, s56")
        A("v_mov_b32 v6, s56")
        A(f"ds_write_b32 v1, v6 offset:{LLV}")
        A(f"s_cmp_lt_u32 s49, {nt}"); A("s_cbranch_scc1 L_bal")
        A("L_bal_end:")
        A("s_waitcnt lgkmcnt(0)")
        A("s_endpgm")
    stream_body = A.L[stream_at:]; del A.L[stream_at:]

    role[0] = "S"; stamp_list.append(("S", "start"))
    G, J, PD, M0, AB, DQ, DG, T0 = 1, 2, 3, 4, 8, 16, 20, 24
    XA, XR, EP, GA, OUTA, XF, PH, XV, WDA, WOA, RA, OGA, TAG, GV, L16 = 40, 44, 45, 46, 48, 49, 50, 51, 52, 58, 59, 60, 61, 62, 63
    WQ, GU = 64, 128
    WO, WD, PS = 64, 128, 160
    def tag(regs, kind=""):
        if kind and kind in rnd:
            for r in regs: A(f"v_add_u32 v{r}, 0x200, v{r}")
        for r in regs: A(f"v_and_or_b32 v{r}, v{r}, s7, v{TAG}")
    def untag(regs):
        for r in regs: A(f"v_and_b32 v{r}, s7, v{r}")
    def check(regs, t):
        regs = list(regs)
        pairs = [regs[k:k+2] for k in range(0, len(regs), 2)]
        A(f"v_bitop3_b32 v{t}, v{pairs[0][0]}, v{pairs[0][1]}, v{TAG} bitop3:0x7e")
        rest = pairs[1:]
        while rest:
            take = rest[:2]; rest = rest[2:]
            for k, p in enumerate(take): A(f"v_bitop3_b32 v{t+1+k}, v{p[0]}, v{p[1]}, v{TAG} bitop3:0x7e")
            if len(take) == 2: A(f"v_or3_b32 v{t}, v{t}, v{t+1}, v{t+2}")
            else: A(f"v_or_b32 v{t}, v{t}, v{t+1}")
        A(f"v_and_b32 v{t}, 0x3ff, v{t}")
        A(f"v_cmp_ne_u32 vcc, 0, v{t}")
    def strip(regs, t):
        regs = list(regs)
        for r in regs[::2]: A(f"v_lshl_add_u64 v[{r}:{r+1}], v[{r}:{r+1}], 0, s[14:15]")
        acc = [t, t + 1]; rest = regs[:]
        for a in acc: A(f"v_or3_b32 v{a}, v{rest[0]}, v{rest[1]}, v{rest[2]}"); rest = rest[3:]
        k = 0
        while len(rest) > 2 or (len(rest) == 2 and k & 1):
            A(f"v_or3_b32 v{acc[k&1]}, v{acc[k&1]}, v{rest[0]}, v{rest[1]}"); rest = rest[2:]; k += 1
        if len(rest) == 2:
            A(f"v_or3_b32 v{t}, v{t}, v{rest[0]}, v{rest[1]}"); rest = []
        assert not rest
        A(f"v_bitop3_b32 v{t}, v{t}, v{t+1}, s7 bitop3:0x54")
        A(f"v_cmp_ne_u32 vcc, 0, v{t}")
    def pub4(kind, r, va, sreg, flags="sc1"):
        if kind in atom:
            for k in (0, 2): A(f"buffer_atomic_swap_x2 v[{r+k}:{r+k+1}], v{va}, s[40:43], s{sreg} offen{off(4*k)} sc1")
        else: A(f"buffer_store_dwordx4 v[{r}:{r+3}], v{va}, s[40:43], s{sreg} offen {flags}")
    def pkadd(d, a, b): A(f"v_pk_add_f32 v[{d}:{d+1}], v[{a}:{a+1}], v[{b}:{b+1}]")
    def poll(name, loads, regs, t, sleep):
        A(f"s_mov_b32 s70, {SPIN}")
        A(f"L_{name}:")
        if sleep: A(f"s_sleep {sleep}")
        loads()
        A("s_sub_u32 s70, s70, 1"); A(f"s_cbranch_scc1 L_{name}_done")
        A("s_waitcnt vmcnt(0)")
        if callable(regs): regs()
        else: check(regs, t)
        A("s_nop 1")
        if name not in skip.split(): A(f"s_cbranch_vccnz L_{name}")
        A(f"L_{name}_done:")
    def poll_pipe(name, R, delay, nreg, nld, loads, finish):
        A(f"s_mov_b32 s70, {SPIN}")
        for k in range(R - 1):
            loads(PS + nreg * k)
            if delay: A(f"s_sleep {delay}")
        A(f"L_{name}:")
        for k in range(R):
            if name == "pollO" and osleep: A(f"s_sleep {osleep}")
            loads(PS + nreg * ((k + R - 1) % R))
            if k == 0:
                A("s_sub_u32 s70, s70, 1"); A(f"s_cbranch_scc1 L_{name}_ok0")
            A(f"s_waitcnt vmcnt({nld * (R - 1)})")
            b = PS + nreg * k
            (strip if fast else check)(range(b, b + nreg), T0)
            A("s_nop 1")
            if name in skip.split(): A(f"s_branch L_{name}_ok{k}")
            A(f"s_cbranch_vccz L_{name}_ok{k}" if k < R - 1 else f"s_cbranch_vccnz L_{name}")
        for k in reversed(range(R)):
            A(f"L_{name}_ok{k}:")
            finish(PS + nreg * k)
            if k: A(f"s_branch L_{name}_done")
        A(f"L_{name}_done:")

    A("L_service:")
    (any(prio) and A(f"s_setprio {prio[0]}"))
    srd(16, 0, 1024); srd(20, 24, 4 << 20); srd(40, 88, WS_BYTES)
    A("s_load_dwordx4 s[44:47], s[0:1], 48")
    srd(24, 32, 4 << 20); srd(28, 64, 1376 * 1024); srd(32, 72, 1024)
    A(f"v_lshrrev_b32 v{G}, 4, v0"); A(f"v_and_b32 v{J}, 15, v0")
    if amap:
        HP, SP = 38, 39
        A("s_lshr_b32 s38, s2, 3"); A("s_and_b32 s39, s2, 7")
    else: HP, SP = 4, 5
    def chunks(hreg):
        if numa:
            A(f"s_and_b32 s7, s{hreg}, 3"); A("s_lshl_b32 s7, s7, 3"); A(f"s_lshr_b32 s48, s{hreg}, 2"); A("s_add_u32 s7, s7, s48")
            A("s_mul_i32 s56, s7, 43")
        elif mapx or amap: A(f"s_mul_i32 s56, s{hreg}, 43")
        else:
            A(f"s_and_b32 s7, s{hreg}, 7"); A("s_lshl_b32 s7, s7, 2"); A(f"s_lshr_b32 s48, s{hreg}, 3"); A("s_add_u32 s7, s7, s48")
            A("s_mul_i32 s56, s7, 43")
        A("s_add_u32 s57, s56, 43"); A("s_lshr_b32 s56, s56, 3"); A("s_lshr_b32 s57, s57, 3")
        A("s_sub_u32 s57, s57, s56")
    chunks(HP)
    A(f"v_lshlrev_b32 v{L16}, 4, v0")
    A(f"s_lshl_b32 s48, s{SP}, 7")
    A(f"v_lshlrev_b32 v{T0+1}, 1, v0")
    A(f"v_lshlrev_b32 v{T0+3}, 4, v{J}")
    A(f"v_lshl_add_u32 v{T0+2}, v{G}, 17, v{T0+3}")
    A(f"s_lshl_b32 s49, s{SP}, 19"); A(f"s_lshl_b32 s51, s{HP}, 8"); A("s_add_u32 s49, s49, s51")
    A(f"v_and_b32 v{T0+4}, 7, v0")
    A(f"v_cmp_gt_u32 vcc, s57, v{T0+4}")
    A("s_mov_b32 s51, 44032"); A(f"s_mul_i32 s58, s{SP}, 176128")
    A(f"v_cndmask_b32 v{T0+4}, 0, v{T0+4}, vcc")
    A(f"v_add_lshl_u32 v{T0+4}, v{T0+4}, s56, 4")
    A(f"v_mad_u32_u24 v{T0+4}, v{G}, s51, v{T0+4}")
    A(f"v_add_u32 v{T0+4}, s58, v{T0+4}")
    A(f"v_mov_b32 v{T0+5}, 0")
    A(f"v_cmp_lt_u32 vcc, 7, v{J}")
    A(f"s_mov_b32 s79, {WS_E}")
    A("s_mov_b32 s60, 5504"); A("s_mov_b32 s61, 0")
    A("s_waitcnt lgkmcnt(0)")
    stamp("skarg")
    if steal:
        A(f"s_cmp_lg_u32 s{SP}, 0"); A("s_cbranch_scc1 L_noreset")
        A(f"s_lshl_b32 s51, s{HP}, 7"); A(f"s_add_u32 s51, s51, {WS_C}")
        A("s_mov_b64 exec, 1")
        A(f"buffer_store_dword v{T0+5}, v{T0+5}, s[40:43], s51 offen sc1")
        A("s_mov_b64 exec, -1")
        A("L_noreset:")
    if pre:
        A("s_lshl_b32 s6, s4, 3"); A("s_add_u32 s6, s6, s5")
        if "A" in pre:
            A(f"s_lshl_b32 s51, s{2 if amap else 6}, 10")
            A(f"buffer_load_dword v{T0+10}, v{L16}, s[40:43], s51 offen {preflags}")
        if "Y" in pre:
            A("s_lshl_b32 s51, s2, 9"); A(f"s_add_u32 s51, s51, {WS_Y}"); A(f"v_lshrrev_b32 v{T0+11}, 1, v{L16}")
            A(f"buffer_load_dword v{T0+10}, v{T0+11}, s[40:43], s51 offen {preflags}")
        if "S" in pre:
            A("s_lshl_b32 s51, s2, 9"); A(f"s_add_u32 s51, s51, {WS_S}"); A(f"v_lshrrev_b32 v{T0+11}, 1, v{L16}")
            A(f"buffer_load_dword v{T0+10}, v{T0+11}, s[40:43], s51 offen {preflags}")
    A(f"buffer_load_dwordx4 v[{XA}:{XA+3}], v{L16}, s[16:19], 0 offen")
    A(f"buffer_load_ushort v{XR}, v{T0+1}, s[16:19], s48 offen")
    A(f"buffer_load_dword v{EP}, v{T0+5}, s[40:43], s79 offen sc1")
    stamp("sx")
    A(f"v_mov_b32 v{T0+6}, s44"); A(f"v_mov_b32 v{T0+7}, s45"); A(f"v_mov_b32 v{T0+8}, s46"); A(f"v_mov_b32 v{T0+9}, s47")
    A(f"v_cndmask_b32 v{GA}, v{T0+6}, v{T0+8}, vcc"); A(f"v_cndmask_b32 v{GA+1}, v{T0+7}, v{T0+9}, vcc")
    A(f"v_lshl_add_u64 v[{GA}:{GA+1}], v[{T0+4}:{T0+5}], 0, v[{GA}:{GA+1}]")
    def lds_init():
        A(f"v_cmp_gt_u32 vcc, 8, v0"); A(f"v_lshlrev_b32 v{T0+7}, 2, v0"); A("s_mov_b32 s7, 0xfffffc00")
        A(f"v_cndmask_b32 v{T0+6}, 0, -1, vcc")
        A("s_mov_b64 exec, 0xffff")
        A(f"ds_write_b32 v{T0+7}, v{T0+6} offset:{LML}")
        A("s_mov_b64 exec, -1")
        if bal and bsm:
            A(f"v_mov_b32 v{T0+6}, -1"); A(f"ds_write_b32 v{T0+5}, v{T0+6} offset:{LTAG}")
        if bal and bv: A(f"ds_write_b32 v{T0+5}, v{T0+5} offset:{LTAG}")
        if steal:
            A(f"v_mov_b32 v{T0+6}, -1")
            A(f"ds_write_b32 v{T0+7}, v{T0+6} offset:{LREC}"); A(f"ds_write_b32 v{T0+7}, v{T0+6} offset:{LREC+64}")
        A("s_waitcnt lgkmcnt(0)")
        A("s_barrier")
    for n in range(16):
        if n in (4, 8): stamp(f"s{2*n}")
        if n == bar0: lds_init()
        if scap and 2 * n + 3 >= scap: A(f"s_waitcnt vmcnt({scap - 2})")
        if "W" in skip.split(): A(f"buffer_load_dword v{WQ+4*n}, v{T0+5}, s[16:19], 0 offen")
        else: A(f"buffer_load_dwordx4 v[{WQ+4*n}:{WQ+4*n+3}], v{T0+2}, s[20:23], s49 offen {wflags}")
        if "G" in skip.split(): A(f"buffer_load_dword v{GU+4*n}, v{T0+5}, s[16:19], 0 offen")
        else: A(f"global_load_dwordx4 v[{GU+4*n}:{GU+4*n+3}], v[{GA}:{GA+1}], off{off(2752 * (n & 1))} {gflags}")
        if n < 15: A("s_addk_i32 s49, 0x2000")
        if n & 1 and n < 15: A(f"v_lshl_add_u64 v[{GA}:{GA+1}], v[{GA}:{GA+1}], 0, s[60:61]")
    if bar0 == 16: lds_init()
    stamp("issued")
    masks(M0, T0 + 6, T0 + 7)
    A("s_and_b32 s58, s5, 3"); A("s_lshr_b32 s59, s5, 2")
    A("s_lshl_b32 s6, s4, 3"); A("s_add_u32 s6, s6, s5")
    A(f"v_lshlrev_b32 v{OUTA}, 5, v{J}"); A(f"v_and_b32 v{T0}, 16, v0"); A(f"v_add_u32 v{OUTA}, v{OUTA}, v{T0}")
    A("s_lshl_b32 s63, s6, 9"); A(f"s_add_u32 s63, s63, {WS_O}")
    if t64:
        assert fast and not (lin or steal or mapx)
        A("s_lshl_b32 s64, s5, 5"); A("s_add_u32 s64, s64, s4"); A(f"s_lshl_b32 s64, s64, {9 if ys else 8}")
    else:
        A("s_lshl_b32 s64, s58, 6"); A("s_lshl_b32 s48, s4, 1"); A("s_add_u32 s64, s64, s48"); A("s_add_u32 s64, s64, s59")
        A("s_lshl_b32 s64, s64, 9")
    SBASE = WS_Y + 64 if ys else (sofs or WS_S)
    A(f"s_add_u32 s65, s64, {WS_Y}")
    if wpar is not None:
        assert t64 and not ys
        SBASE = WS_S + (wpar << 13) - 0
        A("s_lshl_b32 s48, s5, 13"); A("s_add_u32 s64, s64, s48")
    A(f"s_add_u32 s64, s64, {SBASE}")
    A(f"s_lshl_b32 s66, s6, {mlstr}"); A(f"s_add_u32 s66, s66, {WS_ML}")
    A(f"s_lshl_b32 s67, s{2 if amap else 6}, 10")
    if amap: chunks(4)
    A("s_mov_b32 s68, 0"); A("s_mov_b32 s69, -1")
    A("s_waitcnt vmcnt(32)")
    stamp("x")
    for k in range(4):
        A(f"v_lshlrev_b32 v{T0+2*k}, 16, v{XA+k}"); A(f"v_and_b32 v{T0+2*k+1}, 0xffff0000, v{XA+k}")
    A(f"v_add_f32 v{T0+8}, v{T0}, v{T0+1}"); A(f"v_add_f32 v{T0+9}, v{T0+2}, v{T0+3}")
    A(f"v_add_f32 v{T0+10}, v{T0+4}, v{T0+5}"); A(f"v_add_f32 v{T0+11}, v{T0+6}, v{T0+7}")
    A(f"v_add_f32 v{T0+8}, v{T0+8}, v{T0+9}"); A(f"v_add_f32 v{T0+10}, v{T0+10}, v{T0+11}")
    A(f"v_add_f32 v{T0+8}, v{T0+8}, v{T0+10}")
    A(f"v_add_u32 v{EP}, 1, v{EP}"); A(f"v_and_b32 v{TAG}, 0x3ff, v{EP}")
    if bal and bsm:
        A(f"v_mov_b32 v{T0+12}, 0"); A(f"ds_write_b32 v{T0+12}, v{TAG} offset:{LTAG}")
    if bal and bv:
        A(f"v_mov_b32 v{T0+12}, 0"); A(f"v_lshl_or_b32 v{T0+13}, v{EP}, 5, 31"); A(f"ds_write_b32 v{T0+12}, v{T0+13} offset:{LTAG}")
    if fast:
        A(f"v_readfirstlane_b32 s13, v{TAG}"); A("s_sub_u32 s14, 0, s13"); A("s_subb_u32 s15, 0, s13")
    wave_red("v_add_f32", T0 + 8)
    A(f"v_mul_f32 v{T0+8}, 0x3b000000, v{T0+8}")
    A(f"v_readlane_b32 s51, v{T0+8}, 63")
    for k in range(8): A(f"v_subrev_f32 v{T0+k}, s51, v{T0+k}")
    A(f"v_mul_f32 v{T0+9}, v{T0}, v{T0}"); A(f"v_mul_f32 v{T0+10}, v{T0+1}, v{T0+1}")
    for k in range(2, 8, 2):
        A(f"v_fmac_f32 v{T0+9}, v{T0+k}, v{T0+k}"); A(f"v_fmac_f32 v{T0+10}, v{T0+k+1}, v{T0+k+1}")
    A(f"v_add_f32 v{T0+9}, v{T0+9}, v{T0+10}")
    rbf(T0 + 8)
    wave_red("v_add_f32", T0 + 9)
    A(f"v_mul_f32 v{T0+9}, 0x3b000000, v{T0+9}")
    rbf(T0 + 9)
    A(f"v_add_f32 v{T0+9}, 0x3727c5ac, v{T0+9}")
    rbf(T0 + 9)
    A(f"v_sqrt_f32 v{T0+9}, v{T0+9}")
    A(f"v_readlane_b32 s51, v{T0+8}, 63")
    rbf(T0 + 9)
    A(f"v_lshlrev_b32 v{XR}, 16, v{XR}")
    A(f"v_readlane_b32 s62, v{T0+9}, 63")
    A(f"v_subrev_f32 v{XR}, s51, v{XR}")
    rbf(XR)
    A(f"v_rcp_f32 v{T0+10}, s62")
    A(f"v_mul_f32 v{T0+11}, v{XR}, v{T0+10}")
    A(f"v_fma_f32 v{T0+12}, -v{T0+11}, s62, v{XR}")
    A(f"v_fmac_f32 v{T0+11}, v{T0+12}, v{T0+10}")
    A(f"v_cvt_pk_bf16_f32 v{PD}, v{T0+11}, v{T0+11}")
    stamp("ln")
    abuild(AB, PD, M0, 0)
    for n in range(16):
        ab = AB + 4 * (n & 1)
        if n < 15: abuild(AB + 4 * ((n + 1) & 1), PD, M0, n + 1)
        A(f"s_waitcnt vmcnt({30-2*n})")
        mfma(DQ, ab, WQ + 4 * n, n == 0); mfma(DG, ab, GU + 4 * n, n == 0)
    A("s_lshl_b32 s48, s4, 13"); A("s_add_u32 s49, s48, 0x1000")
    A(f"v_lshrrev_b32 v{T0+3}, 1, v{OUTA}")
    for k in range(4): A(f"v_cndmask_b32 v{DQ+k}, v{DQ+k}, v{DG+k}, s[68:69]")
    tag(range(DQ, DQ + 4), "A")
    if "Ast" not in skip.split(): pub4("A", DQ, L16, 67, '' if 'Aplain' in skip.split() else 'sc1')
    stamp("apub")
    def a_loads():
        for k in range(8):
            if "Ald" not in skip.split(): A(f"buffer_load_dwordx4 v[{WQ+4*k}:{WQ+4*k+3}], v{L16}, s[40:43], s{48 + k // 4} offen{off((k&3)*1024)} sc1")
    poll("pollA", a_loads, range(WQ, WQ + 32), T0, asleep)
    stamp("aseen")
    untag(range(WQ, WQ + 32))
    for k in range(4):
        A(f"v_add_f32 v{WQ+k}, v{WQ+k}, v{WQ+4+k}"); A(f"v_add_f32 v{WQ+8+k}, v{WQ+8+k}, v{WQ+12+k}")
        A(f"v_add_f32 v{WQ+16+k}, v{WQ+16+k}, v{WQ+20+k}"); A(f"v_add_f32 v{WQ+24+k}, v{WQ+24+k}, v{WQ+28+k}")
    for k in range(4):
        A(f"v_add_f32 v{WQ+k}, v{WQ+k}, v{WQ+8+k}"); A(f"v_add_f32 v{WQ+16+k}, v{WQ+16+k}, v{WQ+24+k}")
    for k in range(4): A(f"v_add_f32 v{WQ+k}, v{WQ+k}, v{WQ+16+k}")
    A(f"v_cvt_pk_bf16_f32 v{T0+4}, v{WQ}, v{WQ+1}"); A(f"v_cvt_pk_bf16_f32 v{T0+5}, v{WQ+2}, v{WQ+3}")
    A(f"v_mov_b32 v{T0+6}, 0"); A(f"v_mov_b32 v{T0+7}, 1")
    A("s_mov_b32 exec_hi, 0")
    A(f"ds_write_b64 v{T0+3}, v[{T0+4}:{T0+5}] offset:{LQ}")
    A(f"ds_write_b32 v{T0+6}, v{T0+7} offset:{LQF}")
    A("s_mov_b64 exec, -1")
    stamp("qdone")
    (any(prio) and A(f"s_setprio {prio[1]}"))
    MH, PD1 = 53, 54
    def tbuild(a0, src, qs=range(4)):
        for q in qs:
            p, n = src(q)
            A(f"v_and_b32_dpp v{a0+q}, v{p}, v{MH} row_newbcast:{n} row_mask:0xf bank_mask:0xf")
    def tgemv(base, nrho, src, wait):
        tbuild(AB, lambda q: src(0, q))
        for rho in range(nrho):
            a = AB + 4 * (rho & 1); nxt = AB + 4 * ((rho + 1) & 1)
            if rho + 1 < nrho: tbuild(nxt, lambda q: src(rho + 1, q), (0, 1))
            if wait: wait(rho)
            mfma(DQ, a, base + 8 * rho, rho == 0)
            if rho + 1 < nrho: tbuild(nxt, lambda q: src(rho + 1, q), (2, 3))
            mfma(DG, a, base + 8 * rho + 4, rho == 0)
    MH1, YSA = 55, 56
    def xgemv(base, npair, src, wait):
        def build(a0, k):
            for r in range(4):
                p, n = src(2 * k + (r >> 1))
                A(f"v_and_b32_dpp v{a0+r}, v{p}, v{(MH, MH1)[r & 1]} row_newbcast:{n} row_mask:0xf bank_mask:0xf")
        build(AB, 0)
        for k in range(npair):
            if k + 1 < npair: build(AB + 4 * ((k + 1) & 1), k + 1)
            if wait: wait(k)
            mfma(DQ, AB + 4 * (k & 1), base + 4 * k, k == 0)
    def tpublish(kind, sreg, flags):
        A("s_mov_b64 exec, 0xffff")
        src = [DQ, DQ + 1, DQ + 2, DQ + 3] if x2 else [DQ, DQ + 1, DG, DG + 1]
        if kind in rnd:
            for r in src: A(f"v_add_u32 v{r}, 0x200, v{r}")
        for k, r in enumerate(src): A(f"v_and_or_b32 v{T0+8+k}, v{r}, s7, v{TAG}")
        pub4(kind, T0 + 8, YSA if ys else L16, sreg, flags)
        A("s_mov_b64 exec, -1")
    if t64:
        if x2:
            A(f"v_or_b32 v{MH}, v{M0}, v{M0+2}"); A(f"v_or_b32 v{MH1}, v{M0+1}, v{M0+3}")
        else:
            A(f"v_or3_b32 v{MH}, v{M0}, v{M0+1}, v{M0+2}"); A(f"v_or_b32 v{MH}, v{MH}, v{M0+3}")
        if ys:
            A(f"v_lshrrev_b32 v{YSA}, 2, v0"); A(f"v_and_b32 v{T0}, 3, v0"); A(f"v_lshlrev_b32 v{YSA}, 7, v{YSA}"); A(f"v_lshl_add_u32 v{YSA}, v{T0}, 4, v{YSA}")
        A(f"v_mul_u32_u24 v{T0}, 12, v{G}")
        A("s_lshl_b32 s48, s57, 3"); A("s_lshl_b32 s49, s56, 3"); A("s_lshl_b32 s72, s5, 7")
        A(f"v_lshlrev_b32 v{T0+2}, {3 if x2 else 2}, v{J}")
        A(f"v_add_u32 v{T0+3}, 4, v{T0}"); A(f"v_cmp_gt_u32 vcc, s48, v{T0+3}")
        A(f"v_add_u32 v{T0+3}, s49, v{T0}"); A(f"v_lshl_add_u32 v{T0+3}, v{T0+3}, 10, v{T0+2}")
        A(f"v_mov_b32 v{WDA}, 0x7ffffff0"); A(f"v_cndmask_b32 v{WDA}, v{WDA}, v{T0+3}, vcc")
        A("s_add_u32 s48, s72, 0x1000"); A("s_add_u32 s49, s72, 0x2000")
        for rho in range(3):
            for q in range(4):
                if x2:
                    A(f"buffer_load_dwordx2 v[{WD+8*rho+2*q}:{WD+8*rho+2*q+1}], v{WDA if rho else T0+3}, s[28:31], s{(72, 48, 49)[rho]} offen{off(1024*q)} {wflags}")
                    continue
                for t in range(2):
                    A(f"buffer_load_dword v{WD+8*rho+4*t+q}, v{WDA if rho else T0+3}, s[28:31], s{(72, 48, 49)[rho]} offen{off(1024*q + 64*t)} {woflags}")
    else:
        A("s_mul_i32 s48, s59, 24")
        A(f"v_mul_u32_u24 v{T0}, 6, v{G}"); A(f"v_add_u32 v{T0}, s48, v{T0}")
        A("s_lshl_b32 s48, s57, 3"); A("s_lshl_b32 s49, s56, 3"); A("s_lshl_b32 s72, s58, 8")
        A(f"v_lshlrev_b32 v{T0+2}, 4, v{J}")
        for n in range(6):
            A(f"v_add_u32 v{T0+3}, {n}, v{T0}")
            A(f"v_cmp_gt_u32 vcc, s48, v{T0+3}")
            A(f"v_add_u32 v{T0+3}, s49, v{T0+3}")
            A(f"v_lshl_add_u32 v{T0+3}, v{T0+3}, 10, v{T0+2}")
            A(f"v_mov_b32 v{WDA}, 0x7ffffff0")
            A(f"v_cndmask_b32 v{WDA}, v{WDA}, v{T0+3}, vcc")
            if "D" not in skip.split(): A(f"buffer_load_dwordx4 v[{WD+4*n}:{WD+4*n+3}], v{WDA}, s[28:31], s72 offen {wflags}")
    for k in range(4): rbf(WQ + k)
    for k in range(4): A(f"v_mov_b32_dpp v{T0+4+k}, v{WQ+k} row_ror:8 row_mask:0xf bank_mask:0xf")
    for k in range(4): A(f"v_mul_f32 v{WQ+k}, 0xbfb8aa3b, v{WQ+k}")
    for k in range(4): A(f"v_exp_f32 v{WQ+k}, v{WQ+k}")
    for k in range(4): A(f"v_add_f32 v{WQ+k}, 1.0, v{WQ+k}")
    for k in range(4): A(f"v_rcp_f32 v{WQ+k}, v{WQ+k}")
    for k in range(4): rbf(WQ + k)
    for k in range(4): A(f"v_mul_f32 v{WQ+k}, v{WQ+k}, v{T0+4+k}")
    A(f"v_cmp_gt_u32 vcc, s57, v{J}")
    for k in range(4): A(f"v_cvt_pk_bf16_f32 v{WQ+k}, v{WQ+k}, v{WQ+k}")
    for k in range(4): A(f"v_cndmask_b32 v{WQ+k}, 0, v{WQ+k}, vcc")
    A("s_mov_b32 exec_lo, 0"); A("s_mov_b32 exec_hi, 0x00ff00ff")
    A(f"ds_write_b128 v{OUTA}, v[{WQ}:{WQ+3}] offset:{LH}")
    A("s_mov_b64 exec, -1")
    A(f"v_add_lshl_u32 v{T0+1}, v{T0}, v{J}, 2")
    A("s_waitcnt lgkmcnt(0)")
    A(f"ds_read_b32 v{PH}, v{T0+1} offset:{LH}")
    if t64:
        A(f"v_lshl_add_u32 v{WOA}, v{G}, 15, v{T0+2}")
        A("s_lshl_b32 s71, s4, 17"); A("s_add_u32 s71, s71, s72")
        A(f"v_and_b32 v{T0+3}, 3, v0"); A("s_lshr_b32 s48, s4, 2"); A("s_and_b32 s49, s4, 3")
        if x2:
            A(f"v_lshl_add_u32 v{T0+4}, v{T0+3}, 2, v{G}"); A("s_lshl_b32 s51, s4, 4")
        else:
            A(f"v_and_b32 v{T0+4}, 1, v{G}"); A(f"v_lshl_add_u32 v{T0+4}, v{T0+3}, 1, v{T0+4}")
            A(f"v_lshrrev_b32 v{T0+5}, 1, v{G}"); A(f"v_lshl_add_u32 v{T0+4}, v{T0+5}, 5, v{T0+4}")
            A("s_lshl_b32 s51, s48, 6"); A("s_lshl_b32 s73, s49, 3"); A("s_add_u32 s51, s51, s73")
        A(f"v_add_lshl_u32 v{XF}, v{T0+4}, s51, 1")
        A(f"v_lshrrev_b32 v{RA}, 2, v0"); A(f"v_lshlrev_b32 v{RA}, {9 if ys else 8}, v{RA}"); A(f"v_lshl_add_u32 v{RA}, v{T0+3}, 4, v{RA}")
        A(f"s_lshl_b32 s73, s48, {14 if ys else 13}"); A(f"s_lshl_b32 s49, s49, {7 if ys else 6}"); A("s_add_u32 s73, s73, s49")
        A("s_mov_b32 s36, s5")
        A(f"buffer_load_ushort v{XV}, v{XF}, s[16:19], 0 offen")
        A(f"v_lshlrev_b32 v{OGA}, 3, v0")
    else:
        A(f"v_lshl_add_u32 v{WOA}, v{G}, 14, v{T0+2}")
        A("s_lshl_b32 s71, s4, 17"); A("s_lshl_b32 s48, s59, 16"); A("s_add_u32 s71, s71, s48"); A("s_add_u32 s71, s71, s72")
        A(f"v_and_b32 v{T0+3}, 3, v0")
        if lin:
            A(f"v_lshl_add_u32 v{T0+4}, v{T0+3}, 3, v{G}")
            A("s_lshr_b32 s48, s4, 3"); A("s_lshl_b32 s48, s48, 7"); A("s_and_b32 s49, s4, 3"); A("s_lshl_b32 s49, s49, 5"); A("s_add_u32 s48, s48, s49")
            A("s_and_b32 s49, s4, 4"); A("s_add_u32 s48, s48, s49")
        else:
            A(f"v_lshl_add_u32 v{T0+4}, v{T0+3}, 2, v{G}"); A("s_lshl_b32 s48, s4, 4")
        A(f"v_add_lshl_u32 v{XF}, v{T0+4}, s48, 1")
        A(f"v_lshrrev_b32 v{RA}, 2, v0"); A(f"v_lshlrev_b32 v{RA}, 9, v{RA}"); A(f"v_lshl_add_u32 v{RA}, v{T0+3}, 4, v{RA}")
        A("s_and_b32 s48, s4, 7"); A("s_lshl_b32 s49, s48, 6"); A("s_lshr_b32 s73, s4, 3"); A("s_lshl_b32 s73, s73, 15"); A("s_add_u32 s73, s73, s49")
        if mapx: A("s_sub_u32 s36, s5, s48")
        else: A("s_mov_b32 s36, s5")
        A(f"buffer_load_ushort v{XV}, v{XF}, s[16:19], 0 offen")
        if lin:
            A(f"v_bfe_u32 v{T0+4}, v0, 2, 1"); A(f"v_lshrrev_b32 v{T0+5}, 3, v0"); A(f"v_lshl_add_u32 v{T0+4}, v{T0+4}, 4, v{T0+5}")
            A(f"v_lshl_add_u32 v{T0+4}, v{T0+4}, 2, v{T0+3}"); A("s_lshl_b32 s48, s59, 7"); A(f"v_lshl_add_u32 v{OGA}, v{T0+4}, 2, s48")
        else:
            A("s_lshl_b32 s48, s59, 8"); A(f"v_lshl_add_u32 v{OGA}, v0, 2, s48")
    A("s_lshl_b32 s78, s4, 12"); A(f"s_add_u32 s78, s78, {WS_O}")
    A("s_waitcnt lgkmcnt(0)")
    if t64:
        if x2: xgemv(WD, 6, lambda e: (PH, e), lambda k: A(f"s_waitcnt vmcnt({11 - 2 * k})"))
        else: tgemv(WD, 3, lambda rho, q: (PH, 4 * rho + q), lambda rho: A(f"s_waitcnt vmcnt({17 - 8 * rho})"))
        tpublish("Y", 65, "sc1")
    else:
        abuild(AB, PH, M0, 0)
        for n in range(6):
            if n < 5: abuild(AB + 4 * ((n + 1) & 1), PH, M0, n + 1)
            A(f"s_waitcnt vmcnt({6-n})")
            mfma(DG, AB + 4 * (n & 1), WD + 4 * n, n == 0)
        tag(range(DG, DG + 4), "Y")
        A("s_mov_b32 exec_hi, 0")
        if "Yst" not in skip.split(): A(f"buffer_store_dwordx4 v[{DG}:{DG+3}], v{L16 if lin else OUTA}, s[40:43], s65 offen sc1")
        A("s_mov_b64 exec, -1")
    stamp("ypub")
    if prb:
        assert t64 and not ys and wpar is None and mlstr == 4 and not mlfull
        A("s_cmp_lg_u32 s2, 0"); A("s_cbranch_scc1 L_noprobe")
        A(f"s_mov_b32 s48, {WS_X}"); A("s_mov_b32 s10, -1"); A("s_mov_b32 s11, -1"); A(f"s_mov_b32 s49, {prb}")
        A("s_load_dword s8, s[40:41], s48"); A("s_waitcnt lgkmcnt(0)")
        A("L_probe_d:")
        for c in range(2):
            A("s_addk_i32 s48, 0x2000" if c == 0 else "s_addk_i32 s48, 0x2100")
            A("s_memtime s[56:57]"); A("s_waitcnt lgkmcnt(0)")
            A("s_load_dword s8, s[40:41], s48"); A("s_waitcnt lgkmcnt(0)")
            A("s_memtime s[58:59]"); A("s_waitcnt lgkmcnt(0)")
            A("s_sub_u32 s56, s58, s56"); A(f"s_min_u32 s{11 - c}, s{11 - c}, s56")
        A("s_sub_u32 s49, s49, 1"); A("s_cmp_lg_u32 s49, 0"); A("s_cbranch_scc1 L_probe_d")
        A("s_cmp_gt_u32 s10, s11"); A("s_cselect_b32 s48, 0x400, 0")
        A(f"v_or_b32 v{T0+4}, s48, v{TAG}"); A(f"v_mov_b32 v{T0+5}, v{TAG}"); A(f"v_mov_b32 v{T0+6}, v{EP}"); A(f"v_mov_b32 v{T0+7}, v{EP}")
        A(f"v_mov_b32 v{T0+1}, 0"); A(f"s_mov_b32 s48, {WS_D}")
        A("s_mov_b64 exec, 1")
        A(f"buffer_store_dwordx4 v[{T0+4}:{T0+7}], v{T0+1}, s[40:43], s48 offen sc1")
        A("s_mov_b64 exec, -1")
        if stamps == "prb":
            A("s_mov_b32 s98, s10"); A("s_mov_b32 s100, s11")
        A("L_noprobe:")
    A(f"v_and_b32 v{T0}, 3, v0"); A(f"v_lshlrev_b32 v{T0}, 3, v{T0}")
    A(f"s_mov_b32 s70, {SPIN * 8}")
    A("L_pollML:")
    A(f"s_sleep {lsleep}")
    A(f"ds_read_b64 v[{T0+2}:{T0+3}], v{T0} offset:{LML}")
    A("s_sub_u32 s70, s70, 1"); A("s_cbranch_scc1 L_pollML_done")
    A("s_waitcnt lgkmcnt(0)")
    A(f"v_cmp_eq_u32 vcc, -1, v{T0+3}")
    A("s_nop 1")
    A("s_cbranch_vccnz L_pollML")
    A("L_pollML_done:")
    stamp("ml")
    dpp("v_max_f32", T0 + 4, T0 + 2, "quad_perm:[1,0,3,2]"); dpp("v_max_f32", T0 + 4, T0 + 4, "quad_perm:[2,3,0,1]")
    A(f"v_sub_f32 v{T0+5}, v{T0+2}, v{T0+4}"); A(f"v_mul_f32 v{T0+5}, {LOG2E}, v{T0+5}"); A(f"v_exp_f32 v{T0+5}, v{T0+5}")
    A(f"v_mul_f32 v{T0+5}, v{T0+5}, v{T0+3}")
    dpp("v_add_f32", T0 + 5, T0 + 5, "quad_perm:[1,0,3,2]"); dpp("v_add_f32", T0 + 5, T0 + 5, "quad_perm:[2,3,0,1]")
    if steal:
        A(f"v_bfe_u32 v{T0+6}, v0, 2, 2"); A(f"v_lshlrev_b32 v{T0+6}, 3, v{T0+6}")
        A(f"ds_read_b32 v{T0+7}, v{T0+6} offset:{LML}")
        A(f"ds_read_b128 v[{T0+8}:{T0+11}], v{L16} offset:{LP}")
        A("s_lshl_b32 s51, s6, 10"); A(f"s_add_u32 s51, s51, {WS_P}")
        A("s_waitcnt lgkmcnt(0)")
        A(f"v_sub_f32 v{T0+7}, v{T0+7}, v{T0+4}"); A(f"v_mul_f32 v{T0+7}, {LOG2E}, v{T0+7}"); A(f"v_exp_f32 v{T0+7}, v{T0+7}")
        for k in range(4): A(f"v_mul_f32 v{T0+8+k}, v{T0+8+k}, v{T0+7}")
        tag(range(T0 + 8, T0 + 12))
        A(f"buffer_store_dwordx4 v[{T0+8}:{T0+11}], v{L16}, s[40:43], s51 offen sc1")
    tag((T0 + 4, T0 + 5))
    if local:
        A("s_getreg_b32 s37, hwreg(HW_REG_XCC_ID, 0, 4)"); A("s_lshl_b32 s37, s37, 10")
        A(f"v_or_b32 v{T0+4}, s37, v{T0+4}")
    if mlfull:
        assert mlstr == 7
        A(f"v_mov_b32 v{T0+1}, v{L16}"); A("s_mov_b64 exec, 0xff")
    else:
        A(f"v_mov_b32 v{T0+1}, 0"); A("s_mov_b64 exec, 1")
    A(f"v_mov_b32 v{T0+6}, v{EP}"); A(f"v_mov_b32 v{T0+7}, v{EP}")
    if "Mst" not in skip.split(): A(f"buffer_store_dwordx4 v[{T0+4}:{T0+7}], v{T0+1}, s[40:43], s66 offen {'' if 'Mplain' in skip.split() else 'sc1'}")
    A("s_mov_b64 exec, -1")
    A(f"v_and_b32 v{T0+1}, 7, v0"); A(f"v_lshlrev_b32 v{T0+1}, {mlstr}, v{T0+1}")
    A(f"s_lshl_b32 s48, s4, {mlstr + 3}"); A(f"s_add_u32 s48, s48, {WS_ML}")
    if prb:
        A(f"s_sub_u32 s49, {WS_D}, s48"); A(f"v_mov_b32 v{T0+8}, s49"); A("s_mov_b32 s56, 0xff00ff00"); A("s_mov_b32 s57, 0xff00ff00")
        A(f"v_cndmask_b32 v{T0+1}, v{T0+1}, v{T0+8}, s[56:57]")
    if mlat:
        A(f"v_mov_b32 v{T0+8}, 0")
        A(f"s_mov_b32 s70, {SPIN * 8}")
        A("L_pollM:")
        A(f"s_sleep {max(lsleep, 4)}")
        A(f"ds_read_b32 v{T0+4}, v{T0+8} offset:{LPF}" if bal else f"ds_read_b128 v[{T0+4}:{T0+7}], v{T0+8} offset:{LPROG}")
        A("s_sub_u32 s70, s70, 1"); A("s_cbranch_scc1 L_pollM_done")
        A("s_waitcnt lgkmcnt(0)")
        if not bal:
            A(f"v_or3_b32 v{T0+4}, v{T0+4}, v{T0+5}, v{T0+6}"); A(f"v_or_b32 v{T0+4}, v{T0+4}, v{T0+7}")
        A(f"v_cmp_eq_u32 vcc, 0, v{T0+4}")
        A("s_nop 1")
        A("s_cbranch_vccnz L_pollM")
        A("L_pollM_done:")
    def ml_check():
        A(f"v_bitop3_b32 v{T0+8}, v{T0+4}, v{T0+5}, v{TAG} bitop3:0x7e"); A(f"v_bitop3_b32 v{T0+9}, v{T0+6}, v{T0+7}, v{EP} bitop3:0x7e")
        A(f"v_and_or_b32 v{T0+8}, v{T0+8}, s12, v{T0+9}")
        A(f"v_cmp_ne_u32 vcc, 0, v{T0+8}")
    A("s_movk_i32 s12, 0x3ff")
    poll("pollML2", lambda: A(f"buffer_load_dwordx4 v[{T0+4}:{T0+7}], v{T0+1}, s[40:43], s48 offen sc1"), ml_check, None, psleep)
    if local:
        A(f"v_and_b32 v{T0+6}, 0x3c00, v{T0+4}"); A(f"v_cmp_ne_u32 vcc, s37, v{T0+6}")
        A("s_nop 1")
        if prb: A("s_and_b32 s37, vcc_lo, 0xff")
        else: A("s_or_b32 s37, vcc_lo, vcc_hi")
    if prb:
        A(f"v_readlane_b32 s38, v{T0+4}, 8"); A("s_and_b32 s38, s38, 0x400"); A("s_lshl_b32 s38, s38, 3"); A("s_xor_b32 s64, s64, s38")
    A(f"v_and_b32 v{T0+4}, 0xffff0000, v{T0+4}"); untag((T0 + 5,))
    A(f"v_lshlrev_b32 v{XV}, 16, v{XV}")
    for c in ("quad_perm:[1,0,3,2]",): dpp("v_max_f32", T0 + 6, T0 + 4, c)
    for c in ("quad_perm:[2,3,0,1]", "row_half_mirror"): dpp("v_max_f32", T0 + 6, T0 + 6, c)
    A(f"v_sub_f32 v{T0+4}, v{T0+4}, v{T0+6}"); A(f"v_sub_f32 v{T0+2}, v{T0+2}, v{T0+6}")
    A(f"v_mul_f32 v{T0+4}, {LOG2E}, v{T0+4}"); A(f"v_mul_f32 v{T0+2}, {LOG2E}, v{T0+2}")
    A(f"v_exp_f32 v{T0+4}, v{T0+4}"); A(f"v_exp_f32 v{T0+2}, v{T0+2}")
    A(f"v_mul_f32 v{T0+5}, v{T0+4}, v{T0+5}")
    for c in ("quad_perm:[1,0,3,2]", "quad_perm:[2,3,0,1]", "row_half_mirror"): dpp("v_add_f32", T0 + 5, T0 + 5, c)
    A(f"v_rcp_f32 v{T0+5}, v{T0+5}")
    A(f"v_mul_f32 v{T0+2}, v{T0+2}, v{T0+5}")
    if not steal:
        for w in range(4): A(f"v_readlane_b32 s{74+w}, v{T0+2}, {w}")
        stamp("mlx")
    else:
        A(f"v_mul_f32 v{T0+4}, v{T0+4}, v{T0+5}")
        A(f"v_lshrrev_b32 v{T0}, 1, v{T0}")
        A(f"ds_write_b32 v{T0}, v{T0+2} offset:{LF}")
        stamp("mlx")
        A("s_lshl_b32 s48, s4, 13"); A(f"s_add_u32 s48, s48, {WS_P}"); A("s_add_u32 s49, s48, 0x1000")
        poll("pollPT", a_loads, range(WQ, WQ + 32), T0 + 6, 0)
        untag(range(WQ, WQ + 32))
        A(f"v_lshrrev_b32 v{T0+6}, 3, v0"); A(f"v_and_b32 v{T0+7}, 7, v0"); A(f"v_lshlrev_b32 v{T0+6}, 10, v{T0+6}")
        A(f"v_lshl_add_u32 v{T0+6}, v{T0+7}, 4, v{T0+6}")
        if np_ < 8:
            A(f"v_subrev_u32 v{T0+6}, {(8 - np_) * 1024}, v{T0+6}")
            m = (~((1 << (8 * (8 - np_))) - 1)) & (2**64 - 1)
            A(f"s_mov_b32 exec_lo, {hex(m & 0xffffffff)}"); A(f"s_mov_b32 exec_hi, {hex(m >> 32)}")
        for k in range(8):
            A(f"v_readlane_b32 s51, v{T0+4}, {k}")
            for r in range(4): A(f"v_mul_f32 v{WQ+4*k+r}, s51, v{WQ+4*k+r}")
            for r in range(4): A(f"v_cvt_pk_bf16_f32 v{WQ+4*k+r}, v{WQ+4*k+r}, v{WQ+4*k+r}")
            A(f"ds_write_b128 v{T0+6}, v[{WQ+4*k}:{WQ+4*k+3}] offset:{LPT + 128*k}")
        A("s_mov_b64 exec, -1")
        A(f"v_mov_b32 v{T0+6}, 0"); A(f"v_mov_b32 v{T0+7}, 1")
        A(f"ds_write_b32 v{T0+6}, v{T0+7} offset:{LPF}")
        stamp("table")
    NG = 2 if t64 else 4
    def reduce(base):
        if t64:
            untag(range(base, base + 8))
            for k in range(4): A(f"v_add_f32 v{T0+4+k}, v{base+k}, v{base+4+k}")
            return
        untag(range(base, base + 16))
        for k in range(4):
            A(f"v_add_f32 v{base+k}, v{base+k}, v{base+4+k}"); A(f"v_add_f32 v{base+8+k}, v{base+8+k}, v{base+12+k}")
        for k in range(4): A(f"v_add_f32 v{T0+4+k}, v{base+k}, v{base+8+k}")
    def reduce2():
        b = T0 + 4
        A(f"v_permlane32_swap_b32 v{b}, v{b+2}"); A(f"v_permlane32_swap_b32 v{b+1}, v{b+3}")
        A(f"v_add_f32 v{b}, v{b}, v{b+2}"); A(f"v_add_f32 v{b+1}, v{b+1}, v{b+3}")
        A(f"v_permlane16_swap_b32 v{b}, v{b+1}")
        A(f"v_add_f32 v{b}, v{b}, v{b+1}")
        dpp("v_add_f32", b, b, "row_ror:4"); dpp("v_add_f32", b, b, "row_ror:8")
        rbf(b)
    def gather(sregs, fl="sc1"):
        def f(base=PS):
            for k in range(NG): A(f"buffer_load_dwordx4 v[{base+4*k}:{base+4*k+3}], v{RA}, s[40:43], s{sregs[k]} offen {fl}")
        return f
    A("s_cmp_lg_u32 s36, 0"); A("s_cbranch_scc1 L_noY")
    A(f"s_add_u32 s48, s73, {WS_Y}")
    A(f"s_add_u32 s49, s48, {4096 if t64 and not ys else 8192}"); A(f"s_add_u32 s56, s48, 16384"); A(f"s_add_u32 s57, s48, 24576")
    poll("pollY", gather((48, 49, 56, 57)), range(PS, PS + 4 * NG), T0, psleep)
    reduce(PS); reduce2()
    A(f"v_mul_f32 v{T0}, 0xbfb8aa3b, v{T0+4}"); A(f"v_exp_f32 v{T0}, v{T0}"); A(f"v_add_f32 v{T0}, 1.0, v{T0}")
    A(f"v_rcp_f32 v{T0}, v{T0}"); A(f"v_mul_f32 v{GV}, v{T0+4}, v{T0}")
    rbf(GV)
    A("s_cmp_lg_u32 s2, 0"); A("s_cbranch_scc1 L_noY")
    A("s_mov_b64 exec, 1")
    A(f"v_mov_b32 v{T0}, 0")
    A(f"buffer_store_dword v{EP}, v{T0}, s[40:43], s79 offen sc1")
    A("s_mov_b64 exec, -1")
    A("L_noY:")
    A(f"s_add_u32 s48, s73, {SBASE}")
    if prb: A("s_xor_b32 s48, s48, s38")
    if wpar is not None:
        A("s_lshr_b32 s49, s4, 2"); A("s_lshl_b32 s49, s49, 13"); A("s_add_u32 s48, s48, s49")
    A(f"s_add_u32 s49, s48, {4096 if t64 and not ys else 8192}"); A(f"s_add_u32 s56, s48, 16384"); A(f"s_add_u32 s57, s48, 24576")
    A(f"v_mov_b32 v{T0}, 0")
    A(f"s_mov_b32 s70, {SPIN * 8}")
    A("L_pollP:")
    A(f"s_sleep {lsleep}")
    if steal or bal or mlat: A(f"ds_read_b32 v{T0+4}, v{T0} offset:{LGO}")
    else: A(f"ds_read_b128 v[{T0+4}:{T0+7}], v{T0} offset:{LPROG}")
    A("s_sub_u32 s70, s70, 1"); A("s_cbranch_scc1 L_pollP_done")
    A("s_waitcnt lgkmcnt(0)")
    if not (steal or bal or mlat):
        A(f"v_or3_b32 v{T0+4}, v{T0+4}, v{T0+5}, v{T0+6}"); A(f"v_or_b32 v{T0+4}, v{T0+4}, v{T0+7}")
    A(f"v_cmp_eq_u32 vcc, 0, v{T0+4}")
    A("s_nop 1")
    A("s_cbranch_vccnz L_pollP")
    A("L_pollP_done:")
    (any(prio) and A(f"s_setprio {prio[2]}"))
    for n in range(16):
        if t64:
            if n < 8:
                for q in range(4):
                    if x2:
                        A(f"buffer_load_dwordx2 v[{WO+8*n+2*q}:{WO+8*n+2*q+1}], v{WOA}, s[24:27], s71 offen{off(1024*q)} {woflags}")
                        continue
                    for t in range(2): A(f"buffer_load_dword v{WO+8*n+4*t+q}, v{WOA}, s[24:27], s71 offen{off(1024*q + 64*t)} {woflags}")
                if n < 7: A("s_addk_i32 s71, 0x1000")
            continue
        A(f"buffer_load_dwordx4 v[{WO+4*n}:{WO+4*n+3}], v{WOA}, s[24:27], s71 offen{off((n&3)*1024)} {woflags}")
        if n & 3 == 3 and n < 15: A("s_addk_i32 s71, 0x1000")
    stamp("wiss")
    A("s_mov_b32 exec_hi, 0")
    if local: A("s_cmp_lg_u32 s37, 0")
    A("s_barrier")
    for w in range(4): A(f"ds_read_b128 v[{T0+4*w}:{T0+4*w+3}], v{L16 if onat else OUTA} offset:{LO+512*w}")
    stamp("bar2")
    for w in range(4):
        A(f"s_waitcnt lgkmcnt({3-w})" if not (stamps or probe) else "s_waitcnt lgkmcnt(0)")
        if fast and not steal:
            p = 74 + (w & 2); sel = "op_sel:[0,1] op_sel_hi:[1,1]" if w & 1 else "op_sel_hi:[1,0]"
            for k in (0, 2):
                if w == 0: A(f"v_pk_mul_f32 v[{DQ+k}:{DQ+k+1}], v[{T0+k}:{T0+k+1}], s[{p}:{p+1}] {sel}")
                else:
                    sel3 = "op_sel:[0,1,0] op_sel_hi:[1,1,1]" if w & 1 else "op_sel_hi:[1,0,1]"
                    A(f"v_pk_fma_f32 v[{DQ+k}:{DQ+k+1}], v[{T0+4*w+k}:{T0+4*w+k+1}], s[{p}:{p+1}], v[{DQ+k}:{DQ+k+1}] {sel3}")
            continue
        for k in range(4):
            if steal:
                if w == 1: A(f"v_add_f32 v{DQ+k}, v{T0+k}, v{T0+4+k}")
                elif w > 1: A(f"v_add_f32 v{DQ+k}, v{DQ+k}, v{T0+4*w+k}")
            elif w == 0: A(f"v_mul_f32 v{DQ+k}, s74, v{T0+k}")
            else: A(f"v_fmac_f32 v{DQ+k}, s{74+w}, v{T0+4*w+k}")
    tag(range(DQ, DQ + 4), "O")
    if local:
        A("s_cbranch_scc1 L_far")
        A(f"buffer_store_dwordx4 v[{DQ}:{DQ+3}], v{L16 if lin or onat else OUTA}, s[40:43], s63 offen {olflags}")
        A("s_branch L_near")
        A("L_far:")
    if "Ost" not in skip.split(): pub4("O", DQ, L16 if lin or onat else OUTA, 63)
    if local: A("L_near:")
    A("s_mov_b64 exec, -1")
    stamp("opub")
    def o_loads(base):
        for k in range(8): A(f"buffer_load_dword v{base+k}, v{OGA}, s[40:43], s78 offen{off(k*512)} sc1")
    def o_finish(b):
        if fast:
            pkadd(b, b, b + 2); pkadd(b + 4, b + 4, b + 6); pkadd(b, b, b + 4)
            A(f"v_add_f32 v{T0+3}, v{b}, v{b+1}")
            return
        untag(range(b, b + 8))
        for k in range(4): A(f"v_add_f32 v{b+2*k}, v{b+2*k}, v{b+2*k+1}")
        A(f"v_add_f32 v{b}, v{b}, v{b+2}"); A(f"v_add_f32 v{b+4}, v{b+4}, v{b+6}")
        A(f"v_add_f32 v{T0+3}, v{b}, v{b+4}")
    A("; o = bf16(sum of the eight partial outputs); partial out projection: " + ("the head's 128 rows, 64 columns" if t64 else "64 of the head's rows, 128 columns"))
    if t64:
        def o_loads2(base):
            for k in range(8): A(f"buffer_load_dwordx2 v[{base+2*k}:{base+2*k+1}], v{OGA}, s[40:43], s78 offen{off(k*512)} {old}")
        def o_finish2(b):
            for k in (0, 4, 8, 12): pkadd(b + k, b + k, b + k + 2)
            pkadd(b, b, b + 4); pkadd(b + 8, b + 8, b + 12); pkadd(T0 + 2, b, b + 8)
        poll_pipe("pollO", r1, d1, 16, 8, o_loads2, o_finish2)
        stamp("oseen")
        A(f"v_cvt_pk_bf16_f32 v{PD}, v{T0+2}, v{T0+2}"); A(f"v_cvt_pk_bf16_f32 v{PD1}, v{T0+3}, v{T0+3}")
        if x2: xgemv(WO, 16, lambda e: ((PD, PD1)[e & 1], e >> 1), None)
        else: tgemv(WO, 8, lambda rho, q: ((PD, PD1)[q & 1], 2 * rho + (q >> 1)), None)
        tpublish("S", 64, sflags)
    else:
        poll_pipe("pollO", r1, d1, 8, 8, o_loads, o_finish)
        stamp("oseen")
        A(f"v_cvt_pk_bf16_f32 v{PD}, v{T0+3}, v{T0+3}")
        abuild(AB, PD, M0, 0)
        for n in range(16):
            if n < 15: abuild(AB + 4 * ((n + 1) & 1), PD, M0, n + 1)
            mfma(DQ, AB + 4 * (n & 1), WO + 4 * n, n == 0)
        A("s_mov_b32 exec_hi, 0")
        tag(range(DQ, DQ + 4), "S")
        if "Sst" not in skip.split(): A(f"buffer_store_dwordx4 v[{DQ}:{DQ+3}], v{L16 if lin else OUTA}, s[40:43], s64 offen {sflags}")
        A("s_mov_b64 exec, -1")
    stamp("spub")
    A("s_cmp_lg_u32 s36, 0"); A("s_cbranch_scc1 L_sdone")
    PS = 64
    def s_finish(b):
        if t64:
            for k in (0, 2): pkadd(T0 + 4 + k, b + k, b + 4 + k)
            return
        for k in (0, 2): pkadd(b + k, b + k, b + 4 + k); pkadd(b + 8 + k, b + 8 + k, b + 12 + k)
        for k in (0, 2): pkadd(T0 + 4 + k, b + k, b + 8 + k)
    poll_pipe("pollS", r2, d2, 4 * NG, NG, gather((48, 49, 56, 57), sld), s_finish if fast else reduce)
    stamp("sseen")
    reduce2()
    A(f"v_mul_f32 v{T0+4}, v{T0+4}, v{GV}")
    rbf(T0 + 4)
    A(f"v_add_f32 v{T0+4}, v{T0+4}, v{XV}")
    A(f"v_cvt_pk_bf16_f32 v{T0+4}, v{T0+4}, v{T0+4}")
    A("s_mov_b32 exec_lo, 0x000f000f"); A("s_mov_b32 exec_hi, 0x000f000f")
    A(f"buffer_store_short v{T0+4}, v{XF}, s[32:35], 0 offen {oflags}")
    A("L_sdone:")
    if stamps or probe: A("s_waitcnt vmcnt(0)")
    stamp("end")
    if probe:
        A("s_cmp_lg_u32 s2, 0"); A("s_cbranch_scc1 L_end")
        A("s_memrealtime s[84:85]"); A("s_waitcnt lgkmcnt(0)")
        A("s_sub_u32 s82, s82, s80"); A(f"s_mul_i32 s82, s82, {probek}"); A("s_min_u32 s82, s82, 100000")
        A("L_probe:")
        A("s_memrealtime s[86:87]"); A("s_waitcnt lgkmcnt(0)")
        A("s_sub_u32 s86, s86, s84"); A("s_cmp_lt_u32 s86, s82"); A("s_cbranch_scc1 L_probe")
    dump_stamps()
    A("L_end:")
    A("s_endpgm")
    A.L += stream_body

    body = A.fix()
    hdr = open("cdna_kernels/" + NAME + ".s.ref").read().split("\n")
    hdr = [l for l in hdr if l.startswith(";") and "@launch" not in l and "Override" not in l and "grid=ceil" not in l]
    doc = """;
; layernorm -> q projection -> single-query attention over the cache -> out projection, times silu(GLU(xn)), plus x; one kernel.
; 256 workgroups = 32 heads x 8 key splits, one per CU; 4 streaming waves, a service wave and a balance wave each.
;   streaming waves: read the split's 1024 keys, then its 1024 values, once (1 KiB per load, nt); true-max softmax per wave,
;     merged exactly across waves and splits through (max, sum) pairs.
;   service wave: layernorm, a 64-row slice of the q / gate / up projections, a slice of the down and out projections,
;     and the hand-offs between workgroups.
;   balance wave: lets a workgroup that has fallen behind its neighbours keep more loads in flight (speed only).
; Hand-offs go through d_ws. Every handed-over word carries a 10-bit tag in its low bits, taken from an epoch word in d_ws that
; each run reads at entry and advances once all workgroups have read it; a reader waits until all words carry the tag and
; clears the tag before use, so neither results nor control flow depend on what d_ws held before. All waits are bounded.""".split("\n")
    out = hdr + doc + [f"; @launch grid=(256,1,1) block=({384 if steal or bal else 320},1,1) lds={12288 if steal else 3072}",
                 '.amdgcn_target "amdgcn-amd-amdhsa--gfx950"', ".text", f".globl {KN}", ".p2align 8", f".type {KN},@function"]
    out += [l if l.endswith(":") and not l.startswith(";") else "    " + l for l in body]
    nv = max(48 + 4 * nslot + (4 if bal else 0), 224)
    out += ['.section .rodata,"a"', ".p2align 6", f".amdhsa_kernel {KN}", f"  .amdhsa_next_free_vgpr {nv}",
            "  .amdhsa_next_free_sgpr 102", f"  .amdhsa_accum_offset {nv}", "  .amdhsa_group_segment_fixed_size 0",
            "  .amdhsa_kernarg_size 96", "  .amdhsa_user_sgpr_count 2", "  .amdhsa_user_sgpr_kernarg_segment_ptr 1",
            "  .amdhsa_system_sgpr_workgroup_id_x 1", ".end_amdhsa_kernel"]
    return "\n".join(out) + "\n", stamp_list

if __name__ == "__main__":
    kw = eval("dict(" + (sys.argv[2] if len(sys.argv) > 2 else "") + ")")
    open(sys.argv[1], "w").write(gen(**kw)[0])
```
